```python
import torch

def _softmax(x, axis=-1):
    return torch.softmax(x, dim=axis)
def _gelu(x):
    return torch.nn.functional.gelu(x, approximate="tanh")
def _silu(x):
    return torch.nn.functional.silu(x)
def _sigmoid(x):
    return torch.sigmoid(x)
def _layernorm(x, axis=-1, eps=1e-5):
    m = x.mean(dim=axis, keepdim=True)
    v = x.var(dim=axis, keepdim=True, unbiased=False)
    return (x - m) / torch.sqrt(v + eps)
def _scatter_add(tgt, idx, src, axis=0):
    return tgt.clone().index_add_(axis, idx, src)
def _segment_sum(src, seg, n):
    out = torch.zeros((n,) + src.shape[1:], dtype=src.dtype)
    return out.index_add_(0, seg, src)
def _pad(x, pw):
    flat = tuple(v for pair in reversed(pw) for v in pair)
    return torch.nn.functional.pad(x, flat)

kernel_name = 'sequential_preLN__linear_kernel_hedgehog__dense_activation_mish__prompt'

def setup_inputs():

    _w = (lambda a: (lambda t: t.to(torch.bfloat16) if t.is_floating_point() else t)(torch.as_tensor(a)))
    def _A_setup():
        B, S, D, H = 1, 2048, 512, 32
        Dh = D // H
        return {
            "x": _w((lambda *s: torch.randn(*s, dtype=torch.bfloat16) * 0.05)(B, S, D)),
            "wqkv": _w((lambda *s: torch.randn(*s, dtype=torch.bfloat16) * 0.2)(D, 3 * D)),
            "w_phi": _w((lambda *s: torch.randn(*s, dtype=torch.bfloat16) * 0.2)(H, Dh, Dh) * (Dh ** -0.5)),
            "wo": _w((lambda *s: torch.randn(*s, dtype=torch.bfloat16) * 0.05)(D, D)),
        }
    _A_in = _A_setup()

    def _B_setup():
        B, S, D, F = 1, 2048, 512, 1792
        return {
            "x": _w((lambda *s: torch.randn(*s, dtype=torch.bfloat16) * 0.05)(B, S, D)),
            "w1": _w((lambda *s: torch.randn(*s, dtype=torch.bfloat16) * 1.6)(D, F) * (D ** -0.5)),
            "b1": _w((lambda *s: torch.randn(*s, dtype=torch.bfloat16) * 0.4)(F)),
            "w2": _w((lambda *s: torch.randn(*s, dtype=torch.bfloat16) * 0.1)(F, D) * (F ** -0.5)),
        }
    _B_in = _B_setup()

    return {
        "A_x": _A_in["x"],
        "A_wqkv": _A_in["wqkv"],
        "A_w_phi": _A_in["w_phi"],
        "A_wo": _A_in["wo"],
        "B_x": _B_in["x"],
        "B_w1": _B_in["w1"],
        "B_b1": _B_in["b1"],
        "B_w2": _B_in["w2"],
    }

def reference(A_x, A_wqkv, A_w_phi, A_wo, B_x, B_w1, B_b1, B_w2):
    def _A_ref(x, wqkv, w_phi, wo):
        B, S, D = x.shape
        H = 32; Dh = D // H
        qkv = (lambda x, *d: x.permute(*d))((x @ wqkv).reshape(B, S, 3, H, Dh), 2, 0, 3, 1, 4)
        q, k, v = qkv[0], qkv[1], qkv[2]
        pq = torch.einsum("bhsd,hdf->bhsf", q, w_phi)
        pk = torch.einsum("bhsd,hdf->bhsf", k, w_phi)
        phi_q = torch.concatenate([_softmax(pq, axis=-1), _softmax(-pq, axis=-1)], axis=-1)
        phi_k = torch.concatenate([_softmax(pk, axis=-1), _softmax(-pk, axis=-1)], axis=-1)
        kv = torch.einsum("bhsf,bhsd->bhfd", phi_k, v)
        z  = torch.einsum("bhsf->bhf", phi_k)
        num = torch.einsum("bhqf,bhfd->bhqd", phi_q, kv)
        den = torch.einsum("bhqf,bhf->bhq", phi_q, z)[..., None] + 1e-6
        o = num / den
        return (lambda x, *d: x.permute(*d))(o, 0, 2, 1, 3).reshape(B, S, D) @ wo

    def _B_ref(x, w1, b1, w2):
        h = torch.einsum("bsd,df->bsf", x, w1) + b1
        sp = torch.log1p(torch.exp(-torch.abs(h))) + torch.where(h > 0, h, torch.zeros_like(h))
        act = h * torch.tanh(sp)
        return torch.einsum("bsf,fd->bsd", act, w2)

    x = A_x
    h = x + _A_ref(_layernorm(x, axis=-1), A_wqkv, A_w_phi, A_wo)
    h2 = h + _B_ref(_layernorm(h, axis=-1), B_w1, B_b1, B_w2)
    return h2
```

```python
import re

REG_RE = re.compile(r'^(-|abs\(|\|)?([vas])(\d+|\[(\d+):(\d+)\])')


def regs_of(tok):
    tok = tok.strip()
    t = tok
    for pre in ('-abs(', 'abs(', '-|', '|', '-', 'neg(', 'sext('):
        if t.startswith(pre):
            t = t[len(pre):]
            break
    t = t.rstrip(')|')
    m = re.match(r'^([vas])\[(\d+):(\d+)\]$', t)
    if m:
        return {(m.group(1), i) for i in range(int(m.group(2)), int(m.group(3)) + 1)}
    m = re.match(r'^([vas])(\d+)$', t)
    if m:
        return {(m.group(1), int(m.group(2)))}
    if t == 'vcc':
        return {('s', 'vcc_lo'), ('s', 'vcc_hi')}
    if t in ('vcc_lo', 'vcc_hi'):
        return {('s', t)}
    if t == 'exec':
        return {('s', 'exec_lo'), ('s', 'exec_hi')}
    if t in ('exec_lo', 'exec_hi'):
        return {('s', t)}
    if t == 'm0':
        return {('s', 'm0')}
    return set()


def split_ops(s):
    out, depth, cur = [], 0, ''
    for ch in s:
        if ch in '[(':
            depth += 1
        elif ch in '])':
            depth -= 1
        if ch == ',' and depth == 0:
            out.append(cur.strip())
            cur = ''
        else:
            cur += ch
    if cur.strip():
        out.append(cur.strip())
    return out


TRANS = ('v_exp_f32', 'v_log_f32', 'v_rcp_f32', 'v_rsq_f32', 'v_sqrt_f32', 'v_sin_f32', 'v_cos_f32',
         'v_rcp_iflag_f32')
DPP_RE = re.compile(r'quad_perm|row_shr|row_shl|row_ror|row_bcast|row_mirror|row_half_mirror|wave_sh|wave_ro|row_newbcast')
EXEC = {('s', 'exec_lo'), ('s', 'exec_hi')}
VCC = {('s', 'vcc_lo'), ('s', 'vcc_hi')}
M0 = {('s', 'm0')}
SALU_NODST = ('s_cmp', 's_waitcnt', 's_branch', 's_cbranch', 's_barrier', 's_nop', 's_setprio', 's_sleep',
              's_endpgm', 's_bitcmp', 's_setreg', 's_sethalt', 's_setpc')


class Ins:
    def __init__(self, text):
        self.text = text
        self.label = None
        body = text.split(';')[0].strip()
        self.is_label = body.endswith(':')
        self.is_dir = body.startswith('.') and not self.is_label
        self.mn = ''
        self.reads, self.writes = set(), set()
        self.srcA = self.srcB = self.srcC = set()
        self.cls = 'other'
        self.target = None
        self.dpp = False
        self.lanesel = set()
        self.opsel_dst = False
        self.store_data = set()
        self.vm = self.lgkm = False
        self.smem = False
        self.load_dst = set()
        self.ldsdma = False
        if self.is_label:
            self.label = body[:-1]
            self.cls = 'label'
            return
        if self.is_dir or not body:
            self.cls = 'dir'
            return
        parts = body.split(None, 1)
        mn = self.mn = parts[0]
        rest = parts[1] if len(parts) > 1 else ''
        ops = split_ops(rest)
        mods = ''
        if ops:
            last = ops[-1].split(None, 1)
            if len(last) > 1 and not ops[-1].startswith('hwreg') and not mn.startswith('s_waitcnt'):
                ops[-1] = last[0]
                mods = last[1]
        self.ops, self.mods = ops, mods
        R = [regs_of(o) for o in ops]
        base = re.sub(r'_(e32|e64|dpp|sdwa)$', '', mn)
        self.base = base
        allr = set().union(*R) if R else set()
        if mn.startswith('v_mfma'):
            self.cls = 'mfma'
            self.writes = R[0]
            self.srcA, self.srcB, self.srcC = R[1], R[2], R[3]
            self.reads = R[1] | R[2] | R[3]
            if '32x32x16' in mn or '32x32x8' in mn:
                self.passes = 8
            elif '16x16x32' in mn or '16x16x16' in mn:
                self.passes = 4
            elif '4x4x4' in mn:
                self.passes = 2
            else:
                raise ValueError('unknown mfma ' + mn)
        elif mn.startswith('v_'):
            self.cls = 'valu'
            self.dpp = bool(DPP_RE.search(mods)) or mn.endswith('_dpp')
            if base == 'v_nop':
                pass
            elif base.startswith('v_cmpx'):
                self.writes = R[0] | EXEC
                self.reads = set().union(*R[1:])
            elif base.startswith('v_cmp'):
                self.writes = R[0]
                self.reads = set().union(*R[1:])
            elif base in ('v_add_co_u32', 'v_sub_co_u32', 'v_subrev_co_u32', 'v_addc_co_u32', 'v_subb_co_u32',
                          'v_div_scale_f32', 'v_mad_u64_u32'):
                self.writes = R[0] | R[1]
                self.reads = set().union(*R[2:])
            elif base.startswith('v_permlane') or base == 'v_swap_b32':
                self.writes = R[0] | R[1]
                self.reads = R[0] | R[1]
            elif base in ('v_readlane_b32',):
                self.writes = R[0]
                self.reads = R[1] | R[2]
                self.lanesel = R[2]
            elif base in ('v_writelane_b32',):
                self.writes = R[0]
                self.reads = R[0] | R[1] | R[2]
                self.lanesel = R[2]
            else:
                self.writes = R[0]
                self.reads = set().union(*R[1:]) if len(R) > 1 else set()
                if base.startswith(('v_fmac', 'v_dot2c', 'v_dot4c', 'v_pk_fmac')) or self.dpp or mn.endswith('_sdwa'):
                    self.reads |= R[0]
                if base == 'v_div_fmas_f32':
                    self.reads |= VCC
            if mn.endswith('_sdwa') and 'dst_sel:DWORD' not in mods and 'dst_sel' in mods:
                self.opsel_dst = True
            if 'op_sel:' in mods and not base.startswith('v_pk_'):
                self.opsel_dst = True
            self.trans = base in TRANS
            self.dot = base.startswith('v_dot')
        elif mn.startswith('ds_'):
            self.cls = 'ds'
            self.lgkm = True
            if mn.startswith(('ds_read', 'ds_bpermute', 'ds_permute', 'ds_swizzle')) or '_rtn' in mn:
                self.writes = R[0]
                self.load_dst = R[0]
                self.reads = set().union(*R[1:]) if len(R) > 1 else set()
            else:
                self.reads = allr
            if 'addtid' in mn:
                self.reads |= M0
        elif mn.startswith('buffer_') or mn.startswith('global_'):
            self.cls = 'vmem'
            self.vm = True
            toks = mods.split()
            if mn.startswith(('buffer_wbl2', 'buffer_inv')):
                pass
            elif mn.startswith('global_load_lds') or (mn.startswith('buffer_load') and 'lds' in toks):
                self.ldsdma = True
                self.reads = allr | M0
            elif '_load' in mn:
                self.writes = R[0]
                self.load_dst = R[0]
                self.reads = set().union(*R[1:])
            elif 'atomic' in mn:
                ret = 'sc0' in toks
                if mn.startswith('buffer_'):
                    self.reads = allr
                    if ret:
                        self.writes = R[0]
                        self.load_dst = R[0]
                else:
                    if ret:
                        self.writes = R[0]
                        self.load_dst = R[0]
                        self.reads = set().union(*R[1:])
                    else:
                        self.reads = allr
            else:
                self.reads = allr
                if mn.endswith(('x3', 'x4')):
                    self.store_data = R[0] if mn.startswith('buffer_') else R[1]
        elif mn.startswith(('s_load', 's_buffer_load', 's_memtime', 's_memrealtime', 's_atomic')):
            self.cls = 'smem'
            self.lgkm = True
            self.smem = True
            self.writes = R[0]
            self.load_dst = R[0]
            self.reads = set().union(*R[1:]) if len(R) > 1 else set()
        elif mn.startswith('s_'):
            self.cls = 'salu'
            if mn.startswith(SALU_NODST):
                self.reads = allr
                if mn.startswith(('s_branch', 's_cbranch')):
                    self.target = ops[0]
                    if 'vcc' in mn:
                        self.reads = VCC
                    if 'exec' in mn:
                        self.reads = EXEC
            else:
                self.writes = R[0] if R else set()
                self.reads = set().union(*R[1:]) if len(R) > 1 else set()
                if 'saveexec' in mn:
                    self.writes = self.writes | EXEC
                    self.reads = self.reads | EXEC
                if mn.startswith(('s_addk', 's_mulk', 's_cmov', 's_bitset')):
                    self.reads = self.reads | R[0]
        else:
            raise ValueError('unknown instruction: ' + text)

    def states(self):
        if self.cls in ('label', 'dir'):
            return 0
        if self.mn == 's_nop':
            return int(self.ops[0], 0) + 1
        return 1


def is_vec(r):
    return r[0] in 'va'


def sg(rs):
    return {r for r in rs if r[0] == 's'}


def vg(rs):
    return {r for r in rs if r[0] != 's'}


def required(p, c):
    n = 0
    pv = p.cls == 'valu'
    if pv:
        wv, ws = vg(p.writes), sg(p.writes)
        if c.cls == 'mfma' and wv & c.reads:
            n = max(n, 3 if p.dot else 2)
        if c.cls == 'valu':
            if p.dot and wv & (c.reads | c.writes):
                if not (c.base == p.base and wv == vg(c.writes) and c.base.startswith('v_dot2c')
                        and not (wv & set().union(*[regs_of(o) for o in c.ops[1:]]))):
                    if not (c.base == p.base and len(c.ops) == 4 and wv == regs_of(c.ops[3])
                            and not (wv & (regs_of(c.ops[1]) | regs_of(c.ops[2])))):
                        n = max(n, 3)
            if c.dpp and wv & c.reads:
                n = max(n, 2)
            if c.base.startswith('v_permlane') and wv & c.reads:
                n = max(n, 2)
            if c.base in ('v_readlane_b32', 'v_readfirstlane_b32') and wv & c.reads:
                n = max(n, 1)
            if p.trans and not c.trans and wv & c.reads:
                n = max(n, 1)
            if p.opsel_dst and wv & (c.reads | c.writes):
                n = max(n, 1)
            if ws & c.lanesel:
                n = max(n, 4)
            if (ws - EXEC) & c.reads:
                n = max(n, 4 if c.base == 'v_div_fmas_f32' else 2)
            if ws & EXEC:
                if c.dpp:
                    n = max(n, 5)
                if c.base in ('v_readlane_b32', 'v_readfirstlane_b32', 'v_writelane_b32') or c.base.startswith('v_permlane'):
                    n = max(n, 4)
                if EXEC & c.reads:
                    n = max(n, 2)
        if c.cls in ('vmem', 'ds') and p.dot and wv & c.reads:
            n = max(n, 3)
        if c.cls in ('vmem', 'ds') and p.trans and wv & c.reads:
            n = max(n, 1)
        if c.cls == 'mfma' and ws & EXEC:
            n = max(n, 4)
        if c.cls == 'vmem' and ws & c.reads:
            n = max(n, 5)
        if c.cls in ('salu', 'smem') and ws & c.reads:
            n = max(n, 1)
    if p.cls == 'salu' and p.writes & M0:
        if (c.cls == 'vmem' and c.ldsdma) or (c.cls == 'ds' and 'addtid' in c.mn) or c.mn.startswith(('s_movrel', 's_sendmsg')):
            n = max(n, 1)
    if p.cls == 'vmem' and p.store_data and p.store_data & c.writes:
        n = max(n, 2)
    if p.cls == 'mfma':
        k = {2: 0, 4: 1, 8: 2, 16: 3}[p.passes]
        D = p.writes
        if c.cls == 'mfma':
            if D & c.srcC:
                if D == c.srcC and p.passes == c.passes:
                    n = max(n, (2, 0, 0, 0)[k])
                else:
                    n = max(n, (4, 6, 10, 18)[k])
            if D & (c.srcA | c.srcB):
                n = max(n, (5, 8, 12, 20)[k])
            if D & c.writes and not (D & c.srcC):
                n = max(n, (5, 8, 12, 20)[k])
        elif c.cls in ('valu', 'vmem', 'ds'):
            if D & (c.reads | c.writes):
                n = max(n, (5, 8, 12, 20)[k])
            if c.cls == 'valu' and p.srcC & c.writes:
                n = max(n, (1, 3, 7, 15)[k])
            if c.cls in ('vmem', 'ds') and p.srcC & c.writes:
                n = max(n, (1, 3, 7, 15)[k])
    return n


class Asm:
    def __init__(self):
        self.lines = []
        self._uniq = 0

    def __call__(self, text):
        for ln in text.split('\n'):
            ln = ln.strip()
            if ln:
                self.lines.append(ln)

    def label(self, name):
        self.lines.append(name + ':')

    def uniq(self, base):
        self._uniq += 1
        return '%s_%d' % (base, self._uniq)


def build_cfg(ins):
    labels = {x.label: i for i, x in enumerate(ins) if x.is_label}
    succ = [[] for _ in ins]
    for i, x in enumerate(ins):
        if x.mn == 's_endpgm':
            continue
        if x.target is not None:
            succ[i].append(labels[x.target])
            if x.mn == 's_branch':
                continue
        if i + 1 < len(ins):
            succ[i].append(i + 1)
    pred = [[] for _ in ins]
    for i, ss in enumerate(succ):
        for s in ss:
            pred[s].append(i)
    return succ, pred


WAIT_RE = re.compile(r'(vmcnt|lgkmcnt)\((\d+)\)')


def wait_pass(ins):
    succ, pred = build_cfg(ins)
    n = len(ins)
    state_in = [None] * n
    need = [None] * n

    def transfer(i, st):
        vm, lg, smem_pending = dict(st[0]), dict(st[1]), st[2]
        x = ins[i]
        touched = (x.reads | x.writes)
        nv = min((vm[r] for r in touched if r in vm), default=None)
        nl = min((lg[r] for r in touched if r in lg), default=None)
        if x.load_dst and not x.smem:
            own = vm if x.vm else lg
            rd = min((own[r] for r in x.reads if r in own), default=None)
            if x.vm:
                nv = rd
            elif not smem_pending:
                nl = rd
        if nl is not None and smem_pending:
            nl = 0
        if nv is not None:
            nv = min(nv, 63)
            vm = {r: a for r, a in vm.items() if a < nv}
        if nl is not None:
            nl = min(nl, 15)
            lg = {r: a for r, a in lg.items() if a < nl}
            if nl == 0:
                smem_pending = False
        if x.mn == 's_waitcnt':
            for name, val in WAIT_RE.findall(x.text):
                val = int(val)
                if name == 'vmcnt':
                    vm = {r: a for r, a in vm.items() if a < val}
                elif val == 0 or not smem_pending:
                    lg = {r: a for r, a in lg.items() if a < val}
                    if val == 0:
                        smem_pending = False
        if x.vm:
            vm = {r: a + 1 for r, a in vm.items()}
            for r in x.load_dst:
                vm[r] = 0
        if x.lgkm:
            lg = {r: a + 1 for r, a in lg.items()}
            for r in x.load_dst:
                lg[r] = 0
            if x.smem:
                smem_pending = True
        return (vm, lg, smem_pending), (nv, nl)

    def merge(a, b):
        if a is None:
            return b
        out = []
        for da, db in ((a[0], b[0]), (a[1], b[1])):
            d = dict(da)
            for r, v in db.items():
                d[r] = min(d.get(r, v), v)
            out.append(d)
        return (out[0], out[1], a[2] or b[2])

    entries = [i for i in range(n) if not pred[i]]
    work = list(entries)
    for e in entries:
        state_in[e] = ({}, {}, False)
    while work:
        i = work.pop()
        out, nd = transfer(i, state_in[i])
        need[i] = nd
        for s in succ[i]:
            m = merge(state_in[s], out)
            if m != state_in[s]:
                state_in[s] = m
                work.append(s)
    res = []
    for i, x in enumerate(ins):
        nd = need[i]
        if nd and (nd[0] is not None or nd[1] is not None):
            t = 's_waitcnt'
            if nd[0] is not None:
                t += ' vmcnt(%d)' % nd[0]
            if nd[1] is not None:
                t += ' lgkmcnt(%d)' % nd[1]
            res.append(Ins(t))
        res.append(x)
    return res


def hazard_pass(ins):
    changed = True
    while changed:
        changed = False
        succ, pred = build_cfg(ins)
        inserts = {}
        for i, c in enumerate(ins):
            if c.cls in ('label', 'dir') or c.mn in ('s_nop', 's_waitcnt'):
                continue
            worst = 0
            stack = [(p, 0) for p in pred[i]]
            seen = {}
            while stack:
                j, dist = stack.pop()
                if dist >= 20 or seen.get(j, 99) <= dist:
                    continue
                seen[j] = dist
                p = ins[j]
                r = required(p, c)
                if r > dist:
                    worst = max(worst, r - dist)
                nd = dist + p.states() + (inserts.get(j, 0))
                for q in pred[j]:
                    stack.append((q, nd))
            if worst:
                inserts[i] = worst
        if inserts:
            changed = True
            out = []
            for i, x in enumerate(ins):
                k = inserts.get(i, 0)
                while k > 0:
                    m = min(k, 16)
                    out.append(Ins('s_nop %d' % (m - 1)))
                    k -= m
                out.append(x)
            ins = out
    return ins


def finalize(asm, waits=True):
    ins = [Ins(t) for t in asm.lines]
    if waits:
        ins = wait_pass(ins)
    ins = hazard_pass(ins)
    out = []
    for x in ins:
        out.append(x.text if x.is_label or x.is_dir else '    ' + x.text)
    return out


def max_regs(lines):
    mx = {'v': -1, 'a': -1, 's': -1}
    for t in lines:
        x = Ins(t.strip())
        for k, i in (x.reads | x.writes):
            if isinstance(i, int):
                mx[k] = max(mx[k], i)
    return mx


def kernel_text(name, body_lines, vgprs=None, accum=None, sgprs=None):
    mx = max_regs(body_lines)
    nv = mx['v'] + 1
    if accum is None:
        accum = max(4, (nv + 3) // 4 * 4)
    assert nv <= accum, (nv, accum)
    total = accum + mx['a'] + 1 if mx['a'] >= 0 else max(nv, 1)
    if vgprs is not None:
        assert vgprs >= total, (vgprs, total)
        total = vgprs
    ns = sgprs if sgprs is not None else max(mx['s'] + 1, 16)
    assert ns <= 102
    t = ['.text', '.globl %s' % name, '.p2align 8', '.type %s,@function' % name, name + ':']
    t += body_lines
    r = ['.section .rodata,"a"', '.p2align 6', '.amdhsa_kernel %s' % name,
         '  .amdhsa_next_free_vgpr %d' % total,
         '  .amdhsa_next_free_sgpr %d' % ns,
         '  .amdhsa_accum_offset %d' % accum,
         '  .amdhsa_group_segment_fixed_size 0',
         '  .amdhsa_kernarg_size 88',
         '  .amdhsa_user_sgpr_count 2',
         '  .amdhsa_user_sgpr_kernarg_segment_ptr 1',
         '  .amdhsa_system_sgpr_workgroup_id_x 1',
         '  .amdhsa_float_denorm_mode_32 3',
         '.end_amdhsa_kernel']
    return t, r


def module_text(header_lines, kernels):
    out = list(header_lines)
    out.append('.amdgcn_target "amdgcn-amd-amdhsa--gfx950"')
    for t, r in kernels:
        out += t
    for t, r in kernels:
        out += r
    return '\n'.join(out) + '\n'
```

```python
NAME = 'sequential_preLN__linear_kernel_hedgehog__dense_activation_mish__prompt'
KA = dict(x=0, wqkv=8, wphi=16, wo=24, bx=32, w1=40, b1=48, w2=56, out=64, dbg=72, ws=80)
SIZES = dict(x=2048 * 512 * 2, wqkv=512 * 1536 * 2, wphi=32 * 16 * 16 * 2, wo=512 * 512 * 2, w1=512 * 1792 * 2,
             b1=1792 * 2, w2=1792 * 512 * 2, out=2048 * 512 * 2, dbg=256, ws=268435456)


def srd(a, d, ptr, nbytes):
    a('s_mov_b32 s%d, s%d' % (d, ptr))
    a('s_and_b32 s%d, s%d, 0xffff' % (d + 1, ptr + 1))
    a('s_mov_b32 s%d, 0x%x' % (d + 2, nbytes))
    a('s_mov_b32 s%d, 0x20000' % (d + 3))
```

```python
import sys
sys.path.insert(0, 'gen')
from asmlib import *
from common import *

FL, KVP, ST, O_, H_, ACT, STAMP = 0x0, 0x40000, 0x100000, 0x200000, 0x400000, 0x600000, 0x8000000
KVREC = 2304
L_WKV, L_XS, L_WQ = 0, 65536, 131072
L_PHI, L_V, L_CSX, L_CSQ = 0, 16384, 24576, 28672
L_WO = 65536
L_W1 = 0
L_RED3, L_KVB, L_CS1, L_W2S = 131072, 147456, 151552, 147456
L_RED5 = 0
LOG2E = 0x3fb8aa3b
ONES = 0x3f803f80

S_X, S_WQKV, S_WPHI, S_WO, S_W1, S_B1, S_W2, S_OUT, S_DBG, S_WS = 4, 8, 12, 16, 20, 24, 28, 32, 36, 40
sI, sJ, sW, sU, sC, sCG, sXO, sT0, sT1, sT2, sT3, sONES, sSEL0, sSEL1, sLDSX, sLDSW, sCID, sT4 = range(44, 62)
sCNT = 62
SPIN = 400000
S_PTR = 64
S_STAMP = 86


def v(i, n=1):
    return 'v%d' % i if n == 1 else 'v[%d:%d]' % (i, i + n - 1)


def ac(i, n=1):
    return 'a%d' % i if n == 1 else 'a[%d:%d]' % (i, i + n - 1)


def sr(i):
    return 's[%d:%d]' % (i, i + 3)


class K(Asm):
    def __init__(self, cfg):
        super().__init__()
        self.cfg = cfg
        self.vmn = 0
        self.nstamp = 0

    def vm(self, text):
        self(text)
        self.vmn += 1
        return self.vmn

    def wait_vm(self, mark):
        self('s_waitcnt vmcnt(%d)' % min(63, self.vmn - mark))

    def stamp(self):
        if self.cfg.get('stamps'):
            n = self.nstamp
            self.nstamp += 1
            self('s_memrealtime s[%d:%d]' % (S_PTR + 2 * (n % 8), S_PTR + 2 * (n % 8) + 1))
            self('s_waitcnt lgkmcnt(0)')
            self('s_mov_b32 s%d, s%d' % (S_STAMP + n, S_PTR + 2 * (n % 8)))

    def mfma32(self, d, a_, b, c):
        self('v_mfma_f32_32x32x16_bf16 %s, %s, %s, %s' % (d, a_, b, c))

    def mfma16(self, d, a_, b, c):
        self('v_mfma_f32_16x16x32_bf16 %s, %s, %s, %s' % (d, a_, b, c))


def interleave(a, main, side, first=0, every=1):
    si = 0
    for n, g in enumerate(main):
        g()
        if n >= first and (n - first) % every == 0 and si < len(side):
            side[si]()
            si += 1
    while si < len(side):
        side[si]()
        si += 1


def split_hi_lo(a, src, hi_f, lo_f, tmp):
    a('v_cvt_pk_bf16_f32 %s, %s, %s' % (v(tmp), v(src), v(src)))
    a('v_and_b32 %s, 0xffff0000, %s' % (v(hi_f), v(tmp)))
    a('v_sub_f32 %s, %s, %s' % (v(lo_f), v(src), v(hi_f)))


def half_sum2(a, x, y, t):
    a('v_permlane32_swap_b32 %s, %s' % (v(x), v(y)))
    a('v_add_f32 %s, %s, %s' % (v(x), v(x), v(y)))
    a('v_mov_b32 %s, %s' % (v(y), v(x)))
    a('v_permlane32_swap_b32 %s, %s' % (v(x), v(y)))


def ln_stats(a, s1, s2, mean, rstd, t):
    a('v_mul_f32 %s, 0x3b000000, %s' % (v(mean), v(s1)))
    a('v_mul_f32 %s, %s, %s' % (v(t), v(mean), v(mean)))
    a('v_mov_b32 %s, 0x3b000000' % v(rstd))
    a('v_fma_f32 %s, %s, %s, -%s' % (v(s2), v(s2), v(rstd), v(t)))
    a('v_max_f32 %s, 0, %s' % (v(s2), v(s2)))
    a('v_add_f32 %s, 0x3727c5ac, %s' % (v(s2), v(s2)))
    a('v_rsq_f32 %s, %s' % (v(rstd), v(s2)))


def softmax_pair(a, P, E, OUT, c, t):
    mx, mn, sp, sn = t, t + 1, t + 2, t + 3
    a('v_max3_f32 %s, %s, %s, %s' % (v(mx), v(P), v(P + 1), v(P + 2)))
    a('v_min3_f32 %s, %s, %s, %s' % (v(mn), v(P), v(P + 1), v(P + 2)))
    for i in range(3, 15, 2):
        a('v_max3_f32 %s, %s, %s, %s' % (v(mx), v(mx), v(P + i), v(P + i + 1)))
        a('v_min3_f32 %s, %s, %s, %s' % (v(mn), v(mn), v(P + i), v(P + i + 1)))
    a('v_max_f32 %s, %s, %s' % (v(mx), v(mx), v(P + 15)))
    a('v_min_f32 %s, %s, %s' % (v(mn), v(mn), v(P + 15)))
    a('v_mul_f32 %s, %s, %s' % (v(mx), v(mx), v(c)))
    a('v_mul_f32 %s, %s, %s' % (v(mn), v(mn), v(c)))
    for i in range(16):
        a('v_fma_f32 %s, %s, %s, -%s' % (v(E + i), v(P + i), v(c), v(mx)))
        a('v_fma_f32 %s, -%s, %s, %s' % (v(E + 16 + i), v(P + i), v(c), v(mn)))
    for i in range(32):
        a('v_exp_f32 %s, %s' % (v(E + i), v(E + i)))
    a('v_pk_add_f32 %s, %s, %s' % (v(sp, 2), v(E, 2), v(E + 2, 2)))
    a('v_pk_add_f32 %s, %s, %s' % (v(t + 4, 2), v(E + 16, 2), v(E + 18, 2)))
    for i in range(4, 16, 2):
        a('v_pk_add_f32 %s, %s, %s' % (v(sp, 2), v(sp, 2), v(E + i, 2)))
        a('v_pk_add_f32 %s, %s, %s' % (v(t + 4, 2), v(t + 4, 2), v(E + 16 + i, 2)))
    a('v_add_f32 %s, %s, %s' % (v(sp), v(sp), v(sp + 1)))
    a('v_add_f32 %s, %s, %s' % (v(t + 4), v(t + 4), v(t + 5)))
    a('v_rcp_f32 %s, %s' % (v(sp), v(sp)))
    a('v_rcp_f32 %s, %s' % (v(t + 4), v(t + 4)))
    for i in range(0, 16, 2):
        a('v_pk_mul_f32 %s, %s, %s op_sel_hi:[1,0]' % (v(E + i, 2), v(E + i, 2), v(sp, 2)))
        a('v_pk_mul_f32 %s, %s, %s op_sel_hi:[1,0]' % (v(E + 16 + i, 2), v(E + 16 + i, 2), v(t + 4, 2)))
    for i in range(16):
        a('v_cvt_pk_bf16_f32 %s, %s, %s' % (v(OUT + i), v(E + 2 * i), v(E + 2 * i + 1)))


def push_flags(a, sync, vL, vt, stride_lane, base_expr):
    lab = a.uniq('L_nopush')
    a('s_cmp_lg_u32 s%d, 0' % sW)
    a('s_cbranch_scc1 %s' % lab)
    base_expr()
    a('v_mul_u32_u24 %s, %d, %s' % (v(vt), stride_lane, v(vL)))
    a('v_mov_b32 %s, 1' % v(vt + 1))
    a('s_mov_b64 exec, 0xffff')
    a('buffer_store_dword %s, %s, %s, s%d offen sc1' % (v(vt + 1), v(vt), sr(S_WS), sT0))
    a('s_mov_b64 exec, -1')
    a.label(lab)


def poll(a, srd_, off_expr, n, vL, vt):
    lab = a.uniq('L_nopoll')
    lp = a.uniq('L_poll')
    a('s_cmp_lg_u32 s%d, 0' % sW)
    a('s_cbranch_scc1 %s' % lab)
    off_expr()
    a('v_lshlrev_b32 %s, 2, %s' % (v(vt), v(vL)))
    a('s_mov_b64 exec, 0x%x' % ((1 << n) - 1))
    a.label(lp)
    a('buffer_load_dword %s, %s, %s, s%d offen sc1' % (v(vt + 1), v(vt), sr(srd_), sT0))
    a('s_add_u32 s%d, s%d, 1' % (sCNT, sCNT))
    a('s_cmp_gt_u32 s%d, %d' % (sCNT, SPIN))
    a('s_cbranch_scc1 %s_x' % lp)
    a('s_waitcnt vmcnt(0)')
    a('v_cmp_ne_u32 vcc, 1, %s' % v(vt + 1))
    a('s_cbranch_vccnz %s' % lp)
    a.label(lp + '_x')
    a('s_mov_b64 exec, -1')
    a.label(lab)


def gen(cfg):
    a = K(cfg)
    SC = 'sc1'
    D = cfg.get('depth', 2)
    vL, vHH, vTRN, vTRM, vFR = 1, 2, 3, 4, 5
    vXD, vWD, vWQD, vXR, vWR = 6, 10, 11, 12, 16
    vPA1, vPA2 = 20, 24
    vT = 28
    aK, aV, aQ = 32, 48, 64
    vWB = 80
    vS = 112
    X = 128
    s1a, s1b, s2a, s2b, csk, csv, csq, mean, rstd, cexp = range(vS, vS + 10)
    vBX = vS + 12

    a('s_cmp_ge_u32 s2, 256')
    a('s_cbranch_scc1 L_end')
    if cfg.get('stamps'):
        a('s_memrealtime s[100:101]')
    a('s_load_dwordx16 s[%d:%d], s[0:1], 0' % (S_PTR, S_PTR + 15))
    a('s_load_dwordx4 s[%d:%d], s[0:1], 64' % (S_PTR + 16, S_PTR + 19))
    a('s_load_dwordx2 s[%d:%d], s[0:1], 80' % (S_PTR + 20, S_PTR + 21))
    a('s_getpc_b64 s[%d:%d]' % (sT0 + 1, sT0 + 2))
    a.label('L_pc')
    a('s_lshr_b32 s%d, s2, 3' % sT0)
    a('v_lshrrev_b32 %s, 6, v0' % v(vT))
    a('v_and_b32 %s, 63, v0' % v(vL))
    a('v_readfirstlane_b32 s%d, %s' % (sW, v(vT)))
    ncl = cfg.get('code_lines', 10)
    if ncl:
        a('s_mul_i32 s%d, s%d, %d' % (sT3, sT0, ncl * 128))
        a('v_lshl_add_u32 %s, v0, 7, s%d' % (v(vT + 1), sT3))
        a('v_min_u32 %s, L_end-L_pc, %s' % (v(vT + 1), v(vT + 1)))
        a('v_cmp_gt_u32 vcc, %d, v0' % ncl)
        a('s_and_saveexec_b64 s[%d:%d], vcc' % (S_WS, S_WS + 1))
        a('s_cbranch_execz L_nocp')
        a('global_load_dword %s, %s, s[%d:%d]' % (v(255), v(vT + 1), sT0 + 1, sT0 + 2))
        a.label('L_nocp')
        a('s_mov_b64 exec, -1')
    a('s_and_b32 s%d, s2, 7' % sT1)
    a('s_and_b32 s%d, s%d, 15' % (sJ, sT0))
    a('s_lshr_b32 s%d, s%d, 4' % (sT2, sT0))
    a('s_lshl_b32 s%d, s%d, 1' % (sI, sT1))
    a('s_add_u32 s%d, s%d, s%d' % (sI, sI, sT2))
    a('s_lshl_b32 s%d, s%d, 4' % (sCID, sI))
    a('s_add_u32 s%d, s%d, s%d' % (sCID, sCID, sJ))
    a('s_lshr_b32 s%d, s%d, 3' % (sU, sCID))
    a('s_and_b32 s%d, s%d, 7' % (sC, sJ))
    a('s_lshl_b32 s%d, s%d, 1' % (sT2, sT2))
    a('s_and_b32 s%d, s%d, 1' % (sT3, sJ))
    a('s_add_u32 s%d, s%d, s%d' % (sT2, sT2, sT3))
    a('s_lshl_b32 s%d, s%d, 1' % (sT2, sT2))
    a('s_lshr_b32 s%d, s%d, 1' % (sT3, sJ))
    a('s_add_u32 s%d, s%d, s%d' % (sT2, sT2, sT3))
    a('s_and_b32 s%d, s%d, 1' % (sT3, sT1))
    a('s_add_u32 s%d, s%d, s%d' % (sT2, sT2, sT3))
    if cfg.get('rot', 1):
        a('s_and_b32 s%d, s%d, 7' % (sCG, sT2))
    else:
        a('s_mov_b32 s%d, 0' % sCG)
    a('s_lshl_b32 s%d, s%d, 17' % (sXO, sI))
    a('s_lshl_b32 s%d, s%d, 15' % (sT2, sW))
    a('s_add_u32 s%d, s%d, s%d' % (sXO, sXO, sT2))
    a('s_lshl_b32 s%d, s%d, 14' % (sLDSX, sW))
    a('s_add_u32 s%d, s%d, %d' % (sLDSX, sLDSX, L_XS))
    a('s_lshl_b32 s%d, s%d, 11' % (sLDSW, sW))
    a('v_lshrrev_b32 %s, 3, %s' % (v(vT), v(vL)))
    a('v_lshlrev_b32 %s, 10, %s' % (v(vT), v(vT)))
    a('v_lshrrev_b32 %s, 4, %s' % (v(vT + 1), v(vL)))
    a('v_and_b32 %s, 7, %s' % (v(vT + 3), v(vL)))
    a('v_xor_b32 %s, %s, %s' % (v(vT + 1), v(vT + 1), v(vT + 3)))
    a('v_lshl_add_u32 %s, %s, 4, %s' % (v(vXD), v(vT + 1), v(vT)))
    a('v_xor_b32 %s, 64, %s' % (v(vXD + 1), v(vXD)))
    a('v_add_u32 %s, %d, %s' % (v(vXD + 2), 2 * 7168, v(vXD)))
    a('v_add_u32 %s, %d, %s' % (v(vXD + 3), 3 * 7168, v(vXD + 1)))
    a('v_add_u32 %s, %d, %s' % (v(vXD + 1), 7168, v(vXD + 1)))
    a('v_lshrrev_b32 %s, 2, v0' % v(vT))
    a('v_mul_u32_u24 %s, 3072, %s' % (v(vT), v(vT)))
    a('v_and_b32 %s, 3, %s' % (v(vT + 1), v(vL)))
    a('v_lshl_add_u32 %s, %s, 4, %s' % (v(vT), v(vT + 1), v(vT)))
    a('s_lshl_b32 s%d, s%d, 6' % (sT2, sJ))
    a('v_add_u32 %s, s%d, %s' % (v(vWQD), sT2, v(vT)))
    a('v_add_u32 %s, 1024, %s' % (v(vWD), v(vWQD)))
    a('s_waitcnt lgkmcnt(0)')
    if cfg.get('stamps'):
        a('s_mov_b32 s%d, s100' % S_STAMP)
        a.nstamp = 1
    srd(a, S_X, S_PTR + 0, SIZES['x'])
    srd(a, S_WQKV, S_PTR + 2, SIZES['wqkv'])
    srd(a, S_WS, S_PTR + 20, SIZES['ws'])

    a('s_cmp_lg_u32 s%d, 0' % sJ)
    a('s_cbranch_scc1 L_noclear')
    a('v_lshrrev_b32 %s, 4, v0' % v(vT))
    a('v_lshlrev_b32 %s, 7, %s' % (v(vT), v(vT)))
    a('v_bfe_u32 %s, v0, 2, 2' % v(vT + 1))
    a('v_lshl_add_u32 %s, %s, 15, %s' % (v(vT), v(vT + 1), v(vT)))
    a('v_and_b32 %s, 3, v0' % v(vT + 1))
    a('v_lshl_add_u32 %s, %s, 4, %s' % (v(vT), v(vT + 1), v(vT)))
    for i in range(4):
        a('v_mov_b32 %s, 0' % v(vWB + i))
    a('s_lshl_b32 s%d, s%d, 11' % (sT2, sI))
    a('buffer_store_dwordx4 %s, %s, %s, s%d offen sc1' % (v(vWB, 4), v(vT), sr(S_WS), sT2))
    a.label('L_noclear')

    def dma_slot(s):
        def head():
            a('s_lshl_b32 s%d, s%d, 7' % (sT0, sCG))
            a('s_add_u32 s%d, s%d, s%d' % (sT0, sT0, sXO))
            a('s_mul_i32 s%d, s%d, %d' % (sT1, sCG, 64 * 3072))
            a('s_add_u32 m0, s%d, %d' % (sLDSW, s * 8192))
            a('s_add_u32 s%d, s%d, 1' % (sCG, sCG))
            a.vm('buffer_load_dwordx4 %s, %s, s%d offen lds' % (v(vWD), sr(S_WQKV), sT1))
        def g1():
            a('s_and_b32 s%d, s%d, 7' % (sCG, sCG))
            a.vm('buffer_load_dwordx4 %s, %s, s%d offen offset:1024 lds' % (v(vWD), sr(S_WQKV), sT1))
        def gx(q):
            def f():
                if q == 0:
                    a('s_add_u32 m0, s%d, %d' % (sLDSX, (s & 3) * 4096))
                a.vm('buffer_load_dwordx4 %s, %s, s%d offen offset:%d lds' % (v(vXD + q), sr(S_X), sT0, q * 1024))
            return f
        return [head, g1] + [gx(q) for q in range(4)]

    def dma_wq(s):
        def f():
            a('s_mul_i32 s%d, s%d, %d' % (sT1, sCG, 64 * 3072))
            a('s_add_u32 m0, s%d, %d' % (sLDSW, L_WQ + (s >> 1) * 8192 + (s & 1) * 1024))
            a('s_add_u32 s%d, s%d, 1' % (sCG, sCG))
            a('s_and_b32 s%d, s%d, 7' % (sCG, sCG))
            a.vm('buffer_load_dwordx4 %s, %s, s%d offen lds' % (v(vWQD), sr(S_WQKV), sT1))
        return f

    marks = {}
    for s in range(D):
        for g in dma_slot(s):
            g()
        marks[s] = a.vmn

    srd(a, S_WPHI, S_PTR + 4, SIZES['wphi'])
    srd(a, S_WO, S_PTR + 6, SIZES['wo'])
    srd(a, S_W1, S_PTR + 10, SIZES['w1'])
    srd(a, S_B1, S_PTR + 12, SIZES['b1'])
    srd(a, S_W2, S_PTR + 14, SIZES['w2'])
    srd(a, S_OUT, S_PTR + 16, SIZES['out'])
    srd(a, S_DBG, S_PTR + 18, SIZES['dbg'])
    a('s_mov_b32 s%d, 0x%x' % (sONES, ONES))
    a('s_mov_b32 s%d, 0x3f80' % sSEL0)
    a('s_mov_b32 s%d, 0x3f800000' % sSEL1)
    a('s_mov_b32 s%d, 0' % sCNT)
    a('v_lshrrev_b32 %s, 5, %s' % (v(vHH), v(vL)))
    a('v_lshlrev_b32 %s, 4, %s' % (v(vFR), v(vL)))
    a('v_bfe_u32 %s, %s, 2, 1' % (v(vT), v(vL)))
    a('v_bfe_u32 %s, %s, 3, 2' % (v(vT + 1), v(vL)))
    a('v_and_b32 %s, 3, %s' % (v(vT + 2), v(vL)))
    a('v_lshl_add_u32 %s, %s, 2, %s' % (v(vT + 1), v(vT + 1), v(vT + 2)))
    a('v_lshlrev_b32 %s, 1, %s' % (v(vT + 1), v(vT + 1)))
    a('v_lshl_add_u32 %s, %s, 9, %s' % (v(vT + 1), v(vT), v(vT + 1)))
    a('v_lshl_add_u32 %s, %s, 7, %s' % (v(vT + 1), v(vHH), v(vT + 1)))
    a('s_lshl_b32 s%d, s%d, 10' % (sT2, sJ))
    for e in range(8):
        d = 8 * (e >> 2) + (e & 3)
        op = 'buffer_load_short_d16_hi' if e & 1 else 'buffer_load_ushort'
        a.vm('%s %s, %s, %s, s%d offen offset:%d' % (op, v(aQ + e), v(vT + 1), sr(S_WPHI), sT2, d * 32))
    a('v_cmp_eq_u32 s[%d:%d], 0, %s' % (S_PTR + 16, S_PTR + 17, v(vT)))
    a('v_and_b32 %s, 31, %s' % (v(vT), v(vL)))
    a('v_bfe_u32 %s, %s, 1, 3' % (v(vT + 1), v(vL)))
    a('s_lshl_b32 s%d, s%d, 1' % (sT2, sW))
    a('v_add_u32 %s, s%d, %s' % (v(vT + 2), sT2, v(vHH)))
    a('v_xor_b32 %s, %s, %s' % (v(vT + 1), v(vT + 1), v(vT + 2)))
    a('v_lshlrev_b32 %s, 4, %s' % (v(vT + 1), v(vT + 1)))
    a('v_lshl_add_u32 %s, %s, 7, %s' % (v(vT), v(vT), v(vT + 1)))
    a('v_add_u32 %s, s%d, %s' % (v(vXR), sLDSX, v(vT)))
    for p in range(1, 4):
        a('v_xor_b32 %s, %d, %s' % (v(vXR + p), 32 * p, v(vXR)))
    a('v_bfe_u32 %s, %s, 2, 2' % (v(vT), v(vL)))
    a('v_bfe_u32 %s, %s, 4, 1' % (v(vT + 1), v(vL)))
    a('v_and_b32 %s, 3, %s' % (v(vT + 2), v(vL)))
    a('v_lshlrev_b32 %s, 6, %s' % (v(vT), v(vT)))
    a('v_lshl_add_u32 %s, %s, 5, %s' % (v(vT + 3), v(vT + 1), v(vT)))
    a('v_lshl_add_u32 %s, %s, 3, %s' % (v(vT + 3), v(vT + 2), v(vT + 3)))
    a('v_lshl_add_u32 %s, %s, 9, %s' % (v(vT + 3), v(vHH), v(vT + 3)))
    a('v_add_u32 %s, s%d, %s' % (v(vWR), sLDSW, v(vT + 3)))
    for p in range(1, 4):
        a('v_xor_b32 %s, %d, %s' % (v(vWR + p), 2048 * p, v(vWR)))
    a('v_and_b32 %s, 1, %s' % (v(vT + 3), v(vT + 2)))
    a('v_lshl_add_u32 %s, %s, 5, %s' % (v(vT), v(vT + 3), v(vT)))
    a('v_lshl_add_u32 %s, %s, 4, %s' % (v(vT), v(vT + 1), v(vT)))
    a('v_lshrrev_b32 %s, 1, %s' % (v(vT + 2), v(vT + 2)))
    a('v_lshl_add_u32 %s, %s, 3, %s' % (v(vTRN), v(vT + 2), v(vT)))
    for r_ in (s1a, s1b, s2a, s2b, csk, csv, csq):
        a('v_mov_b32 %s, 0' % v(r_))
    def phi_merge():
        for e in range(4):
            a('v_or_b32 %s, %s, %s' % (v(aQ + 8 + e), v(aQ + 2 * e), v(aQ + 2 * e + 1)))
        for e in range(4):
            a('v_cndmask_b32 %s, 0, %s, s[%d:%d]' % (v(vPA1 + e), v(aQ + 8 + e), S_PTR + 16, S_PTR + 17))
            a('v_cndmask_b32 %s, %s, 0, s[%d:%d]' % (v(vPA2 + e), v(aQ + 8 + e), S_PTR + 16, S_PTR + 17))
    a.stamp()

    def reads(s):
        for p in range(4):
            a('ds_read_b128 %s, %s offset:%d' % (v(X + (4 * s + p) * 4, 4), v(vXR + p), (s & 3) * 4096))
            for m in range(2):
                for t in range(2):
                    a('ds_read_b64_tr_b16 %s, %s offset:%d' % (v(vWB + p * 8 + m * 4 + t * 2, 2), v(vWR + p),
                                                              s * 8192 + m * 1024 + t * 256))

    def mf(s, p, m):
        acc = v(aK if m == 0 else aV, 16)
        return lambda: a.mfma32(acc, v(vWB + p * 8 + m * 4, 4), v(X + (4 * s + p) * 4, 4),
                                '0' if (s == 0 and p == 0) else acc)

    def cs_dots():
        for r_ in range(4):
            a('v_dot2_f32_bf16 %s, %s, s%d, %s' % (v(csk), v(vWB + r_), sONES, v(csk)))
            a('v_dot2_f32_bf16 %s, %s, s%d, %s' % (v(csv), v(vWB + 4 + r_), sONES, v(csv)))

    def stat_dots(s):
        for r_ in range(16):
            x = v(X + 16 * s + r_)
            p1, p2 = (s1a, s2a) if r_ & 1 else (s1b, s2b)
            a('v_dot2_f32_bf16 %s, %s, s%d, %s' % (v(p1), x, sONES, v(p1)))
            a('v_dot2_f32_bf16 %s, %s, %s, %s' % (v(p2), x, x, v(p2)))

    wq_list = [dma_wq(s) for s in range(8)]
    for s in range(8):
        a.wait_vm(marks[s])
        a('s_barrier')
        if s == 0:
            a('s_or_b32 s%d, s%d, s%d' % (sT2, sJ, sW))
            a('s_cmp_lg_u32 s%d, 0' % sT2)
            a('s_cbranch_scc1 L_nosig')
            a('s_lshl_b32 s%d, s%d, 2' % (sT2, sI))
            a('v_mov_b32 %s, 0' % v(vT))
            a('v_mov_b32 %s, 1' % v(vT + 1))
            a('s_mov_b64 exec, 1')
            a('buffer_store_dword %s, %s, %s, s%d offen sc1' % (v(vT + 1), v(vT), sr(S_DBG), sT2))
            a('s_mov_b64 exec, -1')
            a.label('L_nosig')
        reads(s)
        if s + D < 8:
            side = dma_slot(s + D)
        else:
            k0 = (s + D - 8) * 8 // D
            k1 = (s + D - 7) * 8 // D
            side = wq_list[k0:k1]
        main = [mf(s, p, m) for p in range(4) for m in range(2)]
        if s < 7:
            interleave(a, main, side)
            if s + D < 8:
                marks[s + D] = a.vmn
            cs_dots()
            stat_dots(s)
            if s == D:
                phi_merge()
        else:
            cs_dots()
            a('v_lshlrev_b32 %s, 3, v0' % v(vT))
            a('ds_write_b64 %s, %s offset:%d' % (v(vT), v(csk, 2), L_CSX))
            stat_dots(s)
            a('s_waitcnt lgkmcnt(0)')
            a('s_barrier')
            a('v_lshlrev_b32 %s, 3, %s' % (v(vT), v(vL)))
            for w in range(4):
                a('ds_read_b64 %s, %s offset:%d' % (v(aQ + 2 * w, 2), v(vT), L_CSX + 512 * w))
            interleave(a, main, side)
            mark_wq = a.vmn
    a.stamp()
    a('v_add_f32 %s, %s, %s' % (v(s1a), v(s1a), v(s1b)))
    a('v_add_f32 %s, %s, %s' % (v(s2a), v(s2a), v(s2b)))
    half_sum2(a, s1a, s2a, vT)
    ln_stats(a, s1a, s2a, mean, rstd, vT)
    a('v_sub_f32 %s, 0, %s' % (v(s1a), v(mean)))
    split_hi_lo(a, s1a, s1b, s2b, vT)
    a('v_cvt_pk_bf16_f32 %s, %s, %s' % (v(vBX), v(s1b), v(s2b)))
    a('v_cvt_pk_bf16_f32 %s, %s, 0' % (v(vBX + 1), v(s1b)))
    a('v_mov_b32 %s, 0' % v(vBX + 2))
    a('v_mov_b32 %s, 0' % v(vBX + 3))
    a('v_mul_f32 %s, 0x%x, %s' % (v(cexp), LOG2E, v(rstd)))

    def a_ext(dst, cs):
        split_hi_lo(a, cs, vT + 1, vT + 2, dst)
        a('v_cvt_pk_bf16_f32 %s, %s, 0' % (v(dst + 1), v(vT + 2)))
        a('v_mov_b32 %s, 0' % v(dst + 2))
        a('v_mov_b32 %s, 0' % v(dst + 3))

    a('v_pk_add_f32 %s, %s, %s' % (v(aQ, 2), v(aQ, 2), v(aQ + 2, 2)))
    a('v_pk_add_f32 %s, %s, %s' % (v(aQ + 4, 2), v(aQ + 4, 2), v(aQ + 6, 2)))
    a('v_pk_add_f32 %s, %s, %s' % (v(csk, 2), v(aQ, 2), v(aQ + 4, 2)))
    a_ext(aQ, csk)
    a_ext(aQ + 4, csv)
    a.mfma32(v(aK, 16), v(aQ, 4), v(vBX, 4), v(aK, 16))
    a.mfma32(v(aV, 16), v(aQ + 4, 4), v(vBX, 4), v(aV, 16))

    vBD = vXD
    def blk_offsets(rowstride, step):
        a('v_bfe_u32 %s, %s, 2, 3' % (v(vT), v(vL)))
        a('v_mul_u32_u24 %s, %d, %s' % (v(vT), rowstride, v(vT)))
        a('v_and_b32 %s, 3, %s' % (v(vT + 1), v(vL)))
        a('v_lshl_add_u32 %s, %s, 4, %s' % (v(vT), v(vT + 1), v(vT)))
        a('v_lshl_add_u32 %s, %s, 6, %s' % (v(vBD), v(vHH), v(vT)))
        for q in range(1, 4):
            a('v_add_u32 %s, %d, %s' % (v(vBD + q), step(q) - 1024 * q, v(vBD)))

    blk_offsets(1024, lambda q: q * 8192)
    def dma_wo(g):
        def f():
            if g % 4 == 0:
                a('s_lshl_b32 s%d, s%d, 17' % (sT0, sW))
                a('s_lshl_b32 s%d, s%d, 7' % (sT1, sC))
                a('s_add_u32 s%d, s%d, s%d' % (sT0, sT0, sT1))
                a('s_add_u32 s%d, s%d, %d' % (sT0, sT0, (g // 4) * 32768))
                a('s_add_u32 m0, s%d, %d' % (sLDSX, (g // 4) * 4096))
            a.vm('buffer_load_dwordx4 %s, %s, s%d offen offset:%d lds' % (v(vBD + g % 4), sr(S_WO), sT0, (g % 4) * 1024))
        return f

    for i in range(8):
        a('v_cvt_pk_bf16_f32 %s, %s, %s' % (v(vWB + i), v(aK + 2 * i), v(aK + 2 * i + 1)))
    a.mfma32(v(aK, 16), v(vPA1, 4), v(vWB, 4), '0')
    a.mfma32(v(aK, 16), v(vPA2, 4), v(vWB + 4, 4), v(aK, 16))
    for i in range(0, 16, 2):
        a('v_pk_mul_f32 %s, %s, %s op_sel_hi:[1,0]' % (v(aV + i, 2), v(aV + i, 2), v(rstd, 2)))
    for i in range(8):
        a('v_cvt_pk_bf16_f32 %s, %s, %s' % (v(aQ + i), v(aV + 2 * i), v(aV + 2 * i + 1)))
    vIM = vXR
    a('v_bfe_u32 %s, %s, 1, 2' % (v(vT), v(vL)))
    a('v_bfe_u32 %s, %s, 3, 1' % (v(vT + 1), v(vL)))
    a('v_lshlrev_b32 %s, 1, %s' % (v(vT + 1), v(vT + 1)))
    a('v_xor_b32 %s, %s, %s' % (v(vT), v(vT), v(vT + 1)))
    a('v_and_b32 %s, 31, %s' % (v(vT + 1), v(vL)))
    a('v_lshlrev_b32 %s, 6, %s' % (v(vT + 1), v(vT + 1)))
    a('v_lshl_add_u32 %s, %s, 4, %s' % (v(vT), v(vT), v(vT + 1)))
    a('v_add_u32 %s, s%d, %s' % (v(vT), sLDSW, v(vT)))
    a('v_lshl_add_u32 %s, %s, 3, %s' % (v(vT + 1), v(vHH), v(vT)))
    for g in range(4):
        a('v_xor_b32 %s, %d, %s' % (v(vT + 2), 16 * g, v(vT + 1)))
        a('ds_write_b64 %s, %s offset:%d' % (v(vT + 2), v(aQ + 2 * g, 2), L_V))
    a('v_lshl_add_u32 %s, %s, 13, %s' % (v(vIM), v(vHH), v(vT)))
    for q in range(1, 4):
        a('v_xor_b32 %s, %d, %s' % (v(vIM + q), 16 * q, v(vIM)))
    softmax_pair(a, aK, vWB, aV, cexp, aQ + 8)
    for q in range(4):
        a('ds_write_b128 %s, %s offset:%d' % (v(vIM + q), v(aV + 4 * q, 4), L_PHI))
    a('v_bfe_u32 %s, %s, 2, 2' % (v(vT), v(vL)))
    a('v_lshrrev_b32 %s, 4, %s' % (v(vT + 1), v(vL)))
    a('v_lshlrev_b32 %s, 9, %s' % (v(vT + 2), v(vT + 1)))
    a('v_lshl_add_u32 %s, %s, 6, %s' % (v(vT + 2), v(vT), v(vT + 2)))
    a('v_lshrrev_b32 %s, 1, %s' % (v(vT), v(vT)))
    a('v_and_b32 %s, 1, %s' % (v(vT + 1), v(vT + 1)))
    a('v_lshl_add_u32 %s, %s, 1, %s' % (v(vT), v(vT + 1), v(vT)))
    a('v_bfe_u32 %s, %s, 1, 1' % (v(vT + 1), v(vL)))
    a('v_xor_b32 %s, %s, %s' % (v(vT), v(vT), v(vT + 1)))
    a('v_lshl_add_u32 %s, %s, 4, %s' % (v(vT + 2), v(vT), v(vT + 2)))
    a('v_and_b32 %s, 1, %s' % (v(vT + 1), v(vL)))
    a('v_lshl_add_u32 %s, %s, 3, %s' % (v(vT + 2), v(vT + 1), v(vT + 2)))
    a('s_and_b32 s%d, s%d, 1' % (sT0, sW))
    a('s_lshr_b32 s%d, s%d, 1' % (sT1, sW))
    a('s_lshl_b32 s%d, s%d, 5' % (sT1, sT1))
    a('s_lshl_b32 s%d, s%d, 13' % (sT2, sT0))
    a('s_or_b32 s%d, s%d, s%d' % (sT1, sT1, sT2))
    a('s_lshl_b32 s%d, s%d, 5' % (sT0, sT0))
    a('v_xor_b32 %s, s%d, %s' % (v(vIM), sT1, v(vT + 2)))
    a('v_xor_b32 %s, 32, %s' % (v(vIM + 1), v(vIM)))
    a('v_xor_b32 %s, s%d, %s' % (v(vIM + 2), sT0, v(vT + 2)))
    a('v_xor_b32 %s, 32, %s' % (v(vIM + 3), v(vIM + 2)))
    for i in range(4):
        a('v_mov_b32 %s, s%d' % (v(aQ + 12 + i), sONES))
    a('s_waitcnt lgkmcnt(0)')
    a('s_barrier')
    a.stamp()
    for s in range(4):
        a('ds_read_b64_tr_b16 %s, %s offset:%d' % (v(vWB + 8 * s, 2), v(vIM), L_PHI + 2048 * s))
        a('ds_read_b64_tr_b16 %s, %s offset:%d' % (v(vWB + 8 * s + 2, 2), v(vIM + 1), L_PHI + 2048 * s + 256))
        a('ds_read_b64_tr_b16 %s, %s offset:%d' % (v(vWB + 8 * s + 4, 2), v(vIM + 2), L_V + 2048 * s))
        a('ds_read_b64_tr_b16 %s, %s offset:%d' % (v(vWB + 8 * s + 6, 2), v(vIM + 3), L_V + 2048 * s + 256))
    a('v_lshlrev_b32 %s, 2, %s' % (v(vT + 2), v(vL)))
    a.vm('buffer_load_dword %s, %s, %s, 0 offen sc1' % (v(vT + 3), v(vT + 2), sr(S_DBG)))
    for s in range(4):
        a.mfma16(v(aK, 4), v(vWB + 8 * s, 4), v(vWB + 8 * s + 4, 4), '0' if s == 0 else v(aK, 4))
        a.mfma16(v(aK + 4, 4), v(vWB + 8 * s, 4), v(aQ + 12, 4), '0' if s == 0 else v(aK + 4, 4))
    a('s_lshl_b32 s%d, s%d, 4' % (sT2, sJ))
    a('s_add_u32 s%d, s%d, s%d' % (sT2, sT2, sI))
    a('s_mul_i32 s%d, s%d, %d' % (sT2, sT2, KVREC))
    a('s_add_u32 s%d, s%d, %d' % (sT2, sT2, KVP))
    a('v_lshlrev_b32 %s, 3, v0' % v(vT))
    a('v_lshrrev_b32 %s, 4, v0' % v(vT + 1))
    a('v_lshlrev_b32 %s, 4, %s' % (v(vT + 1), v(vT + 1)))
    a('v_cvt_pk_bf16_f32 %s, %s, %s' % (v(aK + 8), v(aK), v(aK + 1)))
    a('v_cvt_pk_bf16_f32 %s, %s, %s' % (v(aK + 9), v(aK + 2), v(aK + 3)))
    a.vm('buffer_store_dwordx2 %s, %s, %s, s%d offen sc1' % (v(aK + 8, 2), v(vT), sr(S_WS), sT2))
    a('s_mov_b32 exec_lo, 0x00010001')
    a('s_mov_b32 exec_hi, 0x00010001')
    mark_kv = a.vm('buffer_store_dwordx4 %s, %s, %s, s%d offen offset:2048 sc1' % (v(aK + 4, 4), v(vT + 1), sr(S_WS), sT2))
    a('s_mov_b64 exec, -1')

    for p in range(4):
        a('v_add_u32 %s, %d, %s' % (v(vWR + p), L_WQ, v(vWR + p)))
    a.wait_vm(mark_wq)
    a('s_barrier')
    def qoff(s):
        return (s >> 1) * 8192 + (s & 1) * 1024
    for s in range(8):
        for t in range(2):
            a('ds_read_b64_tr_b16 %s, %s offset:%d' % (v(vWB + 4 * s + 2 * t, 2), v(vWR), qoff(s) + t * 256))
    for r_ in range(32):
        a('v_dot2_f32_bf16 %s, %s, s%d, %s' % (v(csq), v(vWB + r_), sONES, v(csq)))
    a('v_lshlrev_b32 %s, 2, v0' % v(vT))
    a('ds_write_b32 %s, %s offset:%d' % (v(vT), v(csq), L_CSQ))
    wo_list = [dma_wo(g) for g in range(16)]
    order = [(s, p) for p in range(4) for s in range(8)]
    QB = aK
    def qread(n):
        s, p = order[n]
        for t in range(2):
            a('ds_read_b64_tr_b16 %s, %s offset:%d' % (v(QB + 4 * (n % 8) + 2 * t, 2), v(vWR + p), qoff(s) + t * 256))
    main = []
    for n in range(32):
        def f(n=n):
            s, p = order[n]
            if 8 <= n + 6 < 32:
                qread(n + 6)
            src = v(vWB + 4 * s, 4) if p == 0 else v(QB + 4 * (n % 8), 4)
            a.mfma32(v(aQ, 16), src, v(X + (4 * s + p) * 4, 4), '0' if n == 0 else v(aQ, 16))
        main.append(f)
    interleave(a, main, wo_list, first=1, every=2)
    mark_wo = a.vmn
    a.wait_vm(mark_kv)
    lab = a.uniq('L_clr')
    a('s_mov_b64 exec, 0xffff')
    a('v_cmp_ne_u32 vcc, 1, %s' % v(vT + 3))
    a('s_cbranch_vccz %s_ok' % lab)
    a.label(lab)
    a('buffer_load_dword %s, %s, %s, 0 offen sc1' % (v(vT + 3), v(vT + 2), sr(S_DBG)))
    a('s_add_u32 s%d, s%d, 1' % (sCNT, sCNT))
    a('s_cmp_gt_u32 s%d, %d' % (sCNT, SPIN))
    a('s_cbranch_scc1 %s_ok' % lab)
    a('s_waitcnt vmcnt(0)')
    a('v_cmp_ne_u32 vcc, 1, %s' % v(vT + 3))
    a('s_cbranch_vccnz %s' % lab)
    a.label(lab + '_ok')
    a('s_mov_b64 exec, -1')
    a('s_waitcnt lgkmcnt(0)')
    a('s_barrier')
    def baseA():
        a('s_lshl_b32 s%d, s%d, 7' % (sT0, sJ))
        a('s_lshl_b32 s%d, s%d, 2' % (sT1, sI))
        a('s_add_u32 s%d, s%d, s%d' % (sT0, sT0, sT1))
    push_flags(a, 0, vL, vT, 16 * 128, baseA)
    a.stamp()
    a('v_lshlrev_b32 %s, 2, %s' % (v(vT), v(vL)))
    for w in range(4):
        a('ds_read_b32 %s, %s offset:%d' % (v(aK + w), v(vT), L_CSQ + 256 * w))
    a('v_add_f32 %s, %s, %s' % (v(aK), v(aK), v(aK + 1)))
    a('v_add_f32 %s, %s, %s' % (v(aK + 2), v(aK + 2), v(aK + 3)))
    a('v_add_f32 %s, %s, %s' % (v(csq), v(aK), v(aK + 2)))
    a_ext(aK + 4, csq)
    a.mfma32(v(aQ, 16), v(aK + 4, 4), v(vBX, 4), v(aQ, 16))

    vB1 = vXR
    def w1_offsets():
        a('v_bfe_u32 %s, %s, 2, 3' % (v(vT), v(vL)))
        a('v_mul_u32_u24 %s, 3584, %s' % (v(vT), v(vT)))
        a('v_and_b32 %s, 3, %s' % (v(vT + 1), v(vL)))
        a('v_lshl_add_u32 %s, %s, 4, %s' % (v(vT), v(vT + 1), v(vT)))
        a('v_lshl_add_u32 %s, %s, 6, %s' % (v(vT), v(vHH), v(vT)))
        a('v_add_u32 %s, 3072, %s' % (v(vB1), v(vT)))
        for q in range(1, 4):
            a('v_add_u32 %s, %d, %s' % (v(vB1 + q), 3072 + (q >> 1) * 8 * 3584 + (q & 1) * 128 - 1024 * q, v(vT)))
    def dma_w1(half, g):
        def f():
            if g % 4 == 0:
                kb = half * 32 + (g // 4) * 8
                a('s_mul_i32 s%d, s%d, %d' % (sT0, sW, 16 * 3584))
                a('s_lshl_b32 s%d, s%d, 8' % (sT1, sJ))
                a('s_add_u32 s%d, s%d, s%d' % (sT0, sT0, sT1))
                a('s_add_u32 s%d, s%d, %d' % (sT0, sT0, kb * 8 * 3584))
                a('s_lshl_b32 s%d, s%d, 12' % (sT1, sW))
                a('s_add_u32 m0, s%d, %d' % (sT1, L_W1 + kb * 2048))
            a.vm('buffer_load_dwordx4 %s, %s, s%d offen offset:%d lds' % (v(vB1 + g % 4), sr(S_W1), sT0, (g % 4) * 1024))
        return f
    a('s_sub_u32 s%d, s%d, 3072' % (S_W1, S_W1))
    a('s_subb_u32 s%d, s%d, 0' % (S_W1 + 1, S_W1 + 1))
    a('s_add_u32 s%d, s%d, 3072' % (S_W1 + 2, S_W1 + 2))
    w1_offsets()
    for i in range(8):
        a('v_cvt_pk_bf16_f32 %s, %s, %s' % (v(vWB + i), v(aQ + 2 * i), v(aQ + 2 * i + 1)))
    a.mfma32(v(aK, 16), v(vPA1, 4), v(vWB, 4), '0')
    a.mfma32(v(aK, 16), v(vPA2, 4), v(vWB + 4, 4), v(aK, 16))
    PQ = aQ
    softmax_pair(a, aK, vWB, PQ, cexp, aV)
    for q in range(4):
        a('v_permlane32_swap_b32 %s, %s' % (v(PQ + q), v(PQ + 4 + q)))
        a('v_permlane32_swap_b32 %s, %s' % (v(PQ + 8 + q), v(PQ + 12 + q)))
    a.wait_vm(mark_wo)
    a('s_barrier')
    a('s_cmp_ge_u32 s%d, 14' % sJ)
    a('s_cbranch_scc1 L_now1a')
    keep = a.vmn
    for g in range(16):
        dma_w1(0, g)()
    a.vmn = keep
    a.label('L_now1a')
    vWO = vWR
    a('s_lshr_b32 s%d, s%d, 1' % (sT0, sW))
    a('s_mul_i32 s%d, s%d, %d' % (sT1, sT0, 32768 + 512))
    a('s_add_u32 s%d, s%d, %d' % (sT1, sT1, L_WO))
    a('v_lshl_add_u32 %s, %s, 10, %s' % (v(vT), v(vHH), v(vTRN)))
    a('v_add_u32 %s, s%d, %s' % (v(vWO), sT1, v(vT)))
    a('v_xor_b32 %s, 512, %s' % (v(vWO + 1), v(vWO)))
    for s in range(16):
        for rho in range(2):
            for t in range(2):
                a('ds_read_b64_tr_b16 %s, %s offset:%d' % (ac((s * 2 + rho) * 4 + 2 * t, 2), v(vWO + rho), s * 2048 + t * 256))
    XR = X
    a('v_and_b32 %s, 31, %s' % (v(vT), v(vL)))
    a('v_lshlrev_b32 %s, 10, %s' % (v(vT), v(vT)))
    vOUT = vWR + 2
    a('v_lshl_add_u32 %s, %s, 5, %s' % (v(vOUT), v(vHH), v(vT)))
    a('s_lshl_b32 s%d, s%d, 1' % (sT1, sU))
    a('s_and_b32 s%d, s%d, 1' % (sT2, sW))
    a('s_add_u32 s%d, s%d, s%d' % (sT1, sT1, sT2))
    a('s_lshl_b32 s%d, s%d, 15' % (sT4, sT1))
    a('s_lshl_b32 s%d, s%d, 7' % (sT2, sC))
    a('s_add_u32 s%d, s%d, s%d' % (sT4, sT4, sT2))
    a('s_lshl_b32 s%d, s%d, 6' % (sT2, sT0))
    a('s_add_u32 s%d, s%d, s%d' % (sT4, sT4, sT2))
    a.vm('buffer_load_dwordx4 %s, %s, %s, s%d offen' % (v(XR, 4), v(vOUT), sr(S_X), sT4))
    a.vm('buffer_load_dwordx4 %s, %s, %s, s%d offen offset:16' % (v(XR + 4, 4), v(vOUT), sr(S_X), sT4))

    def flag_off(sync):
        def f():
            a('s_lshl_b32 s%d, s%d, 7' % (sT0, sCID))
            if sync:
                a('s_add_u32 s%d, s%d, %d' % (sT0, sT0, sync * 32768))
        return f
    poll(a, S_WS, flag_off(0), 16, vL, vT)
    a('s_waitcnt lgkmcnt(0)')
    a('s_barrier')
    a.stamp()
    G = X + 16
    a('s_mul_i32 s%d, s%d, %d' % (sT2, sJ, 16 * KVREC))
    a('s_add_u32 s%d, s%d, %d' % (sT2, sT2, KVP))
    a('v_lshlrev_b32 %s, 3, v0' % v(vT))
    a('v_and_b32 %s, 15, %s' % (v(vT + 1), v(vL)))
    a('v_mul_u32_u24 %s, %d, %s' % (v(vT + 2), KVREC, v(vT + 1)))
    a('v_lshrrev_b32 %s, 4, v0' % v(vT + 3))
    a('v_lshl_add_u32 %s, %s, 4, %s' % (v(vT + 2), v(vT + 3), v(vT + 2)))
    a.vm('buffer_load_dwordx4 %s, %s, %s, s%d offen offset:2048 sc1' % (v(G + 32, 4), v(vT + 2), sr(S_WS), sT2))
    for p in range(16):
        a.vm('buffer_load_dwordx2 %s, %s, %s, s%d offen sc1' % (v(G + 2 * p, 2), v(vT), sr(S_WS), sT2))
        if p < 15:
            a('s_add_u32 s%d, s%d, %d' % (sT2, sT2, KVREC))
    a('s_cmp_ge_u32 s%d, 14' % sJ)
    a('s_cbranch_scc1 L_now1b')
    keep = a.vmn
    for g in range(16):
        dma_w1(1, g)()
    a.vmn = keep
    a.label('L_now1b')
    for sh in (1, 2, 4, 8):
        for i in range(4):
            a('v_add_f32_dpp %s, %s, %s row_ror:%d row_mask:0xf bank_mask:0xf' % (v(G + 32 + i), v(G + 32 + i), v(G + 32 + i), sh))
    for p in range(16):
        for i in range(4):
            a('v_dot2_f32_bf16 %s, %s, s%d, %s' % (v(aK + i), v(G + 2 * p + (i >> 1)), sSEL1 if i & 1 else sSEL0,
                                                  '0' if p == 0 else v(aK + i)))
    a('s_and_b32 s%d, s%d, 1' % (sT0, sW))
    a('s_mul_i32 s%d, s%d, %d' % (sT0, sT0, 17 * 80))
    a('s_lshr_b32 s%d, s%d, 1' % (sT1, sW))
    a('s_lshl_b32 s%d, s%d, 5' % (sT1, sT1))
    a('s_add_u32 s%d, s%d, s%d' % (sT0, sT0, sT1))
    a('s_add_u32 s%d, s%d, %d' % (sT0, sT0, L_KVB))
    a('v_lshrrev_b32 %s, 4, %s' % (v(vT + 3), v(vL)))
    a('v_lshlrev_b32 %s, 3, %s' % (v(vT + 3), v(vT + 3)))
    a('v_add_u32 %s, s%d, %s' % (v(vT + 3), sT0, v(vT + 3)))
    a('v_mul_u32_u24 %s, 80, %s' % (v(vT + 1), v(vT + 1)))
    a('v_add_u32 %s, %s, %s' % (v(vT + 1), v(vT + 1), v(vT + 3)))
    a('v_cvt_pk_bf16_f32 %s, %s, %s' % (v(aK + 4), v(aK), v(aK + 1)))
    a('v_cvt_pk_bf16_f32 %s, %s, %s' % (v(aK + 5), v(aK + 2), v(aK + 3)))
    a('v_cvt_pk_bf16_f32 %s, %s, %s' % (v(aK + 6), v(G + 32), v(G + 33)))
    a('v_cvt_pk_bf16_f32 %s, %s, %s' % (v(aK + 7), v(G + 34), v(G + 35)))
    a('ds_write_b64 %s, %s' % (v(vT + 1), v(aK + 4, 2)))
    a('ds_write_b64 %s, %s offset:%d' % (v(vT + 3), v(aK + 6, 2), 16 * 80))
    a('v_bfe_u32 %s, %s, 2, 1' % (v(vT), v(vL)))
    a('v_bfe_u32 %s, %s, 3, 1' % (v(vT + 1), v(vL)))
    a('v_and_b32 %s, 3, %s' % (v(vT + 2), v(vL)))
    a('v_lshl_add_u32 %s, %s, 3, %s' % (v(vT + 2), v(vT), v(vT + 2)))
    a('v_lshl_add_u32 %s, %s, 2, %s' % (v(vT + 2), v(vT + 1), v(vT + 2)))
    a('v_and_b32 %s, 16, %s' % (v(vT), v(vL)))
    a('v_cmp_eq_u32 vcc, 0, %s' % v(vT))
    a('v_cndmask_b32 %s, 16, %s, vcc' % (v(vT + 2), v(vT + 2)))
    a('v_mul_u32_u24 %s, 80, %s' % (v(vT + 2), v(vT + 2)))
    a('v_lshl_add_u32 %s, %s, 4, %s' % (v(vT + 2), v(vHH), v(vT + 2)))
    a('v_add_u32 %s, %d, %s' % (v(vT + 2), L_KVB, v(vT + 2)))
    a('s_waitcnt lgkmcnt(0)')
    a('s_barrier')
    for h in range(2):
        for s in range(2):
            a('ds_read_b128 %s, %s offset:%d' % (v(vWB + (h * 2 + s) * 4, 4), v(vT + 2), h * 17 * 80 + s * 32))
    for h in range(2):
        acc = v(aK if h == 0 else aV, 16)
        a.mfma32(acc, v(vWB + h * 8, 4), v(PQ + 4 * h, 4), '0')
        a.mfma32(acc, v(vWB + h * 8 + 4, 4), v(PQ + 8 + 4 * h, 4), acc)
    a('s_lshl_b32 s%d, s%d, 2' % (sT0, sI))
    a('s_add_u32 s%d, s%d, s%d' % (sT0, sT0, sW))
    a('s_lshl_b32 s%d, s%d, 15' % (sT0, sT0))
    a('s_lshl_b32 s%d, s%d, 11' % (sT1, sJ))
    a('s_add_u32 s%d, s%d, s%d' % (sT0, sT0, sT1))
    a('s_add_u32 s%d, s%d, %d' % (sT0, sT0, O_))
    for h in range(2):
        acc = aK if h == 0 else aV
        a('v_add_f32 %s, 0x358637bd, %s' % (v(acc + 8), v(acc + 8)))
        a('v_rcp_f32 %s, %s' % (v(acc + 8), v(acc + 8)))
        for i in range(0, 8, 2):
            a('v_pk_mul_f32 %s, %s, %s op_sel_hi:[1,0]' % (v(acc + i, 2), v(acc + i, 2), v(acc + 8, 2)))
        for i in range(4):
            a('v_cvt_pk_bf16_f32 %s, %s, %s' % (v(acc + 12 + i), v(acc + 2 * i), v(acc + 2 * i + 1)))
        a.vm('buffer_store_dwordx4 %s, %s, %s, s%d offen offset:%d %s' % (v(acc + 12, 4), v(vFR), sr(S_WS), sT0, h * 1024, SC))
    a('s_waitcnt vmcnt(0)')
    a('s_barrier')
    def base_cluster(sync):
        def f():
            a('s_lshl_b32 s%d, s%d, 11' % (sT0, sI))
            a('s_lshl_b32 s%d, s%d, 2' % (sT1, sJ))
            a('s_add_u32 s%d, s%d, s%d' % (sT0, sT0, sT1))
            a('s_add_u32 s%d, s%d, %d' % (sT0, sT0, sync * 32768))
        return f
    push_flags(a, 1, vL, vT, 128, base_cluster(1))
    a.stamp()

    vW1 = vXR
    a('v_lshl_add_u32 %s, %s, 12, %s' % (v(vW1), v(vHH), v(vTRN)))
    a('v_add_u32 %s, 65536, %s' % (v(vW1 + 1), v(vW1)))
    def w1off(ks, ht, t):
        T, a_ = ks >> 1, ks & 1
        off = (4 * T + a_) * 2048 + (ht >> 1) * 1024 + (ht & 1) * 512 + t * 256
        return (vW1 + (off >> 16), off & 0xffff)
    AX = vS
    a('s_cmp_ge_u32 s%d, 14' % sJ)
    a('s_cbranch_scc1 L_nocs1')
    keep = a.vmn
    a('s_lshl_b32 s%d, s%d, 9' % (sT0, sW))
    a('v_add_u32 %s, s%d, %s' % (v(vW1 + 2), sT0, v(vW1)))
    a('v_add_u32 %s, s%d, %s' % (v(vW1 + 3), sT0, v(vW1 + 1)))
    a('v_bfe_u32 %s, %s, 2, 1' % (v(vT), v(vL)))
    a('v_bfe_u32 %s, %s, 3, 2' % (v(vT + 1), v(vL)))
    a('v_and_b32 %s, 3, %s' % (v(vT + 2), v(vL)))
    a('v_lshl_add_u32 %s, %s, 4, %s' % (v(vT + 2), v(vT), v(vT + 2)))
    a('v_lshl_add_u32 %s, %s, 2, %s' % (v(vT + 2), v(vT + 1), v(vT + 2)))
    a('v_lshlrev_b32 %s, 1, %s' % (v(vT + 2), v(vT + 2)))
    a('v_lshl_add_u32 %s, %s, 13, %s' % (v(vT + 2), v(vHH), v(vT + 2)))
    a('s_lshl_b32 s%d, s%d, 8' % (sT1, sJ))
    for ht in range(4):
        a('buffer_load_ushort %s, %s, %s, s%d offen offset:%d' % (v(AX + 4 * ht + 2), v(vT + 2), sr(S_B1), sT1, ht * 64))
    CB = X + 16
    a('v_mov_b32 %s, 0' % v(vT))
    a('v_mov_b32 %s, 0' % v(vT + 1))
    for part in range(2):
        for ks in range(16):
            for t in range(2):
                b, off = w1off(part * 16 + ks, 0, t)
                a('ds_read_b64_tr_b16 %s, %s offset:%d' % (v(CB + 4 * ks + 2 * t, 2), v(b + 2), off))
        for r_ in range(64):
            a('v_dot2_f32_bf16 %s, %s, s%d, %s' % (v(vT + (r_ & 1)), v(CB + r_), sONES, v(vT + (r_ & 1))))
    a('v_add_f32 %s, %s, %s' % (v(vT), v(vT), v(vT + 1)))
    a('v_lshlrev_b32 %s, 2, v0' % v(vT + 1))
    a('v_add_u32 %s, %d, %s' % (v(vT + 1), L_CS1, v(vT + 1)))
    a('ds_write_b32 %s, %s' % (v(vT + 1), v(vT)))
    a.vmn = keep
    a.label('L_nocs1')

    poll(a, S_WS, flag_off(1), 16, vL, vT)
    a('s_waitcnt lgkmcnt(0)')
    a('s_barrier')
    a.stamp()
    OB = X + 16
    a('s_lshl_b32 s%d, s%d, 1' % (sT0, sU))
    a('s_and_b32 s%d, s%d, 1' % (sT1, sW))
    a('s_add_u32 s%d, s%d, s%d' % (sT3, sT0, sT1))
    a('s_lshl_b32 s%d, s%d, 15' % (sT0, sT3))
    a('s_lshr_b32 s%d, s%d, 1' % (sT1, sW))
    a('s_lshl_b32 s%d, s%d, 14' % (sT1, sT1))
    a('s_add_u32 s%d, s%d, s%d' % (sT0, sT0, sT1))
    a('s_add_u32 s%d, s%d, %d' % (sT0, sT0, O_))
    for s in range(16):
        if s and s % 4 == 0:
            a('s_add_u32 s%d, s%d, 4096' % (sT0, sT0))
        a.vm('buffer_load_dwordx4 %s, %s, %s, s%d offen offset:%d %s' % (v(OB + 4 * s, 4), v(vFR), sr(S_WS), sT0, (s % 4) * 1024, SC))
    a('v_lshlrev_b32 %s, 2, %s' % (v(vT + 3), v(vL)))
    a('v_add_u32 %s, %d, %s' % (v(vT + 3), L_CS1, v(vT + 3)))
    for ht in range(4):
        a('ds_read_b32 %s, %s offset:%d' % (v(AX + 4 * ht + 3), v(vT + 3), 256 * ht))
    for ht in range(4):
        d = AX + 4 * ht
        split_hi_lo(a, d + 3, vT + 1, vT + 2, d)
        a('v_cvt_pk_bf16_f32 %s, %s, 0' % (v(d + 1), v(vT + 2)))
        a('v_lshl_or_b32 %s, %s, 16, %s' % (v(d + 1), v(d + 2), v(d + 1)))
        a('v_mov_b32 %s, 0' % v(d + 3))
    for s in range(16):
        for rho in range(2):
            acc = v(aK if rho == 0 else aV, 16)
            a.mfma32(acc, ac((s * 2 + rho) * 4, 4), v(OB + 4 * s, 4), '0' if s == 0 else acc)
    a('s_xor_b32 s%d, s%d, 2' % (sT0, sW))
    a('s_lshl_b32 s%d, s%d, 12' % (sT0, sT0))
    a('s_add_u32 s%d, s%d, %d' % (sT0, sT0, L_RED3))
    a('v_add_u32 %s, s%d, %s' % (v(vT), sT0, v(vFR)))
    a('v_xor_b32 %s, 8192, %s' % (v(vT + 1), v(vT)))
    for q in range(4):
        a('ds_write_b128 %s, %s offset:%d' % (v(vT), v(aV + 4 * q, 4), q * 1024))
    for i in range(8):
        a('v_lshlrev_b32 %s, 16, %s' % (v(aQ + 2 * i), v(XR + i)))
        a('v_and_b32 %s, 0xffff0000, %s' % (v(aQ + 2 * i + 1), v(XR + i)))
    a('s_waitcnt lgkmcnt(0)')
    a('s_barrier')
    for q in range(4):
        a('ds_read_b128 %s, %s offset:%d' % (v(aV + 4 * q, 4), v(vT + 1), q * 1024))
    HP = vPA1
    for i in range(0, 16, 2):
        a('v_pk_add_f32 %s, %s, %s' % (v(aK + i, 2), v(aK + i, 2), v(aV + i, 2)))
    for i in range(8):
        a('v_cvt_pk_bf16_f32 %s, %s, %s' % (v(aV + i), v(aK + 2 * i), v(aK + 2 * i + 1)))
    for i in range(8):
        a('v_lshlrev_b32 %s, 16, %s' % (v(aK + 2 * i), v(aV + i)))
        a('v_and_b32 %s, 0xffff0000, %s' % (v(aK + 2 * i + 1), v(aV + i)))
    for i in range(0, 16, 2):
        a('v_pk_add_f32 %s, %s, %s' % (v(aK + i, 2), v(aK + i, 2), v(aQ + i, 2)))
    for i in range(8):
        a('v_cvt_pk_bf16_f32 %s, %s, %s' % (v(HP + i), v(aK + 2 * i), v(aK + 2 * i + 1)))
    a('s_lshl_b32 s%d, s%d, 1' % (sT1, sC))
    a('s_lshr_b32 s%d, s%d, 1' % (sT2, sW))
    a('s_add_u32 s%d, s%d, s%d' % (sT1, sT1, sT2))
    a('s_lshl_b32 s%d, s%d, 15' % (sT0, sT3))
    a('s_lshl_b32 s%d, s%d, 11' % (sT2, sT1))
    a('s_add_u32 s%d, s%d, s%d' % (sT0, sT0, sT2))
    a('s_add_u32 s%d, s%d, %d' % (sT0, sT0, H_))
    a.vm('buffer_store_dwordx4 %s, %s, %s, s%d offen %s' % (v(HP, 4), v(vFR), sr(S_WS), sT0, SC))
    a.vm('buffer_store_dwordx4 %s, %s, %s, s%d offen offset:1024 %s' % (v(HP + 4, 4), v(vFR), sr(S_WS), sT0, SC))
    for i in range(8):
        a('v_dot2_f32_bf16 %s, %s, s%d, %s' % (v(vT), v(HP + i), sONES, '0' if i == 0 else v(vT)))
        a('v_dot2_f32_bf16 %s, %s, %s, %s' % (v(vT + 1), v(HP + i), v(HP + i), '0' if i == 0 else v(vT + 1)))
    a('v_permlane32_swap_b32 %s, %s' % (v(vT), v(vT + 1)))
    a('v_add_f32 %s, %s, %s' % (v(vT), v(vT), v(vT + 1)))
    a('s_lshl_b32 s%d, s%d, 12' % (sT0, sT3))
    a('s_lshl_b32 s%d, s%d, 8' % (sT2, sT1))
    a('s_add_u32 s%d, s%d, s%d' % (sT0, sT0, sT2))
    a('s_add_u32 s%d, s%d, %d' % (sT0, sT0, ST))
    vL4 = vWR + 3
    a('v_lshlrev_b32 %s, 2, %s' % (v(vL4), v(vL)))
    a.vm('buffer_store_dword %s, %s, %s, s%d offen %s' % (v(vT), v(vL4), sr(S_WS), sT0, SC))
    a('s_waitcnt vmcnt(0)')
    a('s_barrier')
    push_flags(a, 2, vL, vT, 128, base_cluster(2))
    a.stamp()

    vW2 = vWR
    blk_offsets(1024, lambda q: q * 8192)
    a('s_lshr_b32 s%d, s%d, 1' % (sT0, sW))
    a('s_lshl_b32 s%d, s%d, 9' % (sT0, sT0))
    a('s_lshl_b32 s%d, s%d, 12' % (sLDSX, sW))
    a('s_add_u32 s%d, s%d, %d' % (sLDSX, sLDSX, L_W2S))
    a('s_add_u32 s%d, s%d, s%d' % (sT0, sT0, sLDSX))
    a('v_lshl_add_u32 %s, %s, 11, %s' % (v(vT), v(vHH), v(vTRN)))
    a('v_add_u32 %s, s%d, %s' % (v(vW2), sT0, v(vT)))
    a('v_xor_b32 %s, 512, %s' % (v(vW2 + 1), v(vW2)))
    a('s_mul_i32 s%d, s%d, %d' % (sXO, sW, 448 * 1024))
    a('s_lshl_b32 s%d, s%d, 7' % (sT0, sC))
    a('s_add_u32 s%d, s%d, s%d' % (sXO, sXO, sT0))
    def w2_dma(T):
        a('s_add_u32 s%d, s%d, %d' % (sT0, sXO, T * 32768))
        a('s_mov_b32 m0, s%d' % sLDSX)
        for q in range(4):
            a.vm('buffer_load_dwordx4 %s, %s, s%d offen offset:%d lds' % (v(vBD + q), sr(S_W2), sT0, q * 1024))
        return a.vmn
    def w2_park(T):
        for a_ in range(2):
            for rho in range(2):
                for t in range(2):
                    a('ds_read_b64_tr_b16 %s, %s offset:%d' % (ac(((2 * T + a_) * 2 + rho) * 4 + 2 * t, 2), v(vW2 + rho),
                                                              a_ * 1024 + t * 256))
    for T in range(14):
        m = w2_dma(T)
        a.wait_vm(m)
        w2_park(T)
        a('s_waitcnt lgkmcnt(0)')

    a('s_cmp_ge_u32 s%d, 14' % sJ)
    a('s_cbranch_scc1 L_nop4')
    keep = a.vmn
    poll(a, S_WS, flag_off(2), 16, vL, vT)
    a('s_barrier')
    a.stamp()
    a('s_lshl_b32 s%d, s%d, 2' % (sT3, sI))
    a('s_add_u32 s%d, s%d, s%d' % (sT3, sT3, sW))
    a('s_lshl_b32 s%d, s%d, 15' % (sT0, sT3))
    a('s_add_u32 s%d, s%d, %d' % (sT0, sT0, H_))
    for s in range(32):
        if s and s % 4 == 0:
            a('s_add_u32 s%d, s%d, 4096' % (sT0, sT0))
        a('buffer_load_dwordx4 %s, %s, %s, s%d offen offset:%d %s' % (v(X + 4 * s, 4), v(vFR), sr(S_WS), sT0, (s % 4) * 1024, SC))
    a('s_lshl_b32 s%d, s%d, 12' % (sT0, sT3))
    a('s_add_u32 s%d, s%d, %d' % (sT0, sT0, ST))
    SB = aQ
    for ct in range(16):
        a('buffer_load_dword %s, %s, %s, s%d offen offset:%d %s' % (v(SB + ct), v(vL4), sr(S_WS), sT0, ct * 256, SC))
    a('s_mul_i32 s%d, s%d, %d' % (sT2, sT3, 112 * 1024))
    a('s_lshl_b32 s%d, s%d, 13' % (sT1, sJ))
    a('s_add_u32 s%d, s%d, s%d' % (sT2, sT2, sT1))
    a('s_add_u32 s%d, s%d, %d' % (sT2, sT2, ACT))
    RING = vWB
    seq = [(ht, ks) for ht in range(4) for ks in range(32)]
    def aread(n):
        ht, ks = seq[n]
        for t in range(2):
            b, off = w1off(ks, ht, t)
            a('ds_read_b64_tr_b16 %s, %s offset:%d' % (v(RING + 4 * (n % 8) + 2 * t, 2), v(b), off))
    for n in range(6):
        aread(n)
    c1, c2, c3 = vXD, vXD + 1, vXD + 2
    BX = vT
    def stats2():
        for i in range(0, 8, 2):
            a('v_pk_add_f32 %s, %s, %s' % (v(SB + i, 2), v(SB + i, 2), v(SB + 8 + i, 2)))
        a('v_pk_add_f32 %s, %s, %s' % (v(SB, 2), v(SB, 2), v(SB + 4, 2)))
        a('v_pk_add_f32 %s, %s, %s' % (v(SB + 2, 2), v(SB + 2, 2), v(SB + 6, 2)))
        a('v_pk_add_f32 %s, %s, %s' % (v(SB, 2), v(SB, 2), v(SB + 2, 2)))
        a('v_add_f32 %s, %s, %s' % (v(SB), v(SB), v(SB + 1)))
        a('v_mov_b32 %s, %s' % (v(SB + 1), v(SB)))
        a('v_permlane32_swap_b32 %s, %s' % (v(SB), v(SB + 1)))
        ln_stats(a, SB, SB + 1, SB + 2, c3, SB + 3)
        a('v_mul_f32 %s, %s, %s' % (v(SB + 4), v(SB + 1), v(c3)))
        a('v_sub_f32 %s, 0, %s' % (v(SB + 2), v(SB + 2)))
        split_hi_lo(a, SB + 2, SB + 5, SB + 6, SB + 3)
        split_hi_lo(a, SB + 4, SB + 7, SB + 8, SB + 3)
        a('v_cvt_pk_bf16_f32 %s, %s, %s' % (v(BX), v(SB + 5), v(SB + 6)))
        a('v_cvt_pk_bf16_f32 %s, %s, %s' % (v(BX + 1), v(SB + 5), v(SB + 7)))
        a('v_cvt_pk_bf16_f32 %s, %s, 0' % (v(BX + 2), v(SB + 8)))
        a('v_mov_b32 %s, 0' % v(BX + 3))
        a('v_mul_f32 %s, 0x%x, %s' % (v(c1), LOG2E, v(c3)))
        a('v_mul_f32 %s, -2.0, %s' % (v(c2), v(c3)))
    def mish_ops(acc, ht):
        ops = []
        T1, T2, PK = aQ, aQ + 4, aQ + 8
        for g in range(0, 16, 4):
            for i in range(4):
                ops.append('v_mul_f32 %s, %s, %s' % (v(T1 + i), v(acc + g + i), v(c1)))
            for i in range(4):
                ops.append('v_exp_f32 %s, %s' % (v(T1 + i), v(T1 + i)))
            for i in range(4):
                ops.append('v_add_f32 %s, 2.0, %s' % (v(T2 + i), v(T1 + i)))
            for i in range(4):
                ops.append('v_fma_f32 %s, %s, %s, 2.0' % (v(T1 + i), v(T1 + i), v(T2 + i)))
            for i in range(4):
                ops.append('v_rcp_f32 %s, %s' % (v(T1 + i), v(T1 + i)))
            for i in range(4):
                ops.append('v_fma_f32 %s, %s, %s, %s' % (v(T1 + i), v(T1 + i), v(c2), v(c3)))
            for i in range(4):
                ops.append('v_mul_f32 %s, %s, %s' % (v(T1 + i), v(T1 + i), v(acc + g + i)))
            for i in range(2):
                ops.append('v_cvt_pk_bf16_f32 %s, %s, %s' % (v(PK + g // 2 + i), v(T1 + 2 * i), v(T1 + 2 * i + 1)))
            if g % 8 == 4:
                ops.append('buffer_store_dwordx4 %s, %s, %s, s%d offen offset:%d %s' % (
                    v(PK + (g // 8) * 4, 4), v(vFR), sr(S_WS), sT2, ((2 * ht + g // 8) % 4) * 1024, SC))
                if (2 * ht + g // 8) % 4 == 3:
                    ops.append('s_add_u32 s%d, s%d, 4096' % (sT2, sT2))
        return ops
    pending = []
    for ht in range(4):
        acc = aK if ht % 2 == 0 else aV
        per = (len(pending) + 29) // 30
        for ks in range(32):
            n = ht * 32 + ks
            if n + 6 < 128:
                aread(n + 6)
            a.mfma32(v(acc, 16), v(RING + 4 * (n % 8), 4), v(X + 4 * ks, 4), '0' if ks == 0 else v(acc, 16))
            if ks >= 1:
                for o in pending[:per]:
                    a(o)
                pending = pending[per:]
        for o in pending:
            a(o)
        if ht == 0:
            stats2()
        a.mfma32(v(acc, 16), v(AX + 4 * ht, 4), v(BX, 4), v(acc, 16))
        pending = mish_ops(acc, ht)
    for o in pending:
        a(o)
    a('s_waitcnt vmcnt(0)')
    a('s_barrier')
    push_flags(a, 3, vL, vT, 128, base_cluster(3))
    a.vmn = keep
    a.label('L_nop4')
    a.stamp()

    poll(a, S_WS, flag_off(3), 14, vL, vT)
    a('s_barrier')
    a.stamp()
    a('s_lshl_b32 s%d, s%d, 1' % (sT0, sU))
    a('s_and_b32 s%d, s%d, 1' % (sT1, sW))
    a('s_add_u32 s%d, s%d, s%d' % (sT0, sT0, sT1))
    a('s_xor_b32 s%d, s%d, 1' % (sT1, sT0))
    a('s_mul_i32 s%d, s%d, %d' % (sT0, sT0, 112 * 1024))
    a('s_mul_i32 s%d, s%d, %d' % (sT1, sT1, 112 * 1024))
    a('s_mul_i32 s%d, s%d, %d' % (sT2, sW, 28 * 1024))
    a('s_add_u32 s%d, s%d, %d' % (sT2, sT2, ACT))
    a('s_add_u32 s%d, s%d, s%d' % (sT0, sT0, sT2))
    a('s_add_u32 s%d, s%d, s%d' % (sT1, sT1, sT2))
    ACC = 32
    def bload(n):
        ks, tau = n >> 1, n & 1
        sreg = sT0 + tau
        if ks and ks % 4 == 0:
            a('s_add_u32 s%d, s%d, 4096' % (sreg, sreg))
        a.vm('buffer_load_dwordx4 %s, %s, %s, s%d offen offset:%d %s' % (v(X + 4 * (n % 32), 4), v(vFR), sr(S_WS), sreg, (ks % 4) * 1024, SC))
    PRE = cfg.get('p5pre', 16)
    for n in range(PRE):
        bload(n)
    for n in range(56):
        ks, tau = n >> 1, n & 1
        for rc in range(2):
            acc = v(ACC + 16 * (tau + 2 * rc), 16)
            a.mfma32(acc, ac((ks * 2 + rc) * 4, 4), v(X + 4 * (n % 32), 4), '0' if ks == 0 else acc)
            if rc == 0 and n + PRE < 56:
                bload(n + PRE)
    a.stamp()
    for rho in range(1, 4):
        a('s_xor_b32 s%d, s%d, %d' % (sT0, sW, rho))
        a('s_mul_i32 s%d, s%d, 12288' % (sT0, sT0))
        a('s_add_u32 s%d, s%d, %d' % (sT0, sT0, L_RED5 + (rho - 1) * 4096))
        a('v_add_u32 %s, s%d, %s' % (v(vT), sT0, v(vFR)))
        for q in range(4):
            a('ds_write_b128 %s, %s offset:%d' % (v(vT), v(ACC + 16 * rho + 4 * q, 4), q * 1024))
    a('s_mul_i32 s%d, s%d, 12288' % (sT0, sW))
    a('v_add_u32 %s, s%d, %s' % (v(vT), sT0, v(vFR)))
    for i in range(8):
        a('v_lshlrev_b32 %s, 16, %s' % (v(X + 2 * i), v(HP + i)))
        a('v_and_b32 %s, 0xffff0000, %s' % (v(X + 2 * i + 1), v(HP + i)))
    a('s_waitcnt lgkmcnt(0)')
    a('s_barrier')
    for n in range(12):
        a('ds_read_b128 %s, %s offset:%d' % (v(ACC + 16 + 4 * n, 4), v(vT), L_RED5 + n * 1024))
    for rho in range(1, 4):
        for i in range(0, 16, 2):
            a('v_pk_add_f32 %s, %s, %s' % (v(ACC + i, 2), v(ACC + i, 2), v(ACC + 16 * rho + i, 2)))
    for i in range(8):
        a('v_cvt_pk_bf16_f32 %s, %s, %s' % (v(ACC + 16 + i), v(ACC + 2 * i), v(ACC + 2 * i + 1)))
    for i in range(8):
        a('v_lshlrev_b32 %s, 16, %s' % (v(ACC + 2 * i), v(ACC + 16 + i)))
        a('v_and_b32 %s, 0xffff0000, %s' % (v(ACC + 2 * i + 1), v(ACC + 16 + i)))
    for i in range(0, 16, 2):
        a('v_pk_add_f32 %s, %s, %s' % (v(ACC + i, 2), v(ACC + i, 2), v(X + i, 2)))
    for i in range(8):
        a('v_cvt_pk_bf16_f32 %s, %s, %s' % (v(ACC + 16 + i), v(ACC + 2 * i), v(ACC + 2 * i + 1)))
    a.vm('buffer_store_dwordx4 %s, %s, %s, s%d offen' % (v(ACC + 16, 4), v(vOUT), sr(S_OUT), sT4))
    a.vm('buffer_store_dwordx4 %s, %s, %s, s%d offen offset:16' % (v(ACC + 20, 4), v(vOUT), sr(S_OUT), sT4))
    if cfg.get('stamps'):
        a('s_waitcnt vmcnt(0)')
        a.stamp()
        assert a.nstamp <= 16
        a('s_cmp_lg_u32 s%d, 0' % sW)
        a('s_cbranch_scc1 L_end')
        for i in range(16):
            a('v_mov_b32 %s, s%d' % (v(X + i), S_STAMP + i))
        a('s_lshl_b32 s%d, s2, 6' % sT0)
        a('s_add_u32 s%d, s%d, 0x%x' % (sT0, sT0, STAMP))
        a('v_mov_b32 %s, 0' % v(vT))
        for i in range(4):
            a('buffer_store_dwordx4 %s, %s, %s, s%d offen offset:%d' % (v(X + 4 * i, 4), v(vT), sr(S_WS), sT0, 16 * i))
    a.label('L_end')
    a('s_endpgm')
    body = finalize(a)
    return body


HEADER = open('header.txt').read().rstrip('\n').split('\n')


def build(cfg, path):
    body = gen(cfg)
    k = kernel_text(NAME + '_kernel', body, vgprs=512, accum=256, sgprs=102)
    hdr = HEADER + ['; @launch grid=(256,1,1) block=(256,1,1) lds=163840']
    open(path, 'w').write(module_text(hdr, [k]))


if __name__ == '__main__':
    import json
    cfg = json.loads(sys.argv[2]) if len(sys.argv) > 2 else {}
    build(cfg, sys.argv[1])
```

```python
import sys
sys.path.insert(0, 'gen')
from asmlib import *
from common import *

FL, KVP, ST, O_, H_, ACT, STAMP = 0x0, 0x40000, 0x100000, 0x200000, 0x400000, 0x600000, 0x8000000
KVREC = 2304
L_WKV, L_XS, L_WQ = 0, 65536, 131072
L_PHI, L_V, L_CSX, L_CSQ = 0, 16384, 24576, 28672
L_WO = 65536
L_W1 = 0
L_RED3, L_KVB, L_CS1, L_W2S = 131072, 147456, 151552, 147456
L_RED5 = 0
LOG2E = 0x3fb8aa3b
ONES = 0x3f803f80

S_X, S_WQKV, S_WPHI, S_WO, S_W1, S_B1, S_W2, S_OUT, S_DBG, S_WS = 4, 8, 12, 16, 20, 24, 28, 32, 36, 40
sI, sJ, sW, sU, sC, sCG, sXO, sT0, sT1, sT2, sT3, sONES, sSEL0, sSEL1, sLDSX, sLDSW, sCID, sT4 = range(44, 62)
sCNT = 62
SPIN = 400000
S_PTR = 64
S_STAMP = 86


def v(i, n=1):
    return 'v%d' % i if n == 1 else 'v[%d:%d]' % (i, i + n - 1)


def ac(i, n=1):
    return 'a%d' % i if n == 1 else 'a[%d:%d]' % (i, i + n - 1)


def sr(i):
    return 's[%d:%d]' % (i, i + 3)


class K(Asm):
    def __init__(self, cfg):
        super().__init__()
        self.cfg = cfg
        self.vmn = 0
        self.nstamp = 0

    def vm(self, text):
        self(text)
        self.vmn += 1
        return self.vmn

    def wait_vm(self, mark):
        self('s_waitcnt vmcnt(%d)' % min(63, self.vmn - mark))

    def stamp(self):
        if self.cfg.get('stamps'):
            n = self.nstamp
            self.nstamp += 1
            self('s_memrealtime s[%d:%d]' % (S_PTR + 2 * (n % 8), S_PTR + 2 * (n % 8) + 1))
            self('s_waitcnt lgkmcnt(0)')
            self('s_mov_b32 s%d, s%d' % (S_STAMP + n, S_PTR + 2 * (n % 8)))

    def mfma32(self, d, a_, b, c):
        self('v_mfma_f32_32x32x16_bf16 %s, %s, %s, %s' % (d, a_, b, c))

    def mfma16(self, d, a_, b, c):
        self('v_mfma_f32_16x16x32_bf16 %s, %s, %s, %s' % (d, a_, b, c))


def interleave(a, main, side, first=0, every=1):
    si = 0
    for n, g in enumerate(main):
        g()
        if n >= first and (n - first) % every == 0 and si < len(side):
            side[si]()
            si += 1
    while si < len(side):
        side[si]()
        si += 1


def split_hi_lo(a, src, hi_f, lo_f, tmp):
    a('v_cvt_pk_bf16_f32 %s, %s, %s' % (v(tmp), v(src), v(src)))
    a('v_and_b32 %s, 0xffff0000, %s' % (v(hi_f), v(tmp)))
    a('v_sub_f32 %s, %s, %s' % (v(lo_f), v(src), v(hi_f)))


def half_sum2(a, x, y, t):
    a('v_permlane32_swap_b32 %s, %s' % (v(x), v(y)))
    a('v_add_f32 %s, %s, %s' % (v(x), v(x), v(y)))
    a('v_mov_b32 %s, %s' % (v(y), v(x)))
    a('v_permlane32_swap_b32 %s, %s' % (v(x), v(y)))


def ln_stats(a, s1, s2, mean, rstd, t):
    a('v_mul_f32 %s, 0x3b000000, %s' % (v(mean), v(s1)))
    a('v_mul_f32 %s, %s, %s' % (v(t), v(mean), v(mean)))
    a('v_mov_b32 %s, 0x3b000000' % v(rstd))
    a('v_fma_f32 %s, %s, %s, -%s' % (v(s2), v(s2), v(rstd), v(t)))
    a('v_max_f32 %s, 0, %s' % (v(s2), v(s2)))
    a('v_add_f32 %s, 0x3727c5ac, %s' % (v(s2), v(s2)))
    a('v_rsq_f32 %s, %s' % (v(rstd), v(s2)))


def softmax_pair(a, P, E, OUT, c, t):
    mx, mn, sp, sn = t, t + 1, t + 2, t + 3
    a('v_max3_f32 %s, %s, %s, %s' % (v(mx), v(P), v(P + 1), v(P + 2)))
    a('v_min3_f32 %s, %s, %s, %s' % (v(mn), v(P), v(P + 1), v(P + 2)))
    for i in range(3, 15, 2):
        a('v_max3_f32 %s, %s, %s, %s' % (v(mx), v(mx), v(P + i), v(P + i + 1)))
        a('v_min3_f32 %s, %s, %s, %s' % (v(mn), v(mn), v(P + i), v(P + i + 1)))
    a('v_max_f32 %s, %s, %s' % (v(mx), v(mx), v(P + 15)))
    a('v_min_f32 %s, %s, %s' % (v(mn), v(mn), v(P + 15)))
    a('v_mul_f32 %s, %s, %s' % (v(mx), v(mx), v(c)))
    a('v_mul_f32 %s, %s, %s' % (v(mn), v(mn), v(c)))
    for i in range(16):
        a('v_fma_f32 %s, %s, %s, -%s' % (v(E + i), v(P + i), v(c), v(mx)))
        a('v_fma_f32 %s, -%s, %s, %s' % (v(E + 16 + i), v(P + i), v(c), v(mn)))
    for i in range(32):
        a('v_exp_f32 %s, %s' % (v(E + i), v(E + i)))
    a('v_pk_add_f32 %s, %s, %s' % (v(sp, 2), v(E, 2), v(E + 2, 2)))
    a('v_pk_add_f32 %s, %s, %s' % (v(t + 4, 2), v(E + 16, 2), v(E + 18, 2)))
    for i in range(4, 16, 2):
        a('v_pk_add_f32 %s, %s, %s' % (v(sp, 2), v(sp, 2), v(E + i, 2)))
        a('v_pk_add_f32 %s, %s, %s' % (v(t + 4, 2), v(t + 4, 2), v(E + 16 + i, 2)))
    a('v_add_f32 %s, %s, %s' % (v(sp), v(sp), v(sp + 1)))
    a('v_add_f32 %s, %s, %s' % (v(t + 4), v(t + 4), v(t + 5)))
    a('v_rcp_f32 %s, %s' % (v(sp), v(sp)))
    a('v_rcp_f32 %s, %s' % (v(t + 4), v(t + 4)))
    for i in range(0, 16, 2):
        a('v_pk_mul_f32 %s, %s, %s op_sel_hi:[1,0]' % (v(E + i, 2), v(E + i, 2), v(sp, 2)))
        a('v_pk_mul_f32 %s, %s, %s op_sel_hi:[1,0]' % (v(E + 16 + i, 2), v(E + 16 + i, 2), v(t + 4, 2)))
    for i in range(16):
        a('v_cvt_pk_bf16_f32 %s, %s, %s' % (v(OUT + i), v(E + 2 * i), v(E + 2 * i + 1)))


def push_flags(a, sync, vL, vt, stride_lane, base_expr):
    lab = a.uniq('L_nopush')
    a('s_cmp_lg_u32 s%d, 0' % sW)
    a('s_cbranch_scc1 %s' % lab)
    base_expr()
    a('v_mul_u32_u24 %s, %d, %s' % (v(vt), stride_lane, v(vL)))
    a('v_mov_b32 %s, 1' % v(vt + 1))
    a('s_mov_b64 exec, 0xffff')
    a('buffer_store_dword %s, %s, %s, s%d offen sc1' % (v(vt + 1), v(vt), sr(S_WS), sT0))
    a('s_mov_b64 exec, -1')
    a.label(lab)


def poll(a, srd_, off_expr, n, vL, vt):
    lab = a.uniq('L_nopoll')
    lp = a.uniq('L_poll')
    a('s_cmp_lg_u32 s%d, 0' % sW)
    a('s_cbranch_scc1 %s' % lab)
    off_expr()
    a('v_lshlrev_b32 %s, 2, %s' % (v(vt), v(vL)))
    a('s_mov_b64 exec, 0x%x' % ((1 << n) - 1))
    a.label(lp)
    a('buffer_load_dword %s, %s, %s, s%d offen sc1' % (v(vt + 1), v(vt), sr(srd_), sT0))
    a('s_add_u32 s%d, s%d, 1' % (sCNT, sCNT))
    a('s_cmp_gt_u32 s%d, %d' % (sCNT, SPIN))
    a('s_cbranch_scc1 %s_x' % lp)
    a('s_waitcnt vmcnt(0)')
    a('v_cmp_ne_u32 vcc, 1, %s' % v(vt + 1))
    a('s_cbranch_vccnz %s' % lp)
    a.label(lp + '_x')
    a('s_mov_b64 exec, -1')
    a.label(lab)


def gen(cfg):
    a = K(cfg)
    SC = 'sc1'
    D = cfg.get('depth', 2)
    vL, vHH, vTRN, vTRM, vFR = 1, 2, 3, 4, 5
    vXD, vWD, vWQD, vXR, vWR = 6, 10, 11, 12, 16
    vPA1, vPA2 = 20, 24
    vT = 28
    aK, aV, aQ = 32, 48, 64
    vWB = 80
    vS = 112
    X = 128
    s1a, s1b, s2a, s2b, csk, csv, csq, mean, rstd, cexp = range(vS, vS + 10)
    vBX = vS + 12

    a('s_cmp_ge_u32 s2, 256')
    a('s_cbranch_scc1 L_end')
    if cfg.get('stamps'):
        a('s_memrealtime s[100:101]')
    a('s_load_dwordx16 s[%d:%d], s[0:1], 0' % (S_PTR, S_PTR + 15))
    a('s_load_dwordx4 s[%d:%d], s[0:1], 64' % (S_PTR + 16, S_PTR + 19))
    a('s_load_dwordx2 s[%d:%d], s[0:1], 80' % (S_PTR + 20, S_PTR + 21))
    a('s_getpc_b64 s[%d:%d]' % (sT0 + 1, sT0 + 2))
    a.label('L_pc')
    a('s_lshr_b32 s%d, s2, 3' % sT0)
    a('v_lshrrev_b32 %s, 6, v0' % v(vT))
    a('v_and_b32 %s, 63, v0' % v(vL))
    a('v_readfirstlane_b32 s%d, %s' % (sW, v(vT)))
    ncl = cfg.get('code_lines', 10)
    if ncl:
        a('s_mul_i32 s%d, s%d, %d' % (sT3, sT0, ncl * 128))
        a('v_lshl_add_u32 %s, v0, 7, s%d' % (v(vT + 1), sT3))
        a('v_min_u32 %s, L_end-L_pc, %s' % (v(vT + 1), v(vT + 1)))
        a('v_cmp_gt_u32 vcc, %d, v0' % ncl)
        a('s_and_saveexec_b64 s[%d:%d], vcc' % (S_WS, S_WS + 1))
        a('s_cbranch_execz L_nocp')
        a('global_load_dword %s, %s, s[%d:%d]' % (v(255), v(vT + 1), sT0 + 1, sT0 + 2))
        a.label('L_nocp')
        a('s_mov_b64 exec, -1')
    a('s_and_b32 s%d, s2, 7' % sT1)
    a('s_and_b32 s%d, s%d, 15' % (sJ, sT0))
    a('s_lshr_b32 s%d, s%d, 4' % (sT2, sT0))
    a('s_lshl_b32 s%d, s%d, 1' % (sI, sT1))
    a('s_add_u32 s%d, s%d, s%d' % (sI, sI, sT2))
    a('s_lshl_b32 s%d, s%d, 4' % (sCID, sI))
    a('s_add_u32 s%d, s%d, s%d' % (sCID, sCID, sJ))
    a('s_lshr_b32 s%d, s%d, 3' % (sU, sCID))
    a('s_and_b32 s%d, s%d, 7' % (sC, sJ))
    a('s_lshl_b32 s%d, s%d, 1' % (sT2, sT2))
    a('s_and_b32 s%d, s%d, 1' % (sT3, sJ))
    a('s_add_u32 s%d, s%d, s%d' % (sT2, sT2, sT3))
    a('s_lshl_b32 s%d, s%d, 1' % (sT2, sT2))
    a('s_lshr_b32 s%d, s%d, 1' % (sT3, sJ))
    a('s_add_u32 s%d, s%d, s%d' % (sT2, sT2, sT3))
    a('s_and_b32 s%d, s%d, 1' % (sT3, sT1))
    a('s_add_u32 s%d, s%d, s%d' % (sT2, sT2, sT3))
    if cfg.get('rot', 1):
        a('s_and_b32 s%d, s%d, 7' % (sCG, sT2))
    else:
        a('s_mov_b32 s%d, 0' % sCG)
    a('s_lshl_b32 s%d, s%d, 17' % (sXO, sI))
    a('s_lshl_b32 s%d, s%d, 15' % (sT2, sW))
    a('s_add_u32 s%d, s%d, s%d' % (sXO, sXO, sT2))
    a('s_lshl_b32 s%d, s%d, 14' % (sLDSX, sW))
    a('s_add_u32 s%d, s%d, %d' % (sLDSX, sLDSX, L_XS))
    a('s_lshl_b32 s%d, s%d, 11' % (sLDSW, sW))
    a('v_lshrrev_b32 %s, 3, %s' % (v(vT), v(vL)))
    a('v_lshlrev_b32 %s, 10, %s' % (v(vT), v(vT)))
    a('v_lshrrev_b32 %s, 4, %s' % (v(vT + 1), v(vL)))
    a('v_and_b32 %s, 7, %s' % (v(vT + 3), v(vL)))
    a('v_xor_b32 %s, %s, %s' % (v(vT + 1), v(vT + 1), v(vT + 3)))
    a('v_lshl_add_u32 %s, %s, 4, %s' % (v(vXD), v(vT + 1), v(vT)))
    a('v_xor_b32 %s, 64, %s' % (v(vXD + 1), v(vXD)))
    a('v_add_u32 %s, %d, %s' % (v(vXD + 2), 2 * 7168, v(vXD)))
    a('v_add_u32 %s, %d, %s' % (v(vXD + 3), 3 * 7168, v(vXD + 1)))
    a('v_add_u32 %s, %d, %s' % (v(vXD + 1), 7168, v(vXD + 1)))
    a('v_lshrrev_b32 %s, 2, v0' % v(vT))
    a('v_mul_u32_u24 %s, 3072, %s' % (v(vT), v(vT)))
    a('v_and_b32 %s, 3, %s' % (v(vT + 1), v(vL)))
    a('v_lshl_add_u32 %s, %s, 4, %s' % (v(vT), v(vT + 1), v(vT)))
    a('s_lshl_b32 s%d, s%d, 6' % (sT2, sJ))
    a('v_add_u32 %s, s%d, %s' % (v(vWQD), sT2, v(vT)))
    a('v_add_u32 %s, 1024, %s' % (v(vWD), v(vWQD)))
    a('s_waitcnt lgkmcnt(0)')
    if cfg.get('stamps'):
        a('s_mov_b32 s%d, s100' % S_STAMP)
        a.nstamp = 1
    srd(a, S_X, S_PTR + 0, SIZES['x'])
    srd(a, S_WQKV, S_PTR + 2, SIZES['wqkv'])
    srd(a, S_WS, S_PTR + 20, SIZES['ws'])

    a('s_cmp_lg_u32 s%d, 0' % sJ)
    a('s_cbranch_scc1 L_noclear')
    a('v_lshrrev_b32 %s, 4, v0' % v(vT))
    a('v_lshlrev_b32 %s, 7, %s' % (v(vT), v(vT)))
    a('v_bfe_u32 %s, v0, 2, 2' % v(vT + 1))
    a('v_lshl_add_u32 %s, %s, 15, %s' % (v(vT), v(vT + 1), v(vT)))
    a('v_and_b32 %s, 3, v0' % v(vT + 1))
    a('v_lshl_add_u32 %s, %s, 4, %s' % (v(vT), v(vT + 1), v(vT)))
    for i in range(4):
        a('v_mov_b32 %s, 0' % v(vWB + i))
    a('s_lshl_b32 s%d, s%d, 11' % (sT2, sI))
    a('buffer_store_dwordx4 %s, %s, %s, s%d offen sc1' % (v(vWB, 4), v(vT), sr(S_WS), sT2))
    a.label('L_noclear')

    def dma_slot(s):
        def head():
            a('s_lshl_b32 s%d, s%d, 7' % (sT0, sCG))
            a('s_add_u32 s%d, s%d, s%d' % (sT0, sT0, sXO))
            a('s_mul_i32 s%d, s%d, %d' % (sT1, sCG, 64 * 3072))
            a('s_add_u32 m0, s%d, %d' % (sLDSW, s * 8192))
            a('s_add_u32 s%d, s%d, 1' % (sCG, sCG))
            a.vm('buffer_load_dwordx4 %s, %s, s%d offen lds' % (v(vWD), sr(S_WQKV), sT1))
        def g1():
            a('s_and_b32 s%d, s%d, 7' % (sCG, sCG))
            a.vm('buffer_load_dwordx4 %s, %s, s%d offen offset:1024 lds' % (v(vWD), sr(S_WQKV), sT1))
        def gx(q):
            def f():
                if q == 0:
                    a('s_add_u32 m0, s%d, %d' % (sLDSX, (s & 3) * 4096))
                a.vm('buffer_load_dwordx4 %s, %s, s%d offen offset:%d lds' % (v(vXD + q), sr(S_X), sT0, q * 1024))
            return f
        return [head, g1] + [gx(q) for q in range(4)]

    def dma_wq(s):
        def f():
            a('s_mul_i32 s%d, s%d, %d' % (sT1, sCG, 64 * 3072))
            a('s_add_u32 m0, s%d, %d' % (sLDSW, L_WQ + (s >> 1) * 8192 + (s & 1) * 1024))
            a('s_add_u32 s%d, s%d, 1' % (sCG, sCG))
            a('s_and_b32 s%d, s%d, 7' % (sCG, sCG))
            a.vm('buffer_load_dwordx4 %s, %s, s%d offen lds' % (v(vWQD), sr(S_WQKV), sT1))
        return f

    marks = {}
    for s in range(D):
        for g in dma_slot(s):
            g()
        marks[s] = a.vmn

    srd(a, S_WPHI, S_PTR + 4, SIZES['wphi'])
    srd(a, S_WO, S_PTR + 6, SIZES['wo'])
    srd(a, S_W1, S_PTR + 10, SIZES['w1'])
    srd(a, S_B1, S_PTR + 12, SIZES['b1'])
    srd(a, S_W2, S_PTR + 14, SIZES['w2'])
    srd(a, S_OUT, S_PTR + 16, SIZES['out'])
    srd(a, S_DBG, S_PTR + 18, SIZES['dbg'])
    a('s_mov_b32 s%d, 0x%x' % (sONES, ONES))
    a('s_mov_b32 s%d, 0x3f80' % sSEL0)
    a('s_mov_b32 s%d, 0x3f800000' % sSEL1)
    a('s_mov_b32 s%d, 0' % sCNT)
    a('v_lshrrev_b32 %s, 5, %s' % (v(vHH), v(vL)))
    a('v_lshlrev_b32 %s, 4, %s' % (v(vFR), v(vL)))
    a('v_bfe_u32 %s, %s, 2, 1' % (v(vT), v(vL)))
    a('v_bfe_u32 %s, %s, 3, 2' % (v(vT + 1), v(vL)))
    a('v_and_b32 %s, 3, %s' % (v(vT + 2), v(vL)))
    a('v_lshl_add_u32 %s, %s, 2, %s' % (v(vT + 1), v(vT + 1), v(vT + 2)))
    a('v_lshlrev_b32 %s, 1, %s' % (v(vT + 1), v(vT + 1)))
    a('v_lshl_add_u32 %s, %s, 9, %s' % (v(vT + 1), v(vT), v(vT + 1)))
    a('v_lshl_add_u32 %s, %s, 7, %s' % (v(vT + 1), v(vHH), v(vT + 1)))
    a('s_lshl_b32 s%d, s%d, 10' % (sT2, sJ))
    for e in range(8):
        d = 8 * (e >> 2) + (e & 3)
        op = 'buffer_load_short_d16_hi' if e & 1 else 'buffer_load_ushort'
        a.vm('%s %s, %s, %s, s%d offen offset:%d' % (op, v(aQ + e), v(vT + 1), sr(S_WPHI), sT2, d * 32))
    a('v_cmp_eq_u32 s[%d:%d], 0, %s' % (S_PTR + 16, S_PTR + 17, v(vT)))
    a('v_and_b32 %s, 31, %s' % (v(vT), v(vL)))
    a('v_bfe_u32 %s, %s, 1, 3' % (v(vT + 1), v(vL)))
    a('s_lshl_b32 s%d, s%d, 1' % (sT2, sW))
    a('v_add_u32 %s, s%d, %s' % (v(vT + 2), sT2, v(vHH)))
    a('v_xor_b32 %s, %s, %s' % (v(vT + 1), v(vT + 1), v(vT + 2)))
    a('v_lshlrev_b32 %s, 4, %s' % (v(vT + 1), v(vT + 1)))
    a('v_lshl_add_u32 %s, %s, 7, %s' % (v(vT), v(vT), v(vT + 1)))
    a('v_add_u32 %s, s%d, %s' % (v(vXR), sLDSX, v(vT)))
    for p in range(1, 4):
        a('v_xor_b32 %s, %d, %s' % (v(vXR + p), 32 * p, v(vXR)))
    a('v_bfe_u32 %s, %s, 2, 2' % (v(vT), v(vL)))
    a('v_bfe_u32 %s, %s, 4, 1' % (v(vT + 1), v(vL)))
    a('v_and_b32 %s, 3, %s' % (v(vT + 2), v(vL)))
    a('v_lshlrev_b32 %s, 6, %s' % (v(vT), v(vT)))
    a('v_lshl_add_u32 %s, %s, 5, %s' % (v(vT + 3), v(vT + 1), v(vT)))
    a('v_lshl_add_u32 %s, %s, 3, %s' % (v(vT + 3), v(vT + 2), v(vT + 3)))
    a('v_lshl_add_u32 %s, %s, 9, %s' % (v(vT + 3), v(vHH), v(vT + 3)))
    a('v_add_u32 %s, s%d, %s' % (v(vWR), sLDSW, v(vT + 3)))
    for p in range(1, 4):
        a('v_xor_b32 %s, %d, %s' % (v(vWR + p), 2048 * p, v(vWR)))
    a('v_and_b32 %s, 1, %s' % (v(vT + 3), v(vT + 2)))
    a('v_lshl_add_u32 %s, %s, 5, %s' % (v(vT), v(vT + 3), v(vT)))
    a('v_lshl_add_u32 %s, %s, 4, %s' % (v(vT), v(vT + 1), v(vT)))
    a('v_lshrrev_b32 %s, 1, %s' % (v(vT + 2), v(vT + 2)))
    a('v_lshl_add_u32 %s, %s, 3, %s' % (v(vTRN), v(vT + 2), v(vT)))
    for r_ in (s1a, s1b, s2a, s2b, csk, csv, csq):
        a('v_mov_b32 %s, 0' % v(r_))
    def phi_merge():
        for e in range(4):
            a('v_or_b32 %s, %s, %s' % (v(aQ + 8 + e), v(aQ + 2 * e), v(aQ + 2 * e + 1)))
        for e in range(4):
            a('v_cndmask_b32 %s, 0, %s, s[%d:%d]' % (v(vPA1 + e), v(aQ + 8 + e), S_PTR + 16, S_PTR + 17))
            a('v_cndmask_b32 %s, %s, 0, s[%d:%d]' % (v(vPA2 + e), v(aQ + 8 + e), S_PTR + 16, S_PTR + 17))
    a.stamp()

    def reads(s):
        for p in range(4):
            a('ds_read_b128 %s, %s offset:%d' % (v(X + (4 * s + p) * 4, 4), v(vXR + p), (s & 3) * 4096))
            for m in range(2):
                for t in range(2):
                    a('ds_read_b64_tr_b16 %s, %s offset:%d' % (v(vWB + p * 8 + m * 4 + t * 2, 2), v(vWR + p),
                                                              s * 8192 + m * 1024 + t * 256))

    def mf(s, p, m):
        acc = v(aK if m == 0 else aV, 16)
        return lambda: a.mfma32(acc, v(vWB + p * 8 + m * 4, 4), v(X + (4 * s + p) * 4, 4),
                                '0' if (s == 0 and p == 0) else acc)

    def cs_dots():
        for r_ in range(4):
            a('v_dot2_f32_bf16 %s, %s, s%d, %s' % (v(csk), v(vWB + r_), sONES, v(csk)))
            a('v_dot2_f32_bf16 %s, %s, s%d, %s' % (v(csv), v(vWB + 4 + r_), sONES, v(csv)))

    def stat_dots(s):
        for r_ in range(16):
            x = v(X + 16 * s + r_)
            p1, p2 = (s1a, s2a) if r_ & 1 else (s1b, s2b)
            a('v_dot2_f32_bf16 %s, %s, s%d, %s' % (v(p1), x, sONES, v(p1)))
            a('v_dot2_f32_bf16 %s, %s, %s, %s' % (v(p2), x, x, v(p2)))

    wq_list = [dma_wq(s) for s in range(8)]
    for s in range(8):
        a.wait_vm(marks[s])
        a('s_barrier')
        if s == 0:
            a('s_or_b32 s%d, s%d, s%d' % (sT2, sJ, sW))
            a('s_cmp_lg_u32 s%d, 0' % sT2)
            a('s_cbranch_scc1 L_nosig')
            a('s_lshl_b32 s%d, s%d, 2' % (sT2, sI))
            a('v_mov_b32 %s, 0' % v(vT))
            a('v_mov_b32 %s, 1' % v(vT + 1))
            a('s_mov_b64 exec, 1')
            a('buffer_store_dword %s, %s, %s, s%d offen sc1' % (v(vT + 1), v(vT), sr(S_DBG), sT2))
            a('s_mov_b64 exec, -1')
            a.label('L_nosig')
        reads(s)
        if s + D < 8:
            side = dma_slot(s + D)
        else:
            k0 = (s + D - 8) * 8 // D
            k1 = (s + D - 7) * 8 // D
            side = wq_list[k0:k1]
        main = [mf(s, p, m) for p in range(4) for m in range(2)]
        if s < 7:
            interleave(a, main, side)
            if s + D < 8:
                marks[s + D] = a.vmn
            cs_dots()
            stat_dots(s)
            if s == D:
                phi_merge()
        else:
            cs_dots()
            a('v_lshlrev_b32 %s, 3, v0' % v(vT))
            a('ds_write_b64 %s, %s offset:%d' % (v(vT), v(csk, 2), L_CSX))
            stat_dots(s)
            a('s_waitcnt lgkmcnt(0)')
            a('s_barrier')
            a('v_lshlrev_b32 %s, 3, %s' % (v(vT), v(vL)))
            for w in range(4):
                a('ds_read_b64 %s, %s offset:%d' % (v(aQ + 2 * w, 2), v(vT), L_CSX + 512 * w))
            interleave(a, main, side)
            mark_wq = a.vmn
    a.stamp()
    a('v_add_f32 %s, %s, %s' % (v(s1a), v(s1a), v(s1b)))
    a('v_add_f32 %s, %s, %s' % (v(s2a), v(s2a), v(s2b)))
    half_sum2(a, s1a, s2a, vT)
    ln_stats(a, s1a, s2a, mean, rstd, vT)
    a('v_sub_f32 %s, 0, %s' % (v(s1a), v(mean)))
    split_hi_lo(a, s1a, s1b, s2b, vT)
    a('v_cvt_pk_bf16_f32 %s, %s, %s' % (v(vBX), v(s1b), v(s2b)))
    a('v_cvt_pk_bf16_f32 %s, %s, 0' % (v(vBX + 1), v(s1b)))
    a('v_mov_b32 %s, 0' % v(vBX + 2))
    a('v_mov_b32 %s, 0' % v(vBX + 3))
    a('v_mul_f32 %s, 0x%x, %s' % (v(cexp), LOG2E, v(rstd)))

    def a_ext(dst, cs):
        split_hi_lo(a, cs, vT + 1, vT + 2, dst)
        a('v_cvt_pk_bf16_f32 %s, %s, 0' % (v(dst + 1), v(vT + 2)))
        a('v_mov_b32 %s, 0' % v(dst + 2))
        a('v_mov_b32 %s, 0' % v(dst + 3))

    a('v_pk_add_f32 %s, %s, %s' % (v(aQ, 2), v(aQ, 2), v(aQ + 2, 2)))
    a('v_pk_add_f32 %s, %s, %s' % (v(aQ + 4, 2), v(aQ + 4, 2), v(aQ + 6, 2)))
    a('v_pk_add_f32 %s, %s, %s' % (v(csk, 2), v(aQ, 2), v(aQ + 4, 2)))
    a_ext(aQ, csk)
    a_ext(aQ + 4, csv)
    a.mfma32(v(aK, 16), v(aQ, 4), v(vBX, 4), v(aK, 16))
    a.mfma32(v(aV, 16), v(aQ + 4, 4), v(vBX, 4), v(aV, 16))

    vBD = vXD
    def blk_offsets(rowstride, step):
        a('v_bfe_u32 %s, %s, 2, 3' % (v(vT), v(vL)))
        a('v_mul_u32_u24 %s, %d, %s' % (v(vT), rowstride, v(vT)))
        a('v_and_b32 %s, 3, %s' % (v(vT + 1), v(vL)))
        a('v_lshl_add_u32 %s, %s, 4, %s' % (v(vT), v(vT + 1), v(vT)))
        a('v_lshl_add_u32 %s, %s, 6, %s' % (v(vBD), v(vHH), v(vT)))
        for q in range(1, 4):
            a('v_add_u32 %s, %d, %s' % (v(vBD + q), step(q) - 1024 * q, v(vBD)))

    blk_offsets(1024, lambda q: q * 8192)
    def dma_wo(g):
        def f():
            if g % 4 == 0:
                a('s_lshl_b32 s%d, s%d, 17' % (sT0, sW))
                a('s_lshl_b32 s%d, s%d, 7' % (sT1, sC))
                a('s_add_u32 s%d, s%d, s%d' % (sT0, sT0, sT1))
                a('s_add_u32 s%d, s%d, %d' % (sT0, sT0, (g // 4) * 32768))
                a('s_add_u32 m0, s%d, %d' % (sLDSX, (g // 4) * 4096))
            a.vm('buffer_load_dwordx4 %s, %s, s%d offen offset:%d lds' % (v(vBD + g % 4), sr(S_WO), sT0, (g % 4) * 1024))
        return f

    for i in range(8):
        a('v_cvt_pk_bf16_f32 %s, %s, %s' % (v(vWB + i), v(aK + 2 * i), v(aK + 2 * i + 1)))
    a.mfma32(v(aK, 16), v(vPA1, 4), v(vWB, 4), '0')
    a.mfma32(v(aK, 16), v(vPA2, 4), v(vWB + 4, 4), v(aK, 16))
    for i in range(0, 16, 2):
        a('v_pk_mul_f32 %s, %s, %s op_sel_hi:[1,0]' % (v(aV + i, 2), v(aV + i, 2), v(rstd, 2)))
    for i in range(8):
        a('v_cvt_pk_bf16_f32 %s, %s, %s' % (v(aQ + i), v(aV + 2 * i), v(aV + 2 * i + 1)))
    vIM = vXR
    a('v_bfe_u32 %s, %s, 1, 2' % (v(vT), v(vL)))
    a('v_bfe_u32 %s, %s, 3, 1' % (v(vT + 1), v(vL)))
    a('v_lshlrev_b32 %s, 1, %s' % (v(vT + 1), v(vT + 1)))
    a('v_xor_b32 %s, %s, %s' % (v(vT), v(vT), v(vT + 1)))
    a('v_and_b32 %s, 31, %s' % (v(vT + 1), v(vL)))
    a('v_lshlrev_b32 %s, 6, %s' % (v(vT + 1), v(vT + 1)))
    a('v_lshl_add_u32 %s, %s, 4, %s' % (v(vT), v(vT), v(vT + 1)))
    a('v_add_u32 %s, s%d, %s' % (v(vT), sLDSW, v(vT)))
    a('v_lshl_add_u32 %s, %s, 3, %s' % (v(vT + 1), v(vHH), v(vT)))
    for g in range(4):
        a('v_xor_b32 %s, %d, %s' % (v(vT + 2), 16 * g, v(vT + 1)))
        a('ds_write_b64 %s, %s offset:%d' % (v(vT + 2), v(aQ + 2 * g, 2), L_V))
    a('v_lshl_add_u32 %s, %s, 13, %s' % (v(vIM), v(vHH), v(vT)))
    for q in range(1, 4):
        a('v_xor_b32 %s, %d, %s' % (v(vIM + q), 16 * q, v(vIM)))
    softmax_pair(a, aK, vWB, aV, cexp, aQ + 8)
    for q in range(4):
        a('ds_write_b128 %s, %s offset:%d' % (v(vIM + q), v(aV + 4 * q, 4), L_PHI))
    a('v_bfe_u32 %s, %s, 2, 2' % (v(vT), v(vL)))
    a('v_lshrrev_b32 %s, 4, %s' % (v(vT + 1), v(vL)))
    a('v_lshlrev_b32 %s, 9, %s' % (v(vT + 2), v(vT + 1)))
    a('v_lshl_add_u32 %s, %s, 6, %s' % (v(vT + 2), v(vT), v(vT + 2)))
    a('v_lshrrev_b32 %s, 1, %s' % (v(vT), v(vT)))
    a('v_and_b32 %s, 1, %s' % (v(vT + 1), v(vT + 1)))
    a('v_lshl_add_u32 %s, %s, 1, %s' % (v(vT), v(vT + 1), v(vT)))
    a('v_bfe_u32 %s, %s, 1, 1' % (v(vT + 1), v(vL)))
    a('v_xor_b32 %s, %s, %s' % (v(vT), v(vT), v(vT + 1)))
    a('v_lshl_add_u32 %s, %s, 4, %s' % (v(vT + 2), v(vT), v(vT + 2)))
    a('v_and_b32 %s, 1, %s' % (v(vT + 1), v(vL)))
    a('v_lshl_add_u32 %s, %s, 3, %s' % (v(vT + 2), v(vT + 1), v(vT + 2)))
    a('s_and_b32 s%d, s%d, 1' % (sT0, sW))
    a('s_lshr_b32 s%d, s%d, 1' % (sT1, sW))
    a('s_lshl_b32 s%d, s%d, 5' % (sT1, sT1))
    a('s_lshl_b32 s%d, s%d, 13' % (sT2, sT0))
    a('s_or_b32 s%d, s%d, s%d' % (sT1, sT1, sT2))
    a('s_lshl_b32 s%d, s%d, 5' % (sT0, sT0))
    a('v_xor_b32 %s, s%d, %s' % (v(vIM), sT1, v(vT + 2)))
    a('v_xor_b32 %s, 32, %s' % (v(vIM + 1), v(vIM)))
    a('v_xor_b32 %s, s%d, %s' % (v(vIM + 2), sT0, v(vT + 2)))
    a('v_xor_b32 %s, 32, %s' % (v(vIM + 3), v(vIM + 2)))
    for i in range(4):
        a('v_mov_b32 %s, s%d' % (v(aQ + 12 + i), sONES))
    a('s_waitcnt lgkmcnt(0)')
    a('s_barrier')
    a.stamp()
    for s in range(4):
        a('ds_read_b64_tr_b16 %s, %s offset:%d' % (v(vWB + 8 * s, 2), v(vIM), L_PHI + 2048 * s))
        a('ds_read_b64_tr_b16 %s, %s offset:%d' % (v(vWB + 8 * s + 2, 2), v(vIM + 1), L_PHI + 2048 * s + 256))
        a('ds_read_b64_tr_b16 %s, %s offset:%d' % (v(vWB + 8 * s + 4, 2), v(vIM + 2), L_V + 2048 * s))
        a('ds_read_b64_tr_b16 %s, %s offset:%d' % (v(vWB + 8 * s + 6, 2), v(vIM + 3), L_V + 2048 * s + 256))
    a('v_lshlrev_b32 %s, 2, %s' % (v(vT + 2), v(vL)))
    a.vm('buffer_load_dword %s, %s, %s, 0 offen sc1' % (v(vT + 3), v(vT + 2), sr(S_DBG)))
    for s in range(4):
        a.mfma16(v(aK, 4), v(vWB + 8 * s, 4), v(vWB + 8 * s + 4, 4), '0' if s == 0 else v(aK, 4))
        a.mfma16(v(aK + 4, 4), v(vWB + 8 * s, 4), v(aQ + 12, 4), '0' if s == 0 else v(aK + 4, 4))
    a('s_lshl_b32 s%d, s%d, 4' % (sT2, sJ))
    a('s_add_u32 s%d, s%d, s%d' % (sT2, sT2, sI))
    a('s_mul_i32 s%d, s%d, %d' % (sT2, sT2, KVREC))
    a('s_add_u32 s%d, s%d, %d' % (sT2, sT2, KVP))
    a('v_lshlrev_b32 %s, 3, v0' % v(vT))
    a('v_lshrrev_b32 %s, 4, v0' % v(vT + 1))
    a('v_lshlrev_b32 %s, 4, %s' % (v(vT + 1), v(vT + 1)))
    a('v_cvt_pk_bf16_f32 %s, %s, %s' % (v(aK + 8), v(aK), v(aK + 1)))
    a('v_cvt_pk_bf16_f32 %s, %s, %s' % (v(aK + 9), v(aK + 2), v(aK + 3)))
    a.vm('buffer_store_dwordx2 %s, %s, %s, s%d offen sc1' % (v(aK + 8, 2), v(vT), sr(S_WS), sT2))
    a('s_mov_b32 exec_lo, 0x00010001')
    a('s_mov_b32 exec_hi, 0x00010001')
    mark_kv = a.vm('buffer_store_dwordx4 %s, %s, %s, s%d offen offset:2048 sc1' % (v(aK + 4, 4), v(vT + 1), sr(S_WS), sT2))
    a('s_mov_b64 exec, -1')

    for p in range(4):
        a('v_add_u32 %s, %d, %s' % (v(vWR + p), L_WQ, v(vWR + p)))
    a.wait_vm(mark_wq)
    a('s_barrier')
    def qoff(s):
        return (s >> 1) * 8192 + (s & 1) * 1024
    for s in range(8):
        for t in range(2):
            a('ds_read_b64_tr_b16 %s, %s offset:%d' % (v(vWB + 4 * s + 2 * t, 2), v(vWR), qoff(s) + t * 256))
    for r_ in range(32):
        a('v_dot2_f32_bf16 %s, %s, s%d, %s' % (v(csq), v(vWB + r_), sONES, v(csq)))
    a('v_lshlrev_b32 %s, 2, v0' % v(vT))
    a('ds_write_b32 %s, %s offset:%d' % (v(vT), v(csq), L_CSQ))
    wo_list = [dma_wo(g) for g in range(16)]
    order = [(s, p) for p in range(4) for s in range(8)]
    QB = aK
    def qread(n):
        s, p = order[n]
        for t in range(2):
            a('ds_read_b64_tr_b16 %s, %s offset:%d' % (v(QB + 4 * (n % 8) + 2 * t, 2), v(vWR + p), qoff(s) + t * 256))
    main = []
    for n in range(32):
        def f(n=n):
            s, p = order[n]
            if 8 <= n + 6 < 32:
                qread(n + 6)
            src = v(vWB + 4 * s, 4) if p == 0 else v(QB + 4 * (n % 8), 4)
            a.mfma32(v(aQ, 16), src, v(X + (4 * s + p) * 4, 4), '0' if n == 0 else v(aQ, 16))
        main.append(f)
    interleave(a, main, wo_list, first=1, every=2)
    mark_wo = a.vmn
    a.wait_vm(mark_kv)
    lab = a.uniq('L_clr')
    a('s_mov_b64 exec, 0xffff')
    a('v_cmp_ne_u32 vcc, 1, %s' % v(vT + 3))
    a('s_cbranch_vccz %s_ok' % lab)
    a.label(lab)
    a('buffer_load_dword %s, %s, %s, 0 offen sc1' % (v(vT + 3), v(vT + 2), sr(S_DBG)))
    a('s_add_u32 s%d, s%d, 1' % (sCNT, sCNT))
    a('s_cmp_gt_u32 s%d, %d' % (sCNT, SPIN))
    a('s_cbranch_scc1 %s_ok' % lab)
    a('s_waitcnt vmcnt(0)')
    a('v_cmp_ne_u32 vcc, 1, %s' % v(vT + 3))
    a('s_cbranch_vccnz %s' % lab)
    a.label(lab + '_ok')
    a('s_mov_b64 exec, -1')
    a('s_waitcnt lgkmcnt(0)')
    a('s_barrier')
    def baseA():
        a('s_lshl_b32 s%d, s%d, 7' % (sT0, sJ))
        a('s_lshl_b32 s%d, s%d, 2' % (sT1, sI))
        a('s_add_u32 s%d, s%d, s%d' % (sT0, sT0, sT1))
    push_flags(a, 0, vL, vT, 16 * 128, baseA)
    a.stamp()
    a('v_lshlrev_b32 %s, 2, %s' % (v(vT), v(vL)))
    for w in range(4):
        a('ds_read_b32 %s, %s offset:%d' % (v(aK + w), v(vT), L_CSQ + 256 * w))
    a('v_add_f32 %s, %s, %s' % (v(aK), v(aK), v(aK + 1)))
    a('v_add_f32 %s, %s, %s' % (v(aK + 2), v(aK + 2), v(aK + 3)))
    a('v_add_f32 %s, %s, %s' % (v(csq), v(aK), v(aK + 2)))
    a_ext(aK + 4, csq)
    a.mfma32(v(aQ, 16), v(aK + 4, 4), v(vBX, 4), v(aQ, 16))

    vB1 = vXR
    def w1_offsets():
        a('v_bfe_u32 %s, %s, 2, 3' % (v(vT), v(vL)))
        a('v_mul_u32_u24 %s, 3584, %s' % (v(vT), v(vT)))
        a('v_and_b32 %s, 3, %s' % (v(vT + 1), v(vL)))
        a('v_lshl_add_u32 %s, %s, 4, %s' % (v(vT), v(vT + 1), v(vT)))
        a('v_lshl_add_u32 %s, %s, 6, %s' % (v(vT), v(vHH), v(vT)))
        a('v_add_u32 %s, 3072, %s' % (v(vB1), v(vT)))
        for q in range(1, 4):
            a('v_add_u32 %s, %d, %s' % (v(vB1 + q), 3072 + (q >> 1) * 8 * 3584 + (q & 1) * 128 - 1024 * q, v(vT)))
    def dma_w1(half, g):
        def f():
            if g % 4 == 0:
                kb = half * 32 + (g // 4) * 8
                a('s_mul_i32 s%d, s%d, %d' % (sT0, sW, 16 * 3584))
                a('s_lshl_b32 s%d, s%d, 8' % (sT1, sJ))
                a('s_add_u32 s%d, s%d, s%d' % (sT0, sT0, sT1))
                a('s_add_u32 s%d, s%d, %d' % (sT0, sT0, kb * 8 * 3584))
                a('s_lshl_b32 s%d, s%d, 12' % (sT1, sW))
                a('s_add_u32 m0, s%d, %d' % (sT1, L_W1 + kb * 2048))
            a.vm('buffer_load_dwordx4 %s, %s, s%d offen offset:%d lds' % (v(vB1 + g % 4), sr(S_W1), sT0, (g % 4) * 1024))
        return f
    a('s_sub_u32 s%d, s%d, 3072' % (S_W1, S_W1))
    a('s_subb_u32 s%d, s%d, 0' % (S_W1 + 1, S_W1 + 1))
    a('s_add_u32 s%d, s%d, 3072' % (S_W1 + 2, S_W1 + 2))
    w1_offsets()
    for i in range(8):
        a('v_cvt_pk_bf16_f32 %s, %s, %s' % (v(vWB + i), v(aQ + 2 * i), v(aQ + 2 * i + 1)))
    a.mfma32(v(aK, 16), v(vPA1, 4), v(vWB, 4), '0')
    a.mfma32(v(aK, 16), v(vPA2, 4), v(vWB + 4, 4), v(aK, 16))
    PQ = aQ
    softmax_pair(a, aK, vWB, PQ, cexp, aV)
    for q in range(4):
        a('v_permlane32_swap_b32 %s, %s' % (v(PQ + q), v(PQ + 4 + q)))
        a('v_permlane32_swap_b32 %s, %s' % (v(PQ + 8 + q), v(PQ + 12 + q)))
    a.wait_vm(mark_wo)
    a('s_barrier')
    a('s_cmp_ge_u32 s%d, 14' % sJ)
    a('s_cbranch_scc1 L_now1a')
    keep = a.vmn
    for g in range(16):
        dma_w1(0, g)()
    a.vmn = keep
    a.label('L_now1a')
    vWO = vWR
    a('s_lshr_b32 s%d, s%d, 1' % (sT0, sW))
    a('s_mul_i32 s%d, s%d, %d' % (sT1, sT0, 32768 + 512))
    a('s_add_u32 s%d, s%d, %d' % (sT1, sT1, L_WO))
    a('v_lshl_add_u32 %s, %s, 10, %s' % (v(vT), v(vHH), v(vTRN)))
    a('v_add_u32 %s, s%d, %s' % (v(vWO), sT1, v(vT)))
    a('v_xor_b32 %s, 512, %s' % (v(vWO + 1), v(vWO)))
    for s in range(16):
        for rho in range(2):
            for t in range(2):
                a('ds_read_b64_tr_b16 %s, %s offset:%d' % (ac((s * 2 + rho) * 4 + 2 * t, 2), v(vWO + rho), s * 2048 + t * 256))
    XR = X
    a('v_and_b32 %s, 31, %s' % (v(vT), v(vL)))
    a('v_lshlrev_b32 %s, 10, %s' % (v(vT), v(vT)))
    vOUT = vWR + 2
    a('v_lshl_add_u32 %s, %s, 5, %s' % (v(vOUT), v(vHH), v(vT)))
    a('s_lshl_b32 s%d, s%d, 1' % (sT1, sU))
    a('s_and_b32 s%d, s%d, 1' % (sT2, sW))
    a('s_add_u32 s%d, s%d, s%d' % (sT1, sT1, sT2))
    a('s_lshl_b32 s%d, s%d, 15' % (sT4, sT1))
    a('s_lshl_b32 s%d, s%d, 7' % (sT2, sC))
    a('s_add_u32 s%d, s%d, s%d' % (sT4, sT4, sT2))
    a('s_lshl_b32 s%d, s%d, 6' % (sT2, sT0))
    a('s_add_u32 s%d, s%d, s%d' % (sT4, sT4, sT2))
    a.vm('buffer_load_dwordx4 %s, %s, %s, s%d offen' % (v(XR, 4), v(vOUT), sr(S_X), sT4))
    a.vm('buffer_load_dwordx4 %s, %s, %s, s%d offen offset:16' % (v(XR + 4, 4), v(vOUT), sr(S_X), sT4))

    def flag_off(sync):
        def f():
            a('s_lshl_b32 s%d, s%d, 7' % (sT0, sCID))
            if sync:
                a('s_add_u32 s%d, s%d, %d' % (sT0, sT0, sync * 32768))
        return f
    poll(a, S_WS, flag_off(0), 16, vL, vT)
    a('s_waitcnt lgkmcnt(0)')
    a('s_barrier')
    a.stamp()
    G = X + 16
    a('s_mul_i32 s%d, s%d, %d' % (sT2, sJ, 16 * KVREC))
    a('s_add_u32 s%d, s%d, %d' % (sT2, sT2, KVP))
    a('v_lshlrev_b32 %s, 3, v0' % v(vT))
    a('v_and_b32 %s, 15, %s' % (v(vT + 1), v(vL)))
    a('v_mul_u32_u24 %s, %d, %s' % (v(vT + 2), KVREC, v(vT + 1)))
    a('v_lshrrev_b32 %s, 4, v0' % v(vT + 3))
    a('v_lshl_add_u32 %s, %s, 4, %s' % (v(vT + 2), v(vT + 3), v(vT + 2)))
    a.vm('buffer_load_dwordx4 %s, %s, %s, s%d offen offset:2048 sc1' % (v(G + 32, 4), v(vT + 2), sr(S_WS), sT2))
    for p in range(16):
        a.vm('buffer_load_dwordx2 %s, %s, %s, s%d offen sc1' % (v(G + 2 * p, 2), v(vT), sr(S_WS), sT2))
        if p < 15:
            a('s_add_u32 s%d, s%d, %d' % (sT2, sT2, KVREC))
    a('s_cmp_ge_u32 s%d, 14' % sJ)
    a('s_cbranch_scc1 L_now1b')
    keep = a.vmn
    for g in range(16):
        dma_w1(1, g)()
    a.vmn = keep
    a.label('L_now1b')
    for sh in (1, 2, 4, 8):
        for i in range(4):
            a('v_add_f32_dpp %s, %s, %s row_ror:%d row_mask:0xf bank_mask:0xf' % (v(G + 32 + i), v(G + 32 + i), v(G + 32 + i), sh))
    for p in range(16):
        for i in range(4):
            a('v_dot2_f32_bf16 %s, %s, s%d, %s' % (v(aK + i), v(G + 2 * p + (i >> 1)), sSEL1 if i & 1 else sSEL0,
                                                  '0' if p == 0 else v(aK + i)))
    a('s_and_b32 s%d, s%d, 1' % (sT0, sW))
    a('s_mul_i32 s%d, s%d, %d' % (sT0, sT0, 17 * 80))
    a('s_lshr_b32 s%d, s%d, 1' % (sT1, sW))
    a('s_lshl_b32 s%d, s%d, 5' % (sT1, sT1))
    a('s_add_u32 s%d, s%d, s%d' % (sT0, sT0, sT1))
    a('s_add_u32 s%d, s%d, %d' % (sT0, sT0, L_KVB))
    a('v_lshrrev_b32 %s, 4, %s' % (v(vT + 3), v(vL)))
    a('v_lshlrev_b32 %s, 3, %s' % (v(vT + 3), v(vT + 3)))
    a('v_add_u32 %s, s%d, %s' % (v(vT + 3), sT0, v(vT + 3)))
    a('v_mul_u32_u24 %s, 80, %s' % (v(vT + 1), v(vT + 1)))
    a('v_add_u32 %s, %s, %s' % (v(vT + 1), v(vT + 1), v(vT + 3)))
    a('v_cvt_pk_bf16_f32 %s, %s, %s' % (v(aK + 4), v(aK), v(aK + 1)))
    a('v_cvt_pk_bf16_f32 %s, %s, %s' % (v(aK + 5), v(aK + 2), v(aK + 3)))
    a('v_cvt_pk_bf16_f32 %s, %s, %s' % (v(aK + 6), v(G + 32), v(G + 33)))
    a('v_cvt_pk_bf16_f32 %s, %s, %s' % (v(aK + 7), v(G + 34), v(G + 35)))
    a('ds_write_b64 %s, %s' % (v(vT + 1), v(aK + 4, 2)))
    a('ds_write_b64 %s, %s offset:%d' % (v(vT + 3), v(aK + 6, 2), 16 * 80))
    a('v_bfe_u32 %s, %s, 2, 1' % (v(vT), v(vL)))
    a('v_bfe_u32 %s, %s, 3, 1' % (v(vT + 1), v(vL)))
    a('v_and_b32 %s, 3, %s' % (v(vT + 2), v(vL)))
    a('v_lshl_add_u32 %s, %s, 3, %s' % (v(vT + 2), v(vT), v(vT + 2)))
    a('v_lshl_add_u32 %s, %s, 2, %s' % (v(vT + 2), v(vT + 1), v(vT + 2)))
    a('v_and_b32 %s, 16, %s' % (v(vT), v(vL)))
    a('v_cmp_eq_u32 vcc, 0, %s' % v(vT))
    a('v_cndmask_b32 %s, 16, %s, vcc' % (v(vT + 2), v(vT + 2)))
    a('v_mul_u32_u24 %s, 80, %s' % (v(vT + 2), v(vT + 2)))
    a('v_lshl_add_u32 %s, %s, 4, %s' % (v(vT + 2), v(vHH), v(vT + 2)))
    a('v_add_u32 %s, %d, %s' % (v(vT + 2), L_KVB, v(vT + 2)))
    a('s_waitcnt lgkmcnt(0)')
    a('s_barrier')
    for h in range(2):
        for s in range(2):
            a('ds_read_b128 %s, %s offset:%d' % (v(vWB + (h * 2 + s) * 4, 4), v(vT + 2), h * 17 * 80 + s * 32))
    for h in range(2):
        acc = v(aK if h == 0 else aV, 16)
        a.mfma32(acc, v(vWB + h * 8, 4), v(PQ + 4 * h, 4), '0')
        a.mfma32(acc, v(vWB + h * 8 + 4, 4), v(PQ + 8 + 4 * h, 4), acc)
    a('s_lshl_b32 s%d, s%d, 2' % (sT0, sI))
    a('s_add_u32 s%d, s%d, s%d' % (sT0, sT0, sW))
    a('s_lshl_b32 s%d, s%d, 15' % (sT0, sT0))
    a('s_lshl_b32 s%d, s%d, 11' % (sT1, sJ))
    a('s_add_u32 s%d, s%d, s%d' % (sT0, sT0, sT1))
    a('s_add_u32 s%d, s%d, %d' % (sT0, sT0, O_))
    for h in range(2):
        acc = aK if h == 0 else aV
        a('v_add_f32 %s, 0x358637bd, %s' % (v(acc + 8), v(acc + 8)))
        a('v_rcp_f32 %s, %s' % (v(acc + 8), v(acc + 8)))
        for i in range(0, 8, 2):
            a('v_pk_mul_f32 %s, %s, %s op_sel_hi:[1,0]' % (v(acc + i, 2), v(acc + i, 2), v(acc + 8, 2)))
        for i in range(4):
            a('v_cvt_pk_bf16_f32 %s, %s, %s' % (v(acc + 12 + i), v(acc + 2 * i), v(acc + 2 * i + 1)))
        a.vm('buffer_store_dwordx4 %s, %s, %s, s%d offen offset:%d %s' % (v(acc + 12, 4), v(vFR), sr(S_WS), sT0, h * 1024, SC))
    a('s_waitcnt vmcnt(0)')
    a('s_barrier')
    def base_cluster(sync):
        def f():
            a('s_lshl_b32 s%d, s%d, 11' % (sT0, sI))
            a('s_lshl_b32 s%d, s%d, 2' % (sT1, sJ))
            a('s_add_u32 s%d, s%d, s%d' % (sT0, sT0, sT1))
            a('s_add_u32 s%d, s%d, %d' % (sT0, sT0, sync * 32768))
        return f
    push_flags(a, 1, vL, vT, 128, base_cluster(1))
    a.stamp()

    vW1 = vXR
    a('v_lshl_add_u32 %s, %s, 12, %s' % (v(vW1), v(vHH), v(vTRN)))
    a('v_add_u32 %s, 65536, %s' % (v(vW1 + 1), v(vW1)))
    def w1off(ks, ht, t):
        T, a_ = ks >> 1, ks & 1
        off = (4 * T + a_) * 2048 + (ht >> 1) * 1024 + (ht & 1) * 512 + t * 256
        return (vW1 + (off >> 16), off & 0xffff)
    AX = vS
    a('s_cmp_ge_u32 s%d, 14' % sJ)
    a('s_cbranch_scc1 L_nocs1')
    keep = a.vmn
    a('s_lshl_b32 s%d, s%d, 9' % (sT0, sW))
    a('v_add_u32 %s, s%d, %s' % (v(vW1 + 2), sT0, v(vW1)))
    a('v_add_u32 %s, s%d, %s' % (v(vW1 + 3), sT0, v(vW1 + 1)))
    a('v_bfe_u32 %s, %s, 2, 1' % (v(vT), v(vL)))
    a('v_bfe_u32 %s, %s, 3, 2' % (v(vT + 1), v(vL)))
    a('v_and_b32 %s, 3, %s' % (v(vT + 2), v(vL)))
    a('v_lshl_add_u32 %s, %s, 4, %s' % (v(vT + 2), v(vT), v(vT + 2)))
    a('v_lshl_add_u32 %s, %s, 2, %s' % (v(vT + 2), v(vT + 1), v(vT + 2)))
    a('v_lshlrev_b32 %s, 1, %s' % (v(vT + 2), v(vT + 2)))
    a('v_lshl_add_u32 %s, %s, 13, %s' % (v(vT + 2), v(vHH), v(vT + 2)))
    a('s_lshl_b32 s%d, s%d, 8' % (sT1, sJ))
    for ht in range(4):
        a('buffer_load_ushort %s, %s, %s, s%d offen offset:%d' % (v(AX + 4 * ht + 2), v(vT + 2), sr(S_B1), sT1, ht * 64))
    CB = X + 16
    a('v_mov_b32 %s, 0' % v(vT))
    a('v_mov_b32 %s, 0' % v(vT + 1))
    for part in range(2):
        for ks in range(16):
            for t in range(2):
                b, off = w1off(part * 16 + ks, 0, t)
                a('ds_read_b64_tr_b16 %s, %s offset:%d' % (v(CB + 4 * ks + 2 * t, 2), v(b + 2), off))
        for r_ in range(64):
            a('v_dot2_f32_bf16 %s, %s, s%d, %s' % (v(vT + (r_ & 1)), v(CB + r_), sONES, v(vT + (r_ & 1))))
    a('v_add_f32 %s, %s, %s' % (v(vT), v(vT), v(vT + 1)))
    a('v_lshlrev_b32 %s, 2, v0' % v(vT + 1))
    a('v_add_u32 %s, %d, %s' % (v(vT + 1), L_CS1, v(vT + 1)))
    a('ds_write_b32 %s, %s' % (v(vT + 1), v(vT)))
    a.vmn = keep
    a.label('L_nocs1')

    poll(a, S_WS, flag_off(1), 16, vL, vT)
    a('s_waitcnt lgkmcnt(0)')
    a('s_barrier')
    a.stamp()
    OB = X + 16
    a('s_lshl_b32 s%d, s%d, 1' % (sT0, sU))
    a('s_and_b32 s%d, s%d, 1' % (sT1, sW))
    a('s_add_u32 s%d, s%d, s%d' % (sT3, sT0, sT1))
    a('s_lshl_b32 s%d, s%d, 15' % (sT0, sT3))
    a('s_lshr_b32 s%d, s%d, 1' % (sT1, sW))
    a('s_lshl_b32 s%d, s%d, 14' % (sT1, sT1))
    a('s_add_u32 s%d, s%d, s%d' % (sT0, sT0, sT1))
    a('s_add_u32 s%d, s%d, %d' % (sT0, sT0, O_))
    for s in range(16):
        if s and s % 4 == 0:
            a('s_add_u32 s%d, s%d, 4096' % (sT0, sT0))
        a.vm('buffer_load_dwordx4 %s, %s, %s, s%d offen offset:%d %s' % (v(OB + 4 * s, 4), v(vFR), sr(S_WS), sT0, (s % 4) * 1024, SC))
    a('v_lshlrev_b32 %s, 2, %s' % (v(vT + 3), v(vL)))
    a('v_add_u32 %s, %d, %s' % (v(vT + 3), L_CS1, v(vT + 3)))
    for ht in range(4):
        a('ds_read_b32 %s, %s offset:%d' % (v(AX + 4 * ht + 3), v(vT + 3), 256 * ht))
    for ht in range(4):
        d = AX + 4 * ht
        split_hi_lo(a, d + 3, vT + 1, vT + 2, d)
        a('v_cvt_pk_bf16_f32 %s, %s, 0' % (v(d + 1), v(vT + 2)))
        a('v_lshl_or_b32 %s, %s, 16, %s' % (v(d + 1), v(d + 2), v(d + 1)))
        a('v_mov_b32 %s, 0' % v(d + 3))
    for s in range(16):
        for rho in range(2):
            acc = v(aK if rho == 0 else aV, 16)
            a.mfma32(acc, ac((s * 2 + rho) * 4, 4), v(OB + 4 * s, 4), '0' if s == 0 else acc)
    a('s_xor_b32 s%d, s%d, 2' % (sT0, sW))
    a('s_lshl_b32 s%d, s%d, 12' % (sT0, sT0))
    a('s_add_u32 s%d, s%d, %d' % (sT0, sT0, L_RED3))
    a('v_add_u32 %s, s%d, %s' % (v(vT), sT0, v(vFR)))
    a('v_xor_b32 %s, 8192, %s' % (v(vT + 1), v(vT)))
    for q in range(4):
        a('ds_write_b128 %s, %s offset:%d' % (v(vT), v(aV + 4 * q, 4), q * 1024))
    for i in range(8):
        a('v_lshlrev_b32 %s, 16, %s' % (v(aQ + 2 * i), v(XR + i)))
        a('v_and_b32 %s, 0xffff0000, %s' % (v(aQ + 2 * i + 1), v(XR + i)))
    a('s_waitcnt lgkmcnt(0)')
    a('s_barrier')
    for q in range(4):
        a('ds_read_b128 %s, %s offset:%d' % (v(aV + 4 * q, 4), v(vT + 1), q * 1024))
    HP = vPA1
    for i in range(0, 16, 2):
        a('v_pk_add_f32 %s, %s, %s' % (v(aK + i, 2), v(aK + i, 2), v(aV + i, 2)))
    for i in range(8):
        a('v_cvt_pk_bf16_f32 %s, %s, %s' % (v(aV + i), v(aK + 2 * i), v(aK + 2 * i + 1)))
    for i in range(8):
        a('v_lshlrev_b32 %s, 16, %s' % (v(aK + 2 * i), v(aV + i)))
        a('v_and_b32 %s, 0xffff0000, %s' % (v(aK + 2 * i + 1), v(aV + i)))
    for i in range(0, 16, 2):
        a('v_pk_add_f32 %s, %s, %s' % (v(aK + i, 2), v(aK + i, 2), v(aQ + i, 2)))
    for i in range(8):
        a('v_cvt_pk_bf16_f32 %s, %s, %s' % (v(HP + i), v(aK + 2 * i), v(aK + 2 * i + 1)))
    a('s_lshl_b32 s%d, s%d, 1' % (sT1, sC))
    a('s_lshr_b32 s%d, s%d, 1' % (sT2, sW))
    a('s_add_u32 s%d, s%d, s%d' % (sT1, sT1, sT2))
    a('s_lshl_b32 s%d, s%d, 15' % (sT0, sT3))
    a('s_lshl_b32 s%d, s%d, 11' % (sT2, sT1))
    a('s_add_u32 s%d, s%d, s%d' % (sT0, sT0, sT2))
    a('s_add_u32 s%d, s%d, %d' % (sT0, sT0, H_))
    a.vm('buffer_store_dwordx4 %s, %s, %s, s%d offen %s' % (v(HP, 4), v(vFR), sr(S_WS), sT0, SC))
    a.vm('buffer_store_dwordx4 %s, %s, %s, s%d offen offset:1024 %s' % (v(HP + 4, 4), v(vFR), sr(S_WS), sT0, SC))
    for i in range(8):
        a('v_dot2_f32_bf16 %s, %s, s%d, %s' % (v(vT), v(HP + i), sONES, '0' if i == 0 else v(vT)))
        a('v_dot2_f32_bf16 %s, %s, %s, %s' % (v(vT + 1), v(HP + i), v(HP + i), '0' if i == 0 else v(vT + 1)))
    a('v_permlane32_swap_b32 %s, %s' % (v(vT), v(vT + 1)))
    a('v_add_f32 %s, %s, %s' % (v(vT), v(vT), v(vT + 1)))
    a('s_lshl_b32 s%d, s%d, 12' % (sT0, sT3))
    a('s_lshl_b32 s%d, s%d, 8' % (sT2, sT1))
    a('s_add_u32 s%d, s%d, s%d' % (sT0, sT0, sT2))
    a('s_add_u32 s%d, s%d, %d' % (sT0, sT0, ST))
    vL4 = vWR + 3
    a('v_lshlrev_b32 %s, 2, %s' % (v(vL4), v(vL)))
    a.vm('buffer_store_dword %s, %s, %s, s%d offen %s' % (v(vT), v(vL4), sr(S_WS), sT0, SC))
    a('s_waitcnt vmcnt(0)')
    a('s_barrier')
    push_flags(a, 2, vL, vT, 128, base_cluster(2))
    a.stamp()

    vW2 = vWR
    blk_offsets(1024, lambda q: q * 8192)
    a('s_lshr_b32 s%d, s%d, 1' % (sT0, sW))
    a('s_lshl_b32 s%d, s%d, 9' % (sT0, sT0))
    a('s_lshl_b32 s%d, s%d, 12' % (sLDSX, sW))
    a('s_add_u32 s%d, s%d, %d' % (sLDSX, sLDSX, L_W2S))
    a('s_add_u32 s%d, s%d, s%d' % (sT0, sT0, sLDSX))
    a('v_lshl_add_u32 %s, %s, 11, %s' % (v(vT), v(vHH), v(vTRN)))
    a('v_add_u32 %s, s%d, %s' % (v(vW2), sT0, v(vT)))
    a('v_xor_b32 %s, 512, %s' % (v(vW2 + 1), v(vW2)))
    a('s_mul_i32 s%d, s%d, %d' % (sXO, sW, 448 * 1024))
    a('s_lshl_b32 s%d, s%d, 7' % (sT0, sC))
    a('s_add_u32 s%d, s%d, s%d' % (sXO, sXO, sT0))
    def w2_dma(T):
        a('s_add_u32 s%d, s%d, %d' % (sT0, sXO, T * 32768))
        a('s_mov_b32 m0, s%d' % sLDSX)
        for q in range(4):
            a.vm('buffer_load_dwordx4 %s, %s, s%d offen offset:%d lds' % (v(vBD + q), sr(S_W2), sT0, q * 1024))
        return a.vmn
    def w2_park(T):
        for a_ in range(2):
            for rho in range(2):
                for t in range(2):
                    a('ds_read_b64_tr_b16 %s, %s offset:%d' % (ac(((2 * T + a_) * 2 + rho) * 4 + 2 * t, 2), v(vW2 + rho),
                                                              a_ * 1024 + t * 256))
    for T in range(14):
        m = w2_dma(T)
        a.wait_vm(m)
        w2_park(T)
        a('s_waitcnt lgkmcnt(0)')

    a('s_cmp_ge_u32 s%d, 14' % sJ)
    a('s_cbranch_scc1 L_nop4')
    keep = a.vmn
    poll(a, S_WS, flag_off(2), 16, vL, vT)
    a('s_barrier')
    a.stamp()
    a('s_lshl_b32 s%d, s%d, 2' % (sT3, sI))
    a('s_add_u32 s%d, s%d, s%d' % (sT3, sT3, sW))
    a('s_lshl_b32 s%d, s%d, 15' % (sT0, sT3))
    a('s_add_u32 s%d, s%d, %d' % (sT0, sT0, H_))
    for s in range(32):
        if s and s % 4 == 0:
            a('s_add_u32 s%d, s%d, 4096' % (sT0, sT0))
        a('buffer_load_dwordx4 %s, %s, %s, s%d offen offset:%d %s' % (v(X + 4 * s, 4), v(vFR), sr(S_WS), sT0, (s % 4) * 1024, SC))
    a('s_lshl_b32 s%d, s%d, 12' % (sT0, sT3))
    a('s_add_u32 s%d, s%d, %d' % (sT0, sT0, ST))
    SB = aQ
    for ct in range(16):
        a('buffer_load_dword %s, %s, %s, s%d offen offset:%d %s' % (v(SB + ct), v(vL4), sr(S_WS), sT0, ct * 256, SC))
    a('s_mul_i32 s%d, s%d, %d' % (sT2, sT3, 112 * 1024))
    a('s_lshl_b32 s%d, s%d, 13' % (sT1, sJ))
    a('s_add_u32 s%d, s%d, s%d' % (sT2, sT2, sT1))
    a('s_add_u32 s%d, s%d, %d' % (sT2, sT2, ACT))
    RING = vWB
    seq = [(ht, ks) for ht in range(4) for ks in range(32)]
    def aread(n):
        ht, ks = seq[n]
        for t in range(2):
            b, off = w1off(ks, ht, t)
            a('ds_read_b64_tr_b16 %s, %s offset:%d' % (v(RING + 4 * (n % 8) + 2 * t, 2), v(b), off))
    for n in range(6):
        aread(n)
    c1, c2, c3 = vXD, vXD + 1, vXD + 2
    BX = vT
    def stats2():
        for i in range(0, 8, 2):
            a('v_pk_add_f32 %s, %s, %s' % (v(SB + i, 2), v(SB + i, 2), v(SB + 8 + i, 2)))
        a('v_pk_add_f32 %s, %s, %s' % (v(SB, 2), v(SB, 2), v(SB + 4, 2)))
        a('v_pk_add_f32 %s, %s, %s' % (v(SB + 2, 2), v(SB + 2, 2), v(SB + 6, 2)))
        a('v_pk_add_f32 %s, %s, %s' % (v(SB, 2), v(SB, 2), v(SB + 2, 2)))
        a('v_add_f32 %s, %s, %s' % (v(SB), v(SB), v(SB + 1)))
        a('v_mov_b32 %s, %s' % (v(SB + 1), v(SB)))
        a('v_permlane32_swap_b32 %s, %s' % (v(SB), v(SB + 1)))
        ln_stats(a, SB, SB + 1, SB + 2, c3, SB + 3)
        a('v_mul_f32 %s, %s, %s' % (v(SB + 4), v(SB + 1), v(c3)))
        a('v_sub_f32 %s, 0, %s' % (v(SB + 2), v(SB + 2)))
        split_hi_lo(a, SB + 2, SB + 5, SB + 6, SB + 3)
        split_hi_lo(a, SB + 4, SB + 7, SB + 8, SB + 3)
        a('v_cvt_pk_bf16_f32 %s, %s, %s' % (v(BX), v(SB + 5), v(SB + 6)))
        a('v_cvt_pk_bf16_f32 %s, %s, %s' % (v(BX + 1), v(SB + 5), v(SB + 7)))
        a('v_cvt_pk_bf16_f32 %s, %s, 0' % (v(BX + 2), v(SB + 8)))
        a('v_mov_b32 %s, 0' % v(BX + 3))
        a('v_mul_f32 %s, 0x%x, %s' % (v(c1), LOG2E, v(c3)))
        a('v_mul_f32 %s, -2.0, %s' % (v(c2), v(c3)))
    def mish_ops(acc, ht):
        ops = []
        T1, T2, PK = aQ, aQ + 4, aQ + 8
        for g in range(0, 16, 4):
            for i in range(4):
                ops.append('v_mul_f32 %s, %s, %s' % (v(T1 + i), v(acc + g + i), v(c1)))
            for i in range(4):
                ops.append('v_exp_f32 %s, %s' % (v(T1 + i), v(T1 + i)))
            for i in range(4):
                ops.append('v_add_f32 %s, 2.0, %s' % (v(T2 + i), v(T1 + i)))
            for i in range(4):
                ops.append('v_fma_f32 %s, %s, %s, 2.0' % (v(T1 + i), v(T1 + i), v(T2 + i)))
            for i in range(4):
                ops.append('v_rcp_f32 %s, %s' % (v(T1 + i), v(T1 + i)))
            for i in range(4):
                ops.append('v_fma_f32 %s, %s, %s, %s' % (v(T1 + i), v(T1 + i), v(c2), v(c3)))
            for i in range(4):
                ops.append('v_mul_f32 %s, %s, %s' % (v(T1 + i), v(T1 + i), v(acc + g + i)))
            for i in range(2):
                ops.append('v_cvt_pk_bf16_f32 %s, %s, %s' % (v(PK + g // 2 + i), v(T1 + 2 * i), v(T1 + 2 * i + 1)))
            if g % 8 == 4:
                ops.append('buffer_store_dwordx4 %s, %s, %s, s%d offen offset:%d %s' % (
                    v(PK + (g // 8) * 4, 4), v(vFR), sr(S_WS), sT2, ((2 * ht + g // 8) % 4) * 1024, SC))
                if (2 * ht + g // 8) % 4 == 3:
                    ops.append('s_add_u32 s%d, s%d, 4096' % (sT2, sT2))
        return ops
    pending = []
    for ht in range(4):
        acc = aK if ht % 2 == 0 else aV
        per = (len(pending) + 29) // 30
        for ks in range(32):
            n = ht * 32 + ks
            if n + 6 < 128:
                aread(n + 6)
            a.mfma32(v(acc, 16), v(RING + 4 * (n % 8), 4), v(X + 4 * ks, 4), '0' if ks == 0 else v(acc, 16))
            if ks >= 1:
                for o in pending[:per]:
                    a(o)
                pending = pending[per:]
        for o in pending:
            a(o)
        if ht == 0:
            stats2()
        a.mfma32(v(acc, 16), v(AX + 4 * ht, 4), v(BX, 4), v(acc, 16))
        pending = mish_ops(acc, ht)
    for o in pending:
        a(o)
    a('s_waitcnt vmcnt(0)')
    a('s_barrier')
    push_flags(a, 3, vL, vT, 128, base_cluster(3))
    a.vmn = keep
    a.label('L_nop4')
    a.stamp()

    poll(a, S_WS, flag_off(3), 14, vL, vT)
    a('s_barrier')
    a.stamp()
    a('s_lshl_b32 s%d, s%d, 1' % (sT0, sU))
    a('s_and_b32 s%d, s%d, 1' % (sT1, sW))
    a('s_add_u32 s%d, s%d, s%d' % (sT0, sT0, sT1))
    a('s_xor_b32 s%d, s%d, 1' % (sT1, sT0))
    a('s_mul_i32 s%d, s%d, %d' % (sT0, sT0, 112 * 1024))
    a('s_mul_i32 s%d, s%d, %d' % (sT1, sT1, 112 * 1024))
    a('s_mul_i32 s%d, s%d, %d' % (sT2, sW, 28 * 1024))
    a('s_add_u32 s%d, s%d, %d' % (sT2, sT2, ACT))
    a('s_add_u32 s%d, s%d, s%d' % (sT0, sT0, sT2))
    a('s_add_u32 s%d, s%d, s%d' % (sT1, sT1, sT2))
    ACC = 32
    def bload(n):
        ks, tau = n >> 1, n & 1
        sreg = sT0 + tau
        if ks and ks % 4 == 0:
            a('s_add_u32 s%d, s%d, 4096' % (sreg, sreg))
        a.vm('buffer_load_dwordx4 %s, %s, %s, s%d offen offset:%d %s' % (v(X + 4 * (n % 32), 4), v(vFR), sr(S_WS), sreg, (ks % 4) * 1024, SC))
    PRE = cfg.get('p5pre', 16)
    for n in range(PRE):
        bload(n)
    for n in range(56):
        ks, tau = n >> 1, n & 1
        for rc in range(2):
            acc = v(ACC + 16 * (tau + 2 * rc), 16)
            a.mfma32(acc, ac((ks * 2 + rc) * 4, 4), v(X + 4 * (n % 32), 4), '0' if ks == 0 else acc)
            if rc == 0 and n + PRE < 56:
                bload(n + PRE)
    a.stamp()
    for rho in range(1, 4):
        a('s_xor_b32 s%d, s%d, %d' % (sT0, sW, rho))
        a('s_mul_i32 s%d, s%d, 12288' % (sT0, sT0))
        a('s_add_u32 s%d, s%d, %d' % (sT0, sT0, L_RED5 + (rho - 1) * 4096))
        a('v_add_u32 %s, s%d, %s' % (v(vT), sT0, v(vFR)))
        for q in range(4):
            a('ds_write_b128 %s, %s offset:%d' % (v(vT), v(ACC + 16 * rho + 4 * q, 4), q * 1024))
    a('s_mul_i32 s%d, s%d, 12288' % (sT0, sW))
    a('v_add_u32 %s, s%d, %s' % (v(vT), sT0, v(vFR)))
    for i in range(8):
        a('v_lshlrev_b32 %s, 16, %s' % (v(X + 2 * i), v(HP + i)))
        a('v_and_b32 %s, 0xffff0000, %s' % (v(X + 2 * i + 1), v(HP + i)))
    a('s_waitcnt lgkmcnt(0)')
    a('s_barrier')
    for n in range(12):
        a('ds_read_b128 %s, %s offset:%d' % (v(ACC + 16 + 4 * n, 4), v(vT), L_RED5 + n * 1024))
    for rho in range(1, 4):
        for i in range(0, 16, 2):
            a('v_pk_add_f32 %s, %s, %s' % (v(ACC + i, 2), v(ACC + i, 2), v(ACC + 16 * rho + i, 2)))
    for i in range(8):
        a('v_cvt_pk_bf16_f32 %s, %s, %s' % (v(ACC + 16 + i), v(ACC + 2 * i), v(ACC + 2 * i + 1)))
    for i in range(8):
        a('v_lshlrev_b32 %s, 16, %s' % (v(ACC + 2 * i), v(ACC + 16 + i)))
        a('v_and_b32 %s, 0xffff0000, %s' % (v(ACC + 2 * i + 1), v(ACC + 16 + i)))
    for i in range(0, 16, 2):
        a('v_pk_add_f32 %s, %s, %s' % (v(ACC + i, 2), v(ACC + i, 2), v(X + i, 2)))
    for i in range(8):
        a('v_cvt_pk_bf16_f32 %s, %s, %s' % (v(ACC + 16 + i), v(ACC + 2 * i), v(ACC + 2 * i + 1)))
    a.vm('buffer_store_dwordx4 %s, %s, %s, s%d offen' % (v(ACC + 16, 4), v(vOUT), sr(S_OUT), sT4))
    a.vm('buffer_store_dwordx4 %s, %s, %s, s%d offen offset:16' % (v(ACC + 20, 4), v(vOUT), sr(S_OUT), sT4))
    if cfg.get('stamps'):
        a('s_waitcnt vmcnt(0)')
        a.stamp()
        assert a.nstamp <= 16
        a('s_cmp_lg_u32 s%d, 0' % sW)
        a('s_cbranch_scc1 L_end')
        if 'probe' in cfg:
            a('s_sub_u32 s%d, s%d, s%d' % (sT0, S_STAMP + cfg['probe'], S_STAMP))
            a('s_cmp_ge_u32 s%d, 14' % sJ)
            a('s_cselect_b32 s%d, 0, s%d' % (sT0, sT0))
            a('s_min_u32 s%d, s%d, 10000' % (sT0, sT0))
            a('s_lshl_b32 s%d, s%d, 2' % (sT0, sT0))
            a('s_add_u32 s%d, s%d, 10000' % (sT0, sT0))
            a.label('L_probe')
            a('s_memrealtime s[%d:%d]' % (S_PTR, S_PTR + 1))
            a('s_waitcnt lgkmcnt(0)')
            a('s_sub_u32 s%d, s%d, s%d' % (sT1, S_PTR, S_STAMP))
            a('s_cmp_lt_u32 s%d, s%d' % (sT1, sT0))
            a('s_cbranch_scc1 L_probe')
        for i in range(16):
            a('v_mov_b32 %s, s%d' % (v(X + i), S_STAMP + i))
        a('s_lshl_b32 s%d, s2, 6' % sT0)
        a('s_add_u32 s%d, s%d, 0x%x' % (sT0, sT0, STAMP))
        a('v_mov_b32 %s, 0' % v(vT))
        for i in range(4):
            a('buffer_store_dwordx4 %s, %s, %s, s%d offen offset:%d' % (v(X + 4 * i, 4), v(vT), sr(S_WS), sT0, 16 * i))
    a.label('L_end')
    a('s_endpgm')
    body = finalize(a)
    return body


HEADER = open('header.txt').read().rstrip('\n').split('\n')


def build(cfg, path):
    body = gen(cfg)
    k = kernel_text(NAME + '_kernel', body, vgprs=512, accum=256, sgprs=102)
    hdr = HEADER + ['; @launch grid=(256,1,1) block=(256,1,1) lds=163840']
    open(path, 'w').write(module_text(hdr, [k]))


if __name__ == '__main__':
    import json
    cfg = json.loads(sys.argv[2]) if len(sys.argv) > 2 else {}
    build(cfg, sys.argv[1])
```

```python
import sys
sys.path.insert(0, 'gen')
from asmlib import *
from common import *

FL, KVP, ST, O_, H_, ACT, STAMP = 0x0, 0x40000, 0x100000, 0x200000, 0x400000, 0x600000, 0x8000000
KVREC = 2304
L_WKV, L_XS, L_WQ = 0, 65536, 131072
L_PHI, L_V, L_CSX, L_CSQ = 0, 16384, 24576, 28672
L_WO = 65536
L_W1 = 0
L_RED3, L_KVB, L_CS1, L_W2S = 131072, 147456, 151552, 147456
L_RED5 = 0
LOG2E = 0x3fb8aa3b
ONES = 0x3f803f80

S_X, S_WQKV, S_WPHI, S_WO, S_W1, S_B1, S_W2, S_OUT, S_DBG, S_WS = 4, 8, 12, 16, 20, 24, 28, 32, 36, 40
sI, sJ, sW, sU, sC, sCG, sXO, sT0, sT1, sT2, sT3, sONES, sSEL0, sSEL1, sLDSX, sLDSW, sCID, sT4 = range(44, 62)
sCNT = 62
SPIN = 400000
S_PTR = 64
S_STAMP = 86


def v(i, n=1):
    return 'v%d' % i if n == 1 else 'v[%d:%d]' % (i, i + n - 1)


def ac(i, n=1):
    return 'a%d' % i if n == 1 else 'a[%d:%d]' % (i, i + n - 1)


def sr(i):
    return 's[%d:%d]' % (i, i + 3)


class K(Asm):
    def __init__(self, cfg):
        super().__init__()
        self.cfg = cfg
        self.vmn = 0
        self.nstamp = 0
        self.names = []

    def vm(self, text):
        self(text)
        self.vmn += 1
        return self.vmn

    def wait_vm(self, mark):
        self('s_waitcnt vmcnt(%d)' % min(63, self.vmn - mark))

    def stamp(self, name='', level=1):
        only = self.cfg.get('only')
        if self.cfg.get('stamps', 0) >= level and (only is None or name in only or name == 'end'):
            n = self.nstamp
            self.nstamp += 1
            self.names.append(name)
            self('s_memrealtime s[%d:%d]' % (S_PTR, S_PTR + 1))
            if self.cfg.get('cyc'):
                assert n < 32
                self('s_memtime s[%d:%d]' % (S_PTR + 2, S_PTR + 3))
            self('s_waitcnt lgkmcnt(0)')
            self('v_writelane_b32 v4, s%d, %d' % (S_PTR, n))
            if self.cfg.get('cyc'):
                self('v_writelane_b32 v4, s%d, %d' % (S_PTR + 2, 32 + n))

    def mfma32(self, d, a_, b, c):
        self('v_mfma_f32_32x32x16_bf16 %s, %s, %s, %s' % (d, a_, b, c))

    def mfma16(self, d, a_, b, c):
        self('v_mfma_f32_16x16x32_bf16 %s, %s, %s, %s' % (d, a_, b, c))


def interleave(a, main, side, first=0, every=1):
    si = 0
    for n, g in enumerate(main):
        g()
        if n >= first and (n - first) % every == 0 and si < len(side):
            side[si]()
            si += 1
    while si < len(side):
        side[si]()
        si += 1


def split_hi_lo(a, src, hi_f, lo_f, tmp):
    a('v_cvt_pk_bf16_f32 %s, %s, %s' % (v(tmp), v(src), v(src)))
    a('v_and_b32 %s, 0xffff0000, %s' % (v(hi_f), v(tmp)))
    a('v_sub_f32 %s, %s, %s' % (v(lo_f), v(src), v(hi_f)))


def half_sum2(a, x, y, t):
    a('v_permlane32_swap_b32 %s, %s' % (v(x), v(y)))
    a('v_add_f32 %s, %s, %s' % (v(x), v(x), v(y)))
    a('v_mov_b32 %s, %s' % (v(y), v(x)))
    a('v_permlane32_swap_b32 %s, %s' % (v(x), v(y)))


def ln_stats(a, s1, s2, mean, rstd, t):
    a('v_mul_f32 %s, 0x3b000000, %s' % (v(mean), v(s1)))
    a('v_mul_f32 %s, %s, %s' % (v(t), v(mean), v(mean)))
    a('v_mov_b32 %s, 0x3b000000' % v(rstd))
    a('v_fma_f32 %s, %s, %s, -%s' % (v(s2), v(s2), v(rstd), v(t)))
    a('v_max_f32 %s, 0, %s' % (v(s2), v(s2)))
    a('v_add_f32 %s, 0x3727c5ac, %s' % (v(s2), v(s2)))
    a('v_rsq_f32 %s, %s' % (v(rstd), v(s2)))


def softmax_pair(a, P, E, OUT, c, t):
    mx, mn, sp, sn = t, t + 1, t + 2, t + 3
    a('v_max3_f32 %s, %s, %s, %s' % (v(mx), v(P), v(P + 1), v(P + 2)))
    a('v_min3_f32 %s, %s, %s, %s' % (v(mn), v(P), v(P + 1), v(P + 2)))
    for i in range(3, 15, 2):
        a('v_max3_f32 %s, %s, %s, %s' % (v(mx), v(mx), v(P + i), v(P + i + 1)))
        a('v_min3_f32 %s, %s, %s, %s' % (v(mn), v(mn), v(P + i), v(P + i + 1)))
    a('v_max_f32 %s, %s, %s' % (v(mx), v(mx), v(P + 15)))
    a('v_min_f32 %s, %s, %s' % (v(mn), v(mn), v(P + 15)))
    a('v_mul_f32 %s, %s, %s' % (v(mx), v(mx), v(c)))
    a('v_mul_f32 %s, %s, %s' % (v(mn), v(mn), v(c)))
    for i in range(16):
        a('v_fma_f32 %s, %s, %s, -%s' % (v(E + i), v(P + i), v(c), v(mx)))
        a('v_fma_f32 %s, -%s, %s, %s' % (v(E + 16 + i), v(P + i), v(c), v(mn)))
    for i in range(32):
        a('v_exp_f32 %s, %s' % (v(E + i), v(E + i)))
    a('v_pk_add_f32 %s, %s, %s' % (v(sp, 2), v(E, 2), v(E + 2, 2)))
    a('v_pk_add_f32 %s, %s, %s' % (v(t + 4, 2), v(E + 16, 2), v(E + 18, 2)))
    for i in range(4, 16, 2):
        a('v_pk_add_f32 %s, %s, %s' % (v(sp, 2), v(sp, 2), v(E + i, 2)))
        a('v_pk_add_f32 %s, %s, %s' % (v(t + 4, 2), v(t + 4, 2), v(E + 16 + i, 2)))
    a('v_add_f32 %s, %s, %s' % (v(sp), v(sp), v(sp + 1)))
    a('v_add_f32 %s, %s, %s' % (v(t + 4), v(t + 4), v(t + 5)))
    a('v_rcp_f32 %s, %s' % (v(sp), v(sp)))
    a('v_rcp_f32 %s, %s' % (v(t + 4), v(t + 4)))
    for i in range(0, 16, 2):
        a('v_pk_mul_f32 %s, %s, %s op_sel_hi:[1,0]' % (v(E + i, 2), v(E + i, 2), v(sp, 2)))
        a('v_pk_mul_f32 %s, %s, %s op_sel_hi:[1,0]' % (v(E + 16 + i, 2), v(E + 16 + i, 2), v(t + 4, 2)))
    for i in range(16):
        a('v_cvt_pk_bf16_f32 %s, %s, %s' % (v(OUT + i), v(E + 2 * i), v(E + 2 * i + 1)))


def push_flags(a, sync, vL, vt, stride_lane, base_expr):
    lab = a.uniq('L_nopush')
    a('s_cmp_lg_u32 s%d, 0' % sW)
    a('s_cbranch_scc1 %s' % lab)
    base_expr()
    a('v_mul_u32_u24 %s, %d, %s' % (v(vt), stride_lane, v(vL)))
    a('v_mov_b32 %s, 1' % v(vt + 1))
    a('s_mov_b64 exec, 0xffff')
    a('buffer_store_dword %s, %s, %s, s%d offen sc1' % (v(vt + 1), v(vt), sr(S_WS), sT0))
    a('s_mov_b64 exec, -1')
    a.label(lab)


def poll(a, srd_, off_expr, n, vL, vt):
    lab = a.uniq('L_nopoll')
    lp = a.uniq('L_poll')
    a('s_cmp_lg_u32 s%d, 0' % sW)
    a('s_cbranch_scc1 %s' % lab)
    off_expr()
    a('v_lshlrev_b32 %s, 2, %s' % (v(vt), v(vL)))
    a('s_mov_b64 exec, 0x%x' % ((1 << n) - 1))
    a.label(lp)
    a('buffer_load_dword %s, %s, %s, s%d offen sc1' % (v(vt + 1), v(vt), sr(srd_), sT0))
    a('s_add_u32 s%d, s%d, 1' % (sCNT, sCNT))
    a('s_cmp_gt_u32 s%d, %d' % (sCNT, SPIN))
    a('s_cbranch_scc1 %s_x' % lp)
    a('s_waitcnt vmcnt(0)')
    a('v_cmp_ne_u32 vcc, 1, %s' % v(vt + 1))
    a('s_cbranch_vccnz %s' % lp)
    a.label(lp + '_x')
    a('s_mov_b64 exec, -1')
    a.label(lab)


def gen(cfg):
    a = K(cfg)
    SC = 'sc1'
    D = cfg.get('depth', 2)
    vL, vHH, vTRN, vTRM, vFR = 1, 2, 3, 4, 5
    vXD, vWD, vWQD, vXR, vWR = 6, 10, 11, 12, 16
    vPA1, vPA2 = 20, 24
    vT = 28
    aK, aV, aQ = 32, 48, 64
    vWB = 80
    vS = 112
    X = 128
    s1a, s1b, s2a, s2b, csk, csv, csq, mean, rstd, cexp = range(vS, vS + 10)
    vBX = vS + 12

    a('s_cmp_ge_u32 s2, 256')
    a('s_cbranch_scc1 L_end')
    if cfg.get('stamps'):
        a('s_memrealtime s[100:101]')
        a('s_memtime s[98:99]')
    a('s_load_dwordx16 s[%d:%d], s[0:1], 0' % (S_PTR, S_PTR + 15))
    a('s_load_dwordx4 s[%d:%d], s[0:1], 64' % (S_PTR + 16, S_PTR + 19))
    a('s_load_dwordx2 s[%d:%d], s[0:1], 80' % (S_PTR + 20, S_PTR + 21))
    a('s_getpc_b64 s[%d:%d]' % (sT0 + 1, sT0 + 2))
    a.label('L_pc')
    a('s_lshr_b32 s%d, s2, 3' % sT0)
    a('v_lshrrev_b32 %s, 6, v0' % v(vT))
    a('v_and_b32 %s, 63, v0' % v(vL))
    a('v_readfirstlane_b32 s%d, %s' % (sW, v(vT)))
    ncl = cfg.get('code_lines', 10)
    if ncl:
        a('s_mul_i32 s%d, s%d, %d' % (sT3, sT0, ncl * 128))
        a('v_lshl_add_u32 %s, v0, 7, s%d' % (v(vT + 1), sT3))
        a('v_min_u32 %s, L_end-L_pc, %s' % (v(vT + 1), v(vT + 1)))
        a('v_cmp_gt_u32 vcc, %d, v0' % ncl)
        a('s_and_saveexec_b64 s[%d:%d], vcc' % (S_WS, S_WS + 1))
        a('s_cbranch_execz L_nocp')
        a('global_load_dword %s, %s, s[%d:%d]' % (v(255), v(vT + 1), sT0 + 1, sT0 + 2))
        a.label('L_nocp')
        a('s_mov_b64 exec, -1')
    a('s_and_b32 s%d, s2, 7' % sT1)
    a('s_and_b32 s%d, s%d, 15' % (sJ, sT0))
    a('s_lshr_b32 s%d, s%d, 4' % (sT2, sT0))
    a('s_lshl_b32 s%d, s%d, 1' % (sI, sT1))
    a('s_add_u32 s%d, s%d, s%d' % (sI, sI, sT2))
    a('s_lshl_b32 s%d, s%d, 4' % (sCID, sI))
    a('s_add_u32 s%d, s%d, s%d' % (sCID, sCID, sJ))
    a('s_lshr_b32 s%d, s%d, 3' % (sU, sCID))
    a('s_and_b32 s%d, s%d, 7' % (sC, sJ))
    a('s_lshl_b32 s%d, s%d, 1' % (sT2, sT2))
    a('s_and_b32 s%d, s%d, 1' % (sT3, sJ))
    a('s_add_u32 s%d, s%d, s%d' % (sT2, sT2, sT3))
    a('s_lshl_b32 s%d, s%d, 1' % (sT2, sT2))
    a('s_lshr_b32 s%d, s%d, 1' % (sT3, sJ))
    a('s_add_u32 s%d, s%d, s%d' % (sT2, sT2, sT3))
    a('s_and_b32 s%d, s%d, 1' % (sT3, sT1))
    a('s_add_u32 s%d, s%d, s%d' % (sT2, sT2, sT3))
    if cfg.get('rot', 1):
        a('s_and_b32 s%d, s%d, 7' % (sCG, sT2))
    else:
        a('s_mov_b32 s%d, 0' % sCG)
    a('s_lshl_b32 s%d, s%d, 17' % (sXO, sI))
    a('s_lshl_b32 s%d, s%d, 15' % (sT2, sW))
    a('s_add_u32 s%d, s%d, s%d' % (sXO, sXO, sT2))
    a('s_lshl_b32 s%d, s%d, 14' % (sLDSX, sW))
    a('s_add_u32 s%d, s%d, %d' % (sLDSX, sLDSX, L_XS))
    a('s_lshl_b32 s%d, s%d, 11' % (sLDSW, sW))
    a('v_lshrrev_b32 %s, 3, %s' % (v(vT), v(vL)))
    a('v_lshlrev_b32 %s, 10, %s' % (v(vT), v(vT)))
    a('v_lshrrev_b32 %s, 4, %s' % (v(vT + 1), v(vL)))
    a('v_and_b32 %s, 7, %s' % (v(vT + 3), v(vL)))
    a('v_xor_b32 %s, %s, %s' % (v(vT + 1), v(vT + 1), v(vT + 3)))
    a('v_lshl_add_u32 %s, %s, 4, %s' % (v(vXD), v(vT + 1), v(vT)))
    a('v_xor_b32 %s, 64, %s' % (v(vXD + 1), v(vXD)))
    a('v_add_u32 %s, %d, %s' % (v(vXD + 2), 2 * 7168, v(vXD)))
    a('v_add_u32 %s, %d, %s' % (v(vXD + 3), 3 * 7168, v(vXD + 1)))
    a('v_add_u32 %s, %d, %s' % (v(vXD + 1), 7168, v(vXD + 1)))
    a('v_lshrrev_b32 %s, 2, v0' % v(vT))
    a('v_mul_u32_u24 %s, 3072, %s' % (v(vT), v(vT)))
    a('v_and_b32 %s, 3, %s' % (v(vT + 1), v(vL)))
    a('v_lshl_add_u32 %s, %s, 4, %s' % (v(vT), v(vT + 1), v(vT)))
    a('s_lshl_b32 s%d, s%d, 6' % (sT2, sJ))
    a('v_add_u32 %s, s%d, %s' % (v(vWQD), sT2, v(vT)))
    a('v_add_u32 %s, 1024, %s' % (v(vWD), v(vWQD)))
    a('s_waitcnt lgkmcnt(0)')
    if cfg.get('stamps'):
        a('v_mov_b32 v4, 0')
        a('v_writelane_b32 v4, s100, 0')
        if cfg.get('cyc'):
            a('v_writelane_b32 v4, s98, 32')
        a.nstamp = 1
        a.names.append('start')
    srd(a, S_X, S_PTR + 0, SIZES['x'])
    srd(a, S_WQKV, S_PTR + 2, SIZES['wqkv'])
    srd(a, S_WS, S_PTR + 20, SIZES['ws'])

    a('s_cmp_lg_u32 s%d, 0' % sJ)
    a('s_cbranch_scc1 L_noclear')
    a('v_lshrrev_b32 %s, 4, v0' % v(vT))
    a('v_lshlrev_b32 %s, 7, %s' % (v(vT), v(vT)))
    a('v_bfe_u32 %s, v0, 2, 2' % v(vT + 1))
    a('v_lshl_add_u32 %s, %s, 15, %s' % (v(vT), v(vT + 1), v(vT)))
    a('v_and_b32 %s, 3, v0' % v(vT + 1))
    a('v_lshl_add_u32 %s, %s, 4, %s' % (v(vT), v(vT + 1), v(vT)))
    for i in range(4):
        a('v_mov_b32 %s, 0' % v(vWB + i))
    a('s_lshl_b32 s%d, s%d, 11' % (sT2, sI))
    a('buffer_store_dwordx4 %s, %s, %s, s%d offen sc1' % (v(vWB, 4), v(vT), sr(S_WS), sT2))
    a.label('L_noclear')

    def dma_slot(s):
        def head():
            a('s_lshl_b32 s%d, s%d, 7' % (sT0, sCG))
            a('s_add_u32 s%d, s%d, s%d' % (sT0, sT0, sXO))
            a('s_mul_i32 s%d, s%d, %d' % (sT1, sCG, 64 * 3072))
            a('s_add_u32 m0, s%d, %d' % (sLDSW, s * 8192))
            a('s_add_u32 s%d, s%d, 1' % (sCG, sCG))
            a.vm('buffer_load_dwordx4 %s, %s, s%d offen lds' % (v(vWD), sr(S_WQKV), sT1))
        def g1():
            a('s_and_b32 s%d, s%d, 7' % (sCG, sCG))
            a.vm('buffer_load_dwordx4 %s, %s, s%d offen offset:1024 lds' % (v(vWD), sr(S_WQKV), sT1))
        def gx(q):
            def f():
                if q == 0:
                    a('s_add_u32 m0, s%d, %d' % (sLDSX, (s & 3) * 4096))
                a.vm('buffer_load_dwordx4 %s, %s, s%d offen offset:%d lds' % (v(vXD + q), sr(S_X), sT0, q * 1024))
            return f
        return [head, g1] + [gx(q) for q in range(4)]

    def dma_wq(s):
        def f():
            a('s_mul_i32 s%d, s%d, %d' % (sT1, sCG, 64 * 3072))
            a('s_add_u32 m0, s%d, %d' % (sLDSW, L_WQ + (s >> 1) * 8192 + (s & 1) * 1024))
            a('s_add_u32 s%d, s%d, 1' % (sCG, sCG))
            a('s_and_b32 s%d, s%d, 7' % (sCG, sCG))
            a.vm('buffer_load_dwordx4 %s, %s, s%d offen lds' % (v(vWQD), sr(S_WQKV), sT1))
        return f

    marks = {}
    for s in range(D):
        for g in dma_slot(s):
            g()
        marks[s] = a.vmn

    srd(a, S_WPHI, S_PTR + 4, SIZES['wphi'])
    srd(a, S_WO, S_PTR + 6, SIZES['wo'])
    srd(a, S_W1, S_PTR + 10, SIZES['w1'])
    srd(a, S_B1, S_PTR + 12, SIZES['b1'])
    srd(a, S_W2, S_PTR + 14, SIZES['w2'])
    srd(a, S_OUT, S_PTR + 16, SIZES['out'])
    srd(a, S_DBG, S_PTR + 18, SIZES['dbg'])
    a('s_mov_b32 s%d, 0x%x' % (sONES, ONES))
    a('s_mov_b32 s%d, 0x3f80' % sSEL0)
    a('s_mov_b32 s%d, 0x3f800000' % sSEL1)
    a('s_mov_b32 s%d, 0' % sCNT)
    a('v_lshrrev_b32 %s, 5, %s' % (v(vHH), v(vL)))
    a('v_lshlrev_b32 %s, 4, %s' % (v(vFR), v(vL)))
    a('v_bfe_u32 %s, %s, 2, 1' % (v(vT), v(vL)))
    a('v_bfe_u32 %s, %s, 3, 2' % (v(vT + 1), v(vL)))
    a('v_and_b32 %s, 3, %s' % (v(vT + 2), v(vL)))
    a('v_lshl_add_u32 %s, %s, 2, %s' % (v(vT + 1), v(vT + 1), v(vT + 2)))
    a('v_lshlrev_b32 %s, 1, %s' % (v(vT + 1), v(vT + 1)))
    a('v_lshl_add_u32 %s, %s, 9, %s' % (v(vT + 1), v(vT), v(vT + 1)))
    a('v_lshl_add_u32 %s, %s, 7, %s' % (v(vT + 1), v(vHH), v(vT + 1)))
    a('s_lshl_b32 s%d, s%d, 10' % (sT2, sJ))
    for e in range(8):
        d = 8 * (e >> 2) + (e & 3)
        op = 'buffer_load_short_d16_hi' if e & 1 else 'buffer_load_ushort'
        a.vm('%s %s, %s, %s, s%d offen offset:%d' % (op, v(aQ + e), v(vT + 1), sr(S_WPHI), sT2, d * 32))
    a('v_cmp_eq_u32 s[%d:%d], 0, %s' % (S_PTR + 16, S_PTR + 17, v(vT)))
    a('v_and_b32 %s, 31, %s' % (v(vT), v(vL)))
    a('v_bfe_u32 %s, %s, 1, 3' % (v(vT + 1), v(vL)))
    a('s_lshl_b32 s%d, s%d, 1' % (sT2, sW))
    a('v_add_u32 %s, s%d, %s' % (v(vT + 2), sT2, v(vHH)))
    a('v_xor_b32 %s, %s, %s' % (v(vT + 1), v(vT + 1), v(vT + 2)))
    a('v_lshlrev_b32 %s, 4, %s' % (v(vT + 1), v(vT + 1)))
    a('v_lshl_add_u32 %s, %s, 7, %s' % (v(vT), v(vT), v(vT + 1)))
    a('v_add_u32 %s, s%d, %s' % (v(vXR), sLDSX, v(vT)))
    for p in range(1, 4):
        a('v_xor_b32 %s, %d, %s' % (v(vXR + p), 32 * p, v(vXR)))
    a('v_bfe_u32 %s, %s, 2, 2' % (v(vT), v(vL)))
    a('v_bfe_u32 %s, %s, 4, 1' % (v(vT + 1), v(vL)))
    a('v_and_b32 %s, 3, %s' % (v(vT + 2), v(vL)))
    a('v_lshlrev_b32 %s, 6, %s' % (v(vT), v(vT)))
    a('v_lshl_add_u32 %s, %s, 5, %s' % (v(vT + 3), v(vT + 1), v(vT)))
    a('v_lshl_add_u32 %s, %s, 3, %s' % (v(vT + 3), v(vT + 2), v(vT + 3)))
    a('v_lshl_add_u32 %s, %s, 9, %s' % (v(vT + 3), v(vHH), v(vT + 3)))
    a('v_add_u32 %s, s%d, %s' % (v(vWR), sLDSW, v(vT + 3)))
    for p in range(1, 4):
        a('v_xor_b32 %s, %d, %s' % (v(vWR + p), 2048 * p, v(vWR)))
    a('v_and_b32 %s, 1, %s' % (v(vT + 3), v(vT + 2)))
    a('v_lshl_add_u32 %s, %s, 5, %s' % (v(vT), v(vT + 3), v(vT)))
    a('v_lshl_add_u32 %s, %s, 4, %s' % (v(vT), v(vT + 1), v(vT)))
    a('v_lshrrev_b32 %s, 1, %s' % (v(vT + 2), v(vT + 2)))
    a('v_lshl_add_u32 %s, %s, 3, %s' % (v(vTRN), v(vT + 2), v(vT)))
    for r_ in (s1a, s1b, s2a, s2b, csk, csv, csq):
        a('v_mov_b32 %s, 0' % v(r_))
    def phi_merge():
        for e in range(4):
            a('v_or_b32 %s, %s, %s' % (v(aQ + 8 + e), v(aQ + 2 * e), v(aQ + 2 * e + 1)))
        for e in range(4):
            a('v_cndmask_b32 %s, 0, %s, s[%d:%d]' % (v(vPA1 + e), v(aQ + 8 + e), S_PTR + 16, S_PTR + 17))
            a('v_cndmask_b32 %s, %s, 0, s[%d:%d]' % (v(vPA2 + e), v(aQ + 8 + e), S_PTR + 16, S_PTR + 17))
    a.stamp('prolog')

    def reads(s):
        for p in range(4):
            a('ds_read_b128 %s, %s offset:%d' % (v(X + (4 * s + p) * 4, 4), v(vXR + p), (s & 3) * 4096))
            for m in range(2):
                for t in range(2):
                    a('ds_read_b64_tr_b16 %s, %s offset:%d' % (v(vWB + p * 8 + m * 4 + t * 2, 2), v(vWR + p),
                                                              s * 8192 + m * 1024 + t * 256))

    def mf(s, p, m):
        acc = v(aK if m == 0 else aV, 16)
        return lambda: a.mfma32(acc, v(vWB + p * 8 + m * 4, 4), v(X + (4 * s + p) * 4, 4),
                                '0' if (s == 0 and p == 0) else acc)

    def cs_dots():
        for r_ in range(4):
            a('v_dot2_f32_bf16 %s, %s, s%d, %s' % (v(csk), v(vWB + r_), sONES, v(csk)))
            a('v_dot2_f32_bf16 %s, %s, s%d, %s' % (v(csv), v(vWB + 4 + r_), sONES, v(csv)))

    def stat_dots(s):
        for r_ in range(16):
            x = v(X + 16 * s + r_)
            p1, p2 = (s1a, s2a) if r_ & 1 else (s1b, s2b)
            a('v_dot2_f32_bf16 %s, %s, s%d, %s' % (v(p1), x, sONES, v(p1)))
            a('v_dot2_f32_bf16 %s, %s, %s, %s' % (v(p2), x, x, v(p2)))

    wq_list = [dma_wq(s) for s in range(8)]
    for s in range(8):
        a.wait_vm(marks[s])
        a('s_barrier')
        a.stamp('c%d' % s, 2)
        if s == 0:
            a('s_or_b32 s%d, s%d, s%d' % (sT2, sJ, sW))
            a('s_cmp_lg_u32 s%d, 0' % sT2)
            a('s_cbranch_scc1 L_nosig')
            a('s_lshl_b32 s%d, s%d, 2' % (sT2, sI))
            a('v_mov_b32 %s, 0' % v(vT))
            a('v_mov_b32 %s, 1' % v(vT + 1))
            a('s_mov_b64 exec, 1')
            a('buffer_store_dword %s, %s, %s, s%d offen sc1' % (v(vT + 1), v(vT), sr(S_DBG), sT2))
            a('s_mov_b64 exec, -1')
            a.label('L_nosig')
        reads(s)
        if s + D < 8:
            side = dma_slot(s + D)
        else:
            k0 = (s + D - 8) * 8 // D
            k1 = (s + D - 7) * 8 // D
            side = wq_list[k0:k1]
        main = [mf(s, p, m) for p in range(4) for m in range(2)]
        if s < 7:
            interleave(a, main, side)
            if s + D < 8:
                marks[s + D] = a.vmn
            cs_dots()
            stat_dots(s)
            if s == D:
                phi_merge()
        else:
            cs_dots()
            a('v_lshlrev_b32 %s, 3, v0' % v(vT))
            a('ds_write_b64 %s, %s offset:%d' % (v(vT), v(csk, 2), L_CSX))
            stat_dots(s)
            a('s_waitcnt lgkmcnt(0)')
            a('s_barrier')
            a('v_lshlrev_b32 %s, 3, %s' % (v(vT), v(vL)))
            for w in range(4):
                a('ds_read_b64 %s, %s offset:%d' % (v(aQ + 2 * w, 2), v(vT), L_CSX + 512 * w))
            interleave(a, main, side)
            mark_wq = a.vmn
    a.stamp('p1end')
    a('v_add_f32 %s, %s, %s' % (v(s1a), v(s1a), v(s1b)))
    a('v_add_f32 %s, %s, %s' % (v(s2a), v(s2a), v(s2b)))
    half_sum2(a, s1a, s2a, vT)
    ln_stats(a, s1a, s2a, mean, rstd, vT)
    a('v_sub_f32 %s, 0, %s' % (v(s1a), v(mean)))
    split_hi_lo(a, s1a, s1b, s2b, vT)
    a('v_cvt_pk_bf16_f32 %s, %s, %s' % (v(vBX), v(s1b), v(s2b)))
    a('v_cvt_pk_bf16_f32 %s, %s, 0' % (v(vBX + 1), v(s1b)))
    a('v_mov_b32 %s, 0' % v(vBX + 2))
    a('v_mov_b32 %s, 0' % v(vBX + 3))
    a('v_mul_f32 %s, 0x%x, %s' % (v(cexp), LOG2E, v(rstd)))

    def a_ext(dst, cs):
        split_hi_lo(a, cs, vT + 1, vT + 2, dst)
        a('v_cvt_pk_bf16_f32 %s, %s, 0' % (v(dst + 1), v(vT + 2)))
        a('v_mov_b32 %s, 0' % v(dst + 2))
        a('v_mov_b32 %s, 0' % v(dst + 3))

    a('v_pk_add_f32 %s, %s, %s' % (v(aQ, 2), v(aQ, 2), v(aQ + 2, 2)))
    a('v_pk_add_f32 %s, %s, %s' % (v(aQ + 4, 2), v(aQ + 4, 2), v(aQ + 6, 2)))
    a('v_pk_add_f32 %s, %s, %s' % (v(csk, 2), v(aQ, 2), v(aQ + 4, 2)))
    a_ext(aQ, csk)
    a_ext(aQ + 4, csv)
    a.mfma32(v(aK, 16), v(aQ, 4), v(vBX, 4), v(aK, 16))
    a.mfma32(v(aV, 16), v(aQ + 4, 4), v(vBX, 4), v(aV, 16))

    vBD = vXD
    def blk_offsets(rowstride, step):
        a('v_bfe_u32 %s, %s, 2, 3' % (v(vT), v(vL)))
        a('v_mul_u32_u24 %s, %d, %s' % (v(vT), rowstride, v(vT)))
        a('v_and_b32 %s, 3, %s' % (v(vT + 1), v(vL)))
        a('v_lshl_add_u32 %s, %s, 4, %s' % (v(vT), v(vT + 1), v(vT)))
        a('v_lshl_add_u32 %s, %s, 6, %s' % (v(vBD), v(vHH), v(vT)))
        for q in range(1, 4):
            a('v_add_u32 %s, %d, %s' % (v(vBD + q), step(q) - 1024 * q, v(vBD)))

    blk_offsets(1024, lambda q: q * 8192)
    def dma_wo(g):
        def f():
            if g % 4 == 0:
                a('s_lshl_b32 s%d, s%d, 17' % (sT0, sW))
                a('s_lshl_b32 s%d, s%d, 7' % (sT1, sC))
                a('s_add_u32 s%d, s%d, s%d' % (sT0, sT0, sT1))
                a('s_add_u32 s%d, s%d, %d' % (sT0, sT0, (g // 4) * 32768))
                a('s_add_u32 m0, s%d, %d' % (sLDSX, (g // 4) * 4096))
            a.vm('buffer_load_dwordx4 %s, %s, s%d offen offset:%d lds' % (v(vBD + g % 4), sr(S_WO), sT0, (g % 4) * 1024))
        return f

    a.stamp('ext', 2)
    for i in range(8):
        a('v_cvt_pk_bf16_f32 %s, %s, %s' % (v(vWB + i), v(aK + 2 * i), v(aK + 2 * i + 1)))
    a.mfma32(v(aK, 16), v(vPA1, 4), v(vWB, 4), '0')
    a.mfma32(v(aK, 16), v(vPA2, 4), v(vWB + 4, 4), v(aK, 16))
    for i in range(0, 16, 2):
        a('v_pk_mul_f32 %s, %s, %s op_sel_hi:[1,0]' % (v(aV + i, 2), v(aV + i, 2), v(rstd, 2)))
    for i in range(8):
        a('v_cvt_pk_bf16_f32 %s, %s, %s' % (v(aQ + i), v(aV + 2 * i), v(aV + 2 * i + 1)))
    vIM = vXR
    a('v_bfe_u32 %s, %s, 1, 2' % (v(vT), v(vL)))
    a('v_bfe_u32 %s, %s, 3, 1' % (v(vT + 1), v(vL)))
    a('v_lshlrev_b32 %s, 1, %s' % (v(vT + 1), v(vT + 1)))
    a('v_xor_b32 %s, %s, %s' % (v(vT), v(vT), v(vT + 1)))
    a('v_and_b32 %s, 31, %s' % (v(vT + 1), v(vL)))
    a('v_lshlrev_b32 %s, 6, %s' % (v(vT + 1), v(vT + 1)))
    a('v_lshl_add_u32 %s, %s, 4, %s' % (v(vT), v(vT), v(vT + 1)))
    a('v_add_u32 %s, s%d, %s' % (v(vT), sLDSW, v(vT)))
    a('v_lshl_add_u32 %s, %s, 3, %s' % (v(vT + 1), v(vHH), v(vT)))
    for g in range(4):
        a('v_xor_b32 %s, %d, %s' % (v(vT + 2), 16 * g, v(vT + 1)))
        a('ds_write_b64 %s, %s offset:%d' % (v(vT + 2), v(aQ + 2 * g, 2), L_V))
    a('v_lshl_add_u32 %s, %s, 13, %s' % (v(vIM), v(vHH), v(vT)))
    for q in range(1, 4):
        a('v_xor_b32 %s, %d, %s' % (v(vIM + q), 16 * q, v(vIM)))
    softmax_pair(a, aK, vWB, aV, cexp, aQ + 8)
    for q in range(4):
        a('ds_write_b128 %s, %s offset:%d' % (v(vIM + q), v(aV + 4 * q, 4), L_PHI))
    a('v_bfe_u32 %s, %s, 2, 2' % (v(vT), v(vL)))
    a('v_lshrrev_b32 %s, 4, %s' % (v(vT + 1), v(vL)))
    a('v_lshlrev_b32 %s, 9, %s' % (v(vT + 2), v(vT + 1)))
    a('v_lshl_add_u32 %s, %s, 6, %s' % (v(vT + 2), v(vT), v(vT + 2)))
    a('v_lshrrev_b32 %s, 1, %s' % (v(vT), v(vT)))
    a('v_and_b32 %s, 1, %s' % (v(vT + 1), v(vT + 1)))
    a('v_lshl_add_u32 %s, %s, 1, %s' % (v(vT), v(vT + 1), v(vT)))
    a('v_bfe_u32 %s, %s, 1, 1' % (v(vT + 1), v(vL)))
    a('v_xor_b32 %s, %s, %s' % (v(vT), v(vT), v(vT + 1)))
    a('v_lshl_add_u32 %s, %s, 4, %s' % (v(vT + 2), v(vT), v(vT + 2)))
    a('v_and_b32 %s, 1, %s' % (v(vT + 1), v(vL)))
    a('v_lshl_add_u32 %s, %s, 3, %s' % (v(vT + 2), v(vT + 1), v(vT + 2)))
    a('s_and_b32 s%d, s%d, 1' % (sT0, sW))
    a('s_lshr_b32 s%d, s%d, 1' % (sT1, sW))
    a('s_lshl_b32 s%d, s%d, 5' % (sT1, sT1))
    a('s_lshl_b32 s%d, s%d, 13' % (sT2, sT0))
    a('s_or_b32 s%d, s%d, s%d' % (sT1, sT1, sT2))
    a('s_lshl_b32 s%d, s%d, 5' % (sT0, sT0))
    a('v_xor_b32 %s, s%d, %s' % (v(vIM), sT1, v(vT + 2)))
    a('v_xor_b32 %s, 32, %s' % (v(vIM + 1), v(vIM)))
    a('v_xor_b32 %s, s%d, %s' % (v(vIM + 2), sT0, v(vT + 2)))
    a('v_xor_b32 %s, 32, %s' % (v(vIM + 3), v(vIM + 2)))
    for i in range(4):
        a('v_mov_b32 %s, s%d' % (v(aQ + 12 + i), sONES))
    a('s_waitcnt lgkmcnt(0)')
    a('s_barrier')
    a.stamp('B1')
    for s in range(4):
        a('ds_read_b64_tr_b16 %s, %s offset:%d' % (v(vWB + 8 * s, 2), v(vIM), L_PHI + 2048 * s))
        a('ds_read_b64_tr_b16 %s, %s offset:%d' % (v(vWB + 8 * s + 2, 2), v(vIM + 1), L_PHI + 2048 * s + 256))
        a('ds_read_b64_tr_b16 %s, %s offset:%d' % (v(vWB + 8 * s + 4, 2), v(vIM + 2), L_V + 2048 * s))
        a('ds_read_b64_tr_b16 %s, %s offset:%d' % (v(vWB + 8 * s + 6, 2), v(vIM + 3), L_V + 2048 * s + 256))
    a('v_lshlrev_b32 %s, 2, %s' % (v(vT + 2), v(vL)))
    a.vm('buffer_load_dword %s, %s, %s, 0 offen sc1' % (v(vT + 3), v(vT + 2), sr(S_DBG)))
    for s in range(4):
        a.mfma16(v(aK, 4), v(vWB + 8 * s, 4), v(vWB + 8 * s + 4, 4), '0' if s == 0 else v(aK, 4))
        a.mfma16(v(aK + 4, 4), v(vWB + 8 * s, 4), v(aQ + 12, 4), '0' if s == 0 else v(aK + 4, 4))
    a('s_lshl_b32 s%d, s%d, 4' % (sT2, sJ))
    a('s_add_u32 s%d, s%d, s%d' % (sT2, sT2, sI))
    a('s_mul_i32 s%d, s%d, %d' % (sT2, sT2, KVREC))
    a('s_add_u32 s%d, s%d, %d' % (sT2, sT2, KVP))
    a('v_lshlrev_b32 %s, 3, v0' % v(vT))
    a('v_lshrrev_b32 %s, 4, v0' % v(vT + 1))
    a('v_lshlrev_b32 %s, 4, %s' % (v(vT + 1), v(vT + 1)))
    a('v_cvt_pk_bf16_f32 %s, %s, %s' % (v(aK + 8), v(aK), v(aK + 1)))
    a('v_cvt_pk_bf16_f32 %s, %s, %s' % (v(aK + 9), v(aK + 2), v(aK + 3)))
    a.vm('buffer_store_dwordx2 %s, %s, %s, s%d offen sc1' % (v(aK + 8, 2), v(vT), sr(S_WS), sT2))
    a('s_mov_b32 exec_lo, 0x00010001')
    a('s_mov_b32 exec_hi, 0x00010001')
    mark_kv = a.vm('buffer_store_dwordx4 %s, %s, %s, s%d offen offset:2048 sc1' % (v(aK + 4, 4), v(vT + 1), sr(S_WS), sT2))
    a('s_mov_b64 exec, -1')

    a.stamp('kvst', 2)
    for p in range(4):
        a('v_add_u32 %s, %d, %s' % (v(vWR + p), L_WQ, v(vWR + p)))
    a.wait_vm(mark_wq)
    a('s_barrier')
    def qoff(s):
        return (s >> 1) * 8192 + (s & 1) * 1024
    for s in range(8):
        for t in range(2):
            a('ds_read_b64_tr_b16 %s, %s offset:%d' % (v(vWB + 4 * s + 2 * t, 2), v(vWR), qoff(s) + t * 256))
    for r_ in range(32):
        a('v_dot2_f32_bf16 %s, %s, s%d, %s' % (v(csq), v(vWB + r_), sONES, v(csq)))
    a('v_lshlrev_b32 %s, 2, v0' % v(vT))
    a('ds_write_b32 %s, %s offset:%d' % (v(vT), v(csq), L_CSQ))
    wo_list = [dma_wo(g) for g in range(16)]
    order = [(s, p) for p in range(4) for s in range(8)]
    QB = aK
    def qread(n):
        s, p = order[n]
        for t in range(2):
            a('ds_read_b64_tr_b16 %s, %s offset:%d' % (v(QB + 4 * (n % 8) + 2 * t, 2), v(vWR + p), qoff(s) + t * 256))
    main = []
    for n in range(32):
        def f(n=n):
            s, p = order[n]
            if 8 <= n + 6 < 32:
                qread(n + 6)
            src = v(vWB + 4 * s, 4) if p == 0 else v(QB + 4 * (n % 8), 4)
            a.mfma32(v(aQ, 16), src, v(X + (4 * s + p) * 4, 4), '0' if n == 0 else v(aQ, 16))
        main.append(f)
    interleave(a, main, wo_list, first=1, every=2)
    mark_wo = a.vmn
    a.stamp('qgemm', 2)
    a.wait_vm(mark_kv)
    lab = a.uniq('L_clr')
    a('s_mov_b64 exec, 0xffff')
    a('v_cmp_ne_u32 vcc, 1, %s' % v(vT + 3))
    a('s_cbranch_vccz %s_ok' % lab)
    a.label(lab)
    a('buffer_load_dword %s, %s, %s, 0 offen sc1' % (v(vT + 3), v(vT + 2), sr(S_DBG)))
    a('s_add_u32 s%d, s%d, 1' % (sCNT, sCNT))
    a('s_cmp_gt_u32 s%d, %d' % (sCNT, SPIN))
    a('s_cbranch_scc1 %s_ok' % lab)
    a('s_waitcnt vmcnt(0)')
    a('v_cmp_ne_u32 vcc, 1, %s' % v(vT + 3))
    a('s_cbranch_vccnz %s' % lab)
    a.label(lab + '_ok')
    a('s_mov_b64 exec, -1')
    a('s_waitcnt lgkmcnt(0)')
    a('s_barrier')
    def baseA():
        a('s_lshl_b32 s%d, s%d, 7' % (sT0, sJ))
        a('s_lshl_b32 s%d, s%d, 2' % (sT1, sI))
        a('s_add_u32 s%d, s%d, s%d' % (sT0, sT0, sT1))
    push_flags(a, 0, vL, vT, 16 * 128, baseA)
    a.stamp('pushA')
    a('v_lshlrev_b32 %s, 2, %s' % (v(vT), v(vL)))
    for w in range(4):
        a('ds_read_b32 %s, %s offset:%d' % (v(aK + w), v(vT), L_CSQ + 256 * w))
    a('v_add_f32 %s, %s, %s' % (v(aK), v(aK), v(aK + 1)))
    a('v_add_f32 %s, %s, %s' % (v(aK + 2), v(aK + 2), v(aK + 3)))
    a('v_add_f32 %s, %s, %s' % (v(csq), v(aK), v(aK + 2)))
    a_ext(aK + 4, csq)
    a.mfma32(v(aQ, 16), v(aK + 4, 4), v(vBX, 4), v(aQ, 16))

    vB1 = vXR
    def w1_offsets():
        a('v_bfe_u32 %s, %s, 2, 3' % (v(vT), v(vL)))
        a('v_mul_u32_u24 %s, 3584, %s' % (v(vT), v(vT)))
        a('v_and_b32 %s, 3, %s' % (v(vT + 1), v(vL)))
        a('v_lshl_add_u32 %s, %s, 4, %s' % (v(vT), v(vT + 1), v(vT)))
        a('v_lshl_add_u32 %s, %s, 6, %s' % (v(vT), v(vHH), v(vT)))
        a('v_add_u32 %s, 3072, %s' % (v(vB1), v(vT)))
        for q in range(1, 4):
            a('v_add_u32 %s, %d, %s' % (v(vB1 + q), 3072 + (q >> 1) * 8 * 3584 + (q & 1) * 128 - 1024 * q, v(vT)))
    def dma_w1(half, g):
        def f():
            if g % 4 == 0:
                kb = half * 32 + (g // 4) * 8
                a('s_mul_i32 s%d, s%d, %d' % (sT0, sW, 16 * 3584))
                a('s_lshl_b32 s%d, s%d, 8' % (sT1, sJ))
                a('s_add_u32 s%d, s%d, s%d' % (sT0, sT0, sT1))
                a('s_add_u32 s%d, s%d, %d' % (sT0, sT0, kb * 8 * 3584))
                a('s_lshl_b32 s%d, s%d, 12' % (sT1, sW))
                a('s_add_u32 m0, s%d, %d' % (sT1, L_W1 + kb * 2048))
            a.vm('buffer_load_dwordx4 %s, %s, s%d offen offset:%d lds' % (v(vB1 + g % 4), sr(S_W1), sT0, (g % 4) * 1024))
        return f
    a('s_sub_u32 s%d, s%d, 3072' % (S_W1, S_W1))
    a('s_subb_u32 s%d, s%d, 0' % (S_W1 + 1, S_W1 + 1))
    a('s_add_u32 s%d, s%d, 3072' % (S_W1 + 2, S_W1 + 2))
    w1_offsets()
    for i in range(8):
        a('v_cvt_pk_bf16_f32 %s, %s, %s' % (v(vWB + i), v(aQ + 2 * i), v(aQ + 2 * i + 1)))
    a.mfma32(v(aK, 16), v(vPA1, 4), v(vWB, 4), '0')
    a.mfma32(v(aK, 16), v(vPA2, 4), v(vWB + 4, 4), v(aK, 16))
    PQ = aQ
    softmax_pair(a, aK, vWB, PQ, cexp, aV)
    for q in range(4):
        a('v_permlane32_swap_b32 %s, %s' % (v(PQ + q), v(PQ + 4 + q)))
        a('v_permlane32_swap_b32 %s, %s' % (v(PQ + 8 + q), v(PQ + 12 + q)))
    a.stamp('qsm', 2)
    a.wait_vm(mark_wo)
    a('s_barrier')
    a('s_cmp_ge_u32 s%d, 14' % sJ)
    a('s_cbranch_scc1 L_now1a')
    keep = a.vmn
    for g in range(16):
        dma_w1(0, g)()
    a.vmn = keep
    a.label('L_now1a')
    a.stamp('w1a', 2)
    vWO = vWR
    a('s_lshr_b32 s%d, s%d, 1' % (sT0, sW))
    a('s_mul_i32 s%d, s%d, %d' % (sT1, sT0, 32768 + 512))
    a('s_add_u32 s%d, s%d, %d' % (sT1, sT1, L_WO))
    a('v_lshl_add_u32 %s, %s, 10, %s' % (v(vT), v(vHH), v(vTRN)))
    a('v_add_u32 %s, s%d, %s' % (v(vWO), sT1, v(vT)))
    a('v_xor_b32 %s, 512, %s' % (v(vWO + 1), v(vWO)))
    for s in range(16):
        for rho in range(2):
            for t in range(2):
                a('ds_read_b64_tr_b16 %s, %s offset:%d' % (ac((s * 2 + rho) * 4 + 2 * t, 2), v(vWO + rho), s * 2048 + t * 256))
    XR = X
    a('v_and_b32 %s, 31, %s' % (v(vT), v(vL)))
    a('v_lshlrev_b32 %s, 10, %s' % (v(vT), v(vT)))
    vOUT = vWR + 2
    a('v_lshl_add_u32 %s, %s, 5, %s' % (v(vOUT), v(vHH), v(vT)))
    a('s_lshl_b32 s%d, s%d, 1' % (sT1, sU))
    a('s_and_b32 s%d, s%d, 1' % (sT2, sW))
    a('s_add_u32 s%d, s%d, s%d' % (sT1, sT1, sT2))
    a('s_lshl_b32 s%d, s%d, 15' % (sT4, sT1))
    a('s_lshl_b32 s%d, s%d, 7' % (sT2, sC))
    a('s_add_u32 s%d, s%d, s%d' % (sT4, sT4, sT2))
    a('s_lshl_b32 s%d, s%d, 6' % (sT2, sT0))
    a('s_add_u32 s%d, s%d, s%d' % (sT4, sT4, sT2))
    a.vm('buffer_load_dwordx4 %s, %s, %s, s%d offen' % (v(XR, 4), v(vOUT), sr(S_X), sT4))
    a.vm('buffer_load_dwordx4 %s, %s, %s, s%d offen offset:16' % (v(XR + 4, 4), v(vOUT), sr(S_X), sT4))

    a.stamp('wopark', 2)
    def flag_off(sync):
        def f():
            a('s_lshl_b32 s%d, s%d, 7' % (sT0, sCID))
            if sync:
                a('s_add_u32 s%d, s%d, %d' % (sT0, sT0, sync * 32768))
        return f
    poll(a, S_WS, flag_off(0), 16, vL, vT)
    a('s_waitcnt lgkmcnt(0)')
    a('s_barrier')
    a.stamp('gotA')
    G = X + 16
    a('s_mul_i32 s%d, s%d, %d' % (sT2, sJ, 16 * KVREC))
    a('s_add_u32 s%d, s%d, %d' % (sT2, sT2, KVP))
    a('v_lshlrev_b32 %s, 3, v0' % v(vT))
    a('v_and_b32 %s, 15, %s' % (v(vT + 1), v(vL)))
    a('v_mul_u32_u24 %s, %d, %s' % (v(vT + 2), KVREC, v(vT + 1)))
    a('v_lshrrev_b32 %s, 4, v0' % v(vT + 3))
    a('v_lshl_add_u32 %s, %s, 4, %s' % (v(vT + 2), v(vT + 3), v(vT + 2)))
    a.vm('buffer_load_dwordx4 %s, %s, %s, s%d offen offset:2048 sc1' % (v(G + 32, 4), v(vT + 2), sr(S_WS), sT2))
    for p in range(16):
        a.vm('buffer_load_dwordx2 %s, %s, %s, s%d offen sc1' % (v(G + 2 * p, 2), v(vT), sr(S_WS), sT2))
        if p < 15:
            a('s_add_u32 s%d, s%d, %d' % (sT2, sT2, KVREC))
    a('s_cmp_ge_u32 s%d, 14' % sJ)
    a('s_cbranch_scc1 L_now1b')
    keep = a.vmn
    for g in range(16):
        dma_w1(1, g)()
    a.vmn = keep
    a.label('L_now1b')
    a.stamp('w1b', 2)
    for sh in (1, 2, 4, 8):
        for i in range(4):
            a('v_add_f32_dpp %s, %s, %s row_ror:%d row_mask:0xf bank_mask:0xf' % (v(G + 32 + i), v(G + 32 + i), v(G + 32 + i), sh))
    for p in range(16):
        for i in range(4):
            a('v_dot2_f32_bf16 %s, %s, s%d, %s' % (v(aK + i), v(G + 2 * p + (i >> 1)), sSEL1 if i & 1 else sSEL0,
                                                  '0' if p == 0 else v(aK + i)))
    a('s_and_b32 s%d, s%d, 1' % (sT0, sW))
    a('s_mul_i32 s%d, s%d, %d' % (sT0, sT0, 17 * 80))
    a('s_lshr_b32 s%d, s%d, 1' % (sT1, sW))
    a('s_lshl_b32 s%d, s%d, 5' % (sT1, sT1))
    a('s_add_u32 s%d, s%d, s%d' % (sT0, sT0, sT1))
    a('s_add_u32 s%d, s%d, %d' % (sT0, sT0, L_KVB))
    a('v_lshrrev_b32 %s, 4, %s' % (v(vT + 3), v(vL)))
    a('v_lshlrev_b32 %s, 3, %s' % (v(vT + 3), v(vT + 3)))
    a('v_add_u32 %s, s%d, %s' % (v(vT + 3), sT0, v(vT + 3)))
    a('v_mul_u32_u24 %s, 80, %s' % (v(vT + 1), v(vT + 1)))
    a('v_add_u32 %s, %s, %s' % (v(vT + 1), v(vT + 1), v(vT + 3)))
    a('v_cvt_pk_bf16_f32 %s, %s, %s' % (v(aK + 4), v(aK), v(aK + 1)))
    a('v_cvt_pk_bf16_f32 %s, %s, %s' % (v(aK + 5), v(aK + 2), v(aK + 3)))
    a('v_cvt_pk_bf16_f32 %s, %s, %s' % (v(aK + 6), v(G + 32), v(G + 33)))
    a('v_cvt_pk_bf16_f32 %s, %s, %s' % (v(aK + 7), v(G + 34), v(G + 35)))
    a('ds_write_b64 %s, %s' % (v(vT + 1), v(aK + 4, 2)))
    a('ds_write_b64 %s, %s offset:%d' % (v(vT + 3), v(aK + 6, 2), 16 * 80))
    a('v_bfe_u32 %s, %s, 2, 1' % (v(vT), v(vL)))
    a('v_bfe_u32 %s, %s, 3, 1' % (v(vT + 1), v(vL)))
    a('v_and_b32 %s, 3, %s' % (v(vT + 2), v(vL)))
    a('v_lshl_add_u32 %s, %s, 3, %s' % (v(vT + 2), v(vT), v(vT + 2)))
    a('v_lshl_add_u32 %s, %s, 2, %s' % (v(vT + 2), v(vT + 1), v(vT + 2)))
    a('v_and_b32 %s, 16, %s' % (v(vT), v(vL)))
    a('v_cmp_eq_u32 vcc, 0, %s' % v(vT))
    a('v_cndmask_b32 %s, 16, %s, vcc' % (v(vT + 2), v(vT + 2)))
    a('v_mul_u32_u24 %s, 80, %s' % (v(vT + 2), v(vT + 2)))
    a('v_lshl_add_u32 %s, %s, 4, %s' % (v(vT + 2), v(vHH), v(vT + 2)))
    a('v_add_u32 %s, %d, %s' % (v(vT + 2), L_KVB, v(vT + 2)))
    a('s_waitcnt lgkmcnt(0)')
    a('s_barrier')
    a.stamp('B4', 2)
    for h in range(2):
        for s in range(2):
            a('ds_read_b128 %s, %s offset:%d' % (v(vWB + (h * 2 + s) * 4, 4), v(vT + 2), h * 17 * 80 + s * 32))
    for h in range(2):
        acc = v(aK if h == 0 else aV, 16)
        a.mfma32(acc, v(vWB + h * 8, 4), v(PQ + 4 * h, 4), '0')
        a.mfma32(acc, v(vWB + h * 8 + 4, 4), v(PQ + 8 + 4 * h, 4), acc)
    a('s_lshl_b32 s%d, s%d, 2' % (sT0, sI))
    a('s_add_u32 s%d, s%d, s%d' % (sT0, sT0, sW))
    a('s_lshl_b32 s%d, s%d, 15' % (sT0, sT0))
    a('s_lshl_b32 s%d, s%d, 11' % (sT1, sJ))
    a('s_add_u32 s%d, s%d, s%d' % (sT0, sT0, sT1))
    a('s_add_u32 s%d, s%d, %d' % (sT0, sT0, O_))
    for h in range(2):
        acc = aK if h == 0 else aV
        a('v_add_f32 %s, 0x358637bd, %s' % (v(acc + 8), v(acc + 8)))
        a('v_rcp_f32 %s, %s' % (v(acc + 8), v(acc + 8)))
        for i in range(0, 8, 2):
            a('v_pk_mul_f32 %s, %s, %s op_sel_hi:[1,0]' % (v(acc + i, 2), v(acc + i, 2), v(acc + 8, 2)))
        for i in range(4):
            a('v_cvt_pk_bf16_f32 %s, %s, %s' % (v(acc + 12 + i), v(acc + 2 * i), v(acc + 2 * i + 1)))
        a.vm('buffer_store_dwordx4 %s, %s, %s, s%d offen offset:%d %s' % (v(acc + 12, 4), v(vFR), sr(S_WS), sT0, h * 1024, SC))
    a.stamp('ost', 2)
    a('s_waitcnt vmcnt(0)')
    a('s_barrier')
    def base_cluster(sync):
        def f():
            a('s_lshl_b32 s%d, s%d, 11' % (sT0, sI))
            a('s_lshl_b32 s%d, s%d, 2' % (sT1, sJ))
            a('s_add_u32 s%d, s%d, s%d' % (sT0, sT0, sT1))
            a('s_add_u32 s%d, s%d, %d' % (sT0, sT0, sync * 32768))
        return f
    push_flags(a, 1, vL, vT, 128, base_cluster(1))
    a.stamp('pushB')

    vW1 = vXR
    a('v_lshl_add_u32 %s, %s, 12, %s' % (v(vW1), v(vHH), v(vTRN)))
    a('v_add_u32 %s, 65536, %s' % (v(vW1 + 1), v(vW1)))
    def w1off(ks, ht, t):
        T, a_ = ks >> 1, ks & 1
        off = (4 * T + a_) * 2048 + (ht >> 1) * 1024 + (ht & 1) * 512 + t * 256
        return (vW1 + (off >> 16), off & 0xffff)
    AX = vS
    a('s_cmp_ge_u32 s%d, 14' % sJ)
    a('s_cbranch_scc1 L_nocs1')
    keep = a.vmn
    a('s_lshl_b32 s%d, s%d, 9' % (sT0, sW))
    a('v_add_u32 %s, s%d, %s' % (v(vW1 + 2), sT0, v(vW1)))
    a('v_add_u32 %s, s%d, %s' % (v(vW1 + 3), sT0, v(vW1 + 1)))
    a('v_bfe_u32 %s, %s, 2, 1' % (v(vT), v(vL)))
    a('v_bfe_u32 %s, %s, 3, 2' % (v(vT + 1), v(vL)))
    a('v_and_b32 %s, 3, %s' % (v(vT + 2), v(vL)))
    a('v_lshl_add_u32 %s, %s, 4, %s' % (v(vT + 2), v(vT), v(vT + 2)))
    a('v_lshl_add_u32 %s, %s, 2, %s' % (v(vT + 2), v(vT + 1), v(vT + 2)))
    a('v_lshlrev_b32 %s, 1, %s' % (v(vT + 2), v(vT + 2)))
    a('v_lshl_add_u32 %s, %s, 13, %s' % (v(vT + 2), v(vHH), v(vT + 2)))
    a('s_lshl_b32 s%d, s%d, 8' % (sT1, sJ))
    for ht in range(4):
        a('buffer_load_ushort %s, %s, %s, s%d offen offset:%d' % (v(AX + 4 * ht + 2), v(vT + 2), sr(S_B1), sT1, ht * 64))
    CB = X + 16
    a('v_mov_b32 %s, 0' % v(vT))
    a('v_mov_b32 %s, 0' % v(vT + 1))
    for part in range(2):
        for ks in range(16):
            for t in range(2):
                b, off = w1off(part * 16 + ks, 0, t)
                a('ds_read_b64_tr_b16 %s, %s offset:%d' % (v(CB + 4 * ks + 2 * t, 2), v(b + 2), off))
        for r_ in range(64):
            a('v_dot2_f32_bf16 %s, %s, s%d, %s' % (v(vT + (r_ & 1)), v(CB + r_), sONES, v(vT + (r_ & 1))))
    a('v_add_f32 %s, %s, %s' % (v(vT), v(vT), v(vT + 1)))
    a('v_lshlrev_b32 %s, 2, v0' % v(vT + 1))
    a('v_add_u32 %s, %d, %s' % (v(vT + 1), L_CS1, v(vT + 1)))
    a('ds_write_b32 %s, %s' % (v(vT + 1), v(vT)))
    a.vmn = keep
    a.label('L_nocs1')

    a.stamp('cs1', 2)
    poll(a, S_WS, flag_off(1), 16, vL, vT)
    a('s_waitcnt lgkmcnt(0)')
    a('s_barrier')
    a.stamp('gotB')
    OB = X + 16
    a('s_lshl_b32 s%d, s%d, 1' % (sT0, sU))
    a('s_and_b32 s%d, s%d, 1' % (sT1, sW))
    a('s_add_u32 s%d, s%d, s%d' % (sT3, sT0, sT1))
    a('s_lshl_b32 s%d, s%d, 15' % (sT0, sT3))
    a('s_lshr_b32 s%d, s%d, 1' % (sT1, sW))
    a('s_lshl_b32 s%d, s%d, 14' % (sT1, sT1))
    a('s_add_u32 s%d, s%d, s%d' % (sT0, sT0, sT1))
    a('s_add_u32 s%d, s%d, %d' % (sT0, sT0, O_))
    for s in range(16):
        if s and s % 4 == 0:
            a('s_add_u32 s%d, s%d, 4096' % (sT0, sT0))
        a.vm('buffer_load_dwordx4 %s, %s, %s, s%d offen offset:%d %s' % (v(OB + 4 * s, 4), v(vFR), sr(S_WS), sT0, (s % 4) * 1024, SC))
    a('v_lshlrev_b32 %s, 2, %s' % (v(vT + 3), v(vL)))
    a('v_add_u32 %s, %d, %s' % (v(vT + 3), L_CS1, v(vT + 3)))
    for ht in range(4):
        a('ds_read_b32 %s, %s offset:%d' % (v(AX + 4 * ht + 3), v(vT + 3), 256 * ht))
    for ht in range(4):
        d = AX + 4 * ht
        split_hi_lo(a, d + 3, vT + 1, vT + 2, d)
        a('v_cvt_pk_bf16_f32 %s, %s, 0' % (v(d + 1), v(vT + 2)))
        a('v_lshl_or_b32 %s, %s, 16, %s' % (v(d + 1), v(d + 2), v(d + 1)))
        a('v_mov_b32 %s, 0' % v(d + 3))
    for s in range(16):
        for rho in range(2):
            acc = v(aK if rho == 0 else aV, 16)
            a.mfma32(acc, ac((s * 2 + rho) * 4, 4), v(OB + 4 * s, 4), '0' if s == 0 else acc)
    a.stamp('p3mf', 2)
    a('s_xor_b32 s%d, s%d, 2' % (sT0, sW))
    a('s_lshl_b32 s%d, s%d, 12' % (sT0, sT0))
    a('s_add_u32 s%d, s%d, %d' % (sT0, sT0, L_RED3))
    a('v_add_u32 %s, s%d, %s' % (v(vT), sT0, v(vFR)))
    a('v_xor_b32 %s, 8192, %s' % (v(vT + 1), v(vT)))
    for q in range(4):
        a('ds_write_b128 %s, %s offset:%d' % (v(vT), v(aV + 4 * q, 4), q * 1024))
    for i in range(8):
        a('v_lshlrev_b32 %s, 16, %s' % (v(aQ + 2 * i), v(XR + i)))
        a('v_and_b32 %s, 0xffff0000, %s' % (v(aQ + 2 * i + 1), v(XR + i)))
    a('s_waitcnt lgkmcnt(0)')
    a('s_barrier')
    for q in range(4):
        a('ds_read_b128 %s, %s offset:%d' % (v(aV + 4 * q, 4), v(vT + 1), q * 1024))
    HP = vPA1
    for i in range(0, 16, 2):
        a('v_pk_add_f32 %s, %s, %s' % (v(aK + i, 2), v(aK + i, 2), v(aV + i, 2)))
    for i in range(8):
        a('v_cvt_pk_bf16_f32 %s, %s, %s' % (v(aV + i), v(aK + 2 * i), v(aK + 2 * i + 1)))
    for i in range(8):
        a('v_lshlrev_b32 %s, 16, %s' % (v(aK + 2 * i), v(aV + i)))
        a('v_and_b32 %s, 0xffff0000, %s' % (v(aK + 2 * i + 1), v(aV + i)))
    for i in range(0, 16, 2):
        a('v_pk_add_f32 %s, %s, %s' % (v(aK + i, 2), v(aK + i, 2), v(aQ + i, 2)))
    for i in range(8):
        a('v_cvt_pk_bf16_f32 %s, %s, %s' % (v(HP + i), v(aK + 2 * i), v(aK + 2 * i + 1)))
    a('s_lshl_b32 s%d, s%d, 1' % (sT1, sC))
    a('s_lshr_b32 s%d, s%d, 1' % (sT2, sW))
    a('s_add_u32 s%d, s%d, s%d' % (sT1, sT1, sT2))
    a('s_lshl_b32 s%d, s%d, 15' % (sT0, sT3))
    a('s_lshl_b32 s%d, s%d, 11' % (sT2, sT1))
    a('s_add_u32 s%d, s%d, s%d' % (sT0, sT0, sT2))
    a('s_add_u32 s%d, s%d, %d' % (sT0, sT0, H_))
    a.vm('buffer_store_dwordx4 %s, %s, %s, s%d offen %s' % (v(HP, 4), v(vFR), sr(S_WS), sT0, SC))
    a.vm('buffer_store_dwordx4 %s, %s, %s, s%d offen offset:1024 %s' % (v(HP + 4, 4), v(vFR), sr(S_WS), sT0, SC))
    for i in range(8):
        a('v_dot2_f32_bf16 %s, %s, s%d, %s' % (v(vT), v(HP + i), sONES, '0' if i == 0 else v(vT)))
        a('v_dot2_f32_bf16 %s, %s, %s, %s' % (v(vT + 1), v(HP + i), v(HP + i), '0' if i == 0 else v(vT + 1)))
    a('v_permlane32_swap_b32 %s, %s' % (v(vT), v(vT + 1)))
    a('v_add_f32 %s, %s, %s' % (v(vT), v(vT), v(vT + 1)))
    a('s_lshl_b32 s%d, s%d, 12' % (sT0, sT3))
    a('s_lshl_b32 s%d, s%d, 8' % (sT2, sT1))
    a('s_add_u32 s%d, s%d, s%d' % (sT0, sT0, sT2))
    a('s_add_u32 s%d, s%d, %d' % (sT0, sT0, ST))
    vL4 = vWR + 3
    a('v_lshlrev_b32 %s, 2, %s' % (v(vL4), v(vL)))
    a.vm('buffer_store_dword %s, %s, %s, s%d offen %s' % (v(vT), v(vL4), sr(S_WS), sT0, SC))
    a.stamp('hst', 2)
    a('s_waitcnt vmcnt(0)')
    a('s_barrier')
    push_flags(a, 2, vL, vT, 128, base_cluster(2))
    a.stamp('pushC')

    vW2 = vWR
    blk_offsets(1024, lambda q: q * 8192)
    a('s_lshr_b32 s%d, s%d, 1' % (sT0, sW))
    a('s_lshl_b32 s%d, s%d, 9' % (sT0, sT0))
    a('s_lshl_b32 s%d, s%d, 12' % (sLDSX, sW))
    a('s_add_u32 s%d, s%d, %d' % (sLDSX, sLDSX, L_W2S))
    a('s_add_u32 s%d, s%d, s%d' % (sT0, sT0, sLDSX))
    a('v_lshl_add_u32 %s, %s, 11, %s' % (v(vT), v(vHH), v(vTRN)))
    a('v_add_u32 %s, s%d, %s' % (v(vW2), sT0, v(vT)))
    a('v_xor_b32 %s, 512, %s' % (v(vW2 + 1), v(vW2)))
    a('s_mul_i32 s%d, s%d, %d' % (sXO, sW, 448 * 1024))
    a('s_lshl_b32 s%d, s%d, 7' % (sT0, sC))
    a('s_add_u32 s%d, s%d, s%d' % (sXO, sXO, sT0))
    def w2_dma(T):
        a('s_add_u32 s%d, s%d, %d' % (sT0, sXO, T * 32768))
        a('s_mov_b32 m0, s%d' % sLDSX)
        for q in range(4):
            a.vm('buffer_load_dwordx4 %s, %s, s%d offen offset:%d lds' % (v(vBD + q), sr(S_W2), sT0, q * 1024))
        return a.vmn
    def w2_park(T):
        for a_ in range(2):
            for rho in range(2):
                for t in range(2):
                    a('ds_read_b64_tr_b16 %s, %s offset:%d' % (ac(((2 * T + a_) * 2 + rho) * 4 + 2 * t, 2), v(vW2 + rho),
                                                              a_ * 1024 + t * 256))
    for T in range(14):
        m = w2_dma(T)
        a.wait_vm(m)
        w2_park(T)
        a('s_waitcnt lgkmcnt(0)')

    a.stamp('w2', 2)
    a('s_cmp_ge_u32 s%d, 14' % sJ)
    a('s_cbranch_scc1 L_nop4')
    keep = a.vmn
    poll(a, S_WS, flag_off(2), 16, vL, vT)
    a('s_barrier')
    a.stamp('gotC')
    a('s_lshl_b32 s%d, s%d, 2' % (sT3, sI))
    a('s_add_u32 s%d, s%d, s%d' % (sT3, sT3, sW))
    a('s_lshl_b32 s%d, s%d, 15' % (sT0, sT3))
    a('s_add_u32 s%d, s%d, %d' % (sT0, sT0, H_))
    for s in range(32):
        if s and s % 4 == 0:
            a('s_add_u32 s%d, s%d, 4096' % (sT0, sT0))
        a('buffer_load_dwordx4 %s, %s, %s, s%d offen offset:%d %s' % (v(X + 4 * s, 4), v(vFR), sr(S_WS), sT0, (s % 4) * 1024, SC))
    a('s_lshl_b32 s%d, s%d, 12' % (sT0, sT3))
    a('s_add_u32 s%d, s%d, %d' % (sT0, sT0, ST))
    SB = aQ
    for ct in range(16):
        a('buffer_load_dword %s, %s, %s, s%d offen offset:%d %s' % (v(SB + ct), v(vL4), sr(S_WS), sT0, ct * 256, SC))
    a('s_mul_i32 s%d, s%d, %d' % (sT2, sT3, 112 * 1024))
    a('s_lshl_b32 s%d, s%d, 13' % (sT1, sJ))
    a('s_add_u32 s%d, s%d, s%d' % (sT2, sT2, sT1))
    a('s_add_u32 s%d, s%d, %d' % (sT2, sT2, ACT))
    RING = vWB
    seq = [(ht, ks) for ht in range(4) for ks in range(32)]
    def aread(n):
        ht, ks = seq[n]
        for t in range(2):
            b, off = w1off(ks, ht, t)
            a('ds_read_b64_tr_b16 %s, %s offset:%d' % (v(RING + 4 * (n % 8) + 2 * t, 2), v(b), off))
    a.stamp('hld', 2)
    for n in range(6):
        aread(n)
    c1, c2, c3 = vXD, vXD + 1, vXD + 2
    BX = vT
    def stats2():
        for i in range(0, 8, 2):
            a('v_pk_add_f32 %s, %s, %s' % (v(SB + i, 2), v(SB + i, 2), v(SB + 8 + i, 2)))
        a('v_pk_add_f32 %s, %s, %s' % (v(SB, 2), v(SB, 2), v(SB + 4, 2)))
        a('v_pk_add_f32 %s, %s, %s' % (v(SB + 2, 2), v(SB + 2, 2), v(SB + 6, 2)))
        a('v_pk_add_f32 %s, %s, %s' % (v(SB, 2), v(SB, 2), v(SB + 2, 2)))
        a('v_add_f32 %s, %s, %s' % (v(SB), v(SB), v(SB + 1)))
        a('v_mov_b32 %s, %s' % (v(SB + 1), v(SB)))
        a('v_permlane32_swap_b32 %s, %s' % (v(SB), v(SB + 1)))
        ln_stats(a, SB, SB + 1, SB + 2, c3, SB + 3)
        a('v_mul_f32 %s, %s, %s' % (v(SB + 4), v(SB + 1), v(c3)))
        a('v_sub_f32 %s, 0, %s' % (v(SB + 2), v(SB + 2)))
        split_hi_lo(a, SB + 2, SB + 5, SB + 6, SB + 3)
        split_hi_lo(a, SB + 4, SB + 7, SB + 8, SB + 3)
        a('v_cvt_pk_bf16_f32 %s, %s, %s' % (v(BX), v(SB + 5), v(SB + 6)))
        a('v_cvt_pk_bf16_f32 %s, %s, %s' % (v(BX + 1), v(SB + 5), v(SB + 7)))
        a('v_cvt_pk_bf16_f32 %s, %s, 0' % (v(BX + 2), v(SB + 8)))
        a('v_mov_b32 %s, 0' % v(BX + 3))
        a('v_mul_f32 %s, 0x%x, %s' % (v(c1), LOG2E, v(c3)))
        a('v_mul_f32 %s, -2.0, %s' % (v(c2), v(c3)))
    def mish_ops(acc, ht):
        ops = []
        T1, T2, PK = aQ, aQ + 4, aQ + 8
        for g in range(0, 16, 4):
            for i in range(4):
                ops.append('v_mul_f32 %s, %s, %s' % (v(T1 + i), v(acc + g + i), v(c1)))
            for i in range(4):
                ops.append('v_exp_f32 %s, %s' % (v(T1 + i), v(T1 + i)))
            for i in range(4):
                ops.append('v_add_f32 %s, 2.0, %s' % (v(T2 + i), v(T1 + i)))
            for i in range(4):
                ops.append('v_fma_f32 %s, %s, %s, 2.0' % (v(T1 + i), v(T1 + i), v(T2 + i)))
            for i in range(4):
                ops.append('v_rcp_f32 %s, %s' % (v(T1 + i), v(T1 + i)))
            for i in range(4):
                ops.append('v_fma_f32 %s, %s, %s, %s' % (v(T1 + i), v(T1 + i), v(c2), v(c3)))
            for i in range(4):
                ops.append('v_mul_f32 %s, %s, %s' % (v(T1 + i), v(T1 + i), v(acc + g + i)))
            for i in range(2):
                ops.append('v_cvt_pk_bf16_f32 %s, %s, %s' % (v(PK + g // 2 + i), v(T1 + 2 * i), v(T1 + 2 * i + 1)))
            if g % 8 == 4:
                ops.append('buffer_store_dwordx4 %s, %s, %s, s%d offen offset:%d %s' % (
                    v(PK + (g // 8) * 4, 4), v(vFR), sr(S_WS), sT2, ((2 * ht + g // 8) % 4) * 1024, SC))
                if (2 * ht + g // 8) % 4 == 3:
                    ops.append('s_add_u32 s%d, s%d, 4096' % (sT2, sT2))
        return ops
    pending = []
    for ht in range(4):
        acc = aK if ht % 2 == 0 else aV
        per = (len(pending) + 29) // 30
        for ks in range(32):
            n = ht * 32 + ks
            if n + 6 < 128:
                aread(n + 6)
            a.mfma32(v(acc, 16), v(RING + 4 * (n % 8), 4), v(X + 4 * ks, 4), '0' if ks == 0 else v(acc, 16))
            if ks >= 1:
                for o in pending[:per]:
                    a(o)
                pending = pending[per:]
        for o in pending:
            a(o)
        if ht == 0:
            stats2()
        a.mfma32(v(acc, 16), v(AX + 4 * ht, 4), v(BX, 4), v(acc, 16))
        pending = mish_ops(acc, ht)
        a.stamp('t%d' % ht, 2)
    for o in pending:
        a(o)
    a.stamp('mish', 2)
    a('s_waitcnt vmcnt(0)')
    a('s_barrier')
    push_flags(a, 3, vL, vT, 128, base_cluster(3))
    a.vmn = keep
    a.label('L_nop4')
    a.stamp('pushD')

    poll(a, S_WS, flag_off(3), 14, vL, vT)
    a('s_barrier')
    a.stamp('gotD')
    a('s_lshl_b32 s%d, s%d, 1' % (sT0, sU))
    a('s_and_b32 s%d, s%d, 1' % (sT1, sW))
    a('s_add_u32 s%d, s%d, s%d' % (sT0, sT0, sT1))
    a('s_xor_b32 s%d, s%d, 1' % (sT1, sT0))
    a('s_mul_i32 s%d, s%d, %d' % (sT0, sT0, 112 * 1024))
    a('s_mul_i32 s%d, s%d, %d' % (sT1, sT1, 112 * 1024))
    a('s_mul_i32 s%d, s%d, %d' % (sT2, sW, 28 * 1024))
    a('s_add_u32 s%d, s%d, %d' % (sT2, sT2, ACT))
    a('s_add_u32 s%d, s%d, s%d' % (sT0, sT0, sT2))
    a('s_add_u32 s%d, s%d, s%d' % (sT1, sT1, sT2))
    ACC = 32
    def bload(n):
        ks, tau = n >> 1, n & 1
        sreg = sT0 + tau
        if ks and ks % 4 == 0:
            a('s_add_u32 s%d, s%d, 4096' % (sreg, sreg))
        a.vm('buffer_load_dwordx4 %s, %s, %s, s%d offen offset:%d %s' % (v(X + 4 * (n % 32), 4), v(vFR), sr(S_WS), sreg, (ks % 4) * 1024, SC))
    PRE = cfg.get('p5pre', 16)
    for n in range(PRE):
        bload(n)
    for n in range(56):
        ks, tau = n >> 1, n & 1
        for rc in range(2):
            acc = v(ACC + 16 * (tau + 2 * rc), 16)
            a.mfma32(acc, ac((ks * 2 + rc) * 4, 4), v(X + 4 * (n % 32), 4), '0' if ks == 0 else acc)
            if rc == 0 and n + PRE < 56:
                bload(n + PRE)
    a.stamp('p5mf')
    for rho in range(1, 4):
        a('s_xor_b32 s%d, s%d, %d' % (sT0, sW, rho))
        a('s_mul_i32 s%d, s%d, 12288' % (sT0, sT0))
        a('s_add_u32 s%d, s%d, %d' % (sT0, sT0, L_RED5 + (rho - 1) * 4096))
        a('v_add_u32 %s, s%d, %s' % (v(vT), sT0, v(vFR)))
        for q in range(4):
            a('ds_write_b128 %s, %s offset:%d' % (v(vT), v(ACC + 16 * rho + 4 * q, 4), q * 1024))
    a('s_mul_i32 s%d, s%d, 12288' % (sT0, sW))
    a('v_add_u32 %s, s%d, %s' % (v(vT), sT0, v(vFR)))
    for i in range(8):
        a('v_lshlrev_b32 %s, 16, %s' % (v(X + 2 * i), v(HP + i)))
        a('v_and_b32 %s, 0xffff0000, %s' % (v(X + 2 * i + 1), v(HP + i)))
    a('s_waitcnt lgkmcnt(0)')
    a('s_barrier')
    a.stamp('B12', 2)
    for n in range(12):
        a('ds_read_b128 %s, %s offset:%d' % (v(ACC + 16 + 4 * n, 4), v(vT), L_RED5 + n * 1024))
    for rho in range(1, 4):
        for i in range(0, 16, 2):
            a('v_pk_add_f32 %s, %s, %s' % (v(ACC + i, 2), v(ACC + i, 2), v(ACC + 16 * rho + i, 2)))
    for i in range(8):
        a('v_cvt_pk_bf16_f32 %s, %s, %s' % (v(ACC + 16 + i), v(ACC + 2 * i), v(ACC + 2 * i + 1)))
    for i in range(8):
        a('v_lshlrev_b32 %s, 16, %s' % (v(ACC + 2 * i), v(ACC + 16 + i)))
        a('v_and_b32 %s, 0xffff0000, %s' % (v(ACC + 2 * i + 1), v(ACC + 16 + i)))
    for i in range(0, 16, 2):
        a('v_pk_add_f32 %s, %s, %s' % (v(ACC + i, 2), v(ACC + i, 2), v(X + i, 2)))
    if 'perturb' in cfg:
        import struct
        a('s_cmp_lg_u32 s2, 0')
        a('s_cbranch_scc1 L_nopert')
        a('v_add_f32 %s, 0x%x, %s' % (v(ACC), struct.unpack('<I', struct.pack('<f', cfg['perturb']))[0], v(ACC)))
        a.label('L_nopert')
    for i in range(8):
        a('v_cvt_pk_bf16_f32 %s, %s, %s' % (v(ACC + 16 + i), v(ACC + 2 * i), v(ACC + 2 * i + 1)))
    a.vm('buffer_store_dwordx4 %s, %s, %s, s%d offen' % (v(ACC + 16, 4), v(vOUT), sr(S_OUT), sT4))
    a.vm('buffer_store_dwordx4 %s, %s, %s, s%d offen offset:16' % (v(ACC + 20, 4), v(vOUT), sr(S_OUT), sT4))
    if cfg.get('stamps'):
        a('s_waitcnt vmcnt(0)')
        a.stamp('end')
        assert a.nstamp <= 64
        a('s_cmp_lg_u32 s%d, %d' % (sW, cfg.get('swave', 0)))
        a('s_cbranch_scc1 L_end')
        if 'probe' in cfg:
            a('v_readlane_b32 s%d, v4, %d' % (sT0, cfg['probe']))
            a('v_readlane_b32 s%d, v4, 0' % sT2)
            a('s_sub_u32 s%d, s%d, s%d' % (sT0, sT0, sT2))
            a('s_cmp_ge_u32 s%d, 14' % sJ)
            a('s_cselect_b32 s%d, 0, s%d' % (sT0, sT0))
            a('s_min_u32 s%d, s%d, 10000' % (sT0, sT0))
            a('s_lshl_b32 s%d, s%d, 2' % (sT0, sT0))
            a('s_add_u32 s%d, s%d, 10000' % (sT0, sT0))
            a.label('L_probe')
            a('s_memrealtime s[%d:%d]' % (S_PTR, S_PTR + 1))
            a('s_waitcnt lgkmcnt(0)')
            a('s_sub_u32 s%d, s%d, s%d' % (sT1, S_PTR, sT2))
            a('s_cmp_lt_u32 s%d, s%d' % (sT1, sT0))
            a('s_cbranch_scc1 L_probe')
        a('s_lshl_b32 s%d, s2, 8' % sT0)
        a('s_add_u32 s%d, s%d, 0x%x' % (sT0, sT0, STAMP))
        a('v_lshlrev_b32 %s, 2, %s' % (v(vT), v(vL)))
        a('buffer_store_dword v4, %s, %s, s%d offen' % (v(vT), sr(S_WS), sT0))
    a.label('L_end')
    a('s_endpgm')
    body = finalize(a)
    return body, a.names


HEADER = open('header.txt').read().rstrip('\n').split('\n')


def build(cfg, path):
    body, names = gen(cfg)
    k = kernel_text(NAME + '_kernel', body, vgprs=512, accum=256, sgprs=102)
    hdr = HEADER + ['; @launch grid=(256,1,1) block=(256,1,1) lds=163840']
    if names:
        hdr.append('; stamps: ' + ' '.join(names))
        if cfg.get('cyc'):
            hdr.append('; cycle stamps')
    open(path, 'w').write(module_text(hdr, [k]))


if __name__ == '__main__':
    import json
    cfg = json.loads(sys.argv[2]) if len(sys.argv) > 2 else {}
    build(cfg, sys.argv[1])
```

```python
import sys, struct, json, math
sys.path.insert(0, 'gen')
from asmlib import *
from common import *

FL, KVP, ST, O_, H_, ACT, STAMP = 0x0, 0x40000, 0x100000, 0x200000, 0x400000, 0x600000, 0x8000000
KVREC = 2304
R0, R1, R2 = 0, 65536, 131072
L_XS, L_WQ = R1, R2
L_PHI, L_V, L_CSX, L_CSQ = 0, 16384, 24576, 28672
L_WO = R1
L_KVB = R2 + 16384
L_BX = 3 * 32768
L_WPHI = L_WQ + 31 * 1024
LOG2E = 0x3fb8aa3b
ONES = 0x3f803f80
SPIN = 400000

S_X, S_WQKV, S_WPHI, S_WO, S_W1, S_B1, S_W2, S_OUT, S_DBG, S_WS = 4, 8, 12, 16, 20, 24, 28, 32, 36, 40
(sI, sJ, sW, sC, sCX, sCW, sT0, sT1, sT2, sT3, sONES, sSEL0, sSEL1, sLDSX, sLDSW, sCNT, sXCD, sP, sMSK, sMSK1) = range(44, 64)
S_PTR = 64
(sREC, sGAT, sFA, sFB, sFP, sOST, sOLD, sHST, sSST, sOUT, sHL0, sHL1, sSLD, sAST, sALD, sCO, sC1, sC2, sC5, sR3) = range(64, 84)
sLW2, sT4, sT5, sKH, sTT, sLW1, sRS, sLN2 = 86, 87, 88, 89, 90, 91, 3, 84
S_TMP = 92
S_ST = 96
A_STASH = 224


def v(i, n=1):
    return 'v%d' % i if n == 1 else 'v[%d:%d]' % (i, i + n - 1)


def ac(i, n=1):
    return 'a%d' % i if n == 1 else 'a[%d:%d]' % (i, i + n - 1)


def sr(i):
    return 's[%d:%d]' % (i, i + 3)


def fbits(x):
    return struct.unpack('<I', struct.pack('<f', x))[0]


class Mark:
    def __init__(self, name):
        self.name = name


class WaitVM:
    def __init__(self, name):
        self.name = name


class WaitDS:
    def __init__(self, name):
        self.name = name


def cost(x):
    if isinstance(x, Mark):
        return 0
    if isinstance(x, (WaitVM, WaitDS)):
        return 1
    if isinstance(x, (list, tuple)):
        return sum(cost(y) for y in x)
    if callable(x):
        return getattr(x, 'cost', 4)
    mn = x.split()[0]
    if mn.startswith('v_mfma'):
        return 0
    if mn.startswith(TRANS) or mn.startswith('v_permlane'):
        return 2
    return 1


def flat(x):
    if isinstance(x, (list, tuple)):
        return [z for y in x for z in flat(y)]
    return [x]


class K(Asm):
    def __init__(self, cfg):
        super().__init__()
        self.cfg = cfg
        self.vmn = 0
        self.dsn = 0
        self.marks = {}
        self.nstamp = 0
        self.names = []
        self.stash_slots = {}

    def run(self, x):
        if isinstance(x, Mark):
            self.marks[x.name] = (self.vmn, self.dsn)
        elif isinstance(x, WaitVM):
            self('s_waitcnt vmcnt(%d)' % min(63, self.vmn - self.marks[x.name][0]))
        elif isinstance(x, WaitDS):
            self('s_waitcnt lgkmcnt(%d)' % min(15, self.dsn - self.marks[x.name][1]))
        elif isinstance(x, (list, tuple)):
            for y in x:
                self.run(y)
        elif callable(x):
            x()
        else:
            for key in self.cfg.get('skip', []):
                if x.startswith('buffer_load') and key in x:
                    return
            self(x)
            if x.startswith(('buffer_', 'global_')):
                self.vmn += 1
            elif x.startswith('ds_'):
                self.dsn += 1

    def gap(self, items):
        front, back, wr, rd = [], [], set(), set()
        blocked = False
        for x in items:
            fl = flat(x)
            strs = [Ins(y) for y in fl if isinstance(y, str)]
            is_valu = any(i.cls == 'valu' for i in strs)
            opaque = any(callable(y) for y in fl)
            r_ = set().union(*[i.reads for i in strs]) if strs else set()
            w_ = set().union(*[i.writes for i in strs]) if strs else set()
            dep = bool(r_ & wr) or bool(w_ & (wr | rd))
            if is_valu or opaque or dep or blocked:
                back.append(x)
                wr |= w_
                rd |= r_
                if not is_valu:
                    blocked = True
            else:
                front.append(x)
        self.run(front)
        self.run(back)

    def fill(self, mains, side, first=0, last=None, post=None):
        n = len(mains)
        post = post or [[] for _ in mains]
        last = n - 1 if last is None else min(last, n - 1)
        span = last - first + 1
        extra = [(cost(mains[i + 1]) if i + 1 < n else 0) + cost(post[i]) for i in range(n)]
        total = sum(cost(x) for x in side) + sum(extra[first:last + 1])
        done, used = 0, 0.0
        for i, g in enumerate(mains):
            self.run(g)
            items = list(post[i])
            if first <= i <= last:
                used += extra[i]
                target = total * (i - first + 1) / span
                while done < len(side) and (used + cost(side[done]) / 2.0 <= target or i == last):
                    items.append(side[done])
                    used += cost(side[done])
                    done += 1
            self.gap(items)
        self.run(side[done:])

    def stamp(self, name='', level=1):
        only = self.cfg.get('only')
        if self.cfg.get('stamps', 0) >= level and (only is None or name in only or name == 'end'):
            n = self.nstamp
            self.nstamp += 1
            self.names.append(name)
            self('s_memrealtime s[%d:%d]' % (S_ST, S_ST + 1))
            if self.cfg.get('cyc'):
                assert n < 32
                self('s_memtime s[%d:%d]' % (S_ST + 2, S_ST + 3))
            self('s_waitcnt lgkmcnt(0)')
            self('v_writelane_b32 v4, s%d, %d' % (S_ST, n))
            if self.cfg.get('cyc'):
                self('v_writelane_b32 v4, s%d, %d' % (S_ST + 2, 32 + n))

    def stamper(self, name, level=2):
        f = lambda: self.stamp(name, level)
        f.cost = 0
        return f

    def stash(self, name, reg):
        slot = A_STASH + 8 + len(self.stash_slots)
        assert slot < 256
        self.stash_slots[name] = slot
        self('v_accvgpr_write_b32 %s, %s' % (ac(slot), v(reg)))

    def unstash(self, name, reg):
        return 'v_accvgpr_read_b32 %s, %s' % (v(reg), ac(self.stash_slots[name]))


def mfma32(d, a_, b, c):
    return 'v_mfma_f32_32x32x16_bf16 %s, %s, %s, %s' % (d, a_, b, c)


def mfma16(d, a_, b, c):
    return 'v_mfma_f32_16x16x32_bf16 %s, %s, %s, %s' % (d, a_, b, c)


def merge(*lists):
    lists = [l for l in lists if l]
    tot = [max(1, cost(l)) for l in lists]
    idx = [0] * len(lists)
    used = [0] * len(lists)
    out = []
    while any(idx[k] < len(l) for k, l in enumerate(lists)):
        best = min((used[k] / tot[k], k) for k, l in enumerate(lists) if idx[k] < len(l))[1]
        x = lists[best][idx[best]]
        out.append(x)
        used[best] += cost(x)
        idx[best] += 1
    return out


def split_hl(src, hi_f, lo_f, tmp):
    return ['v_cvt_pk_bf16_f32 %s, %s, %s' % (v(tmp), v(src), v(src)),
            'v_and_b32 %s, 0xffff0000, %s' % (v(hi_f), v(tmp)),
            'v_sub_f32 %s, %s, %s' % (v(lo_f), v(src), v(hi_f))]


def ln_ops(s1, s2, mean, rstd):
    return ['v_mul_f32 %s, 0x3b000000, %s' % (v(mean), v(s1)),
            'v_mul_f32 %s, 0x3b000000, %s' % (v(s2), v(s2)),
            'v_fma_f32 %s, -%s, %s, %s' % (v(s2), v(mean), v(mean), v(s2)),
            'v_max_f32 %s, 0, %s' % (v(s2), v(s2)),
            'v_add_f32 %s, 0x3727c5ac, %s' % (v(s2), v(s2)),
            'v_rsq_f32 %s, %s' % (v(rstd), v(s2))]


def softmax_ops(P, E, OUT, c, t):
    o = []
    mx, mn, sp, sn = t, t + 2, t + 4, t + 6
    o.append('v_max3_f32 %s, %s, %s, %s' % (v(mx), v(P), v(P + 1), v(P + 2)))
    o.append('v_min3_f32 %s, %s, %s, %s' % (v(mn), v(P), v(P + 1), v(P + 2)))
    o.append('v_max3_f32 %s, %s, %s, %s' % (v(mx + 1), v(P + 3), v(P + 4), v(P + 5)))
    o.append('v_min3_f32 %s, %s, %s, %s' % (v(mn + 1), v(P + 3), v(P + 4), v(P + 5)))
    for n, i in enumerate(range(6, 14, 2)):
        o.append('v_max3_f32 %s, %s, %s, %s' % (v(mx + n % 2), v(mx + n % 2), v(P + i), v(P + i + 1)))
        o.append('v_min3_f32 %s, %s, %s, %s' % (v(mn + n % 2), v(mn + n % 2), v(P + i), v(P + i + 1)))
    o.append('v_max3_f32 %s, %s, %s, %s' % (v(mx), v(mx), v(P + 14), v(P + 15)))
    o.append('v_min3_f32 %s, %s, %s, %s' % (v(mn), v(mn), v(P + 14), v(P + 15)))
    o.append('v_max_f32 %s, %s, %s' % (v(mx), v(mx), v(mx + 1)))
    o.append('v_min_f32 %s, %s, %s' % (v(mn), v(mn), v(mn + 1)))
    o.append('v_mul_f32 %s, %s, %s' % (v(mx), v(mx), v(c + 1)))
    o.append('v_mul_f32 %s, %s, %s' % (v(mn), v(mn), v(c)))
    for i in range(0, 16, 2):
        o.append('v_pk_fma_f32 %s, %s, %s, %s op_sel_hi:[1,0,0]' % (v(E + i, 2), v(P + i, 2), v(c, 2), v(mx, 2)))
        o.append('v_pk_fma_f32 %s, %s, %s, %s op_sel:[0,1,0] op_sel_hi:[1,1,0]' % (v(E + 16 + i, 2), v(P + i, 2), v(c, 2), v(mn, 2)))
    for i in range(32):
        o.append('v_exp_f32 %s, %s' % (v(E + i), v(E + i)))
    o.append('v_pk_add_f32 %s, %s, %s' % (v(sp, 2), v(E, 2), v(E + 2, 2)))
    o.append('v_pk_add_f32 %s, %s, %s' % (v(sn, 2), v(E + 16, 2), v(E + 18, 2)))
    for i in range(4, 16, 2):
        o.append('v_pk_add_f32 %s, %s, %s' % (v(sp, 2), v(sp, 2), v(E + i, 2)))
        o.append('v_pk_add_f32 %s, %s, %s' % (v(sn, 2), v(sn, 2), v(E + 16 + i, 2)))
    o.append('v_add_f32 %s, %s, %s' % (v(sp), v(sp), v(sp + 1)))
    o.append('v_add_f32 %s, %s, %s' % (v(sn), v(sn), v(sn + 1)))
    o.append('v_rcp_f32 %s, %s' % (v(sp), v(sp)))
    o.append('v_rcp_f32 %s, %s' % (v(sn), v(sn)))
    for half, sm in ((0, sp), (16, sn)):
        for i in range(0, 16, 2):
            o.append('v_pk_mul_f32 %s, %s, %s op_sel_hi:[1,0]' % (v(E + half + i, 2), v(E + half + i, 2), v(sm, 2)))
        for i in range(0, 16, 2):
            o.append('v_cvt_pk_bf16_f32 %s, %s, %s' % (v(OUT + (half + i) // 2), v(E + half + i), v(E + half + i + 1)))
    return o


def gen(cfg):
    a = K(cfg)
    R = a.run
    SC = 'sc1'
    D = cfg.get('depth', 3)
    vL, vFR, vL4, vOUT = 1, 2, 3, 5
    vXD, vWD, vWQD, vXR, vWR = 6, 10, 11, 12, 16
    vA = 20
    vT = 28
    aK, aV, aQ = 32, 48, 64
    vWB = 80
    vS = 112
    X = 128
    s1a, s1b, s2a, s2b, csk, csv, csq, mean, rstd, vONE, cexp, ncexp = range(vS, vS + 12)
    vBX = vS + 12
    PA1, PA2 = A_STASH, A_STASH + 4
    vHH, vTRN = aK, aK + 1

    def vx(dst, terms, sadd=None, const=0, tmp=vT + 3):
        first = True
        for src, lo, n, mul in terms:
            if n:
                a('v_bfe_u32 %s, %s, %d, %d' % (v(tmp), v(src), lo, n))
                s_ = tmp
            elif lo:
                a('v_lshrrev_b32 %s, %d, %s' % (v(tmp), lo, v(src)))
                s_ = tmp
            else:
                s_ = src
            pw = mul & (mul - 1) == 0
            if first:
                if pw:
                    a('v_lshlrev_b32 %s, %d, %s' % (v(dst), mul.bit_length() - 1, v(s_)))
                else:
                    a('v_mul_u32_u24 %s, %d, %s' % (v(dst), mul, v(s_)))
                first = False
            elif pw:
                a('v_lshl_add_u32 %s, %s, %d, %s' % (v(dst), v(s_), mul.bit_length() - 1, v(dst)))
            else:
                a('v_mul_u32_u24 %s, %d, %s' % (v(tmp), mul, v(s_)))
                a('v_add_u32 %s, %s, %s' % (v(dst), v(tmp), v(dst)))
        if sadd is not None:
            a('v_add_u32 %s, s%d, %s' % (v(dst), sadd, v(dst)))
        if const:
            a('v_add_u32 %s, %d, %s' % (v(dst), const, v(dst)))

    def sx(dst, terms, const=0, tmp=sT5):
        first = True
        for src, mul in terms:
            tgt = dst if first else tmp
            if mul == 1:
                if first:
                    a('s_mov_b32 s%d, s%d' % (dst, src))
                else:
                    a('s_add_u32 s%d, s%d, s%d' % (dst, dst, src))
                first = False
                continue
            if mul & (mul - 1) == 0:
                a('s_lshl_b32 s%d, s%d, %d' % (tgt, src, mul.bit_length() - 1))
            else:
                a('s_mul_i32 s%d, s%d, %d' % (tgt, src, mul))
            if not first:
                a('s_add_u32 s%d, s%d, s%d' % (dst, dst, tmp))
            first = False
        if const:
            a('s_add_u32 s%d, s%d, %d' % (dst, dst, const))

    def step(sreg, inc, period):
        if period & (period - 1) == 0:
            return ['s_add_u32 s%d, s%d, %d' % (sreg, sreg, inc), 's_and_b32 s%d, s%d, %d' % (sreg, sreg, period - 1)]
        return ['s_add_u32 s%d, s%d, %d' % (sreg, sreg, inc),
                ['s_cmp_eq_u32 s%d, %d' % (sreg, period), 's_cmov_b32 s%d, 0' % sreg]]

    def push_flags(sbase, add, vaddr):
        lab = a.uniq('L_nopush')
        a('s_cmp_lg_u32 s%d, 0' % sW)
        a('s_cbranch_scc1 %s' % lab)
        a('s_add_u32 s%d, s%d, %d' % (sT5, sbase, add))
        a('s_mov_b64 exec, 0xffff')
        a('buffer_store_dword %s, %s, %s, s%d offen sc1' % (v(vONE), v(vaddr), sr(S_WS), sT5))
        a('s_mov_b64 exec, -1')
        a.label(lab)

    def arrive(sync):
        lab = a.uniq('L_noarr')
        a('s_cmp_lg_u32 s%d, 0' % sW)
        a('s_cbranch_scc1 %s' % lab)
        a('s_add_u32 s%d, s%d, %d' % (sT5, sFB, sync * 32768))
        a('s_mov_b64 exec, 1')
        a('buffer_atomic_add %s, %s, %s, s%d offen sc1' % (v(vONE), v(vL4), sr(S_WS), sT5))
        a('s_mov_b64 exec, -1')
        a.label(lab)

    def spin(lp, reg, srd_, soff, want):
        a.label(lp)
        a('buffer_load_dword %s, %s, %s, %s offen sc1' % (v(reg), v(vL4), sr(srd_), soff))
        a('s_add_u32 s%d, s%d, 1' % (sCNT, sCNT))
        a('s_cmp_gt_u32 s%d, %d' % (sCNT, SPIN))
        a('s_cbranch_scc1 %s_y' % lp)
        a('s_waitcnt vmcnt(0)')
        a('v_cmp_ne_u32 vcc, %d, %s' % (want, v(reg)))
        a('s_cbranch_vccnz %s' % lp)
        a.label(lp + '_y')
        a('s_waitcnt vmcnt(0)')

    def flag_addr(sync):
        return 's_add_u32 s%d, s%d, %d' % (sT5, sFP if sync == 0 else sFB, sync * 32768)

    def poll(sync, n, wave=0):
        lab = a.uniq('L_nopoll')
        a('s_cmp_lg_u32 s%d, %d' % (sW, wave))
        a('s_cbranch_scc1 %s' % lab)
        a(flag_addr(sync))
        a('s_mov_b64 exec, 0x%x' % (0xffff if sync == 0 else 1))
        spin(a.uniq('L_poll'), vT + 3, S_WS, 's%d' % sT5, 1 if sync == 0 else n)
        a('s_mov_b64 exec, -1')
        a.label(lab)

    def check_issue(sync, reg, wave):
        def f():
            lab = a.uniq('L_noci')
            a('s_cmp_lg_u32 s%d, %d' % (sW, wave))
            a('s_cbranch_scc1 %s' % lab)
            a(flag_addr(sync))
            a('s_mov_b64 exec, 1')
            a('buffer_load_dword %s, %s, %s, s%d offen sc1' % (v(reg), v(vL4), sr(S_WS), sT5))
            a('s_mov_b64 exec, -1')
            a.label(lab)
        f.cost = 3
        return f

    def check_done(sync, n, reg, wave):
        lp = a.uniq('L_chk')
        a('s_cmp_lg_u32 s%d, %d' % (sW, wave))
        a('s_cbranch_scc1 %s_z' % lp)
        a('s_mov_b64 exec, 0x%x' % (0xffff if sync is None else 1))
        a('v_cmp_ne_u32 vcc, %d, %s' % (1 if sync is None else n, v(reg)))
        a('s_cbranch_vccz %s_x' % lp)
        if sync is None:
            spin(lp, reg, S_DBG, '0', 1)
        else:
            a(flag_addr(sync))
            spin(lp, reg, S_WS, 's%d' % sT5, n)
        a.label(lp + '_x')
        a('s_mov_b64 exec, -1')
        a.label(lp + '_z')

    a('s_cmp_ge_u32 s2, 256')
    a('s_cbranch_scc1 L_end')
    if cfg.get('stamps'):
        a('s_memrealtime s[100:101]')
        a('s_memtime s[98:99]')
    a('s_load_dwordx16 s[%d:%d], s[0:1], 0' % (S_PTR, S_PTR + 15))
    a('s_load_dwordx4 s[%d:%d], s[0:1], 64' % (S_PTR + 16, S_PTR + 19))
    a('s_load_dwordx2 s[%d:%d], s[0:1], 80' % (S_PTR + 20, S_PTR + 21))
    a('s_getpc_b64 s[%d:%d]' % (sT2, sT2 + 1))
    a.label('L_pc')
    a('s_lshr_b32 s%d, s2, 3' % sT0)
    a('v_lshrrev_b32 %s, 6, v0' % v(vT))
    a('v_and_b32 %s, 63, v0' % v(vL))
    a('v_readfirstlane_b32 s%d, %s' % (sW, v(vT)))
    ncl = cfg.get('code_lines', 9)
    if ncl:
        a('s_mul_i32 s%d, s%d, %d' % (sT1, sT0, ncl * 128))
        a('v_lshl_add_u32 %s, v0, 7, s%d' % (v(vT + 1), sT1))
        a('v_min_u32 %s, L_end-L_pc, %s' % (v(vT + 1), v(vT + 1)))
        a('v_cmp_gt_u32 vcc, %d, v0' % ncl)
        a('s_and_saveexec_b64 s[%d:%d], vcc' % (sMSK, sMSK1))
        a('s_cbranch_execz L_nocp')
        a('global_load_dword %s, %s, s[%d:%d]' % (v(255), v(vT + 1), sT2, sT2 + 1))
        a.label('L_nocp')
        a('s_mov_b64 exec, -1')
    a('s_and_b32 s%d, s2, 7' % sXCD)
    a('s_and_b32 s%d, s%d, 15' % (sJ, sT0))
    a('s_lshr_b32 s%d, s%d, 4' % (sT2, sT0))
    sx(sI, [(sXCD, 2), (sT2, 1)])
    a('s_and_b32 s%d, s%d, 1' % (sT3, sJ))
    a('s_lshr_b32 s%d, s%d, 1' % (sT1, sJ))
    a('s_and_b32 s%d, s%d, 1' % (sT0, sXCD))
    sx(sT4, [(sT2, 4), (sT3, 2), (sT1, 1), (sT0, 1)])
    a('s_and_b32 s%d, s%d, 7' % (sT4, sT4))
    a('s_lshl_b32 s%d, s%d, 7' % (sCX, sT4))
    a('s_mul_i32 s%d, s%d, %d' % (sCW, sT4, 64 * 3072))
    sx(sT0, [(sI, 1 << 17), (sW, 1 << 15)])
    sx(sLDSX, [(sW, 1 << 14)], L_XS)
    a('s_lshl_b32 s%d, s%d, 11' % (sLDSW, sW))
    a('v_lshrrev_b32 %s, 4, %s' % (v(vT + 1), v(vL)))
    a('v_and_b32 %s, 7, %s' % (v(vT + 2), v(vL)))
    a('v_xor_b32 %s, %s, %s' % (v(vT + 1), v(vT + 1), v(vT + 2)))
    vx(vXD, [(vL, 3, 0, 1024), (vT + 1, 0, 0, 16)], sadd=sT0)
    a('v_xor_b32 %s, 64, %s' % (v(vXD + 1), v(vXD)))
    a('v_add_u32 %s, %d, %s' % (v(vXD + 2), 2 * 7168, v(vXD)))
    a('v_add_u32 %s, %d, %s' % (v(vXD + 3), 3 * 7168, v(vXD + 1)))
    a('v_add_u32 %s, %d, %s' % (v(vXD + 1), 7168, v(vXD + 1)))
    a('s_lshl_b32 s%d, s%d, 6' % (sT2, sJ))
    vx(vWQD, [(0, 2, 0, 3072), (vL, 0, 2, 16)], sadd=sT2)
    a('v_add_u32 %s, 1024, %s' % (v(vWD), v(vWQD)))
    a('s_waitcnt lgkmcnt(0)')
    if cfg.get('stamps'):
        a('v_mov_b32 v4, 0')
        a('v_writelane_b32 v4, s100, 0')
        if cfg.get('cyc'):
            a('v_writelane_b32 v4, s98, 32')
        a.nstamp = 1
        a.names.append('start')
    a.stamp('karg', 2)
    srd(a, S_WQKV, S_PTR + 2, SIZES['wqkv'])

    def dma_w(s):
        return ['s_add_u32 m0, s%d, %d' % (sLDSW, s * 8192),
                'buffer_load_dwordx4 %s, %s, s%d offen lds' % (v(vWD), sr(S_WQKV), sCW),
                'buffer_load_dwordx4 %s, %s, s%d offen offset:1024 lds' % (v(vWD), sr(S_WQKV), sCW)] + step(sCW, 64 * 3072, 512 * 3072)

    def dma_x(s):
        return ['s_add_u32 m0, s%d, %d' % (sLDSX, (s & 3) * 4096)] + [
            'buffer_load_dwordx4 %s, %s, s%d offen offset:%d lds' % (v(vXD + q), sr(S_X), sCX, q * 1024) for q in range(4)
        ] + step(sCX, 128, 1024) + [Mark('slot%d' % s)]

    def dma_wq(s):
        return ['s_add_u32 m0, s%d, %d' % (sLDSW, L_WQ + (s >> 1) * 8192 + (s & 1) * 1024),
                'buffer_load_dwordx4 %s, %s, s%d offen lds' % (v(vWQD), sr(S_WQKV), sCW)] + step(sCW, 64 * 3072, 512 * 3072)

    R(dma_w(0))
    srd(a, S_X, S_PTR + 0, SIZES['x'])
    R(dma_x(0))
    a.stamp('dma0', 2)
    srd(a, S_WS, S_PTR + 20, SIZES['ws'])
    srd(a, S_WPHI, S_PTR + 4, SIZES['wphi'])
    srd(a, S_WO, S_PTR + 6, SIZES['wo'])
    srd(a, S_W1, S_PTR + 10, SIZES['w1'])
    srd(a, S_B1, S_PTR + 12, SIZES['b1'])
    srd(a, S_W2, S_PTR + 14, SIZES['w2'])
    srd(a, S_OUT, S_PTR + 16, SIZES['out'])
    srd(a, S_DBG, S_PTR + 18, SIZES['dbg'])
    srd(a, S_TMP, S_PTR + 10, SIZES['w1'])

    a('s_mov_b32 s%d, 0x%x' % (sONES, ONES))
    a('s_mov_b32 s%d, 0x3f80' % sSEL0)
    a('s_mov_b32 s%d, 0x3f800000' % sSEL1)
    a('s_mov_b32 s%d, 0' % sCNT)
    a('s_mov_b32 s%d, 0x%x' % (sRS, fbits(math.sqrt(0.5))))
    a('s_mov_b32 s%d, 0x%x' % (sLN2, fbits(math.log(2.0))))
    a('s_lshr_b32 s%d, s%d, 1' % (sKH, sW))
    a('s_and_b32 s%d, s%d, 1' % (sTT, sW))
    a('s_lshr_b32 s%d, s%d, 3' % (sP, sJ))
    a('s_and_b32 s%d, s%d, 7' % (sC, sJ))
    a('s_lshl_b32 s%d, s%d, 13' % (sLW2, sW))
    a('s_lshl_b32 s%d, s%d, 12' % (sLW1, sW))
    a('v_lshrrev_b32 %s, 5, %s' % (v(vHH), v(vL)))
    a('v_lshlrev_b32 %s, 4, %s' % (v(vFR), v(vL)))
    a('v_lshlrev_b32 %s, 2, %s' % (v(vL4), v(vL)))
    a('v_mov_b32 %s, 1' % v(vONE))
    vx(aQ + 8, [(vL, 0, 1, 512), (vL, 1, 1, 8), (vL, 4, 1, 16), (vL, 2, 2, 32), (vHH, 0, 0, 128)], const=L_WPHI)
    a('v_bfe_u32 %s, %s, 2, 1' % (v(vT), v(vL)))
    a('v_cmp_eq_u32 s[%d:%d], 0, %s' % (sMSK, sMSK1, v(vT)))
    a('v_bfe_u32 %s, %s, 1, 3' % (v(vT + 1), v(vL)))
    a('s_lshl_b32 s%d, s%d, 1' % (sT2, sW))
    a('v_add_u32 %s, s%d, %s' % (v(vT + 2), sT2, v(vHH)))
    a('v_xor_b32 %s, %s, %s' % (v(vT + 1), v(vT + 1), v(vT + 2)))
    vx(vXR, [(vL, 0, 5, 128), (vT + 1, 0, 0, 16)], sadd=sLDSX)
    for p in range(1, 4):
        a('v_xor_b32 %s, %d, %s' % (v(vXR + p), 32 * p, v(vXR)))
    vx(vOUT, [(vL, 0, 5, 1024), (vHH, 0, 0, 32)])
    vx(vWR, [(vL, 2, 2, 64), (vL, 4, 1, 32), (vL, 0, 2, 8), (vHH, 0, 0, 512)], sadd=sLDSW)
    for p in range(1, 4):
        a('v_xor_b32 %s, %d, %s' % (v(vWR + p), 2048 * p, v(vWR)))
    vx(vTRN, [(vL, 2, 2, 64), (vL, 0, 1, 32), (vL, 4, 1, 16), (vL, 1, 1, 8)])
    sx(sT2, [(sKH, 32768 + 512)], L_WO)
    vx(vT, [(vTRN, 0, 0, 1), (vHH, 0, 0, 1024)], sadd=sT2)
    a.stash('wo', vT)
    a('s_lshl_b32 s%d, s%d, 9' % (sT2, sW))
    vx(vT, [(vTRN, 0, 0, 1), (vHH, 0, 0, 4096)], sadd=sT2)
    a.stash('w1', vT)
    sx(sT2, [(sKH, 512), (sLW2, 1)])
    vx(vT, [(vTRN, 0, 0, 1), (vHH, 0, 0, 2048)], sadd=sT2)
    a.stash('w2', vT)
    vx(vT + 1, [(vL, 0, 2, 16), (vHH, 0, 0, 64)])
    sx(sT2, [(sKH, 1 << 18), (sC, 128)])
    vx(vT, [(vL, 2, 3, 1024), (vT + 1, 0, 0, 1)], sadd=sT2)
    a.stash('bdo', vT)
    sx(sT2, [(sW, 448 * 1024), (sC, 128)])
    vx(vT, [(vL, 2, 3, 1024), (vT + 1, 0, 0, 1)], sadd=sT2)
    a.stash('bd2', vT)
    sx(sT2, [(sW, 16 * 3584), (sJ, 256)], 3072)
    vx(vT, [(vL, 2, 3, 3584), (vT + 1, 0, 0, 1)], sadd=sT2)
    a.stash('bd1', vT)
    a('v_bfe_u32 %s, %s, 1, 2' % (v(vT), v(vL)))
    vx(vT + 1, [(vL, 3, 1, 2)])
    a('v_xor_b32 %s, %s, %s' % (v(vT + 1), v(vT), v(vT + 1)))
    vx(vT, [(vL, 0, 5, 64), (vT + 1, 0, 0, 16)], sadd=sLDSW)
    a('v_lshl_add_u32 %s, %s, 3, %s' % (v(vA), v(vHH), v(vT)))
    a('v_lshl_add_u32 %s, %s, 13, %s' % (v(vA + 4), v(vHH), v(vT)))
    for g in range(1, 4):
        a('v_xor_b32 %s, %d, %s' % (v(vA + g), 16 * g, v(vA)))
        a('v_xor_b32 %s, %d, %s' % (v(vA + 4 + g), 16 * g, v(vA + 4)))
    vx(vT, [(vL, 3, 1, 1), (vL, 4, 1, 2)])
    a('v_bfe_u32 %s, %s, 1, 1' % (v(vT + 1), v(vL)))
    a('v_xor_b32 %s, %s, %s' % (v(vT), v(vT), v(vT + 1)))
    vx(vT + 2, [(vL, 4, 0, 512), (vL, 2, 2, 64), (vT, 0, 0, 16), (vL, 0, 1, 8)])
    sx(sT2, [(sKH, 32), (sTT, 8192)])
    a('v_xor_b32 %s, s%d, %s' % (v(vT), sT2, v(vT + 2)))
    a.stash('kvphi', vT)
    a('s_lshl_b32 s%d, s%d, 5' % (sT2, sTT))
    a('v_xor_b32 %s, s%d, %s' % (v(vT), sT2, v(vT + 2)))
    a.stash('kvv', vT)
    vx(vT, [(0, 4, 0, 16)])
    a.stash('zst', vT)
    vx(vT + 1, [(vL, 0, 4, KVREC), (vT, 0, 0, 1)])
    a.stash('zld', vT + 1)
    sx(sT2, [(sTT, 17 * 80), (sKH, 32)], L_KVB)
    vx(vT, [(vL, 4, 0, 8)], sadd=sT2)
    a.stash('kbz', vT)
    vx(vT + 1, [(vL, 0, 4, 80), (vT, 0, 0, 1)])
    a.stash('kbw', vT + 1)
    vx(vT + 2, [(vL, 2, 1, 8), (vL, 3, 1, 4), (vL, 0, 2, 1)])
    a('v_and_b32 %s, 16, %s' % (v(vT), v(vL)))
    a('v_cmp_eq_u32 vcc, 0, %s' % v(vT))
    a('v_cndmask_b32 %s, 16, %s, vcc' % (v(vT + 2), v(vT + 2)))
    vx(vT, [(vT + 2, 0, 0, 80), (vHH, 0, 0, 16)], const=L_KVB)
    a.stash('kbr', vT)
    sx(sT2, [(sJ, 256), (sW, 64)])
    vx(vT, [(vL, 2, 1, 32), (vL, 3, 2, 8), (vL, 0, 2, 2), (vHH, 0, 0, 8192)], sadd=sT2)
    a.stash('bias', vT)
    sx(sT2, [(sLW2, 1)], R2)
    a('v_add_u32 %s, s%d, %s' % (v(vT), sT2, v(vFR)))
    a.stash('red3', vT)

    sx(sGAT, [(sJ, 16 * KVREC)], KVP)
    sx(sREC, [(sGAT, 1), (sI, KVREC)])
    sx(sFA, [(sJ, 128), (sI, 4)])
    sx(sFP, [(sI, 2048), (sJ, 128)])
    sx(sFB, [(sI, 2048)])
    sx(sOST, [(sI, 4 << 15), (sW, 1 << 15), (sJ, 2048)], O_)
    sx(sSLD, [(sI, 4 << 12), (sW, 1 << 12)], ST)
    sx(sAST, [(sI, 4 * 112 * 1024), (sJ, 8192), (sW, 2048)], ACT)
    sx(sALD, [(sI, 4 * 112 * 1024), (sP, 112 * 1024), (sW, 28 * 1024)], ACT)
    sx(sT2, [(sI, 4), (sP, 1), (sTT, 2)])
    sx(sT3, [(sC, 2), (sKH, 1)])
    sx(sOLD, [(sT2, 1 << 15), (sKH, 1 << 14)], O_)
    sx(sOUT, [(sT2, 1 << 15), (sT3, 64)])
    sx(sHST, [(sT2, 1 << 15), (sT3, 2048)], H_)
    sx(sSST, [(sT2, 1 << 12), (sT3, 256)], ST)
    rot = cfg.get('rot', 1)
    a('s_and_b32 s%d, s%d, %d' % (sT2, sI, 1 if cfg.get('rotw', 0) else 0))
    a('s_and_b32 s%d, s%d, %d' % (sT3, sP, 1 if cfg.get('rotw', 0) else 0))
    sx(sT3, [(sT3, 1), (sT2, 2)])
    a('s_lshr_b32 s%d, s%d, 1' % (sT0, sC))
    a('s_add_u32 s%d, s%d, s%d' % (sT0, sT0, sT3))
    a('s_and_b32 s%d, s%d, %d' % (sT0, sT0, 3 if rot else 0))
    a('s_lshl_b32 s%d, s%d, 12' % (sR3, sT0))
    sx(sCO, [(sTT, 4 << 15), (sT0, 2 << 15)])
    a('s_and_b32 s%d, s%d, %d' % (sCO, sCO, (8 << 15) - 1))
    sx(sT0, [(sJ, 1), (sT2, 2)])
    a('s_and_b32 s%d, s%d, %d' % (sT0, sT0, 3 if rot else 0))
    a('s_mul_i32 s%d, s%d, %d' % (sC1, sT0, 128 * 3584))
    sx(sT1, [(sT0, 2), (sW, 1)])
    a('s_and_b32 s%d, s%d, 7' % (sT4, sT1))
    sx(sHL0, [(sI, 4 << 15), (sT4, 4096)], H_)
    a('s_xor_b32 s%d, s%d, 4' % (sT4, sT4))
    sx(sHL1, [(sI, 4 << 15), (sT4, 4096)], H_)
    sx(sT0, [(sC, 1), (sT3, 2)])
    a('s_add_u32 s%d, s%d, -7' % (sT1, sT0))
    a('s_cselect_b32 s%d, s%d, s%d' % (sT0, sT1, sT0))
    if not rot:
        a('s_mov_b32 s%d, 0' % sT0)
    a('s_lshl_b32 s%d, s%d, 16' % (sC2, sT0))
    a('s_lshl_b32 s%d, s%d, 12' % (sC5, sT0))
    a('s_sub_u32 s%d, s%d, 3072' % (S_W1, S_W1))
    a('s_subb_u32 s%d, s%d, 0' % (S_W1 + 1, S_W1 + 1))
    a('s_cmp_ge_u32 s%d, 14' % sJ)
    a('s_cselect_b32 s%d, 0, %d' % (S_W1 + 2, SIZES['w1'] + 3072))
    for r_ in (s1a, s1b, s2a, s2b, csk, csv, csq, vBX + 2, vBX + 3):
        a('v_mov_b32 %s, 0' % v(r_))

    def warm(srd_, nbytes, dst):
        nl = nbytes // 128 // 256
        a('s_mul_i32 s%d, s2, %d' % (sT2, nl * 128))
        a('v_lshlrev_b32 %s, 7, %s' % (v(vT), v(vL)))
        a('s_mov_b32 exec_lo, 0x%x' % (((1 << nl) - 1) & 0xffffffff))
        a('s_mov_b32 exec_hi, 0x%x' % (((1 << nl) - 1) >> 32))
        a('buffer_load_dword %s, %s, %s, s%d offen' % (v(dst), v(vT), sr(srd_), sT2))
        a('s_mov_b64 exec, -1')

    def warm_big():
        a('s_cmp_lg_u32 s%d, 1' % sW)
        a('s_cbranch_scc1 L_nw1')
        warm(S_TMP, SIZES['w1'], vT + 2)
        a.label('L_nw1')
        a('s_cmp_lg_u32 s%d, 2' % sW)
        a('s_cbranch_scc1 L_nw2')
        warm(S_W2, SIZES['w2'], vT + 2)
        a.label('L_nw2')

    a('s_cmp_lg_u32 s%d, 0' % sJ)
    a('s_cbranch_scc1 L_noclear')
    vx(vT, [(0, 4, 0, 128), (0, 2, 2, 32768), (0, 0, 2, 16)])
    a('s_lshl_b32 s%d, s%d, 11' % (sT2, sI))
    a('buffer_store_dwordx4 %s, %s, %s, s%d offen sc1' % (v(s1a, 4), v(vT), sr(S_WS), sT2))
    a('s_add_u32 s%d, s%d, %d' % (sT2, sT2, 4 * 32768))
    a('buffer_store_dwordx4 %s, %s, %s, s%d offen sc1' % (v(s1a, 4), v(vT), sr(S_WS), sT2))
    a.label('L_noclear')
    if cfg.get('warm0', 1):
        a('s_cmp_lg_u32 s%d, 1' % sW)
        a('s_cbranch_scc1 L_nowarm0')
        a('s_mul_i32 s%d, s2, %d' % (sT2, 2 * 3072))
        vx(vT, [(vL, 3, 1, 3072), (vL, 0, 3, 128)])
        a('s_mov_b64 exec, 0xffff')
        a('buffer_load_dword %s, %s, %s, s%d offen' % (v(254), v(vT), sr(S_WQKV), sT2))
        a('s_mov_b64 exec, -1')
        warm(S_WO, SIZES['wo'], 253)
        a.label('L_nowarm0')
    a('s_cmp_lg_u32 s%d, 3' % sW)
    a('s_cbranch_scc1 L_nophi')
    a('s_lshl_b32 s%d, s%d, 10' % (sT2, sJ))
    a('s_mov_b32 m0, %d' % L_WPHI)
    a('buffer_load_dwordx4 %s, %s, s%d offen lds' % (v(vFR), sr(S_WPHI), sT2))
    a.label('L_nophi')
    if cfg.get('warm1', 7) == -1:
        warm_big()
    D0 = min(D, cfg.get('d0', 2))
    for s in range(1, D0):
        R(dma_w(s) + dma_x(s))
    a.stamp('prolog')

    def wreg(s, p, m):
        if p == 0:
            return lambda o, n: v(vWB + (s & 1) * 8 + m * 4 + o, n)
        return lambda o, n: ac(128 + (s & 1) * 24 + (p - 1) * 8 + m * 4 + o, n)

    def reads(s):
        o = []
        for p in range(4):
            o.append('ds_read_b128 %s, %s offset:%d' % (v(X + (4 * s + p) * 4, 4), v(vXR + p), (s & 3) * 4096))
            for m in range(2):
                for t in range(2):
                    o.append('ds_read_b64_tr_b16 %s, %s offset:%d' % (wreg(s, p, m)(2 * t, 2), v(vWR + p), s * 8192 + m * 1024 + t * 256))
        return o

    def mains(s):
        o = []
        for p in range(4):
            for m in range(2):
                acc = v(aK if m == 0 else aV, 16)
                o.append([mfma32(acc, wreg(s, p, m)(0, 4), v(X + (4 * s + p) * 4, 4), '0' if (s == 0 and p == 0) else acc)])
        return o

    def cs_dots(s):
        o = []
        for r_ in range(4):
            o.append('v_dot2_f32_bf16 %s, %s, s%d, %s' % (v(csk), wreg(s, 0, 0)(r_, 1), sONES, v(csk)))
            o.append('v_dot2_f32_bf16 %s, %s, s%d, %s' % (v(csv), wreg(s, 0, 1)(r_, 1), sONES, v(csv)))
        return o

    def stat_dots(s):
        o = []
        for r_ in range(16):
            x = v(X + 16 * s + r_)
            p1, p2 = (s1a, s2a) if r_ & 1 else (s1b, s2b)
            o.append('v_dot2_f32_bf16 %s, %s, s%d, %s' % (v(p1), x, sONES, v(p1)))
            o.append('v_dot2_f32_bf16 %s, %s, %s, %s' % (v(p2), x, x, v(p2)))
        return o

    def a_ext(dst, cs, t):
        return split_hl(cs, t, t + 1, dst) + ['v_cvt_pk_bf16_f32 %s, %s, 0' % (v(dst + 1), v(t + 1)),
                                              'v_mov_b32 %s, 0' % v(dst + 2), 'v_mov_b32 %s, 0' % v(dst + 3)]

    phi_merge = ['ds_read_b64_tr_b16 %s, %s' % (v(aQ + 12, 2), v(aQ + 8)),
                 'ds_read_b64_tr_b16 %s, %s offset:256' % (v(aQ + 14, 2), v(aQ + 8))]
    phi_merge2 = []
    for e in range(4):
        phi_merge2.append('v_cndmask_b32 %s, 0, %s, s[%d:%d]' % (v(aQ + e), v(aQ + 12 + e), sMSK, sMSK1))
        phi_merge2.append('v_cndmask_b32 %s, %s, 0, s[%d:%d]' % (v(aQ + 4 + e), v(aQ + 12 + e), sMSK, sMSK1))
    for e in range(8):
        phi_merge2.append('v_accvgpr_write_b32 %s, %s' % (ac(PA1 + e), v(aQ + e)))

    wq = [dma_wq(s) for s in range(8)]
    R(WaitVM('slot0'))
    a('s_barrier')
    a.stamp('c0', 2)
    R(reads(0))
    for s in range(D0, D):
        R(dma_w(s) + dma_x(s))
    late = cfg.get('p1late', 0)
    for s in range(7):
        R(WaitVM('slot%d' % (s + 1)))
        a('s_waitcnt lgkmcnt(0)')
        a('s_barrier')
        a.stamp('c%d' % (s + 1), 2)
        if s == 1:
            a('s_or_b32 s%d, s%d, s%d' % (sT2, sJ, sW))
            a('s_cmp_lg_u32 s%d, 0' % sT2)
            a('s_cbranch_scc1 L_nosig')
            a('s_lshl_b32 s%d, s%d, 2' % (sT2, sI))
            a('s_mov_b64 exec, 1')
            a('buffer_store_dword %s, %s, %s, s%d offen sc1' % (v(vONE), v(vL4), sr(S_DBG), sT2))
            a('s_mov_b64 exec, -1')
            a.label('L_nosig')
        if s + D < 8:
            dw, dx = dma_w(s + D), dma_x(s + D)
        else:
            k0, k1 = (s + D - 8) * 8 // D, (s + D - 7) * 8 // D
            fl = [x for g in wq[k0:k1] for x in g]
            dw, dx = fl[:len(fl) // 2], fl[len(fl) // 2:]
        rd = reads(s + 1) + (phi_merge if s == 1 else [])
        if late:
            a.fill(mains(s), merge(rd, dw))
            dots = cs_dots(s) + stat_dots(s)
            R(dots[:20])
            R(dx[:3])
            R(dots[20:])
            R(dx[3:])
        else:
            a.fill(mains(s), merge(rd, dw + dx))
            R(cs_dots(s) + stat_dots(s))
        if s == 2:
            R(phi_merge2)
        if cfg.get('warm1', 7) == s:
            warm_big()
    s = 7
    R(cs_dots(s))
    a('v_lshlrev_b32 %s, 3, v0' % v(vT))
    R('ds_write_b64 %s, %s offset:%d' % (v(vT), v(csk, 2), L_CSX))
    R(stat_dots(s))
    a('v_lshlrev_b32 %s, 3, %s' % (v(vT), v(vL)))
    a('s_waitcnt lgkmcnt(0)')
    a('s_barrier')
    for w in range(4):
        R('ds_read_b64 %s, %s offset:%d' % (v(aQ + 2 * w, 2), v(vT), L_CSX + 512 * w))
    fin = ['v_add_f32 %s, %s, %s' % (v(s1a), v(s1a), v(s1b)),
           'v_add_f32 %s, %s, %s' % (v(s2a), v(s2a), v(s2b)),
           'v_permlane32_swap_b32 %s, %s' % (v(s1a), v(s2a)),
           'v_add_f32 %s, %s, %s' % (v(s1a), v(s1a), v(s2a)),
           'v_mov_b32 %s, %s' % (v(s2a), v(s1a)),
           'v_permlane32_swap_b32 %s, %s' % (v(s1a), v(s2a))]
    fin += ln_ops(s1a, s2a, mean, rstd)
    fin += ['v_sub_f32 %s, 0, %s' % (v(s1a), v(mean))]
    fin += split_hl(s1a, s1b, s2b, vT)
    fin += ['v_cvt_pk_bf16_f32 %s, %s, %s' % (v(vBX), v(s1b), v(s2b)),
            'v_cvt_pk_bf16_f32 %s, %s, 0' % (v(vBX + 1), v(s1b))]
    fin2 = ['v_add_f32 %s, %s, %s' % (v(aQ + i), v(aQ + i), v(aQ + 4 + i)) for i in range(4)]
    fin2 += ['v_add_f32 %s, %s, %s' % (v(csk + i), v(aQ + i), v(aQ + 2 + i)) for i in range(2)]
    fin2 += a_ext(aQ + 8, csk, vT + 1) + a_ext(aQ + 12, csv, vT + 1)
    k0 = (7 + D - 8) * 8 // D
    m7 = mains(7)
    m7 = [m7[i] for i in (0, 2, 4, 6, 1, 3, 5, 7)]
    a.fill(m7, merge(fin, fin2))
    a.stamp('p1end')
    R(mfma32(v(aK, 16), v(aQ + 8, 4), v(vBX, 4), v(aK, 16)))
    R(mfma32(v(aV, 16), v(aQ + 12, 4), v(vBX, 4), v(aV, 16)))
    R([x for g in wq[k0:] for x in g] + [Mark('wq')])
    if cfg.get('warm1', 7) == 7:
        warm_big()
    vBD = vXD
    def blk_regs(name, reg):
        return [a.unstash(name, reg)] + ['v_add_u32 %s, %d, %s' % (v(reg + q), q * 7168, v(reg)) for q in range(1, 4)]
    R(blk_regs('bdo', vBD))
    def dma_wo(g4):
        return ['s_add_u32 m0, s%d, %d' % (sLDSX, g4 * 4096)] + [
            'buffer_load_dwordx4 %s, %s, s%d offen offset:%d lds' % (v(vBD + b), sr(S_WO), sCO, b * 1024) for b in range(4)
        ] + step(sCO, 32768, 8 * 32768)
    vB1 = vXR
    def dma_w1(g4):
        return ['s_add_u32 m0, s%d, %d' % (sLW1, g4 * 16384)] + [
            'buffer_load_dwordx4 %s, %s, s%d offen offset:%d lds' % (v(vB1 + b), sr(S_W1), sC1, b * 1024) for b in range(4)
        ] + step(sC1, 64 * 3584, 512 * 3584)
    def w2reg(ks, rho):
        return ((ks * 2 + rho) * 4 + 128) % 224
    vW2, vW2c = vS + 2, vS + 14
    REG = {0: 32768, 1: R2, 2: R2, 3: R2, 4: 0, 5: 32768, 6: 65536}
    TW2, TAC = 4, 12
    def w2_dma(q):
        o = []
        for h in range(2):
            so = sC2 if q < 3 else TW2 + 2 * (q - 3) + h
            o += ['s_add_u32 m0, s%d, %d' % (sLW2, REG[q] + h * 4096)] + [
                'buffer_load_dwordx4 %s, %s, s%d offen offset:%d lds' % (v(vBD2 + b), sr(S_W2), so, b * 1024) for b in range(4)]
            if q < 3:
                o += step(sC2, 32768, 14 * 32768)
        return o + [Mark('w2_%d' % q)]
    def tables():
        for n in range(8):
            a('s_mov_b32 s%d, s%d' % (TW2 + n, sC2))
            R(step(sC2, 32768, 14 * 32768))
        for n in range(14):
            a('s_mov_b32 s%d, s%d' % (TAC + n, sC5))
            R(step(sC5, 2048, 14 * 2048))
    def w2_read(q, h, a_, rho):
        n, region = 2 * q + h, REG[q]
        base, off = (vW2, region) if region < R1 else ((vW2c, region - R1) if region < R2 else (vW2 + 2, region - R2))
        return ['ds_read_b64_tr_b16 %s, %s offset:%d' % (ac(w2reg(2 * n + a_, rho) + 2 * t, 2), v(base + rho),
                                                        off + h * 4096 + a_ * 1024 + t * 256) for t in range(2)]
    def w2_park(q):
        return [x for h in range(2) for a_ in range(2) for rho in range(2) for x in w2_read(q, h, a_, rho)] + [Mark('park%d' % q)]

    vBD2 = vWR
    PLAN = dict(Wa=['o0', 'o1'], Wb1=['o2'], Wb2=['o3'], Wb3=['p0'], Wc=['g0', 'g1'], Wd0=['g2'], Wd=['g3', 'p1'], We=['g4', 'g5'],
                Wf0=['g6'], Wf=['g7', 'p2'])
    PLAN.update(cfg.get('plan', {}))
    ORDER = ['Wa', 'Wb1', 'Wb2', 'Wb3', 'Wc', 'Wd0', 'Wd', 'We', 'Wf0', 'Wf']
    where = {g: ORDER.index(w) for w in ORDER for g in PLAN[w]}
    assert sorted(where) == sorted(['o%d' % i for i in range(4)] + ['g%d' % i for i in range(8)] + ['p0', 'p1', 'p2'])
    assert all(where['o%d' % i] <= 4 for i in range(4)) and where['p0'] == 3
    assert all(where['g%d' % i] >= 4 for i in (0, 1)) and all(where['g%d' % i] >= 5 for i in (2, 3))
    assert all(where['g%d' % i] >= 7 for i in range(4, 8)) and where['p1'] in (6, 7) and where['p2'] == 9
    def window(w):
        o = []
        for g in PLAN[w]:
            o += {'o': dma_wo, 'g': dma_w1, 'p': w2_dma}[g[0]](int(g[1]))
            o.append(Mark(g))
        return o
    def landed(w):
        return sum(1 for i in range(8) if where['g%d' % i] <= ORDER.index(w))
    cs1 = vS + 6
    vW1 = vS + 10
    def w1_reads(k0, k1):
        o = []
        for ks in range(k0, k1):
            T, a_ = ks >> 1, ks & 1
            for t in range(2):
                off = (4 * T + a_) * 2048 + t * 256
                o.append('ds_read_b64_tr_b16 %s, %s offset:%d' % (v(X + 4 * ks + 2 * t, 2), v(vW1 + (off >> 16)), off & 0xffff))
        return o
    def w1_dots(k0, k1):
        return ['v_dot2_f32_bf16 %s, %s, s%d, %s' % (v(cs1 + (r_ & 1)), v(X + r_), sONES, '0' if r_ < 2 else v(cs1 + (r_ & 1)))
                for r_ in range(4 * k0, 4 * k1)]

    a('v_mul_f32 %s, 0x%x, %s' % (v(cexp), LOG2E, v(rstd)))
    a('v_mul_f32 %s, 0x%x, %s' % (v(ncexp), LOG2E | 0x80000000, v(rstd)))
    for i in range(8):
        a('v_cvt_pk_bf16_f32 %s, %s, %s' % (v(vWB + i), v(aK + 2 * i), v(aK + 2 * i + 1)))
    R(mfma32(v(aK, 16), ac(PA1, 4), v(vWB, 4), '0'))
    R(mfma32(v(aK, 16), ac(PA2, 4), v(vWB + 4, 4), v(aK, 16)))
    for i in range(16):
        a('v_mul_f32 %s, %s, %s' % (v(aV + i), v(aV + i), v(rstd)))
    for i in range(8):
        a('v_cvt_pk_bf16_f32 %s, %s, %s' % (v(aQ + i), v(aV + 2 * i), v(aV + 2 * i + 1)))
    for g in range(4):
        R('ds_write_b64 %s, %s offset:%d' % (v(vA + g), v(aQ + 2 * g, 2), L_V))
    a.stamp('phik', 2)
    sm = softmax_ops(aK, vWB, aV, cexp, aQ + 8)
    R(sm[:34])
    R(merge(sm[34:66], window('Wa')))
    R(sm[66:-16])
    for q in range(2):
        R('ds_write_b128 %s, %s offset:%d' % (v(vA + 4 + q), v(aV + 4 * q, 4), L_PHI))
    R(sm[-16:])
    for q in range(2, 4):
        R('ds_write_b128 %s, %s offset:%d' % (v(vA + 4 + q), v(aV + 4 * q, 4), L_PHI))
    vKV = vXR
    R([a.unstash('kvphi', vKV), a.unstash('kvv', vKV + 2), 'v_xor_b32 %s, 32, %s' % (v(vKV + 1), v(vKV)),
       'v_xor_b32 %s, 32, %s' % (v(vKV + 3), v(vKV + 2))])
    for i in range(4):
        a('v_mov_b32 %s, s%d' % (v(aQ + 12 + i), sONES))
    a('s_waitcnt lgkmcnt(0)')
    a('s_barrier')
    a.stamp('B1')
    for s in range(4):
        R('ds_read_b64_tr_b16 %s, %s offset:%d' % (v(vWB + 8 * s, 2), v(vKV), L_PHI + 2048 * s))
        R('ds_read_b64_tr_b16 %s, %s offset:%d' % (v(vWB + 8 * s + 2, 2), v(vKV + 1), L_PHI + 2048 * s + 256))
        R('ds_read_b64_tr_b16 %s, %s offset:%d' % (v(vWB + 8 * s + 4, 2), v(vKV + 2), L_V + 2048 * s))
        R('ds_read_b64_tr_b16 %s, %s offset:%d' % (v(vWB + 8 * s + 6, 2), v(vKV + 3), L_V + 2048 * s + 256))
    vDB = vA + 2
    R('buffer_load_dword %s, %s, %s, 0 offen sc1' % (v(vDB), v(vL4), sr(S_DBG)))
    a('v_lshlrev_b32 %s, 3, v0' % v(vA))
    R(a.unstash('zst', vA + 1))
    for s in range(4):
        R(mfma16(v(aK, 4), v(vWB + 8 * s, 4), v(vWB + 8 * s + 4, 4), '0' if s == 0 else v(aK, 4)))
        R(mfma16(v(aK + 4, 4), v(vWB + 8 * s, 4), v(aQ + 12, 4), '0' if s == 0 else v(aK + 4, 4)))
    for p in range(4):
        a('v_add_u32 %s, %d, %s' % (v(vWR + p), L_WQ, v(vWR + p)))
    a('v_cvt_pk_bf16_f32 %s, %s, %s' % (v(aQ), v(aK), v(aK + 1)))
    a('v_cvt_pk_bf16_f32 %s, %s, %s' % (v(aQ + 1), v(aK + 2), v(aK + 3)))
    R('buffer_store_dwordx2 %s, %s, %s, s%d offen sc1' % (v(aQ, 2), v(vA), sr(S_WS), sREC))
    a('s_mov_b32 exec_lo, 0x00010001')
    a('s_mov_b32 exec_hi, 0x00010001')
    R('buffer_store_dwordx4 %s, %s, %s, s%d offen offset:2048 sc1' % (v(aK + 4, 4), v(vA + 1), sr(S_WS), sREC))
    R(Mark('kv'))
    a('s_mov_b64 exec, -1')
    a.stamp('kvst', 2)

    R(WaitVM('wq'))
    a('s_barrier')
    def qoff(s):
        return (s >> 1) * 8192 + (s & 1) * 1024
    order = [(s, p) for p in range(4) for s in range(8)]
    def qreg(n):
        return (lambda o, k: v(vWB + 4 * n + o, k)) if n < 8 else (lambda o, k: ac(4 * (n - 8) + o, k))
    def qread(n):
        s, p = order[n]
        return ['ds_read_b64_tr_b16 %s, %s offset:%d' % (qreg(n)(2 * t, 2), v(vWR + p), qoff(s) + t * 256) for t in range(2)] + [Mark('q%d' % n)]
    for n in range(12):
        R(qread(n))
    a('v_mov_b32 %s, 0' % v(vT + 1))
    R(WaitDS('q7'))
    for r_ in range(32):
        d = csq if r_ & 1 else vT + 1
        a('v_dot2_f32_bf16 %s, %s, s%d, %s' % (v(d), v(vWB + r_), sONES, v(d)))
    a('v_lshlrev_b32 %s, 2, v0' % v(vT))
    a('v_add_f32 %s, %s, %s' % (v(csq), v(csq), v(vT + 1)))
    R('ds_write_b32 %s, %s offset:%d' % (v(vT), v(csq), L_CSQ))
    qm, qp = [], []
    for n in range(32):
        s, p = order[n]
        g = []
        if n >= 8 and n % 4 == 0:
            g.append(WaitDS('q%d' % (n + 3)))
        g.append(mfma32(v(aQ, 16), qreg(n)(0, 4), v(X + (4 * s + p) * 4, 4), '0' if n == 0 else v(aQ, 16)))
        qm.append(g)
        qp.append(qread(n + 12) if n + 12 < 32 else [])
    n1 = cfg.get('q1', 12)
    a.fill(qm[:n1], window('Wb1') + ['v_lshlrev_b32 %s, 11, %s' % (v(vT), v(vL))], post=qp[:n1])
    a.stamp('q1', 2)
    R(WaitVM('kv'))
    check_done(None, 16, vDB, 0)
    a('s_waitcnt lgkmcnt(0)')
    a('s_barrier')
    push_flags(sFA, 0, vT)
    a.stamp('pushA')
    qx = ['ds_read_b32 %s, %s offset:%d' % (v(vA + 4 + w), v(vL4), L_CSQ + 256 * w) for w in range(4)]
    qy = ['v_add_f32 %s, %s, %s' % (v(vA + 4), v(vA + 4), v(vA + 5)),
          'v_add_f32 %s, %s, %s' % (v(vA + 6), v(vA + 6), v(vA + 7)),
          'v_add_f32 %s, %s, %s' % (v(csq), v(vA + 4), v(vA + 6))] + a_ext(vA + 4, csq, vT + 1)
    qy.append(a.unstash('bd1', vB1))
    for q in range(1, 4):
        qy.append('v_add_u32 %s, %d, %s' % (v(vB1 + q), (q >> 1) * 8 * 3584 + (q & 1) * 128 - 1024 * q, v(vB1)))
    a.fill(qm[n1:], qx + merge(window('Wb2'), qy), post=qp[n1:])
    R(mfma32(v(aQ, 16), v(vA + 4, 4), v(vBX, 4), v(aQ, 16)))
    XR = vWB + 24
    R([a.unstash('w2', vW2), 'v_xor_b32 %s, 512, %s' % (v(vW2 + 1), v(vW2)),
       'v_add_u32 %s, %d, %s' % (v(vW2 + 2), R2, v(vW2)), 'v_add_u32 %s, %d, %s' % (v(vW2 + 3), R2, v(vW2 + 1))])
    R(blk_regs('bd2', vBD2))
    R(window('Wb3'))
    a.stamp('qgemm', 2)
    for i in range(8):
        a('v_cvt_pk_bf16_f32 %s, %s, %s' % (v(vWB + i), v(aQ + 2 * i), v(aQ + 2 * i + 1)))
    R(mfma32(v(aK, 16), ac(PA1, 4), v(vWB, 4), '0'))
    R(mfma32(v(aK, 16), ac(PA2, 4), v(vWB + 4, 4), v(aK, 16)))
    R([a.unstash('zld', vA + 1), a.unstash('kbw', vA + 2), a.unstash('kbz', vA + 3), a.unstash('kbr', vA + 4)])
    PQ = aQ
    sm = softmax_ops(aK, vWB, PQ, cexp, aV)
    for q in range(4):
        sm.append('v_permlane32_swap_b32 %s, %s' % (v(PQ + q), v(PQ + 4 + q)))
        sm.append('v_permlane32_swap_b32 %s, %s' % (v(PQ + 8 + q), v(PQ + 12 + q)))
    ns = cfg.get('smpre', 0)
    R(sm[:ns])
    a.stamp('qsm', 2)

    poll(0, 16)
    a('s_barrier')
    a.stamp('gotA')
    G = X + 64
    GZ = X + 96
    gl = ['buffer_load_dwordx4 %s, %s, %s, s%d offen offset:2048 sc1' % (v(GZ, 4), v(vA + 1), sr(S_WS), sGAT)]
    for p in range(16):
        g = ['buffer_load_dwordx2 %s, %s, %s, s%d offen offset:%d sc1' % (v(G + 2 * p, 2), v(vA), sr(S_WS), sGAT, (p & 1) * KVREC)]
        if p & 1 and p < 15:
            g.append('s_add_u32 s%d, s%d, %d' % (sGAT, sGAT, 2 * KVREC))
        if p % 4 == 3:
            g.append(Mark('g%d' % (p // 4)))
        gl.append(g)
    ng = cfg.get('gfirst', 11)
    R(gl[:ng])
    R(WaitVM('p0'))
    R(w2_park(0))
    e0 = max(ns, cfg.get('gsplit', 66))
    R(sm[ns:e0])
    R(gl[ng:])
    R(window('Wc'))
    R(sm[e0:])
    R('buffer_load_dwordx4 %s, %s, %s, s%d offen' % (v(XR, 4), v(vOUT), sr(S_X), sOUT))
    R('buffer_load_dwordx4 %s, %s, %s, s%d offen offset:16' % (v(XR + 4, 4), v(vOUT), sr(S_X), sOUT))
    a.stamp('qsm2', 2)
    for sh in (1, 2, 4, 8):
        for i in range(4):
            a('v_add_f32_dpp %s, %s, %s row_ror:%d row_mask:0xf bank_mask:0xf' % (v(GZ + i), v(GZ + i), v(GZ + i), sh))
    a('v_cvt_pk_bf16_f32 %s, %s, %s' % (v(aK + 6), v(GZ), v(GZ + 1)))
    a('v_cvt_pk_bf16_f32 %s, %s, %s' % (v(aK + 7), v(GZ + 2), v(GZ + 3)))
    R('ds_write_b64 %s, %s offset:%d' % (v(vA + 3), v(aK + 6, 2), 16 * 80))
    for p in range(16):
        if p % 4 == 0:
            R(WaitVM('g%d' % (p // 4)))
        for i in range(4):
            a('v_dot2_f32_bf16 %s, %s, s%d, %s' % (v(aK + i), v(G + 2 * p + (i >> 1)), sSEL1 if i & 1 else sSEL0,
                                                  '0' if p == 0 else v(aK + i)))
    a('v_cvt_pk_bf16_f32 %s, %s, %s' % (v(aK + 4), v(aK), v(aK + 1)))
    a('v_cvt_pk_bf16_f32 %s, %s, %s' % (v(aK + 5), v(aK + 2), v(aK + 3)))
    R('ds_write_b64 %s, %s' % (v(vA + 2), v(aK + 4, 2)))
    a('s_waitcnt lgkmcnt(0)')
    a('s_barrier')
    a.stamp('B4', 2)
    for h in range(2):
        for s in range(2):
            R('ds_read_b128 %s, %s offset:%d' % (v(vWB + (h * 2 + s) * 4, 4), v(vA + 4), h * 17 * 80 + s * 32))
    for h in range(2):
        acc = v(aK if h == 0 else aV, 16)
        R(mfma32(acc, v(vWB + h * 8, 4), v(PQ + 4 * h, 4), '0'))
        R(mfma32(acc, v(vWB + h * 8 + 4, 4), v(PQ + 8 + 4 * h, 4), acc))
    for h in range(2):
        acc = aK if h == 0 else aV
        a('v_add_f32 %s, 0x358637bd, %s' % (v(acc + 8), v(acc + 8)))
        a('v_rcp_f32 %s, %s' % (v(acc + 8), v(acc + 8)))
        for i in range(8):
            a('v_mul_f32 %s, %s, %s' % (v(acc + i), v(acc + i), v(acc + 8)))
        for i in range(4):
            a('v_cvt_pk_bf16_f32 %s, %s, %s' % (v(acc + 12 + i), v(acc + 2 * i), v(acc + 2 * i + 1)))
        R('buffer_store_dwordx4 %s, %s, %s, s%d offen offset:%d %s' % (v(acc + 12, 4), v(vFR), sr(S_WS), sOST, h * 1024, SC))
    R(Mark('o'))
    a.stamp('ost', 2)
    R(window('Wd0'))
    vWO = vXD
    R([a.unstash('wo', vWO), 'v_xor_b32 %s, 512, %s' % (v(vWO + 1), v(vWO))])
    R([a.unstash('w1', vW1), 'v_add_u32 %s, 65536, %s' % (v(vW1 + 1), v(vW1))])
    for i in range(8):
        a('v_lshlrev_b32 %s, 16, %s' % (v(aQ + 2 * i), v(XR + i)))
        a('v_and_b32 %s, 0xffff0000, %s' % (v(aQ + 2 * i + 1), v(XR + i)))
    R([a.unstash('red3', vA), 'v_xor_b32 %s, 16384, %s' % (v(vA + 1), v(vA))])
    R(WaitVM('o'))
    a('s_barrier')
    arrive(1)
    a.stamp('pushB')
    wop = []
    for s in range(16):
        for rho in range(2):
            for t in range(2):
                wop.append('ds_read_b64_tr_b16 %s, %s offset:%d' % (ac((s * 2 + rho) * 4 + 2 * t, 2), v(vWO + rho), s * 2048 + t * 256))
    k1 = 4 * landed('Wc')
    R(merge(w1_reads(0, k1) + wop, window('Wd')))
    R(Mark('Wd'))
    R(w1_dots(0, k1))
    a.stamp('wopark', 2)

    poll(1, 16)
    R(WaitVM('Wd'))
    a('s_waitcnt lgkmcnt(0)')
    a('s_barrier')
    a.stamp('gotB')
    OB = X + 64
    for s in range(16):
        if s % 4 == 0:
            a('s_add_u32 s%d, s%d, s%d' % (sT2, sR3, sOLD))
            R(step(sR3, 4096, 16384))
        R('buffer_load_dwordx4 %s, %s, %s, s%d offen offset:%d %s' % (v(OB + 4 * s, 4), v(vFR), sr(S_WS), sT2, (s % 4) * 1024, SC))
    pm = []
    for s in range(16):
        for rho in range(2):
            acc = v(aK if rho == 0 else aV, 16)
            pm.append([mfma32(acc, ac((s * 2 + rho) * 4, 4), v(OB + 4 * s, 4), '0' if s == 0 else acc)])
    k2 = min(16, 4 * landed('Wd'))
    R(w1_reads(k1, k2))
    if where['p1'] == 6:
        R(w2_park(1))
    R(w1_dots(k1, k2))
    if where['p1'] == 6:
        a.fill(pm, window('We'), 8)
    else:
        a.fill(pm, window('We') + [WaitVM('p1')] + w2_park(1), 4)
    a.stamp('p3mf', 2)
    for q in range(4):
        R('ds_write_b128 %s, %s offset:%d' % (v(vA), v(aV + 4 * q, 4), q * 1024))
    for i in range(0, 16, 2):
        a('v_pk_add_f32 %s, %s, %s' % (v(aK + i, 2), v(aK + i, 2), v(aQ + i, 2)))
    a('s_waitcnt lgkmcnt(0)')
    a('s_barrier')
    for q in range(4):
        R('ds_read_b128 %s, %s offset:%d' % (v(aV + 4 * q, 4), v(vA + 1), q * 1024))
    HP = vA
    for half in range(2):
        for i in range(8 * half, 8 * half + 8, 2):
            a('v_pk_add_f32 %s, %s, %s' % (v(aK + i, 2), v(aK + i, 2), v(aV + i, 2)))
        for i in range(8 * half, 8 * half + 8, 2):
            a('v_cvt_pk_bf16_f32 %s, %s, %s' % (v(HP + i // 2), v(aK + i), v(aK + i + 1)))
        R('buffer_store_dwordx4 %s, %s, %s, s%d offen offset:%d %s' % (v(HP + 4 * half, 4), v(vFR), sr(S_WS), sHST, half * 1024, SC))
    for i in range(8):
        a('v_dot2_f32_bf16 %s, %s, s%d, %s' % (v(vT), v(HP + i), sONES, '0' if i == 0 else v(vT)))
        a('v_dot2_f32_bf16 %s, %s, %s, %s' % (v(vT + 1), v(HP + i), v(HP + i), '0' if i == 0 else v(vT + 1)))
    a('v_permlane32_swap_b32 %s, %s' % (v(vT), v(vT + 1)))
    a('v_add_f32 %s, %s, %s' % (v(vT), v(vT), v(vT + 1)))
    R('buffer_store_dword %s, %s, %s, s%d offen %s' % (v(vT), v(vL4), sr(S_WS), sSST, SC))
    R(Mark('h'))
    a.stamp('hst', 2)
    R(a.unstash('bias', vT + 2))
    R('buffer_load_ushort %s, %s, %s, 0 offen' % (v(vS + 12), v(vT + 2), sr(S_B1)))
    R(window('Wf0'))
    R(['v_add_u32 %s, %d, %s' % (v(vW2c), R1, v(vW2)), 'v_add_u32 %s, %d, %s' % (v(vW2c + 1), R1, v(vW2 + 1))])
    R(WaitVM('h'))
    a('s_barrier')
    arrive(2)
    a.stamp('pushC')
    R(window('Wf'))
    tables()
    vAL = vXD + 2
    a('v_add_u32 %s, s%d, %s' % (v(vAL), sALD, v(vFR)))
    a('v_add_u32 %s, %d, %s' % (v(vAL + 1), 2 * 112 * 1024, v(vAL)))

    a('s_cmp_ge_u32 s%d, 14' % sJ)
    a('s_cbranch_scc1 L_idle')
    k3 = 4 * landed('We')
    R(w1_reads(k2, k3))
    R(w1_dots(k2, k3))
    if k3 < 32:
        R(WaitVM('g7'))
        a('s_barrier')
        R(w1_reads(k3, 32))
        R(w1_dots(k3, 32))
    AXR = vWB + 28
    a('v_add_f32 %s, %s, %s' % (v(AXR + 3), v(cs1), v(cs1 + 1)))
    R(split_hl(AXR + 3, vT + 1, vT + 2, AXR))
    a('v_cvt_pk_bf16_f32 %s, %s, 0' % (v(AXR + 1), v(vT + 2)))
    a('v_lshl_or_b32 %s, %s, 16, %s' % (v(AXR + 1), v(vS + 12), v(AXR + 1)))
    a('v_mov_b32 %s, %s' % (v(AXR + 2), v(vS + 12)))
    a('v_mov_b32 %s, 0' % v(AXR + 3))
    vHR = vXR + 2
    a('v_mov_b32 %s, %s' % (v(vHR), v(vFR)))
    a('v_add_u32 %s, 65536, %s' % (v(vHR + 1), v(vFR)))
    a('s_lshl_b32 s%d, s%d, 10' % (sT2, sW))
    a('v_add_u32 %s, s%d, %s' % (v(vXR), sT2, v(vHR + 1)))
    BX4 = vWB + 24
    a('v_mov_b32 %s, 0' % v(BX4 + 3))
    a.stamp('w1park', 2)

    poll(2, 16)
    a('s_barrier')
    a.stamp('gotC')
    def h_dma(tau, half):
        sb = sHL1 if half else sHL0
        return ['s_add_u32 m0, s%d, %d' % (sLW1, tau * 32768 + half * 16384)] + [
            'buffer_load_dwordx4 %s, %s, s%d offen offset:%d %s lds' % (v(vFR), sr(S_WS), sb, b * 1024, SC) for b in range(4)
        ] + ['s_add_u32 s%d, s%d, 32768' % (sb, sb), Mark('h%d%d' % (tau, half))]
    R(h_dma(0, 0))
    R(h_dma(0, 1))
    SB = aQ
    st_loads = ['buffer_load_dword %s, %s, %s, s%d offen offset:%d %s' % (v(SB + ct), v(vL4), sr(S_WS), sSLD, ct * 256, SC)
                for ct in range(16)] + [Mark('st')]
    R(st_loads[:8])
    BXA = A_STASH
    vCK = vS + 1
    NR, LA = 12, 8
    def bread(n):
        tau, ks = n >> 5, n & 31
        off = tau * 32768 + ks * 1024
        return ['ds_read_b128 %s, %s offset:%d' % (ac(4 * (n % NR), 4), v(vHR + (off >> 16)), off & 0xffff), Mark('b%d' % n)]
    stats = [WaitVM('st')]
    for i in range(8):
        stats.append('v_add_f32 %s, %s, %s' % (v(SB + i), v(SB + i), v(SB + 8 + i)))
    for i in range(4):
        stats.append('v_add_f32 %s, %s, %s' % (v(SB + i), v(SB + i), v(SB + 4 + i)))
    stats += ['v_add_f32 %s, %s, %s' % (v(SB), v(SB), v(SB + 2)), 'v_add_f32 %s, %s, %s' % (v(SB + 1), v(SB + 1), v(SB + 3)),
              'v_add_f32 %s, %s, %s' % (v(SB), v(SB), v(SB + 1)), 'v_mov_b32 %s, %s' % (v(SB + 1), v(SB)),
              'v_permlane32_swap_b32 %s, %s' % (v(SB), v(SB + 1))]
    stats += ln_ops(SB, SB + 1, SB + 2, SB + 15)
    stats += ['v_mul_f32 %s, %s, %s' % (v(SB + 4), v(SB + 1), v(SB + 15)), 'v_sub_f32 %s, 0, %s' % (v(SB + 2), v(SB + 2))]
    stats += split_hl(SB + 2, SB + 5, SB + 6, SB + 3) + split_hl(SB + 4, SB + 7, SB + 8, SB + 3)
    stats += ['v_cvt_pk_bf16_f32 %s, %s, %s' % (v(SB + 12), v(SB + 5), v(SB + 6)),
              'v_cvt_pk_bf16_f32 %s, %s, %s' % (v(SB + 13), v(SB + 5), v(SB + 7)),
              'v_cvt_pk_bf16_f32 %s, %s, 0' % (v(SB + 14), v(SB + 8)),
              'v_mul_f32 %s, 0x%x, %s' % (v(SB + 15), LOG2E, v(SB + 15)),
              'ds_write_b128 %s, %s offset:%d' % (v(vXR), v(SB + 12, 4), L_BX - 65536)]

    ACCS = [aK, aV, vWB + 8]
    PKS = [aQ, aQ + 8]
    T = lambda e: v(vWB + e % 4)
    Y = lambda e: v(ACCS[(e >> 4) % 3] + (e & 15))
    C1 = lambda e: v(vS + 12 + ((e >> 4) & 1))
    def elem_ops(m):
        E, o = m >> 1, []
        ok = lambda e: 0 <= e < 64
        if m % 2 == 0:
            if ok(E):
                o.append('v_mul_f32 %s, %s, %s' % (Y(E), Y(E), C1(E)))
            if ok(E - 1):
                o.append('v_fma_f32 %s, %s, s%d, s%d' % (T(E - 1), T(E - 1), sRS, sRS))
            if ok(E):
                o.append('v_exp_f32 %s, %s' % (T(E), Y(E)))
        else:
            if ok(E - 1):
                o.append('v_fma_f32 %s, %s, %s, 0.5' % (T(E - 1), T(E - 1), T(E - 1)))
            if ok(E - 2):
                o.append('v_fma_f32 %s, -%s, %s, %s' % (Y(E - 2), T(E - 2), Y(E - 2), Y(E - 2)))
            if ok(E - 1):
                o.append('v_rcp_f32 %s, %s' % (T(E - 1), T(E - 1)))
            if ok(E - 2) and E & 1:
                e = E - 2
                o.append('v_cvt_pk_bf16_f32 %s, %s, %s' % (v(PKS[(e >> 4) & 1] + (e & 15) // 2), Y(e - 1), Y(e)))
        return o
    def act_store(tau):
        return ['buffer_store_dwordx4 %s, %s, %s, s%d offen offset:%d %s' % (v(PKS[tau & 1] + 4 * h, 4), v(vFR), sr(S_WS), sAST, h * 1024, SC)
                for h in range(2)] + ['s_add_u32 s%d, s%d, %d' % (sAST, sAST, 112 * 1024), Mark('act%d' % tau)]
    def ext_regs(tau):
        return ['v_accvgpr_read_b32 %s, %s' % (v(BX4 + i), ac(BXA + 4 * tau + i)) for i in range(3)] + [
            'v_accvgpr_read_b32 %s, %s' % (C1(16 * tau), ac(BXA + 4 * tau + 3))]
    bx_reads = ['ds_read_b128 %s, %s offset:%d' % (ac(BXA + 4 * t_, 4), v(vHR + 1), L_BX - 65536 + t_ * 1024) for t_ in range(4)]

    bars = {10: 'h01', 26: 'h11', 58: 'h21', 90: 'h31'}
    lim = lambda n: 16 if n < 10 else (32 if n < 26 else (64 if n < 58 else (96 if n < 90 else 128)))
    M0 = 36
    def paced(items):
        out, cur = [], []
        for x in items:
            if isinstance(x, str) and x.startswith('buffer_'):
                out.append(cur + [x])
                cur = []
            elif isinstance(x, str) and 'm0' in x:
                cur.append(x)
            else:
                out[-1].append(x)
        return out
    at_mem, at_val = {}, {}
    def place(n0, items, every=2):
        for k, g in enumerate(paced(items)):
            at_mem.setdefault(n0 + k * every, []).extend(g)
    place(0, h_dma(1, 0) + h_dma(1, 1))
    for k in range(4):
        at_mem.setdefault(1 + 2 * k, []).extend(st_loads[8 + 2 * k:10 + 2 * k] + ([st_loads[16]] if k == 3 else []))
    pk2 = w2_park(2)
    for k in range(8):
        at_mem.setdefault(k, []).extend(pk2[2 * k:2 * k + 2] + ([pk2[16]] if k == 7 else []))
    place(16, h_dma(2, 0) + h_dma(2, 1))
    place(cfg.get('q3', 32), w2_dma(3))
    place(cfg.get('q4', 48), w2_dma(4))
    place(cfg.get('qh3', 64), h_dma(3, 0) + h_dma(3, 1), cfg.get('qh3e', 2))
    place(cfg.get('q5', 80), w2_dma(5), cfg.get('q5e', 2))
    place(cfg.get('q6', 96), w2_dma(6), cfg.get('q6e', 1))
    at_mem.setdefault(27, []).extend(bx_reads)
    ks0 = cfg.get('st0', M0 + 68)
    at_mem.setdefault(ks0, []).extend(act_store(0))
    at_mem.setdefault(M0 + 68, []).extend(act_store(1))
    per = (len(stats) + 12) // 13
    for k in range(13):
        at_val.setdefault(12 + k, []).extend(stats[k * per:(k + 1) * per])
    for tau in range(4):
        er = ext_regs(tau)
        at_val.setdefault(32 * tau + 29, []).extend(er[:2])
        at_val.setdefault(32 * tau + 30, []).extend(er[2:3])
        at_val.setdefault(32 * tau + 31, []).extend(er[3:])
    R(WaitVM('h00'))
    a('s_barrier')
    a.stamp('h00', 2)
    for n in range(LA):
        R(bread(n))
    nxt = LA
    for n in range(128):
        tau, ks = n >> 5, n & 31
        acc = v(ACCS[tau % 3], 16)
        if n in bars:
            R([WaitVM(bars[n]), 's_waitcnt lgkmcnt(0)', 's_barrier'])
            a.stamp('bar%d' % n, 2)
        if n % 4 == 0 and n not in bars:
            R(WaitDS('b%d' % min(n + 3, nxt - 1)))
        R(mfma32(acc, v(X + 4 * ks, 4), ac(4 * (n % NR), 4), '0' if ks == 0 else acc))
        if ks == 31:
            R(mfma32(acc, v(AXR, 4), v(BX4, 4), acc))
        mem = at_mem.pop(n, [])
        R([x for x in mem if isinstance(x, str) and 'm0,' in x])
        k = 0
        while nxt < min(n + LA + 2, lim(n + 1) if n + 1 not in bars else lim(n)) and k < 2:
            R(bread(nxt))
            nxt += 1
            k += 1
        R([x for x in mem if not (isinstance(x, str) and 'm0,' in x)])
        R(elem_ops(n - M0) if n >= M0 else [])
        R(at_val.pop(n, []))
        if ks == 31:
            a.stamp('t%d' % tau, 2)
    assert not at_mem and not at_val, (at_mem.keys(), at_val.keys())
    PRE = cfg.get('p5pre', 12)
    def bload(n):
        t, ks = n // 28, n % 28
        return ['buffer_load_dwordx4 %s, %s, %s, s%d offen offset:%d %s' % (
            v(X + 4 * (n % 32), 4), v(vAL + t), sr(S_WS), TAC + ks // 2, (ks % 2) * 1024, SC), Mark('a%d' % n)]
    tail = [x for m in range(128 - M0, 134) for x in elem_ops(m)]
    h0, h1, h2 = cfg.get('tail', [8, 70, 90])
    R(tail[:h0])
    R(WaitVM('act1'))
    a('s_barrier')
    arrive(3)
    a.stamp('pushD', 2)
    R(tail[h0:h1])
    R(check_issue(3, vCK, 3))
    R(tail[h1:h2])
    check_done(3, 14, vCK, 3)
    a('s_barrier')
    a.stamp('gotD')
    npre = cfg.get('tailpre', 8)
    for n in range(npre):
        R(bload(n))
    R(tail[h2:])
    a.stamp('mish', 2)
    R(act_store(2))
    R(act_store(3))
    for n in range(npre, PRE):
        R(bload(n))
    join = (a.vmn, a.dsn)
    a('s_branch L_p5')
    a.label('L_idle')
    saved = dict(a.marks)
    a('s_waitcnt vmcnt(0)')
    a('s_barrier')
    R(w2_park(2))
    a('s_waitcnt lgkmcnt(0)')
    for q in range(3, 7):
        R(w2_dma(q))
    poll(3, 14, 3)
    a('s_barrier')
    for n in range(PRE):
        R(bload(n))
    a.vmn, a.dsn = join
    a.marks = saved
    a.label('L_p5')

    ACC = 32
    def areads(ks):
        n, a_ = ks >> 1, ks & 1
        q, h = n >> 1, n & 1
        if q < 3:
            return []
        return w2_read(q, h, a_, 0) + w2_read(q, h, a_, 1)
    pre = ['s_lshl_b32 s%d, s%d, 12' % (sT2, sKH), 's_add_u32 s%d, s%d, s%d' % (sT3, sT2, sLW2),
           'v_add_u32 %s, s%d, %s' % (v(vXR), sT3, v(vFR)), 'v_xor_b32 %s, 4096, %s' % (v(vXR + 1), v(vXR)),
           's_lshl_b32 s%d, s%d, 15' % (sT3, sTT), 's_add_u32 s%d, s%d, s%d' % (sT2, sT2, sT3),
           'v_add_u32 %s, s%d, %s' % (v(vXR + 2), sT2, v(vFR))]
    def red_writes(t):
        return ['ds_write_b128 %s, %s offset:%d' % (v(vXR + rc), v(ACC + 16 * (2 * t + rc) + 4 * q, 4), t * 32768 + q * 1024)
                for rc in range(2) for q in range(4)]
    HU = vWB + 16
    unpack = []
    for i in range(8):
        unpack.append('v_lshlrev_b32 %s, 16, %s' % (v(HU + 2 * i), v(HP + i)))
        unpack.append('v_and_b32 %s, 0xffff0000, %s' % (v(HU + 2 * i + 1), v(HP + i)))
    ALA = 3
    ke = cfg.get('pushe', 7)
    rw = red_writes(0)
    for n in range(56):
        t, ks = n // 28, n % 28
        side = []
        if t == 0 and ks + ALA < 28:
            side += areads(ks + ALA)
        if n == 28 - PRE - 3:
            R(check_issue(4, vCK, 3))
        if n == 28 - PRE:
            check_done(4, 14, vCK, 3)
            a('s_barrier')
            a.stamp('gotE', 2)
        if n + PRE < 56:
            side += bload(n + PRE)
        if n == 1:
            side += pre
        if 30 <= n < 38:
            side.append(rw[n - 30])
        if 44 <= n < 52:
            side += unpack[2 * (n - 44):2 * (n - 44) + 2]
        mm = []
        for rc in range(2):
            acc = v(ACC + 16 * (2 * t + rc), 16)
            mm.append([mfma32(acc, ac(w2reg(ks, rc), 4), v(X + 4 * (n % 32), 4), '0' if ks == 0 else acc)])
        a.fill(mm, side)
        if n == ke:
            R(WaitVM('act3'))
            a('s_barrier')
            lab = a.uniq('L_noe')
            a('s_cmp_ge_u32 s%d, 14' % sJ)
            a('s_cbranch_scc1 %s' % lab)
            arrive(4)
            a.label(lab)
            a.stamp('pushE', 2)
    a.stamp('p5mf')
    R(red_writes(1))
    a('s_waitcnt lgkmcnt(0)')
    a('s_barrier')
    a.stamp('B12', 2)
    for n in range(16):
        R('ds_read_b128 %s, %s offset:%d' % (v(ACC + 4 * n, 4), v(vXR + 2), (n >> 2) * 8192 + (n & 3) * 1024))
    for src in range(1, 4):
        for i in range(0, 16, 2):
            a('v_pk_add_f32 %s, %s, %s' % (v(ACC + i, 2), v(ACC + i, 2), v(ACC + 16 * src + i, 2)))
    a('v_mov_b32 %s, s%d' % (v(vT), sLN2))
    for i in range(0, 16, 2):
        a('v_pk_fma_f32 %s, %s, %s, %s op_sel_hi:[1,0,1]' % (v(ACC + i, 2), v(ACC + i, 2), v(vT, 2), v(HU + i, 2)))
    if 'perturb' in cfg:
        a('s_cmp_lg_u32 s2, 0')
        a('s_cbranch_scc1 L_nopert')
        a('v_add_f32 %s, 0x%x, %s' % (v(ACC), fbits(cfg['perturb']), v(ACC)))
        a.label('L_nopert')
    for i in range(8):
        a('v_cvt_pk_bf16_f32 %s, %s, %s' % (v(X + 16 + i), v(ACC + 2 * i), v(ACC + 2 * i + 1)))
        if i == 3:
            R('buffer_store_dwordx4 %s, %s, %s, s%d offen %s' % (v(X + 16, 4), v(vOUT), sr(S_OUT), sOUT, cfg.get('outf', '')))
    R('buffer_store_dwordx4 %s, %s, %s, s%d offen offset:16 %s' % (v(X + 20, 4), v(vOUT), sr(S_OUT), sOUT, cfg.get('outf', '')))
    if cfg.get('stamps'):
        a('s_waitcnt vmcnt(0)')
        a.stamp('end')
        assert a.nstamp <= 64
        a('s_cmp_lg_u32 s%d, %d' % (sW, cfg.get('swave', 0)))
        a('s_cbranch_scc1 L_end')
        if 'dirty' in cfg:
            a('s_lshl_b32 s%d, s2, 16' % sT0)
            a('s_add_u32 s%d, s%d, 0x2000000' % (sT0, sT0))
            for n in range(cfg['dirty']):
                a('buffer_store_dwordx4 %s, %s, %s, s%d offen %s' % (v(X, 4), v(vFR), sr(S_WS), sT0, cfg.get('dirtyf', '')))
                a('s_add_u32 s%d, s%d, 1024' % (sT0, sT0))
            a('s_waitcnt vmcnt(0)')
        if 'probe' in cfg:
            a('v_readlane_b32 s%d, v4, %d' % (sT0, cfg['probe']))
            a('v_readlane_b32 s%d, v4, 0' % sT2)
            a('s_sub_u32 s%d, s%d, s%d' % (sT0, sT0, sT2))
            a('s_cmp_ge_u32 s%d, 14' % sJ)
            a('s_cselect_b32 s%d, 0, s%d' % (sT0, sT0))
            a('s_min_u32 s%d, s%d, 10000' % (sT0, sT0))
            a('s_lshl_b32 s%d, s%d, 2' % (sT0, sT0))
            a('s_add_u32 s%d, s%d, 10000' % (sT0, sT0))
            a.label('L_probe')
            a('s_memrealtime s[%d:%d]' % (S_ST, S_ST + 1))
            a('s_waitcnt lgkmcnt(0)')
            a('s_sub_u32 s%d, s%d, s%d' % (sT1, S_ST, sT2))
            a('s_cmp_lt_u32 s%d, s%d' % (sT1, sT0))
            a('s_cbranch_scc1 L_probe')
        a('s_lshl_b32 s%d, s2, 8' % sT0)
        a('s_add_u32 s%d, s%d, 0x%x' % (sT0, sT0, STAMP))
        a('buffer_store_dword v4, %s, %s, s%d offen' % (v(vL4), sr(S_WS), sT0))
    a.label('L_end')
    a('s_endpgm')
    return finalize(a), a.names


HEADER = open('header.txt').read().rstrip('\n').split('\n')


def build(cfg, path):
    body, names = gen(cfg)
    k = kernel_text(NAME + '_kernel', body, vgprs=512, accum=256, sgprs=102)
    hdr = HEADER + ['; @launch grid=(256,1,1) block=(256,1,1) lds=163840']
    if names:
        hdr.append('; stamps: ' + ' '.join(names))
        if cfg.get('cyc'):
            hdr.append('; cycle stamps')
    open(path, 'w').write(module_text(hdr, [k]))


if __name__ == '__main__':
    build(json.loads(sys.argv[2]) if len(sys.argv) > 2 else {}, sys.argv[1])
```

```python
import sys, struct, json, math
sys.path.insert(0, 'gen')
from asmlib import *
from common import *

FL, KVP, ST, O_, H_, ACT, STAMP = 0x0, 0x40000, 0x100000, 0x200000, 0x400000, 0x600000, 0x8000000
KVREC = 2304
R0, R1, R2 = 0, 65536, 131072
L_XS, L_WQ = R1, R2
L_PHI, L_V, L_CSX, L_CSQ = 0, 16384, 24576, 28672
L_WO = R1
L_KVB = R2 + 16384
L_BX = 3 * 32768
L_WPHI = L_WQ + 31 * 1024
LOG2E = 0x3fb8aa3b
ONES = 0x3f803f80
SPIN = 400000

S_X, S_WQKV, S_WPHI, S_WO, S_W1, S_B1, S_W2, S_OUT, S_DBG, S_WS = 4, 8, 12, 16, 20, 24, 28, 32, 36, 40
(sI, sJ, sW, sC, sCX, sCW, sT0, sT1, sT2, sT3, sONES, sSEL0, sSEL1, sLDSX, sLDSW, sCNT, sXCD, sP, sMSK, sMSK1) = range(44, 64)
S_PTR = 64
(sREC, sGAT, sFA, sFB, sFP, sOST, sOLD, sHST, sSST, sOUT, sHL0, sHL1, sSLD, sAST, sALD, sCO, sC1, sC2, sC5, sR3) = range(64, 84)
sLW2, sT4, sT5, sKH, sTT, sLW1, sRS, sLN2 = 86, 87, 88, 89, 90, 91, 3, 84
sFME, sLOC, sXID = 85, sXCD, sCX
S_TMP = 92
S_ST = 96
A_STASH = 224


def v(i, n=1):
    return 'v%d' % i if n == 1 else 'v[%d:%d]' % (i, i + n - 1)


def ac(i, n=1):
    return 'a%d' % i if n == 1 else 'a[%d:%d]' % (i, i + n - 1)


def sr(i):
    return 's[%d:%d]' % (i, i + 3)


def fbits(x):
    return struct.unpack('<I', struct.pack('<f', x))[0]


class Mark:
    def __init__(self, name):
        self.name = name


class WaitVM:
    def __init__(self, name):
        self.name = name


class WaitDS:
    def __init__(self, name):
        self.name = name


def cost(x):
    if isinstance(x, Mark):
        return 0
    if isinstance(x, (WaitVM, WaitDS)):
        return 1
    if isinstance(x, (list, tuple)):
        return sum(cost(y) for y in x)
    if callable(x):
        return getattr(x, 'cost', 4)
    mn = x.split()[0]
    if mn.startswith('v_mfma'):
        return 0
    if mn.startswith(TRANS) or mn.startswith('v_permlane'):
        return 2
    return 1


def flat(x):
    if isinstance(x, (list, tuple)):
        return [z for y in x for z in flat(y)]
    return [x]


class K(Asm):
    def __init__(self, cfg):
        super().__init__()
        self.cfg = cfg
        self.vmn = 0
        self.dsn = 0
        self.marks = {}
        self.nstamp = 0
        self.names = []
        self.stash_slots = {}

    def run(self, x):
        if isinstance(x, Mark):
            self.marks[x.name] = (self.vmn, self.dsn)
        elif isinstance(x, WaitVM):
            self('s_waitcnt vmcnt(%d)' % min(63, self.vmn - self.marks[x.name][0]))
        elif isinstance(x, WaitDS):
            self('s_waitcnt lgkmcnt(%d)' % min(15, self.dsn - self.marks[x.name][1]))
        elif isinstance(x, (list, tuple)):
            for y in x:
                self.run(y)
        elif callable(x):
            x()
        else:
            for key in self.cfg.get('skip', []):
                if x.startswith('buffer_load') and key in x:
                    return
            self(x)
            if x.startswith(('buffer_', 'global_')):
                self.vmn += 1
            elif x.startswith('ds_'):
                self.dsn += 1

    def gap(self, items):
        front, back, wr, rd = [], [], set(), set()
        blocked = False
        for x in items:
            fl = flat(x)
            strs = [Ins(y) for y in fl if isinstance(y, str)]
            is_valu = any(i.cls == 'valu' for i in strs)
            opaque = any(callable(y) for y in fl)
            r_ = set().union(*[i.reads for i in strs]) if strs else set()
            w_ = set().union(*[i.writes for i in strs]) if strs else set()
            dep = bool(r_ & wr) or bool(w_ & (wr | rd))
            if is_valu or opaque or dep or blocked:
                back.append(x)
                wr |= w_
                rd |= r_
                if not is_valu:
                    blocked = True
            else:
                front.append(x)
        self.run(front)
        self.run(back)

    def fill(self, mains, side, first=0, last=None, post=None):
        n = len(mains)
        post = post or [[] for _ in mains]
        last = n - 1 if last is None else min(last, n - 1)
        span = last - first + 1
        extra = [(cost(mains[i + 1]) if i + 1 < n else 0) + cost(post[i]) for i in range(n)]
        total = sum(cost(x) for x in side) + sum(extra[first:last + 1])
        done, used = 0, 0.0
        for i, g in enumerate(mains):
            self.run(g)
            items = list(post[i])
            if first <= i <= last:
                used += extra[i]
                target = total * (i - first + 1) / span
                while done < len(side) and (used + cost(side[done]) / 2.0 <= target or i == last):
                    items.append(side[done])
                    used += cost(side[done])
                    done += 1
            self.gap(items)
        self.run(side[done:])

    def stamp(self, name='', level=1):
        only = self.cfg.get('only')
        if self.cfg.get('stamps', 0) >= level and (only is None or name in only or name == 'end'):
            n = self.nstamp
            self.nstamp += 1
            self.names.append(name)
            self('s_memrealtime s[%d:%d]' % (S_ST, S_ST + 1))
            if self.cfg.get('cyc'):
                assert n < 32
                self('s_memtime s[%d:%d]' % (S_ST + 2, S_ST + 3))
            self('s_waitcnt lgkmcnt(0)')
            self('v_writelane_b32 v4, s%d, %d' % (S_ST, n))
            if self.cfg.get('cyc'):
                self('v_writelane_b32 v4, s%d, %d' % (S_ST + 2, 32 + n))

    def stamper(self, name, level=2):
        f = lambda: self.stamp(name, level)
        f.cost = 0
        return f

    def stash(self, name, reg):
        slot = A_STASH + 8 + len(self.stash_slots)
        assert slot < 256
        self.stash_slots[name] = slot
        self('v_accvgpr_write_b32 %s, %s' % (ac(slot), v(reg)))

    def unstash(self, name, reg):
        return 'v_accvgpr_read_b32 %s, %s' % (v(reg), ac(self.stash_slots[name]))


def mfma32(d, a_, b, c):
    return 'v_mfma_f32_32x32x16_bf16 %s, %s, %s, %s' % (d, a_, b, c)


def mfma16(d, a_, b, c):
    return 'v_mfma_f32_16x16x32_bf16 %s, %s, %s, %s' % (d, a_, b, c)


def merge(*lists):
    lists = [l for l in lists if l]
    tot = [max(1, cost(l)) for l in lists]
    idx = [0] * len(lists)
    used = [0] * len(lists)
    out = []
    while any(idx[k] < len(l) for k, l in enumerate(lists)):
        best = min((used[k] / tot[k], k) for k, l in enumerate(lists) if idx[k] < len(l))[1]
        x = lists[best][idx[best]]
        out.append(x)
        used[best] += cost(x)
        idx[best] += 1
    return out


def split_hl(src, hi_f, lo_f, tmp):
    return ['v_cvt_pk_bf16_f32 %s, %s, %s' % (v(tmp), v(src), v(src)),
            'v_and_b32 %s, 0xffff0000, %s' % (v(hi_f), v(tmp)),
            'v_sub_f32 %s, %s, %s' % (v(lo_f), v(src), v(hi_f))]


def ln_ops(s1, s2, mean, rstd):
    return ['v_mul_f32 %s, 0x3b000000, %s' % (v(mean), v(s1)),
            'v_mul_f32 %s, 0x3b000000, %s' % (v(s2), v(s2)),
            'v_fma_f32 %s, -%s, %s, %s' % (v(s2), v(mean), v(mean), v(s2)),
            'v_max_f32 %s, 0, %s' % (v(s2), v(s2)),
            'v_add_f32 %s, 0x3727c5ac, %s' % (v(s2), v(s2)),
            'v_rsq_f32 %s, %s' % (v(rstd), v(s2))]


def softmax_ops(P, E, OUT, c, t):
    o = []
    mx, mn, sp, sn = t, t + 2, t + 4, t + 6
    o.append('v_max3_f32 %s, %s, %s, %s' % (v(mx), v(P), v(P + 1), v(P + 2)))
    o.append('v_min3_f32 %s, %s, %s, %s' % (v(mn), v(P), v(P + 1), v(P + 2)))
    o.append('v_max3_f32 %s, %s, %s, %s' % (v(mx + 1), v(P + 3), v(P + 4), v(P + 5)))
    o.append('v_min3_f32 %s, %s, %s, %s' % (v(mn + 1), v(P + 3), v(P + 4), v(P + 5)))
    for n, i in enumerate(range(6, 14, 2)):
        o.append('v_max3_f32 %s, %s, %s, %s' % (v(mx + n % 2), v(mx + n % 2), v(P + i), v(P + i + 1)))
        o.append('v_min3_f32 %s, %s, %s, %s' % (v(mn + n % 2), v(mn + n % 2), v(P + i), v(P + i + 1)))
    o.append('v_max3_f32 %s, %s, %s, %s' % (v(mx), v(mx), v(P + 14), v(P + 15)))
    o.append('v_min3_f32 %s, %s, %s, %s' % (v(mn), v(mn), v(P + 14), v(P + 15)))
    o.append('v_max_f32 %s, %s, %s' % (v(mx), v(mx), v(mx + 1)))
    o.append('v_min_f32 %s, %s, %s' % (v(mn), v(mn), v(mn + 1)))
    o.append('v_mul_f32 %s, %s, %s' % (v(mx), v(mx), v(c + 1)))
    o.append('v_mul_f32 %s, %s, %s' % (v(mn), v(mn), v(c)))
    for i in range(0, 16, 2):
        o.append('v_pk_fma_f32 %s, %s, %s, %s op_sel_hi:[1,0,0]' % (v(E + i, 2), v(P + i, 2), v(c, 2), v(mx, 2)))
        o.append('v_pk_fma_f32 %s, %s, %s, %s op_sel:[0,1,0] op_sel_hi:[1,1,0]' % (v(E + 16 + i, 2), v(P + i, 2), v(c, 2), v(mn, 2)))
    for i in range(32):
        o.append('v_exp_f32 %s, %s' % (v(E + i), v(E + i)))
    o.append('v_pk_add_f32 %s, %s, %s' % (v(sp, 2), v(E, 2), v(E + 2, 2)))
    o.append('v_pk_add_f32 %s, %s, %s' % (v(sn, 2), v(E + 16, 2), v(E + 18, 2)))
    for i in range(4, 16, 2):
        o.append('v_pk_add_f32 %s, %s, %s' % (v(sp, 2), v(sp, 2), v(E + i, 2)))
        o.append('v_pk_add_f32 %s, %s, %s' % (v(sn, 2), v(sn, 2), v(E + 16 + i, 2)))
    o.append('v_add_f32 %s, %s, %s' % (v(sp), v(sp), v(sp + 1)))
    o.append('v_add_f32 %s, %s, %s' % (v(sn), v(sn), v(sn + 1)))
    o.append('v_rcp_f32 %s, %s' % (v(sp), v(sp)))
    o.append('v_rcp_f32 %s, %s' % (v(sn), v(sn)))
    for half, sm in ((0, sp), (16, sn)):
        for i in range(0, 16, 2):
            o.append('v_pk_mul_f32 %s, %s, %s op_sel_hi:[1,0]' % (v(E + half + i, 2), v(E + half + i, 2), v(sm, 2)))
        for i in range(0, 16, 2):
            o.append('v_cvt_pk_bf16_f32 %s, %s, %s' % (v(OUT + (half + i) // 2), v(E + half + i), v(E + half + i + 1)))
    return o


def gen(cfg):
    a = K(cfg)
    R = a.run
    SC = 'sc1'
    D = cfg.get('depth', 3)
    vL, vFR, vL4, vOUT = 1, 2, 3, 5
    vXD, vWD, vWQD, vXR, vWR = 6, 10, 11, 12, 16
    vA = 20
    vT = 28
    aK, aV, aQ = 32, 48, 64
    vWB = 80
    vS = 112
    X = 128
    s1a, s1b, s2a, s2b, csk, csv, csq, mean, rstd, vONE, cexp, ncexp = range(vS, vS + 12)
    vBX = vS + 12
    PA1, PA2 = A_STASH, A_STASH + 4
    vL128, vRB = vWD, vWQD
    vHH, vTRN = aK, aK + 1

    def vx(dst, terms, sadd=None, const=0, tmp=vT + 3):
        first = True
        for src, lo, n, mul in terms:
            if n:
                a('v_bfe_u32 %s, %s, %d, %d' % (v(tmp), v(src), lo, n))
                s_ = tmp
            elif lo:
                a('v_lshrrev_b32 %s, %d, %s' % (v(tmp), lo, v(src)))
                s_ = tmp
            else:
                s_ = src
            pw = mul & (mul - 1) == 0
            if first:
                if pw:
                    a('v_lshlrev_b32 %s, %d, %s' % (v(dst), mul.bit_length() - 1, v(s_)))
                else:
                    a('v_mul_u32_u24 %s, %d, %s' % (v(dst), mul, v(s_)))
                first = False
            elif pw:
                a('v_lshl_add_u32 %s, %s, %d, %s' % (v(dst), v(s_), mul.bit_length() - 1, v(dst)))
            else:
                a('v_mul_u32_u24 %s, %d, %s' % (v(tmp), mul, v(s_)))
                a('v_add_u32 %s, %s, %s' % (v(dst), v(tmp), v(dst)))
        if sadd is not None:
            a('v_add_u32 %s, s%d, %s' % (v(dst), sadd, v(dst)))
        if const:
            a('v_add_u32 %s, %d, %s' % (v(dst), const, v(dst)))

    def sx(dst, terms, const=0, tmp=sT5):
        first = True
        for src, mul in terms:
            tgt = dst if first else tmp
            if mul == 1:
                if first:
                    a('s_mov_b32 s%d, s%d' % (dst, src))
                else:
                    a('s_add_u32 s%d, s%d, s%d' % (dst, dst, src))
                first = False
                continue
            if mul & (mul - 1) == 0:
                a('s_lshl_b32 s%d, s%d, %d' % (tgt, src, mul.bit_length() - 1))
            else:
                a('s_mul_i32 s%d, s%d, %d' % (tgt, src, mul))
            if not first:
                a('s_add_u32 s%d, s%d, s%d' % (dst, dst, tmp))
            first = False
        if const:
            a('s_add_u32 s%d, s%d, %d' % (dst, dst, const))

    def step(sreg, inc, period):
        if period & (period - 1) == 0:
            return ['s_add_u32 s%d, s%d, %d' % (sreg, sreg, inc), 's_and_b32 s%d, s%d, %d' % (sreg, sreg, period - 1)]
        return ['s_add_u32 s%d, s%d, %d' % (sreg, sreg, inc),
                ['s_cmp_eq_u32 s%d, %d' % (sreg, period), 's_cmov_b32 s%d, 0' % sreg]]

    def push_flags(sbase, add, vaddr):
        lab = a.uniq('L_nopush')
        a('s_cmp_lg_u32 s%d, 0' % sW)
        a('s_cbranch_scc1 %s' % lab)
        a('s_add_u32 s%d, s%d, %d' % (sT5, sbase, add))
        a('s_mov_b64 exec, 0xffff')
        a('buffer_store_dword %s, %s, %s, s%d offen sc1' % (v(vONE), v(vaddr), sr(S_WS), sT5))
        a('s_mov_b64 exec, -1')
        a.label(lab)

    def arrive(sync):
        lab = a.uniq('L_noarr')
        a('s_cmp_lg_u32 s%d, 0' % sW)
        a('s_cbranch_scc1 %s' % lab)
        a('s_add_u32 s%d, s%d, %d' % (sT5, sFME, sync * 32768))
        a('s_mov_b64 exec, 1')
        a('s_cmp_lg_u32 s%d, 0' % sLOC)
        a('s_cbranch_scc1 %s_l' % lab)
        a('buffer_store_dword %s, %s, %s, s%d offen sc1' % (v(vONE), v(vL4), sr(S_WS), sT5))
        a('s_branch %s_e' % lab)
        a.label(lab + '_l')
        a('buffer_store_dword %s, %s, %s, s%d offen' % (v(vONE), v(vL4), sr(S_WS), sT5))
        a.label(lab + '_e')
        a('s_mov_b64 exec, -1')
        a.label(lab)

    def spin(lp, reg, srd_, soff, want):
        a.label(lp)
        a('buffer_load_dword %s, %s, %s, %s offen sc1' % (v(reg), v(vL4), sr(srd_), soff))
        a('s_add_u32 s%d, s%d, 1' % (sCNT, sCNT))
        a('s_cmp_gt_u32 s%d, %d' % (sCNT, SPIN))
        a('s_cbranch_scc1 %s_y' % lp)
        a('s_waitcnt vmcnt(0)')
        a('v_cmp_%s_u32 vcc, %d, %s' % ('eq' if want == 0 else 'ne', want, v(reg)))
        a('s_cbranch_vccnz %s' % lp)
        a.label(lp + '_y')
        a('s_waitcnt vmcnt(0)')

    def flag_addr(sync):
        return 's_add_u32 s%d, s%d, %d' % (sT5, sFP if sync == 0 else sFB, sync * 32768)

    def poll(sync, n, wave=0):
        lab = a.uniq('L_nopoll')
        a('s_cmp_lg_u32 s%d, %d' % (sW, wave))
        a('s_cbranch_scc1 %s' % lab)
        a(flag_addr(sync))
        a('s_mov_b64 exec, 0x%x' % ((1 << n) - 1))
        spin(a.uniq('L_poll'), vT + 3, S_WS, 's%d' % sT5, 1)
        a('s_mov_b64 exec, -1')
        a.label(lab)

    def check_issue(sync, reg, wave):
        def f():
            lab = a.uniq('L_noci')
            a('s_cmp_lg_u32 s%d, %d' % (sW, wave))
            a('s_cbranch_scc1 %s' % lab)
            a(flag_addr(sync))
            a('s_mov_b64 exec, 0xffff')
            a('buffer_load_dword %s, %s, %s, s%d offen sc1' % (v(reg), v(vL4), sr(S_WS), sT5))
            a('s_mov_b64 exec, -1')
            a.label(lab)
        f.cost = 3
        return f

    def check_done(sync, n, reg, wave):
        lp = a.uniq('L_chk')
        a('s_cmp_lg_u32 s%d, %d' % (sW, wave))
        a('s_cbranch_scc1 %s_z' % lp)
        a('s_mov_b64 exec, 0x%x' % ((1 << n) - 1))
        want = 0 if sync == 5 else 1
        a('v_cmp_%s_u32 vcc, %d, %s' % ('eq' if want == 0 else 'ne', want, v(reg)))
        a('s_cbranch_vccz %s_x' % lp)
        if sync is None:
            spin(lp, reg, S_DBG, '0', 1)
        else:
            a(flag_addr(sync))
            spin(lp, reg, S_WS, 's%d' % sT5, want)
        a.label(lp + '_x')
        if sync == 5:
            a('v_cmp_ne_u32 vcc, s%d, %s' % (sXID, v(reg)))
            a('s_cmp_eq_u64 vcc, 0')
            a('s_cselect_b32 s%d, %d, 0' % (sLOC, 1 if cfg.get('local', 1) else 0))
        a('s_mov_b64 exec, -1')
        a.label(lp + '_z')

    def readback(soff, nl, dst, extra=None):
        o = ['s_mov_b64 exec, 0x%x' % ((1 << nl) - 1),
             'buffer_load_dword %s, %s, %s, s%d offen sc1' % (v(dst), v(vL128), sr(S_WS), soff)]
        if extra is not None:
            o += ['s_mov_b64 exec, 3', 'buffer_load_dword %s, %s, %s, s%d offen sc1' % (v(dst), v(vL128), sr(S_WS), extra)]
        return [o + ['s_mov_b64 exec, -1']]

    a('s_cmp_ge_u32 s2, 256')
    a('s_cbranch_scc1 L_end')
    if cfg.get('stamps'):
        a('s_memrealtime s[100:101]')
        a('s_memtime s[98:99]')
    a('s_load_dwordx16 s[%d:%d], s[0:1], 0' % (S_PTR, S_PTR + 15))
    a('s_load_dwordx4 s[%d:%d], s[0:1], 64' % (S_PTR + 16, S_PTR + 19))
    a('s_load_dwordx2 s[%d:%d], s[0:1], 80' % (S_PTR + 20, S_PTR + 21))
    a('s_getpc_b64 s[%d:%d]' % (sT2, sT2 + 1))
    a.label('L_pc')
    a('s_lshr_b32 s%d, s2, 3' % sT0)
    a('v_lshrrev_b32 %s, 6, v0' % v(vT))
    a('v_and_b32 %s, 63, v0' % v(vL))
    a('v_readfirstlane_b32 s%d, %s' % (sW, v(vT)))
    ncl = cfg.get('code_lines', 9)
    if ncl:
        a('s_mul_i32 s%d, s%d, %d' % (sT1, sT0, ncl * 128))
        a('v_lshl_add_u32 %s, v0, 7, s%d' % (v(vT + 1), sT1))
        a('v_min_u32 %s, L_end-L_pc, %s' % (v(vT + 1), v(vT + 1)))
        a('v_cmp_gt_u32 vcc, %d, v0' % ncl)
        a('s_and_saveexec_b64 s[%d:%d], vcc' % (sMSK, sMSK1))
        a('s_cbranch_execz L_nocp')
        a('global_load_dword %s, %s, s[%d:%d]' % (v(255), v(vT + 1), sT2, sT2 + 1))
        a.label('L_nocp')
        a('s_mov_b64 exec, -1')
    a('s_and_b32 s%d, s2, 7' % sXCD)
    a('s_and_b32 s%d, s%d, 15' % (sJ, sT0))
    a('s_lshr_b32 s%d, s%d, 4' % (sT2, sT0))
    sx(sI, [(sXCD, 2), (sT2, 1)])
    a('s_and_b32 s%d, s%d, 1' % (sT3, sJ))
    a('s_lshr_b32 s%d, s%d, 1' % (sT1, sJ))
    a('s_and_b32 s%d, s%d, 1' % (sT0, sXCD))
    if cfg.get('halfrot', 0):
        sx(sT4, [(sT2, 4), (sT3, 2), (sT1, 2)])
    else:
        sx(sT4, [(sT2, 4), (sT3, 2), (sT1, 1), (sT0, 1)])
    a('s_and_b32 s%d, s%d, 7' % (sT4, sT4))
    a('s_lshl_b32 s%d, s%d, 7' % (sCX, sT4))
    a('s_mul_i32 s%d, s%d, %d' % (sCW, sT4, 64 * 3072))
    sx(sT0, [(sI, 1 << 17), (sW, 1 << 15)], 2048)
    sx(sLDSX, [(sW, 1 << 14)], L_XS)
    a('s_lshl_b32 s%d, s%d, 11' % (sLDSW, sW))
    a('v_lshrrev_b32 %s, 4, %s' % (v(vT + 1), v(vL)))
    a('v_and_b32 %s, 7, %s' % (v(vT + 2), v(vL)))
    a('v_xor_b32 %s, %s, %s' % (v(vT + 1), v(vT + 1), v(vT + 2)))
    vx(vXD, [(vL, 3, 0, 1024), (vT + 1, 0, 0, 16)], sadd=sT0)
    a('v_xor_b32 %s, 64, %s' % (v(vXD + 1), v(vXD)))
    a('s_lshl_b32 s%d, s%d, 14' % (sT1, sT3))
    a('s_sub_u32 s%d, %d, s%d' % (sT2, 2 * 7168, sT1))
    a('v_add_u32 %s, %d, %s' % (v(vXD + 1), 7168, v(vXD + 1)))
    a('v_add_u32 %s, s%d, %s' % (v(vXD + 2), sT2, v(vXD)))
    a('v_add_u32 %s, s%d, %s' % (v(vXD + 3), sT2, v(vXD + 1)))
    a('v_add_u32 %s, s%d, %s' % (v(vXD), sT1, v(vXD)))
    a('v_add_u32 %s, s%d, %s' % (v(vXD + 1), sT1, v(vXD + 1)))
    a('s_lshr_b32 s%d, s2, 3' % sT1)
    sx(sT2, [(2, 16), (sW, 4)])
    sx(sT1, [(sT1, 16), (sW, 4)])
    a('v_and_b32 %s, 3, %s' % (v(vT), v(vL)))
    a('v_add_u32 %s, s%d, %s' % (v(vT + 1), sT2, v(vT)))
    a('v_add_u32 %s, s%d, %s' % (v(vT), sT1, v(vT)))
    a('v_cmp_gt_u32 vcc, 4, %s' % v(vL))
    vx(aV, [(vT + 1, 3, 0, 3072), (vT + 1, 0, 3, 128)])
    vx(aV + 1, [(vT, 0, 0, 3072)], const=384)
    a('v_cndmask_b32 %s, %s, %s, vcc' % (v(aV), v(aV + 1), v(aV)))
    a('v_lshlrev_b32 %s, 7, %s' % (v(aV + 2), v(vT + 1)))
    vx(aV + 1, [(vT, 0, 0, 1024)], const=384)
    a('v_cndmask_b32 %s, %s, %s, vcc' % (v(aV + 1), v(aV + 1), v(aV + 2)))
    a('v_lshlrev_b32 %s, 4, %s' % (v(vFR), v(vL)))
    a('s_lshl_b32 s%d, s%d, 6' % (sT2, sJ))
    vx(vWQD, [(0, 2, 0, 3072), (vL, 0, 2, 16)], sadd=sT2)
    a('v_add_u32 %s, 1024, %s' % (v(vWD), v(vWQD)))
    a('s_waitcnt lgkmcnt(0)')
    if cfg.get('stamps'):
        a('v_mov_b32 v4, 0')
        a('v_writelane_b32 v4, s100, 0')
        if cfg.get('cyc'):
            a('v_writelane_b32 v4, s98, 32')
        a.nstamp = 1
        a.names.append('start')
    a.stamp('karg', 2)
    srd(a, S_WQKV, S_PTR + 2, SIZES['wqkv'])

    def dma_w(s):
        return ['s_add_u32 m0, s%d, %d' % (sLDSW, s * 8192),
                'buffer_load_dwordx4 %s, %s, s%d offen lds' % (v(vWD), sr(S_WQKV), sCW),
                'buffer_load_dwordx4 %s, %s, s%d offen offset:1024 lds' % (v(vWD), sr(S_WQKV), sCW)] + step(sCW, 64 * 3072, 512 * 3072)

    def dma_x(s):
        return ['s_add_u32 m0, s%d, %d' % (sLDSX, (s & 3) * 4096)] + [
            'buffer_load_dwordx4 %s, %s, s%d offen offset:%d lds' % (v(vXD + q), sr(S_X), sCX, q * 1024) for q in range(4)
        ] + step(sCX, 128, 1024) + [Mark('slot%d' % s)]

    def dma_wq(s):
        return ['s_add_u32 m0, s%d, %d' % (sLDSW, L_WQ + (s >> 1) * 8192 + (s & 1) * 1024),
                'buffer_load_dwordx4 %s, %s, s%d offen lds' % (v(vWQD), sr(S_WQKV), sCW)] + step(sCW, 64 * 3072, 512 * 3072)

    a('s_cmp_lg_u32 s%d, 0' % sJ)
    a('s_cbranch_scc1 L_noclear')
    srd(a, S_WS, S_PTR + 20, SIZES['ws'])
    vx(vT, [(0, 4, 0, 128), (0, 2, 2, 32768), (0, 0, 2, 16)])
    for i in range(4):
        a('v_mov_b32 %s, 0' % v(vWB + i))
    a('s_lshl_b32 s%d, s%d, 11' % (sT2, sI))
    a('buffer_store_dwordx4 %s, %s, %s, s%d offen sc1' % (v(vWB, 4), v(vT), sr(S_WS), sT2))
    a('s_add_u32 s%d, s%d, %d' % (sT2, sT2, 4 * 32768))
    a('buffer_store_dwordx4 %s, %s, %s, s%d offen sc1' % (v(vWB, 4), v(vT), sr(S_WS), sT2))
    a.label('L_noclear')
    R(dma_w(0))
    a('s_sub_u32 s%d, s%d, 2048' % (S_PTR, S_PTR))
    a('s_subb_u32 s%d, s%d, 0' % (S_PTR + 1, S_PTR + 1))
    srd(a, S_X, S_PTR + 0, SIZES['x'] + 2048)
    dx0 = dma_x(0)
    R(dx0[:3])
    srd(a, S_WO, S_PTR + 6, SIZES['wo'])
    srd(a, S_WPHI, S_PTR + 4, SIZES['wphi'])
    if cfg.get('warm0', 1):
        a('s_mov_b64 exec, 0x%x' % (0xff if cfg.get('touch3', 1) else 0xf))
        R('buffer_load_dword %s, %s, %s, 0 offen' % (v(254), v(aV), sr(S_WQKV)))
        R('buffer_load_dword %s, %s, %s, 0 offen' % (v(253), v(aV + 1), sr(S_WO)))
    sx(sT2, [(sJ, 1024), (sW, 256)])
    sx(sT3, [(sW, 256)], L_WPHI)
    a('s_mov_b32 m0, s%d' % sT3)
    a('s_mov_b64 exec, 0xffff')
    R('buffer_load_dwordx4 %s, %s, s%d offen lds' % (v(vFR), sr(S_WPHI), sT2))
    a('s_mov_b64 exec, -1')
    R([dx0[0]] + dx0[3:])
    a.stamp('dma0', 2)
    srd(a, S_WS, S_PTR + 20, SIZES['ws'])
    srd(a, S_W1, S_PTR + 10, SIZES['w1'])
    srd(a, S_B1, S_PTR + 12, SIZES['b1'])
    srd(a, S_W2, S_PTR + 14, SIZES['w2'])
    srd(a, S_OUT, S_PTR + 16, SIZES['out'])
    srd(a, S_DBG, S_PTR + 18, SIZES['dbg'])
    srd(a, S_TMP, S_PTR + 10, SIZES['w1'])

    a('s_mov_b32 s%d, 0x%x' % (sONES, ONES))
    a('s_mov_b32 s%d, 0x3f80' % sSEL0)
    a('s_mov_b32 s%d, 0x3f800000' % sSEL1)
    a('s_mov_b32 s%d, 0' % sCNT)
    a('s_mov_b32 s%d, 0x%x' % (sRS, fbits(math.sqrt(0.5))))
    a('s_mov_b32 s%d, 0x%x' % (sLN2, fbits(math.log(2.0))))
    a('s_lshr_b32 s%d, s%d, 1' % (sKH, sW))
    a('s_and_b32 s%d, s%d, 1' % (sTT, sW))
    a('s_and_b32 s%d, s%d, 1' % (sP, sJ))
    a('s_lshr_b32 s%d, s%d, 1' % (sC, sJ))
    a('s_and_b32 s%d, s%d, 3' % (sT2, sC))
    a('s_cmp_eq_u32 s%d, 3' % sT2)
    a('s_cselect_b32 s%d, 4, 0' % sT2)
    a('s_xor_b32 s%d, s%d, s%d' % (sC, sC, sT2))
    a('s_lshl_b32 s%d, s%d, 13' % (sLW2, sW))
    a('s_lshl_b32 s%d, s%d, 12' % (sLW1, sW))
    a('v_lshrrev_b32 %s, 5, %s' % (v(vHH), v(vL)))
    a('v_lshlrev_b32 %s, 2, %s' % (v(vL4), v(vL)))
    a('v_mov_b32 %s, 1' % v(vONE))
    vx(aQ + 8, [(vL, 0, 1, 512), (vL, 1, 1, 8), (vL, 4, 1, 16), (vL, 2, 2, 32), (vHH, 0, 0, 128)], const=L_WPHI)
    a('v_bfe_u32 %s, %s, 2, 1' % (v(vT), v(vL)))
    a('v_cmp_eq_u32 s[%d:%d], 0, %s' % (sMSK, sMSK1, v(vT)))
    a('v_bfe_u32 %s, %s, 1, 3' % (v(vT + 1), v(vL)))
    a('s_lshl_b32 s%d, s%d, 1' % (sT2, sW))
    a('v_add_u32 %s, s%d, %s' % (v(vT + 2), sT2, v(vHH)))
    a('v_xor_b32 %s, %s, %s' % (v(vT + 1), v(vT + 1), v(vT + 2)))
    vx(vXR, [(vL, 0, 5, 128), (vT + 1, 0, 0, 16)], sadd=sLDSX)
    a('s_and_b32 s%d, s%d, 1' % (sT2, sJ))
    a('s_lshl_b32 s%d, s%d, 11' % (sT2, sT2))
    a('v_xor_b32 %s, s%d, %s' % (v(vXR), sT2, v(vXR)))
    for p in range(1, 4):
        a('v_xor_b32 %s, %d, %s' % (v(vXR + p), 32 * p, v(vXR)))
    vx(vOUT, [(vL, 0, 5, 1024), (vHH, 0, 0, 32)])
    vx(vWR, [(vL, 2, 2, 64), (vL, 4, 1, 32), (vL, 0, 2, 8), (vHH, 0, 0, 512)], sadd=sLDSW)
    for p in range(1, 4):
        a('v_xor_b32 %s, %d, %s' % (v(vWR + p), 2048 * p, v(vWR)))
    vx(vTRN, [(vL, 2, 2, 64), (vL, 0, 1, 32), (vL, 4, 1, 16), (vL, 1, 1, 8)])
    sx(sT2, [(sKH, 32768 + 512)], L_WO)
    vx(vT, [(vTRN, 0, 0, 1), (vHH, 0, 0, 1024)], sadd=sT2)
    a.stash('wo', vT)
    a('s_lshl_b32 s%d, s%d, 9' % (sT2, sW))
    vx(vT, [(vTRN, 0, 0, 1), (vHH, 0, 0, 4096)], sadd=sT2)
    a.stash('w1', vT)
    sx(sT2, [(sKH, 512), (sLW2, 1)])
    vx(vT, [(vTRN, 0, 0, 1), (vHH, 0, 0, 2048)], sadd=sT2)
    a.stash('w2', vT)
    vx(vT + 1, [(vL, 0, 2, 16), (vHH, 0, 0, 64)])
    sx(sT2, [(sKH, 1 << 18), (sC, 128)])
    vx(vT, [(vL, 2, 3, 1024), (vT + 1, 0, 0, 1)], sadd=sT2)
    a.stash('bdo', vT)
    sx(sT2, [(sW, 448 * 1024), (sC, 128)])
    vx(vT, [(vL, 2, 3, 1024), (vT + 1, 0, 0, 1)], sadd=sT2)
    a.stash('bd2', vT)
    sx(sT2, [(sW, 16 * 3584), (sJ, 256)], 3072)
    vx(vT, [(vL, 2, 3, 3584), (vT + 1, 0, 0, 1)], sadd=sT2)
    a.stash('bd1', vT)
    a('v_bfe_u32 %s, %s, 1, 2' % (v(vT), v(vL)))
    vx(vT + 1, [(vL, 3, 1, 2)])
    a('v_xor_b32 %s, %s, %s' % (v(vT + 1), v(vT), v(vT + 1)))
    vx(vT, [(vL, 0, 5, 64), (vT + 1, 0, 0, 16)], sadd=sLDSW)
    a('v_lshl_add_u32 %s, %s, 3, %s' % (v(vA), v(vHH), v(vT)))
    a('v_lshl_add_u32 %s, %s, 13, %s' % (v(vA + 4), v(vHH), v(vT)))
    for g in range(1, 4):
        a('v_xor_b32 %s, %d, %s' % (v(vA + g), 16 * g, v(vA)))
        a('v_xor_b32 %s, %d, %s' % (v(vA + 4 + g), 16 * g, v(vA + 4)))
    vx(vT, [(vL, 3, 1, 1), (vL, 4, 1, 2)])
    a('v_bfe_u32 %s, %s, 1, 1' % (v(vT + 1), v(vL)))
    a('v_xor_b32 %s, %s, %s' % (v(vT), v(vT), v(vT + 1)))
    vx(vT + 2, [(vL, 4, 0, 512), (vL, 2, 2, 64), (vT, 0, 0, 16), (vL, 0, 1, 8)])
    sx(sT2, [(sKH, 32), (sTT, 8192)])
    a('v_xor_b32 %s, s%d, %s' % (v(vT), sT2, v(vT + 2)))
    a.stash('kvphi', vT)
    a('s_lshl_b32 s%d, s%d, 5' % (sT2, sTT))
    a('v_xor_b32 %s, s%d, %s' % (v(vT), sT2, v(vT + 2)))
    a.stash('kvv', vT)
    vx(vT, [(0, 4, 0, 16)])
    a.stash('zst', vT)
    vx(vT + 1, [(vL, 0, 4, KVREC), (vT, 0, 0, 1)])
    a.stash('zld', vT + 1)
    sx(sT2, [(sTT, 17 * 80), (sKH, 32)], L_KVB)
    vx(vT, [(vL, 4, 0, 8)], sadd=sT2)
    a.stash('kbz', vT)
    vx(vT + 1, [(vL, 0, 3, 160), (vHH, 0, 0, 80), (vL, 3, 2, 8)], sadd=sT2)
    a.stash('kbw', vT + 1)
    a('s_lshl_b32 s%d, s%d, 9' % (sT3, sW))
    vx(vT + 1, [(vL, 0, 5, 16), (vHH, 0, 0, KVREC)], sadd=sT3)
    a.stash('gld', vT + 1)
    vx(vT + 2, [(vL, 2, 1, 8), (vL, 3, 1, 4), (vL, 0, 2, 1)])
    a('v_and_b32 %s, 16, %s' % (v(vT), v(vL)))
    a('v_cmp_eq_u32 vcc, 0, %s' % v(vT))
    a('v_cndmask_b32 %s, 16, %s, vcc' % (v(vT + 2), v(vT + 2)))
    vx(vT, [(vT + 2, 0, 0, 80), (vHH, 0, 0, 16)], const=L_KVB)
    a.stash('kbr', vT)
    sx(sT2, [(sJ, 256), (sW, 64)])
    vx(vT, [(vL, 2, 1, 32), (vL, 3, 2, 8), (vL, 0, 2, 2), (vHH, 0, 0, 8192)], sadd=sT2)
    a.stash('bias', vT)
    sx(sT2, [(sLW2, 1)], R2)
    a('v_add_u32 %s, s%d, %s' % (v(vT), sT2, v(vFR)))
    a.stash('red3', vT)
    vx(vT, [(vL, 2, 0, 1024), (vL, 0, 2, 16)], const=2048)
    a.stash('xd', vT)
    vx(vT, [(vL, 0, 5, 64), (vHH, 0, 0, 32)], sadd=sT2, const=4096)
    a.stash('xr', vT)

    sx(sGAT, [(sJ, 16 * KVREC)], KVP)
    sx(sREC, [(sGAT, 1), (sI, KVREC)])
    sx(sFA, [(sJ, 128), (sI, 4)])
    sx(sFP, [(sI, 2048), (sJ, 128)])
    sx(sFB, [(sI, 2048)])
    sx(sFME, [(sI, 2048), (sJ, 4)])
    sx(sOST, [(sI, 4 << 15), (sW, 1 << 15), (sJ, 2048)], O_)
    sx(sSLD, [(sI, 4 << 12), (sW, 1 << 12)], ST)
    sx(sAST, [(sI, 4 * 112 * 1024), (sJ, 8192), (sW, 2048)], ACT)
    sx(sALD, [(sI, 4 * 112 * 1024), (sP, 112 * 1024), (sW, 28 * 1024)], ACT)
    sx(sT2, [(sI, 4), (sP, 1), (sTT, 2)])
    sx(sT3, [(sC, 2), (sKH, 1)])
    sx(sOLD, [(sT2, 1 << 15), (sKH, 1 << 14)], O_)
    sx(sOUT, [(sT2, 1 << 15), (sT3, 64)])
    sx(sHST, [(sT2, 1 << 15), (sT3, 2048)], H_)
    sx(sSST, [(sT2, 1 << 12), (sT3, 256)], ST)
    rot = cfg.get('rot', 1)
    a('s_and_b32 s%d, s%d, %d' % (sT2, sI, 1 if cfg.get('rotw', 0) else 0))
    a('s_and_b32 s%d, s%d, %d' % (sT3, sP, 1 if cfg.get('rotw', 0) else 0))
    sx(sT3, [(sT3, 1), (sT2, 2)])
    a('s_lshr_b32 s%d, s%d, 1' % (sT0, sC))
    a('s_add_u32 s%d, s%d, s%d' % (sT0, sT0, sT3))
    a('s_and_b32 s%d, s%d, %d' % (sT0, sT0, 3 if rot else 0))
    a('s_lshl_b32 s%d, s%d, 12' % (sR3, sT0))
    sx(sCO, [(sTT, 4 << 15), (sT0, 2 << 15)])
    a('s_and_b32 s%d, s%d, %d' % (sCO, sCO, (8 << 15) - 1))
    sx(sT0, [(sJ, 1), (sT2, 2)])
    a('s_and_b32 s%d, s%d, %d' % (sT0, sT0, 3 if rot else 0))
    a('s_mul_i32 s%d, s%d, %d' % (sC1, sT0, 128 * 3584))
    sx(sT1, [(sT0, 2), (sW, 1)])
    a('s_and_b32 s%d, s%d, 7' % (sT4, sT1))
    sx(sHL0, [(sI, 4 << 15), (sT4, 4096)], H_)
    a('s_xor_b32 s%d, s%d, 4' % (sT4, sT4))
    sx(sHL1, [(sI, 4 << 15), (sT4, 4096)], H_)
    sx(sT0, [(sC, 1), (sT3, 2)])
    a('s_add_u32 s%d, s%d, -7' % (sT1, sT0))
    a('s_cselect_b32 s%d, s%d, s%d' % (sT0, sT1, sT0))
    if not rot:
        a('s_mov_b32 s%d, 0' % sT0)
    a('s_lshl_b32 s%d, s%d, 16' % (sC2, sT0))
    a('s_lshl_b32 s%d, s%d, 12' % (sC5, sT0))
    a('s_sub_u32 s%d, s%d, 3072' % (S_W1, S_W1))
    a('s_subb_u32 s%d, s%d, 0' % (S_W1 + 1, S_W1 + 1))
    a('s_cmp_ge_u32 s%d, 14' % sJ)
    a('s_cselect_b32 s%d, 0, %d' % (S_W1 + 2, SIZES['w1'] + 3072))
    for r_ in (s1a, s1b, s2a, s2b, csk, csv, csq, vBX + 2, vBX + 3):
        a('v_mov_b32 %s, 0' % v(r_))

    def warm(srd_, nbytes, dst):
        nl = nbytes // 128 // 256
        a('s_mul_i32 s%d, s2, %d' % (sT2, nl * 128))
        a('v_lshlrev_b32 %s, 7, %s' % (v(vT), v(vL)))
        a('s_mov_b32 exec_lo, 0x%x' % (((1 << nl) - 1) & 0xffffffff))
        a('s_mov_b32 exec_hi, 0x%x' % (((1 << nl) - 1) >> 32))
        a('buffer_load_dword %s, %s, %s, s%d offen' % (v(dst), v(vT), sr(srd_), sT2))
        a('s_mov_b64 exec, -1')

    def touch3(srd_, rows, pitch, off, dst, row0=None):
        nl = rows // 32
        a('s_lshr_b32 s%d, s2, 3' % sT2)
        a('s_mul_i32 s%d, s%d, %d' % (sT2, sT2, nl * pitch))
        if row0 is not None:
            a('s_add_u32 s%d, s%d, s%d' % (sT2, sT2, row0))
        a('v_mul_u32_u24 %s, %d, %s' % (v(vT), pitch, v(vL)))
        a('s_mov_b32 exec_lo, 0x%x' % (((1 << nl) - 1) & 0xffffffff))
        a('s_mov_b32 exec_hi, 0x%x' % (((1 << nl) - 1) >> 32))
        a('buffer_load_dword %s, %s, %s, s%d offen offset:%d' % (v(dst), v(vT), sr(srd_), sT2, off))
        a('s_mov_b64 exec, -1')

    def warm_big():
        a('s_cmp_lg_u32 s%d, 1' % sW)
        a('s_cbranch_scc1 L_nw1')
        warm(S_TMP, SIZES['w1'], vT + 2)
        a.label('L_nw1')
        a('s_cmp_lg_u32 s%d, 2' % sW)
        a('s_cbranch_scc1 L_nw2')
        warm(S_W2, SIZES['w2'], vT + 2)
        a.label('L_nw2')

    if cfg.get('warm1', 7) == -1:
        warm_big()
    D0 = min(D, cfg.get('d0', 2))
    for s in range(1, D0):
        R(dma_w(s) + dma_x(s))
    a.stamp('prolog')

    def wreg(s, p, m):
        if p == 0:
            return lambda o, n: v(vWB + (s & 1) * 8 + m * 4 + o, n)
        return lambda o, n: ac(128 + (s & 1) * 24 + (p - 1) * 8 + m * 4 + o, n)

    def reads(s):
        o = []
        for p in range(4):
            o.append('ds_read_b128 %s, %s offset:%d' % (v(X + (4 * s + p) * 4, 4), v(vXR + p), (s & 3) * 4096))
            for m in range(2):
                for t in range(2):
                    o.append('ds_read_b64_tr_b16 %s, %s offset:%d' % (wreg(s, p, m)(2 * t, 2), v(vWR + p), s * 8192 + m * 1024 + t * 256))
        return o

    def mains(s):
        o = []
        for p in range(4):
            for m in range(2):
                acc = v(aK if m == 0 else aV, 16)
                o.append([mfma32(acc, wreg(s, p, m)(0, 4), v(X + (4 * s + p) * 4, 4), '0' if (s == 0 and p == 0) else acc)])
        return o

    def cs_dots(s):
        o = []
        for r_ in range(4):
            o.append('v_dot2_f32_bf16 %s, %s, s%d, %s' % (v(csk), wreg(s, 0, 0)(r_, 1), sONES, v(csk)))
            o.append('v_dot2_f32_bf16 %s, %s, s%d, %s' % (v(csv), wreg(s, 0, 1)(r_, 1), sONES, v(csv)))
        return o

    def stat_dots(s):
        o = []
        for r_ in range(16):
            x = v(X + 16 * s + r_)
            p1, p2 = (s1a, s2a) if r_ & 1 else (s1b, s2b)
            o.append('v_dot2_f32_bf16 %s, %s, s%d, %s' % (v(p1), x, sONES, v(p1)))
            o.append('v_dot2_f32_bf16 %s, %s, %s, %s' % (v(p2), x, x, v(p2)))
        return o

    def a_ext(dst, cs, t):
        return split_hl(cs, t, t + 1, dst) + ['v_cvt_pk_bf16_f32 %s, %s, 0' % (v(dst + 1), v(t + 1)),
                                              'v_mov_b32 %s, 0' % v(dst + 2), 'v_mov_b32 %s, 0' % v(dst + 3)]

    phi_merge = ['ds_read_b64_tr_b16 %s, %s' % (v(aQ + 12, 2), v(aQ + 8)),
                 'ds_read_b64_tr_b16 %s, %s offset:256' % (v(aQ + 14, 2), v(aQ + 8))]
    phi_merge2 = []
    for e in range(4):
        phi_merge2.append('v_cndmask_b32 %s, 0, %s, s[%d:%d]' % (v(aQ + e), v(aQ + 12 + e), sMSK, sMSK1))
        phi_merge2.append('v_cndmask_b32 %s, %s, 0, s[%d:%d]' % (v(aQ + 4 + e), v(aQ + 12 + e), sMSK, sMSK1))
    for e in range(8):
        phi_merge2.append('v_accvgpr_write_b32 %s, %s' % (ac(PA1 + e), v(aQ + e)))

    wq = [dma_wq(s) for s in range(8)]
    R(WaitVM('slot0'))
    a('s_barrier')
    a.stamp('c0', 2)
    R(phi_merge)
    R(reads(0))
    for s in range(D0, D):
        R(dma_w(s) + dma_x(s))
    R(phi_merge2)
    late = cfg.get('p1late', 0)
    for s in range(7):
        R(WaitVM('slot%d' % (s + 1)))
        a('s_waitcnt lgkmcnt(0)')
        a('s_barrier')
        a.stamp('c%d' % (s + 1), 2)
        if s == cfg.get('sig', 5):
            a('s_or_b32 s%d, s%d, s%d' % (sT2, sJ, sW))
            a('s_cmp_lg_u32 s%d, 0' % sT2)
            a('s_cbranch_scc1 L_nosig')
            a('s_lshl_b32 s%d, s%d, 2' % (sT2, sI))
            a('s_mov_b64 exec, 1')
            a('buffer_store_dword %s, %s, %s, s%d offen sc1' % (v(vONE), v(vL4), sr(S_DBG), sT2))
            a('s_mov_b64 exec, -1')
            a.label('L_nosig')
        if s + D < 8:
            dw, dx = dma_w(s + D), dma_x(s + D)
        else:
            k0, k1 = (s + D - 8) * 8 // D, (s + D - 7) * 8 // D
            fl = [x for g in wq[k0:k1] for x in g]
            dw, dx = fl[:len(fl) // 2], fl[len(fl) // 2:]
        rd = reads(s + 1)
        allm = dw + dx
        idx = [i for i, x in enumerate(allm) if isinstance(x, str) and x.startswith('buffer_')]
        nl = min(late, len(idx))
        cut = idx[len(idx) - nl] if nl else len(allm)
        if nl and isinstance(allm[cut - 1], str) and 'm0' in allm[cut - 1]:
            cut -= 1
        a.fill(mains(s), merge(rd, allm[:cut]))
        dots = cs_dots(s) + stat_dots(s)
        rest = allm[cut:]
        groups = []
        for x in rest:
            if not groups or (isinstance(x, str) and x.startswith('buffer_') and any(isinstance(y, str) and y.startswith('buffer_') for y in groups[-1])):
                groups.append([])
            groups[-1].append(x)
        ng_ = len(groups)
        for k in range(ng_ + 1):
            R(dots[k * 40 // (ng_ + cfg.get('p1e', 0)) if ng_ else 0:(k + 1) * 40 // (ng_ + cfg.get('p1e', 0)) if ng_ else 40])
            if k < ng_:
                R(groups[k])
        if cfg.get('warm1', 7) == s:
            warm_big()
    s = 7
    R(cs_dots(s))
    a('v_lshlrev_b32 %s, 3, v0' % v(vT))
    R('ds_write_b64 %s, %s offset:%d' % (v(vT), v(csk, 2), L_CSX))
    R(stat_dots(s))
    a('v_lshlrev_b32 %s, 3, %s' % (v(vT), v(vL)))
    a('s_waitcnt lgkmcnt(0)')
    a('s_barrier')
    for w in range(4):
        R('ds_read_b64 %s, %s offset:%d' % (v(aQ + 2 * w, 2), v(vT), L_CSX + 512 * w))
    fin = ['v_add_f32 %s, %s, %s' % (v(s1a), v(s1a), v(s1b)),
           'v_add_f32 %s, %s, %s' % (v(s2a), v(s2a), v(s2b)),
           'v_permlane32_swap_b32 %s, %s' % (v(s1a), v(s2a)),
           'v_add_f32 %s, %s, %s' % (v(s1a), v(s1a), v(s2a)),
           'v_mov_b32 %s, %s' % (v(s2a), v(s1a)),
           'v_permlane32_swap_b32 %s, %s' % (v(s1a), v(s2a))]
    fin += ln_ops(s1a, s2a, mean, rstd)
    fin += ['v_sub_f32 %s, 0, %s' % (v(s1a), v(mean))]
    fin += split_hl(s1a, s1b, s2b, vT)
    fin += ['v_cvt_pk_bf16_f32 %s, %s, %s' % (v(vBX), v(s1b), v(s2b)),
            'v_cvt_pk_bf16_f32 %s, %s, 0' % (v(vBX + 1), v(s1b))]
    fin2 = ['v_add_f32 %s, %s, %s' % (v(aQ + i), v(aQ + i), v(aQ + 4 + i)) for i in range(4)]
    fin2 += ['v_add_f32 %s, %s, %s' % (v(csk + i), v(aQ + i), v(aQ + 2 + i)) for i in range(2)]
    fin2 += a_ext(aQ + 8, csk, vT + 1) + a_ext(aQ + 12, csv, vT + 1)
    k0 = (7 + D - 8) * 8 // D
    m7 = mains(7)
    m7 = [m7[i] for i in (0, 2, 4, 6, 1, 3, 5, 7)]
    a.fill(m7, merge(fin, fin2))
    a.stamp('p1end')
    R(mfma32(v(aK, 16), v(aQ + 8, 4), v(vBX, 4), v(aK, 16)))
    R(mfma32(v(aV, 16), v(aQ + 12, 4), v(vBX, 4), v(aV, 16)))
    R([x for g in wq[k0:] for x in g] + [Mark('wq')])
    if cfg.get('warm1', 7) == 7:
        warm_big()
    vBD = vXD
    def blk_regs(name, reg):
        return [a.unstash(name, reg)] + ['v_add_u32 %s, %d, %s' % (v(reg + q), q * 7168, v(reg)) for q in range(1, 4)]
    R(blk_regs('bdo', vBD))
    def dma_wo(g4):
        return ['s_add_u32 m0, s%d, %d' % (sLDSX, g4 * 4096)] + [
            'buffer_load_dwordx4 %s, %s, s%d offen offset:%d lds' % (v(vBD + b), sr(S_WO), sCO, b * 1024) for b in range(4)
        ] + step(sCO, 32768, 8 * 32768)
    vB1 = vWR
    def dma_w1(g4):
        return ['s_add_u32 m0, s%d, %d' % (sLW1, g4 * 16384)] + [
            'buffer_load_dwordx4 %s, %s, s%d offen offset:%d lds' % (v(vB1 + b), sr(S_W1), sC1, b * 1024) for b in range(4)
        ] + step(sC1, 64 * 3584, 512 * 3584)
    def w2reg(ks, rho):
        return ((ks * 2 + rho) * 4 + 128) % 224
    vW2, vW2c = vS + 2, vS + 14
    REG = {0: 32768, 1: R2, 2: R2, 3: R2, 4: 0, 5: 32768, 6: 65536}
    TW2, TAC = 4, 14
    def w2_dma(q):
        o = []
        early = q < (2 if LATE2 else 3)
        for h in range(2):
            so = sC2 if early else TW2 + 2 * (q - 2) + h
            o += ['s_add_u32 m0, s%d, %d' % (sLW2, REG[q] + h * 4096)] + [
                'buffer_load_dwordx4 %s, %s, s%d offen offset:%d lds' % (v(vBD2 + b), sr(S_W2), so, b * 1024) for b in range(4)]
            if early:
                o += step(sC2, 32768, 14 * 32768)
        return o + [Mark('w2_%d' % q)]
    def tables():
        for n in range(0 if LATE2 else 2, 10):
            a('s_mov_b32 s%d, s%d' % (TW2 + n, sC2))
            R(step(sC2, 32768, 14 * 32768))
        for n in range(14):
            a('s_mov_b32 s%d, s%d' % (TAC + n, sC5))
            R(step(sC5, 2048, 14 * 2048))
    def w2_read(q, h, a_, rho):
        n, region = 2 * q + h, REG[q]
        base, off = (vW2, region) if region < R1 else ((vW2c, region - R1) if region < R2 else (vW2 + 2, region - R2))
        return ['ds_read_b64_tr_b16 %s, %s offset:%d' % (ac(w2reg(2 * n + a_, rho) + 2 * t, 2), v(base + rho),
                                                        off + h * 4096 + a_ * 1024 + t * 256) for t in range(2)]
    def w2_park(q):
        return [x for h in range(2) for a_ in range(2) for rho in range(2) for x in w2_read(q, h, a_, rho)] + [Mark('park%d' % q)]

    vBD2 = vXR
    PLAN = dict(Wa=['o0'], Wb1=['o1', 'o2'], Wb2=['o3', 'p0'], Wb3=[], Wc=[], Wd0=['g0', 'g1'], Wd=['g2', 'g3'], We=['g4', 'g5'],
                Wf0=['g6', 'g7'], Wf=['p1'])
    PLAN.update(cfg.get('plan', {}))
    ORDER = ['Wa', 'Wb1', 'Wb2', 'Wb3', 'Wc', 'Wd0', 'Wd', 'We', 'Wf0', 'Wf']
    where = {g: ORDER.index(w) for w in ORDER for g in PLAN[w]}
    LATE2 = 'p2' not in where
    assert sorted(where) == sorted(['o%d' % i for i in range(4)] + ['g%d' % i for i in range(8)] + ['p0', 'p1'] + ([] if LATE2 else ['p2']))
    assert all(where['o%d' % i] <= 4 for i in range(4)) and 1 <= where['p0'] <= 3
    assert all(where['g%d' % i] >= 4 for i in (0, 1)) and all(where['g%d' % i] >= 5 for i in (2, 3))
    assert all(where['g%d' % i] >= 7 for i in range(4, 8))
    assert (where['p1'] == 9) if LATE2 else (where['p1'] in (6, 7) and where['p2'] == 9)
    def window(w):
        o = []
        for g in PLAN[w]:
            o += {'o': dma_wo, 'g': dma_w1, 'p': w2_dma}[g[0]](int(g[1]))
            o.append(Mark(g))
        return o
    def landed(w):
        return sum(1 for i in range(8) if where['g%d' % i] <= ORDER.index(w))
    cs1 = vS + 6
    vW1 = vS + 10
    def w1_reads(k0, k1):
        o = []
        for ks in range(k0, k1):
            T, a_ = ks >> 1, ks & 1
            for t in range(2):
                off = (4 * T + a_) * 2048 + t * 256
                o.append('ds_read_b64_tr_b16 %s, %s offset:%d' % (v(X + 4 * ks + 2 * t, 2), v(vW1 + (off >> 16)), off & 0xffff))
        return o
    def w1_dots(k0, k1):
        return ['v_dot2_f32_bf16 %s, %s, s%d, %s' % (v(cs1 + (r_ & 1)), v(X + r_), sONES, '0' if r_ < 2 else v(cs1 + (r_ & 1)))
                for r_ in range(4 * k0, 4 * k1)]

    a('v_mul_f32 %s, 0x%x, %s' % (v(cexp), LOG2E, v(rstd)))
    a('v_mul_f32 %s, 0x%x, %s' % (v(ncexp), LOG2E | 0x80000000, v(rstd)))
    for i in range(8):
        a('v_cvt_pk_bf16_f32 %s, %s, %s' % (v(vWB + i), v(aK + 2 * i), v(aK + 2 * i + 1)))
    R(mfma32(v(aK, 16), ac(PA1, 4), v(vWB, 4), '0'))
    R(mfma32(v(aK, 16), ac(PA2, 4), v(vWB + 4, 4), v(aK, 16)))
    for i in range(16):
        a('v_mul_f32 %s, %s, %s' % (v(aV + i), v(aV + i), v(rstd)))
    for i in range(8):
        a('v_cvt_pk_bf16_f32 %s, %s, %s' % (v(aQ + i), v(aV + 2 * i), v(aV + 2 * i + 1)))
    for g in range(4):
        R('ds_write_b64 %s, %s offset:%d' % (v(vA + g), v(aQ + 2 * g, 2), L_V))
    a.stamp('phik', 2)
    sm = softmax_ops(aK, vWB, aV, cexp, aQ + 8)
    R(sm[:34])
    R(merge(sm[34:66], window('Wa')))
    R(sm[66:-16])
    for q in range(2):
        R('ds_write_b128 %s, %s offset:%d' % (v(vA + 4 + q), v(aV + 4 * q, 4), L_PHI))
    R(sm[-16:])
    for q in range(2, 4):
        R('ds_write_b128 %s, %s offset:%d' % (v(vA + 4 + q), v(aV + 4 * q, 4), L_PHI))
    vKV = vXR
    R([a.unstash('kvphi', vKV), a.unstash('kvv', vKV + 2), 'v_xor_b32 %s, 32, %s' % (v(vKV + 1), v(vKV)),
       'v_xor_b32 %s, 32, %s' % (v(vKV + 3), v(vKV + 2))])
    for i in range(4):
        a('v_mov_b32 %s, s%d' % (v(aQ + 12 + i), sONES))
    a('s_waitcnt lgkmcnt(0)')
    a('s_barrier')
    a.stamp('B1')
    for s in range(4):
        R('ds_read_b64_tr_b16 %s, %s offset:%d' % (v(vWB + 8 * s, 2), v(vKV), L_PHI + 2048 * s))
        R('ds_read_b64_tr_b16 %s, %s offset:%d' % (v(vWB + 8 * s + 2, 2), v(vKV + 1), L_PHI + 2048 * s + 256))
        R('ds_read_b64_tr_b16 %s, %s offset:%d' % (v(vWB + 8 * s + 4, 2), v(vKV + 2), L_V + 2048 * s))
        R('ds_read_b64_tr_b16 %s, %s offset:%d' % (v(vWB + 8 * s + 6, 2), v(vKV + 3), L_V + 2048 * s + 256))
    vDB = vA + 2
    R('buffer_load_dword %s, %s, %s, 0 offen sc1' % (v(vDB), v(vL4), sr(S_DBG)))
    a('v_lshlrev_b32 %s, 3, v0' % v(vA))
    R(a.unstash('zst', vA + 1))
    for s in range(4):
        R(mfma16(v(aK, 4), v(vWB + 8 * s, 4), v(vWB + 8 * s + 4, 4), '0' if s == 0 else v(aK, 4)))
        R(mfma16(v(aK + 4, 4), v(vWB + 8 * s, 4), v(aQ + 12, 4), '0' if s == 0 else v(aK + 4, 4)))
    for p in range(4):
        a('v_add_u32 %s, %d, %s' % (v(vWR + p), L_WQ, v(vWR + p)))
    R(blk_regs('bd2', vBD2))
    a('v_cvt_pk_bf16_f32 %s, %s, %s' % (v(aQ), v(aK), v(aK + 1)))
    a('v_cvt_pk_bf16_f32 %s, %s, %s' % (v(aQ + 1), v(aK + 2), v(aK + 3)))
    R('buffer_store_dwordx2 %s, %s, %s, s%d offen sc1' % (v(aQ, 2), v(vA), sr(S_WS), sREC))
    a('s_mov_b32 exec_lo, 0x00010001')
    a('s_mov_b32 exec_hi, 0x00010001')
    R('buffer_store_dwordx4 %s, %s, %s, s%d offen offset:2048 sc1' % (v(aK + 4, 4), v(vA + 1), sr(S_WS), sREC))
    R(Mark('kv'))
    a('s_mov_b64 exec, -1')
    a.stamp('kvst', 2)

    R(WaitVM('wq'))
    a('s_barrier')
    a.stamp('Bq', 2)
    def qoff(s):
        return (s >> 1) * 8192 + (s & 1) * 1024
    order = [(s, p) for p in range(4) for s in range(8)]
    def qreg(n):
        return (lambda o, k: v(vWB + 4 * n + o, k)) if n < 8 else (lambda o, k: ac(4 * (n - 8) + o, k))
    def qread(n):
        s, p = order[n]
        return ['ds_read_b64_tr_b16 %s, %s offset:%d' % (qreg(n)(2 * t, 2), v(vWR + p), qoff(s) + t * 256) for t in range(2)] + [Mark('q%d' % n)]
    for n in range(12):
        R(qread(n))
    a('v_mov_b32 %s, 0' % v(vT + 1))
    R(WaitDS('q7'))
    for r_ in range(32):
        d = csq if r_ & 1 else vT + 1
        a('v_dot2_f32_bf16 %s, %s, s%d, %s' % (v(d), v(vWB + r_), sONES, v(d)))
    a('v_lshlrev_b32 %s, 2, v0' % v(vT))
    a('v_add_f32 %s, %s, %s' % (v(csq), v(csq), v(vT + 1)))
    R('ds_write_b32 %s, %s offset:%d' % (v(vT), v(csq), L_CSQ))
    a.stamp('qdot', 2)
    qm, qp = [], []
    for n in range(32):
        s, p = order[n]
        g = []
        if n >= 8 and n % 4 == 0:
            g.append(WaitDS('q%d' % (n + 3)))
        g.append(mfma32(v(aQ, 16), qreg(n)(0, 4), v(X + (4 * s + p) * 4, 4), '0' if n == 0 else v(aQ, 16)))
        qm.append(g)
        qp.append(qread(n + 12) if n + 12 < 32 else [])
    n1 = cfg.get('q1', 12)
    a.fill(qm[:n1], window('Wb1') + ['v_lshlrev_b32 %s, 11, %s' % (v(vT), v(vL))], post=qp[:n1])
    a.stamp('q1', 2)
    R(WaitVM('kv'))
    a.stamp('kvack', 2)
    check_done(None, 16, vDB, 0)
    a('s_waitcnt lgkmcnt(0)')
    a('s_barrier')
    push_flags(sFA, 0, vT)
    lab = a.uniq('L_noid')
    a('s_cmp_lg_u32 s%d, 0' % sW)
    a('s_cbranch_scc1 %s' % lab)
    a('s_getreg_b32 s%d, hwreg(HW_REG_XCC_ID, 0, 4)' % sXID)
    a('s_add_u32 s%d, s%d, 1' % (sXID, sXID))
    a('s_add_u32 s%d, s%d, %d' % (sT5, sFME, 5 * 32768))
    a('v_mov_b32 %s, s%d' % (v(vT + 3), sXID))
    a('s_mov_b64 exec, 1')
    a('buffer_store_dword %s, %s, %s, s%d offen sc1' % (v(vT + 3), v(vL4), sr(S_WS), sT5))
    a('s_mov_b64 exec, -1')
    a.label(lab)
    a.stamp('pushA')
    qx = ['ds_read_b32 %s, %s offset:%d' % (v(vA + 4 + w), v(vL4), L_CSQ + 256 * w) for w in range(4)]
    qy = ['v_add_f32 %s, %s, %s' % (v(vA + 4), v(vA + 4), v(vA + 5)),
          'v_add_f32 %s, %s, %s' % (v(vA + 6), v(vA + 6), v(vA + 7)),
          'v_add_f32 %s, %s, %s' % (v(csq), v(vA + 4), v(vA + 6))] + a_ext(vA + 4, csq, vT + 1)
    a.fill(qm[n1:], qx + merge(window('Wb2'), qy), post=qp[n1:])
    R(mfma32(v(aQ, 16), v(vA + 4, 4), v(vBX, 4), v(aQ, 16)))
    XR = vWB + 24
    R([a.unstash('w2', vW2), 'v_xor_b32 %s, 512, %s' % (v(vW2 + 1), v(vW2)),
       'v_add_u32 %s, %d, %s' % (v(vW2 + 2), R2, v(vW2)), 'v_add_u32 %s, %d, %s' % (v(vW2 + 3), R2, v(vW2 + 1))])
    R(a.unstash('bd1', vB1))
    for q in range(1, 4):
        a('v_add_u32 %s, %d, %s' % (v(vB1 + q), (q >> 1) * 8 * 3584 + (q & 1) * 128 - 1024 * q, v(vB1)))
    R(window('Wb3'))
    a.stamp('qgemm', 2)
    for i in range(8):
        a('v_cvt_pk_bf16_f32 %s, %s, %s' % (v(vWB + i), v(aQ + 2 * i), v(aQ + 2 * i + 1)))
    R(mfma32(v(aK, 16), ac(PA1, 4), v(vWB, 4), '0'))
    R(mfma32(v(aK, 16), ac(PA2, 4), v(vWB + 4, 4), v(aK, 16)))
    R([a.unstash('gld', vA), a.unstash('zld', vA + 1), a.unstash('kbw', vA + 2), a.unstash('kbz', vA + 3), a.unstash('kbr', vA + 4),
       'v_lshlrev_b32 %s, 7, %s' % (v(vL128), v(vL))])
    PQ = aQ
    sm = softmax_ops(aK, vWB, PQ, cexp, aV)
    for q in range(4):
        sm.append('v_permlane32_swap_b32 %s, %s' % (v(PQ + q), v(PQ + 4 + q)))
        sm.append('v_permlane32_swap_b32 %s, %s' % (v(PQ + 8 + q), v(PQ + 12 + q)))
    ns = cfg.get('smpre', 0)
    R(sm[:ns])
    a.stamp('qsm', 2)

    poll(0, 16)
    a('s_barrier')
    a.stamp('gotA')
    G = X + 64
    GZ = X + 96
    gl = []
    for p in range(8):
        g = ['buffer_load_dwordx4 %s, %s, %s, s%d offen sc1' % (v(G + 4 * p, 4), v(vA), sr(S_WS), sGAT)]
        if p == 0:
            g.append('buffer_load_dwordx4 %s, %s, %s, s%d offen offset:2048 sc1' % (v(GZ, 4), v(vA + 1), sr(S_WS), sGAT))
        if p < 7:
            g.append('s_add_u32 s%d, s%d, %d' % (sGAT, sGAT, 2 * KVREC))
        if p % 2 == 1:
            g.append(Mark('g%d' % (p // 2)))
        gl.append(g)
    ng = cfg.get('gfirst', 8)
    R(gl[:ng])
    a.stamp('gl', 2)
    R(WaitVM('p0'))
    R(w2_park(0))
    a.stamp('park0', 2)
    e0 = max(ns, cfg.get('gsplit', 66))
    R(sm[ns:e0])
    R(gl[ng:])
    vID = vS + 1
    R(check_issue(5, vID, 0))
    lab = a.uniq('L_nowf')
    a('s_cmp_lg_u32 s%d, 1' % sW)
    a('s_cbranch_scc1 %s' % lab)
    a('v_lshlrev_b32 %s, 15, %s' % (v(vID), v(vL)))
    a('s_mov_b64 exec, 0x1e')
    a('buffer_load_dword %s, %s, %s, s%d offen sc1' % (v(vID), v(vID), sr(S_WS), sFB))
    a('s_mov_b64 exec, -1')
    a.label(lab)
    R(window('Wc'))
    a.stamp('gl2', 2)
    R(sm[e0:])
    a.stamp('sm2', 2)
    R([a.unstash('xd', vT), 'v_add_u32 %s, %d, %s' % (v(vT + 1), 16384 - 1024, v(vT)),
       's_add_u32 m0, s%d, %d' % (sLW2, R2 + 4096),
       'buffer_load_dwordx4 %s, %s, s%d offen lds' % (v(vT), sr(S_X), sOUT),
       'buffer_load_dwordx4 %s, %s, s%d offen offset:1024 lds' % (v(vT + 1), sr(S_X), sOUT), Mark('xr')])
    a.stamp('qsm2', 2)
    for sh in (1, 2, 4, 8):
        for i in range(4):
            a('v_add_f32_dpp %s, %s, %s row_ror:%d row_mask:0xf bank_mask:0xf' % (v(GZ + i), v(GZ + i), v(GZ + i), sh))
    a('v_cvt_pk_bf16_f32 %s, %s, %s' % (v(aK + 6), v(GZ), v(GZ + 1)))
    a('v_cvt_pk_bf16_f32 %s, %s, %s' % (v(aK + 7), v(GZ + 2), v(GZ + 3)))
    R('ds_write_b64 %s, %s offset:%d' % (v(vA + 3), v(aK + 6, 2), 16 * 80))
    S8 = aK + 8
    for p in range(8):
        if p % 2 == 0:
            R(WaitVM('g%d' % (p // 2)))
        for i in range(8):
            a('v_dot2_f32_bf16 %s, %s, s%d, %s' % (v(S8 + i), v(G + 4 * p + (i >> 1)), sSEL1 if i & 1 else sSEL0,
                                                  '0' if p == 0 else v(S8 + i)))
    for i in range(4):
        a('v_permlane32_swap_b32 %s, %s' % (v(S8 + i), v(S8 + 4 + i)))
    a('v_pk_add_f32 %s, %s, %s' % (v(aK, 2), v(S8, 2), v(S8 + 4, 2)))
    a('v_pk_add_f32 %s, %s, %s' % (v(aK + 2, 2), v(S8 + 2, 2), v(S8 + 6, 2)))
    a('v_cvt_pk_bf16_f32 %s, %s, %s' % (v(aK + 4), v(aK), v(aK + 1)))
    a('v_cvt_pk_bf16_f32 %s, %s, %s' % (v(aK + 5), v(aK + 2), v(aK + 3)))
    a.stamp('gdot', 2)
    R('ds_write_b64 %s, %s' % (v(vA + 2), v(aK + 4, 2)))
    R(WaitVM('o3'))
    a('s_waitcnt lgkmcnt(0)')
    a('s_barrier')
    a.stamp('B4', 2)
    for h in range(2):
        for s in range(2):
            R('ds_read_b128 %s, %s offset:%d' % (v(vWB + (h * 2 + s) * 4, 4), v(vA + 4), h * 17 * 80 + s * 32))
    for h in range(2):
        acc = v(aK if h == 0 else aV, 16)
        R(mfma32(acc, v(vWB + h * 8, 4), v(PQ + 4 * h, 4), '0'))
        R(mfma32(acc, v(vWB + h * 8 + 4, 4), v(PQ + 8 + 4 * h, 4), acc))
    for h in range(2):
        acc = aK if h == 0 else aV
        a('v_add_f32 %s, 0x358637bd, %s' % (v(acc + 8), v(acc + 8)))
        a('v_rcp_f32 %s, %s' % (v(acc + 8), v(acc + 8)))
        for i in range(8):
            a('v_mul_f32 %s, %s, %s' % (v(acc + i), v(acc + i), v(acc + 8)))
        for i in range(4):
            a('v_cvt_pk_bf16_f32 %s, %s, %s' % (v(acc + 12 + i), v(acc + 2 * i), v(acc + 2 * i + 1)))
        R('buffer_store_dwordx4 %s, %s, %s, s%d offen offset:%d %s' % (v(acc + 12, 4), v(vFR), sr(S_WS), sOST, h * 1024, SC))
    R(Mark('o'))
    a.stamp('ost', 2)
    vWO = vXD
    R([a.unstash('wo', vWO), 'v_xor_b32 %s, 512, %s' % (v(vWO + 1), v(vWO))])
    R([a.unstash('w1', vW1), 'v_add_u32 %s, 65536, %s' % (v(vW1 + 1), v(vW1)), a.unstash('xr', vT)])
    R([a.unstash('red3', vA), 'v_xor_b32 %s, 16384, %s' % (v(vA + 1), v(vA))])
    wop = []
    for s in range(16):
        for rho in range(2):
            for t in range(2):
                wop.append('ds_read_b64_tr_b16 %s, %s offset:%d' % (ac((s * 2 + rho) * 4 + 2 * t, 2), v(vWO + rho), s * 2048 + t * 256))
    R(merge(wop, window('Wd0')))
    check_done(5, 16, vID, 0)
    R(WaitVM('o'))
    a('s_barrier')
    arrive(1)
    a.stamp('pushB')
    R(['ds_read_b128 %s, %s' % (v(XR, 4), v(vT)), 'ds_read_b128 %s, %s offset:16' % (v(XR + 4, 4), v(vT))])
    k1 = 4 * landed('Wc')
    R(merge(w1_reads(0, k1), window('Wd')))
    R(Mark('Wd'))
    for i in range(8):
        a('v_lshlrev_b32 %s, 16, %s' % (v(aQ + 2 * i), v(XR + i)))
        a('v_and_b32 %s, 0xffff0000, %s' % (v(aQ + 2 * i + 1), v(XR + i)))
    a.stamp('wopark', 2)

    poll(1, 16)
    R(WaitVM('Wd'))
    a('s_waitcnt lgkmcnt(0)')
    a('s_barrier')
    a.stamp('gotB')
    OB = X + 64
    ol = []
    for s in range(16):
        g = []
        if s % 4 == 0:
            g += ['s_add_u32 s%d, s%d, s%d' % (sT2, sR3, sOLD)] + step(sR3, 4096, 16384)
        g.append('buffer_load_dwordx4 %s, %s, %s, s%d offen offset:%d %s' % (v(OB + 4 * s, 4), v(vFR), sr(S_WS), sT2, (s % 4) * 1024, SC))
        ol.append(g)
    no = cfg.get('ofirst', 10)
    R(ol[:no])
    a.stamp('old', 2)
    pm = []
    for s in range(16):
        for rho in range(2):
            acc = v(aK if rho == 0 else aV, 16)
            pm.append([mfma32(acc, ac((s * 2 + rho) * 4, 4), v(OB + 4 * s, 4), '0' if s == 0 else acc)])
    k2 = min(16, 4 * landed('Wd'))
    R(w1_reads(k1, k2))
    if where['p1'] == 6:
        R(w2_park(1))
    a.stamp('park1', 2)
    post = [[] for _ in pm]
    for k, g in enumerate(ol[no:]):
        post[2 * k] = g
    if where['p1'] != 7:
        a.fill(pm, window('We'), cfg.get('wefirst', 14), post=post)
    else:
        a.fill(pm, window('We') + [WaitVM('p1')] + w2_park(1), 14, post=post)
    a.stamp('p3mf', 2)
    for q in range(4):
        R('ds_write_b128 %s, %s offset:%d' % (v(vA), v(aV + 4 * q, 4), q * 1024))
    for i in range(0, 16, 2):
        a('v_pk_add_f32 %s, %s, %s' % (v(aK + i, 2), v(aK + i, 2), v(aQ + i, 2)))
    a('s_waitcnt lgkmcnt(0)')
    a('s_barrier')
    for q in range(4):
        R('ds_read_b128 %s, %s offset:%d' % (v(aV + 4 * q, 4), v(vA + 1), q * 1024))
    HP = vA
    for half in range(2):
        for i in range(8 * half, 8 * half + 8, 2):
            a('v_pk_add_f32 %s, %s, %s' % (v(aK + i, 2), v(aK + i, 2), v(aV + i, 2)))
        for i in range(8 * half, 8 * half + 8, 2):
            a('v_cvt_pk_bf16_f32 %s, %s, %s' % (v(HP + i // 2), v(aK + i), v(aK + i + 1)))
        R('buffer_store_dwordx4 %s, %s, %s, s%d offen offset:%d %s' % (v(HP + 4 * half, 4), v(vFR), sr(S_WS), sHST, half * 1024, SC))
    for i in range(8):
        a('v_dot2_f32_bf16 %s, %s, s%d, %s' % (v(vT), v(HP + i), sONES, '0' if i == 0 else v(vT)))
        a('v_dot2_f32_bf16 %s, %s, %s, %s' % (v(vT + 1), v(HP + i), v(HP + i), '0' if i == 0 else v(vT + 1)))
    a('v_permlane32_swap_b32 %s, %s' % (v(vT), v(vT + 1)))
    a('v_add_f32 %s, %s, %s' % (v(vT), v(vT), v(vT + 1)))
    R('buffer_store_dword %s, %s, %s, s%d offen %s' % (v(vT), v(vL4), sr(S_WS), sSST, SC))
    R(Mark('h'))
    a.stamp('hst', 2)
    R(a.unstash('bias', vT + 2))
    R('buffer_load_ushort %s, %s, %s, 0 offen' % (v(vS + 12), v(vT + 2), sr(S_B1)))
    R(window('Wf0'))
    R(w1_dots(0, k2))
    R(['v_add_u32 %s, %d, %s' % (v(vW2c), R1, v(vW2)), 'v_add_u32 %s, %d, %s' % (v(vW2c + 1), R1, v(vW2 + 1))])
    R(WaitVM('h'))
    if cfg.get('rbh', 0):
        R(readback(sHST, 16, vRB, sSST))
    a('s_barrier')
    arrive(2)
    a.stamp('pushC')
    R(window('Wf'))
    vAL = vXD + 2
    a('v_add_u32 %s, s%d, %s' % (v(vAL), sALD, v(vFR)))
    a('v_add_u32 %s, %d, %s' % (v(vAL + 1), 2 * 112 * 1024, v(vAL)))
    vHR = vWR + 2
    a('v_mov_b32 %s, %s' % (v(vHR), v(vFR)))
    a('v_add_u32 %s, 65536, %s' % (v(vHR + 1), v(vFR)))
    a('s_lshl_b32 s%d, s%d, 10' % (sT2, sW))
    a('v_add_u32 %s, s%d, %s' % (v(vWR), sT2, v(vHR + 1)))
    BX4 = vWB + 24
    AXR = vWB + 28
    a('v_mov_b32 %s, 0' % v(BX4 + 3))
    a('s_cmp_ge_u32 s%d, 14' % sJ)
    a('s_cbranch_scc1 L_idle')
    k3 = min(cfg.get('k3', 16), 4 * landed('We'))
    R(w1_reads(k2, k3))
    R(w1_dots(k2, k3))
    sx(sT2, [(sJ, 80 * 128), (sW, 20 * 128)])
    sx(sT3, [(sI, 4 << 15)], H_)
    a('v_lshlrev_b32 %s, 7, %s' % (v(vT + 1), v(vL)))
    a('v_add_u32 %s, s%d, %s' % (v(vT + 1), sT2, v(vT + 1)))
    a('v_min_u32 %s, %d, %s' % (v(vT + 1), 131072 - 128, v(vT + 1)))
    a.stamp('w1park', 2)

    poll(2, 16)
    R(WaitVM('g7'))
    a('s_waitcnt lgkmcnt(0)')
    a('s_barrier')
    a.stamp('gotC')
    def h_dma(tau, half):
        sb = sHL1 if half else sHL0
        return ['s_add_u32 m0, s%d, %d' % (sLW1, tau * 32768 + half * 16384)] + [
            'buffer_load_dwordx4 %s, %s, s%d offen offset:%d %s lds' % (v(vFR), sr(S_WS), sb, b * 1024, SC) for b in range(4)
        ] + ['s_add_u32 s%d, s%d, 32768' % (sb, sb), Mark('h%d%d' % (tau, half))]
    R(h_dma(0, 0))
    R(h_dma(0, 1))
    SB = aQ
    L_ST = L_BX + 8192
    st_dma = ['s_add_u32 m0, s%d, %d' % (sLW1, L_ST)] + [
        'buffer_load_dwordx4 %s, %s, s%d offen offset:%d %s lds' % (v(vFR), sr(S_WS), sSLD, b * 1024, SC) for b in range(4)] + [Mark('st')]
    st_reads = [WaitVM('st')] + ['ds_read_b32 %s, %s offset:%d' % (v(SB + ct), v(vWR + 1), ct * 256) for ct in range(16)]
    a('s_add_u32 s%d, s%d, %d' % (sT2, sLW1, L_ST))
    a('v_add_u32 %s, s%d, %s' % (v(vWR + 1), sT2, v(vL4)))
    if cfg.get('touchh', 0):
        a('s_mov_b64 exec, 0xfffff')
        R('buffer_load_dword %s, %s, %s, s%d offen %s' % (v(vT + 2), v(vT + 1), sr(S_WS), sT3, SC))
        a('s_mov_b64 exec, -1')
    R(w1_reads(k3, 32))
    tables()
    kd1, kd2 = cfg.get('dots', [20, 26])
    R(w1_dots(k3, kd1))
    aext = ['v_add_f32 %s, %s, %s' % (v(AXR + 3), v(cs1), v(cs1 + 1))] + split_hl(AXR + 3, vT + 1, vT, AXR) + [
        'v_cvt_pk_bf16_f32 %s, %s, 0' % (v(AXR + 1), v(vT)),
        'v_lshl_or_b32 %s, %s, 16, %s' % (v(AXR + 1), v(vS + 12), v(AXR + 1)),
        'v_mov_b32 %s, %s' % (v(AXR + 2), v(vS + 12)), 'v_mov_b32 %s, 0' % v(AXR + 3)]
    a('s_waitcnt lgkmcnt(0)')
    a.stamp('w1b', 2)
    BXA = A_STASH
    vCK = vS + 1
    NR, LA = 12, 8
    def bread(n):
        tau, ks = n >> 5, n & 31
        off = tau * 32768 + ks * 1024
        return ['ds_read_b128 %s, %s offset:%d' % (ac(4 * (n % NR), 4), v(vHR + (off >> 16)), off & 0xffff), Mark('b%d' % n)]
    stats = []
    for i in range(8):
        stats.append('v_add_f32 %s, %s, %s' % (v(SB + i), v(SB + i), v(SB + 8 + i)))
    for i in range(4):
        stats.append('v_add_f32 %s, %s, %s' % (v(SB + i), v(SB + i), v(SB + 4 + i)))
    stats += ['v_add_f32 %s, %s, %s' % (v(SB), v(SB), v(SB + 2)), 'v_add_f32 %s, %s, %s' % (v(SB + 1), v(SB + 1), v(SB + 3)),
              'v_add_f32 %s, %s, %s' % (v(SB), v(SB), v(SB + 1)), 'v_mov_b32 %s, %s' % (v(SB + 1), v(SB)),
              'v_permlane32_swap_b32 %s, %s' % (v(SB), v(SB + 1))]
    stats += ln_ops(SB, SB + 1, SB + 2, SB + 15)
    stats += ['v_mul_f32 %s, %s, %s' % (v(SB + 4), v(SB + 1), v(SB + 15)), 'v_sub_f32 %s, 0, %s' % (v(SB + 2), v(SB + 2))]
    stats += split_hl(SB + 2, SB + 5, SB + 6, SB + 3) + split_hl(SB + 4, SB + 7, SB + 8, SB + 3)
    stats += ['v_cvt_pk_bf16_f32 %s, %s, %s' % (v(SB + 12), v(SB + 5), v(SB + 6)),
              'v_cvt_pk_bf16_f32 %s, %s, %s' % (v(SB + 13), v(SB + 5), v(SB + 7)),
              'v_cvt_pk_bf16_f32 %s, %s, 0' % (v(SB + 14), v(SB + 8)),
              'v_mul_f32 %s, 0x%x, %s' % (v(SB + 15), LOG2E, v(SB + 15)),
              'ds_write_b128 %s, %s offset:%d' % (v(vWR), v(SB + 12, 4), L_BX - 65536)]

    ACCS = [aK, aV, vWB + 8]
    PKS = [aQ, aQ + 8]
    T = lambda e: v(vWB + e % 4)
    Y = lambda e: v(ACCS[(e >> 4) % 3] + (e & 15))
    C1 = lambda e: v(vS + 12 + ((e >> 4) & 1))
    def elem_ops(m):
        E, o = m >> 1, []
        ok = lambda e: 0 <= e < 64
        if m % 2 == 0:
            if ok(E):
                o.append('v_mul_f32 %s, %s, %s' % (Y(E), Y(E), C1(E)))
            if ok(E - 1):
                o.append('v_fma_f32 %s, %s, s%d, s%d' % (T(E - 1), T(E - 1), sRS, sRS))
            if ok(E):
                o.append('v_exp_f32 %s, %s' % (T(E), Y(E)))
        else:
            if ok(E - 1):
                o.append('v_fma_f32 %s, %s, %s, 0.5' % (T(E - 1), T(E - 1), T(E - 1)))
            if ok(E - 2):
                o.append('v_fma_f32 %s, -%s, %s, %s' % (Y(E - 2), T(E - 2), Y(E - 2), Y(E - 2)))
            if ok(E - 1):
                o.append('v_rcp_f32 %s, %s' % (T(E - 1), T(E - 1)))
            if ok(E - 2) and E & 1:
                e = E - 2
                o.append('v_cvt_pk_bf16_f32 %s, %s, %s' % (v(PKS[(e >> 4) & 1] + (e & 15) // 2), Y(e - 1), Y(e)))
        return o
    def act_store(tau):
        return ['buffer_store_dwordx4 %s, %s, %s, s%d offen offset:%d %s' % (v(PKS[tau & 1] + 4 * h, 4), v(vFR), sr(S_WS), sAST, h * 1024, SC)
                for h in range(2)] + ['s_add_u32 s%d, s%d, %d' % (sAST, sAST, 112 * 1024), Mark('act%d' % tau)]
    def ext_regs(tau):
        return ['v_accvgpr_read_b32 %s, %s' % (v(BX4 + i), ac(BXA + 4 * tau + i)) for i in range(3)] + [
            'v_accvgpr_read_b32 %s, %s' % (C1(16 * tau), ac(BXA + 4 * tau + 3))]
    bx_reads = ['ds_read_b128 %s, %s offset:%d' % (ac(BXA + 4 * t_, 4), v(vHR + 1), L_BX - 65536 + t_ * 1024) for t_ in range(4)]

    bars = {10: 'h01', 26: 'h11', 58: 'h21', 90: 'h31'}
    lim = lambda n: 16 if n < 10 else (32 if n < 26 else (64 if n < 58 else (96 if n < 90 else 128)))
    M0 = 36
    def paced(items):
        out, cur = [], []
        for x in items:
            if isinstance(x, str) and x.startswith('buffer_'):
                out.append(cur + [x])
                cur = []
            elif isinstance(x, str) and 'm0' in x:
                cur.append(x)
            else:
                out[-1].append(x)
        return out
    at_mem, at_val = {}, {}
    kd = cfg.get('pushd', 128)
    busy = [-1]
    def place(n0, items, every=2):
        assert n0 > busy[0], (n0, busy)
        for k, g in enumerate(paced(items)):
            busy[0] = n0 + int(k * every)
            at_mem.setdefault(busy[0], []).extend(g)
    P = dict(h1=[0, 2], h2=[16, 1.5], p3=[28, 1], p4=[36, 2], h3=[58, 2], p5=[76, 2], p6=[92, 1.5])
    if LATE2:
        P = dict(h1=[6, 2], h2=[24, 2], p2=[40, 2], h3=[58, 2], p4=[74, 1.75], p5=[88, 2], p3=[106, 1.25], p6=[116, 1.25])
    P.update(cfg.get('p4plan', {}))
    assert P['p4'][0] >= 26 and P['h3'][0] >= 58 and P['p5'][0] >= 58 and P['p6'][0] >= 90
    place(0, st_dma, 1.5)
    ns_ = cfg.get('stn', 14)
    for k in range(4):
        at_mem.setdefault(ns_ + k // 2, []).extend(st_reads[4 * k + (1 if k else 0):4 * k + 5])
    pk = w2_park(1 if LATE2 else 2)
    for k in range(8):
        at_mem.setdefault(k, []).extend(pk[2 * k:2 * k + 2] + ([pk[16]] if k == 7 else []))
    if LATE2:
        assert P['p2'][0] > 10
        n2 = cfg.get('park2', 66)
        pk = w2_park(2)
        at_mem.setdefault(n2, []).append(WaitVM('w2_2'))
        for k in range(16):
            at_mem.setdefault(n2 + 1 + 2 * k, []).extend([pk[k]] + ([pk[16]] if k == 15 else []))
        assert P['p3'][0] >= n2 + 36
        at_mem.setdefault(P['p3'][0] - 1, []).append(WaitDS('park2'))
    else:
        assert P['p3'][0] > 10
    for name in sorted(P, key=lambda z: P[z][0]):
        t_ = int(name[1])
        place(P[name][0], h_dma(t_, 0) + h_dma(t_, 1) if name[0] == 'h' else w2_dma(t_), P[name][1])
    at_mem.setdefault(27, []).extend(bx_reads)
    ks0 = cfg.get('st0', M0 + 38)
    assert ks0 >= M0 + 36
    at_mem.setdefault(ks0, []).extend(act_store(0))
    at_mem.setdefault(M0 + 68, []).extend(act_store(1))
    nsp = 25 - (ns_ + 3)
    per = (len(stats) + nsp - 1) // nsp
    for k in range(nsp):
        at_val.setdefault(ns_ + 3 + k, []).extend(stats[k * per:(k + 1) * per])
    at_val.setdefault(26, []).extend(aext[:4])
    at_val.setdefault(27, []).extend(aext[4:])
    for tau in range(4):
        er = ext_regs(tau)
        at_val.setdefault(32 * tau + 29, []).extend(er[:2])
        at_val.setdefault(32 * tau + 30, []).extend(er[2:3])
        at_val.setdefault(32 * tau + 31, []).extend(er[3:])
    R(WaitVM('h00'))
    a('s_barrier')
    a.stamp('h00', 2)
    for n in range(LA):
        R(bread(n))
    nxt = LA
    for n in range(128):
        tau, ks = n >> 5, n & 31
        acc = v(ACCS[tau % 3], 16)
        if n == 10:
            R(w1_dots(kd1, kd2))
        if n == 26:
            R(w1_dots(kd2, 32))
        if n in bars:
            R([WaitVM(bars[n]), 's_waitcnt lgkmcnt(0)', 's_barrier'])
            a.stamp('bar%d' % n, 2)
        if n == kd:
            R(WaitVM('act1'))
            a('s_barrier')
            arrive(3)
            a.stamp('pushD', 2)
        if n % 4 == 0 and n not in bars:
            R(WaitDS('b%d' % min(n + 3, nxt - 1)))
        R(mfma32(acc, v(X + 4 * ks, 4), ac(4 * (n % NR), 4), '0' if ks == 0 else acc))
        if ks == 31:
            R(mfma32(acc, v(AXR, 4), v(BX4, 4), acc))
        mem = at_mem.pop(n, [])
        R([x for x in mem if isinstance(x, str) and 'm0,' in x])
        k = 0
        while nxt < min(n + LA + 2, lim(n + 1) if n + 1 not in bars else lim(n)) and k < 2:
            R(bread(nxt))
            nxt += 1
            k += 1
        R([x for x in mem if not (isinstance(x, str) and 'm0,' in x)])
        R(elem_ops(n - M0) if n >= M0 else [])
        R(at_val.pop(n, []))
        if ks == 31:
            a.stamp('t%d' % tau, 2)
    assert not at_mem and not at_val, (at_mem.keys(), at_val.keys())
    PRE = cfg.get('p5pre', 12)
    def bload(n):
        t, ks = n // 28, n % 28
        return ['buffer_load_dwordx4 %s, %s, %s, s%d offen offset:%d %s' % (
            v(X + 4 * (n % 32), 4), v(vAL + t), sr(S_WS), TAC + ks // 2, (ks % 2) * 1024, SC), Mark('a%d' % n)]
    tail = [x for m in range(128 - M0, 134) for x in elem_ops(m)]
    h0, h2, h1 = cfg.get('tail', [0, 24, 30])
    ev = {}
    def pd():
        R(WaitVM('act1'))
        a('s_barrier')
        arrive(3)
        a.stamp('pushD', 2)
    assert h1 >= sum(len(elem_ops(m)) for m in range(128 - M0, 100))
    if kd >= 128:
        ev.setdefault(h0, []).append(pd)
    ev.setdefault(h2, []).append(check_issue(3, vCK, 3))
    ev.setdefault(h1, []).append(act_store(2))
    for k in range(len(tail) + 1):
        R(ev.pop(k, []))
        if k < len(tail):
            R(tail[k])
    assert not ev
    R(act_store(3))
    a.stamp('mish', 2)
    check_done(3, 14, vCK, 3)
    a('s_barrier')
    a.stamp('gotD')
    for n in range(PRE):
        R(bload(n))
    R(WaitVM('act3'))
    a('s_barrier')
    arrive(4)
    a.stamp('pushE', 2)
    join = (a.vmn, a.dsn)
    a('s_branch L_p5')
    a.label('L_idle')
    saved = dict(a.marks)
    tables()
    a('s_waitcnt vmcnt(0)')
    a('s_barrier')
    if LATE2:
        R(w2_park(1))
        a('s_waitcnt lgkmcnt(0)')
        R(w2_dma(2))
        a('s_waitcnt vmcnt(0)')
    R(w2_park(2))
    a('s_waitcnt lgkmcnt(0)')
    for q in range(3, 7):
        R(w2_dma(q))
    poll(3, 14, 3)
    a('s_barrier')
    for n in range(PRE):
        R(bload(n))
    a.vmn, a.dsn = join
    a.marks = saved
    a.label('L_p5')

    ACC = 32
    def areads(ks):
        n, a_ = ks >> 1, ks & 1
        q, h = n >> 1, n & 1
        if q < 3:
            return []
        return w2_read(q, h, a_, 0) + w2_read(q, h, a_, 1)
    vRW, vRR, vOS = vWR, vS + 2, vS + 3
    pre = ['v_lshrrev_b32 %s, 5, %s' % (v(vT), v(vL)), 'v_lshlrev_b32 %s, 6, %s' % (v(vT), v(vT)),
           'v_xor_b32 %s, %s, %s' % (v(vT), v(vT), v(vFR)),
           's_mul_i32 s%d, s%d, %d' % (sT2, sKH, 4096 + 128), 's_add_u32 s%d, s%d, s%d' % (sT2, sT2, sLW2),
           'v_xor_b32 %s, s%d, %s' % (v(vRW), sT2, v(vT)), 'v_xor_b32 %s, 32, %s' % (v(vRW + 1), v(vRW)),
           'v_xor_b32 %s, %d, %s' % (v(vRW + 2), 4096 + 128, v(vRW)), 'v_xor_b32 %s, %d, %s' % (v(vRW + 3), 4096 + 128 + 32, v(vRW))]
    pre2 = ['s_lshl_b32 s%d, s%d, 3' % (sT2, sW), 'v_lshrrev_b32 %s, 3, %s' % (v(vT), v(vL)),
            'v_add_u32 %s, s%d, %s' % (v(vT), sT2, v(vT)),
            'v_and_b32 %s, 7, %s' % (v(vT + 1), v(vL)),
            'v_lshlrev_b32 %s, 4, %s' % (v(vOS), v(vT + 1)), 'v_lshl_add_u32 %s, %s, 10, %s' % (v(vOS), v(vT), v(vOS)),
            'v_lshlrev_b32 %s, 1, %s' % (v(vT + 2), v(vT + 1)), 'v_xor_b32 %s, %s, %s' % (v(vT), v(vT), v(vT + 2)),
            'v_lshlrev_b32 %s, 4, %s' % (v(vRR), v(vT)),
            'v_bfe_u32 %s, %s, 1, 1' % (v(vT + 2), v(vL)), 'v_lshl_add_u32 %s, %s, 9, %s' % (v(vRR), v(vT + 2), v(vRR)),
            'v_and_b32 %s, 1, %s' % (v(vT + 2), v(vL)), 'v_lshl_add_u32 %s, %s, 11, %s' % (v(vRR), v(vT + 2), v(vRR)),
            'v_bfe_u32 %s, %s, 2, 1' % (v(vT + 2), v(vL)), 'v_lshl_add_u32 %s, %s, 12, %s' % (v(vRR), v(vT + 2), v(vRR)),
            's_lshl_b32 s%d, s%d, 16' % (sT2, sTT), 's_lshl_b32 s%d, s%d, 6' % (sT3, sKH),
            's_add_u32 s%d, s%d, s%d' % (sT2, sT2, sT3), 's_sub_u32 s%d, s%d, s%d' % (sOUT, sOUT, sT2)]
    def red_writes(t):
        return ['ds_write_b128 %s, %s offset:%d' % (v(vRW + 2 * rc + (q >> 1)), v(ACC + 16 * (2 * t + rc) + 4 * q, 4), t * 32768 + q * 1024)
                for rc in (1, 0) for q in range(4)]
    HU = vWB + 16
    unpack = []
    for i in range(8):
        unpack.append('v_lshlrev_b32 %s, 16, %s' % (v(HU + 2 * i), v(HP + i)))
        unpack.append('v_and_b32 %s, 0xffff0000, %s' % (v(HU + 2 * i + 1), v(HP + i)))
    sM0, sM1 = sT0, sT1
    res0 = ['v_fma_f32 %s, %s, s%d, %s' % (v(ACC + i), v(HU + i), sM0, v(ACC + i)) for i in range(16)]
    res1 = ['v_mul_f32 %s, s%d, %s' % (v(ACC + 32 + i), sM1, v(HU + i)) for i in range(16)]
    def red_reads(t, dst):
        return ['ds_read_b128 %s, %s offset:%d' % (v(dst + 8 * src + 4 * e, 4), v(vRR), t * 32768 + src * 8192 + e * 1024)
                for src in range(4) for e in range(2)]
    def red_sum(t, dst):
        o = ['v_add_f32 %s, %s, %s' % (v(dst + i), v(dst + i), v(dst + 8 + i)) for i in range(8)]
        o += ['v_add_f32 %s, %s, %s' % (v(dst + 16 + i), v(dst + 16 + i), v(dst + 24 + i)) for i in range(8)]
        o += ['v_add_f32 %s, %s, %s' % (v(dst + i), v(dst + i), v(dst + 16 + i)) for i in range(8)]
        o += ['v_mul_f32 %s, s%d, %s' % (v(dst + i), sLN2, v(dst + i)) for i in range(8)]
        o += ['v_cvt_pk_bf16_f32 %s, %s, %s' % (v(dst + 8 + i), v(dst + 2 * i), v(dst + 2 * i + 1)) for i in range(4)]
        o += ['buffer_store_dwordx4 %s, %s, %s, s%d offen %s' % (v(dst + 8, 4), v(vOS), sr(S_OUT), sOUT, cfg.get('outf', ''))]
        if t == 0:
            o.append('s_add_u32 s%d, s%d, 65536' % (sOUT, sOUT))
        return o
    a('s_cmp_eq_u32 s%d, 0' % sTT)
    a('s_cselect_b32 s%d, 0x%x, 0' % (sM0, LOG2E))
    a('s_cselect_b32 s%d, 0, 0x%x' % (sM1, LOG2E))
    ALA = 3
    sched = {}
    def put(n0, items, per):
        for k in range(0, len(items), per):
            sched.setdefault(n0 + k // per, []).extend(items[k:k + per])
    put(1, pre, 5)
    put(3, unpack, 4)
    put(28, pre2, 7)
    rw = red_writes(0)
    put(30, rw[:4], 2)
    put(7, res1, 8)
    put(31, res0, 8)
    put(33, rw[4:], 2)
    put(38, red_reads(0, ACC), 4)
    put(41, red_sum(0, ACC), 8)
    order5 = [(n, rc) for n in range(56) for rc in range(2)]
    nl = cfg.get('lastsplit', 6)
    if nl:
        order5 = order5[:-2 * nl] + [(n, 1) for n in range(56 - nl, 56)] + [(n, 0) for n in range(56 - nl, 56)]
    rw1 = red_writes(1)
    for n in range(56):
        t, ks = n // 28, n % 28
        side = []
        if t == 0 and ks + ALA < 28:
            side += areads(ks + ALA)
        if n == 28 - PRE - 3:
            R(check_issue(4, vCK, 3))
        if n == 28 - PRE:
            check_done(4, 14, vCK, 3)
            a('s_barrier')
            a.stamp('gotE', 2)
        if n == 38:
            a('s_waitcnt lgkmcnt(0)')
            a('s_barrier')
        if n + PRE < 56:
            side += bload(n + PRE)
        side += sched.pop(n, [])
        mm = []
        for n_, rc in order5[2 * n:2 * n + 2]:
            t_, ks_ = n_ // 28, n_ % 28
            acc = v(ACC + 16 * (2 * t_ + rc), 16)
            mm.append([mfma32(acc, ac(w2reg(ks_, rc), 4), v(X + 4 * (n_ % 32), 4), '0' if (ks_ == 0 and (t_, rc) != (1, 0)) else acc)])
        if nl and n == 55:
            side += rw1[:4]
        a.fill(mm, side)
    assert not sched
    a.stamp('p5mf')
    R(rw1[4:] if nl else rw1)
    a('s_waitcnt lgkmcnt(0)')
    a('s_barrier')
    a.stamp('B12', 2)
    R(red_reads(1, ACC))
    R(red_sum(1, ACC))
    if cfg.get('stamps'):
        a('s_waitcnt vmcnt(0)')
        a.stamp('end')
        assert a.nstamp <= 64
        a('s_cmp_lg_u32 s%d, %d' % (sW, cfg.get('swave', 0)))
        a('s_cbranch_scc1 L_end')
        if 'dirty' in cfg:
            a('s_lshl_b32 s%d, s2, 16' % sT0)
            a('s_add_u32 s%d, s%d, 0x2000000' % (sT0, sT0))
            for n in range(cfg['dirty']):
                a('buffer_store_dwordx4 %s, %s, %s, s%d offen %s' % (v(X, 4), v(vFR), sr(S_WS), sT0, cfg.get('dirtyf', '')))
                a('s_add_u32 s%d, s%d, 1024' % (sT0, sT0))
            a('s_waitcnt vmcnt(0)')
        if 'probe' in cfg:
            a('v_readlane_b32 s%d, v4, %d' % (sT0, cfg['probe']))
            a('v_readlane_b32 s%d, v4, 0' % sT2)
            a('s_sub_u32 s%d, s%d, s%d' % (sT0, sT0, sT2))
            a('s_cmp_ge_u32 s%d, 14' % sJ)
            a('s_cselect_b32 s%d, 0, s%d' % (sT0, sT0))
            a('s_min_u32 s%d, s%d, 10000' % (sT0, sT0))
            a('s_lshl_b32 s%d, s%d, 2' % (sT0, sT0))
            a('s_add_u32 s%d, s%d, 10000' % (sT0, sT0))
            a.label('L_probe')
            a('s_memrealtime s[%d:%d]' % (S_ST, S_ST + 1))
            a('s_waitcnt lgkmcnt(0)')
            a('s_sub_u32 s%d, s%d, s%d' % (sT1, S_ST, sT2))
            a('s_cmp_lt_u32 s%d, s%d' % (sT1, sT0))
            a('s_cbranch_scc1 L_probe')
        a('s_lshl_b32 s%d, s2, 8' % sT0)
        a('s_add_u32 s%d, s%d, 0x%x' % (sT0, sT0, STAMP))
        a('buffer_store_dword v4, %s, %s, s%d offen' % (v(vL4), sr(S_WS), sT0))
    a.label('L_end')
    a('s_endpgm')
    return finalize(a), a.names


HEADER = open('header.txt').read().rstrip('\n').split('\n')


def build(cfg, path):
    body, names = gen(cfg)
    k = kernel_text(NAME + '_kernel', body, vgprs=512, accum=256, sgprs=102)
    hdr = HEADER + ['; @launch grid=(256,1,1) block=(256,1,1) lds=163840']
    if names:
        hdr.append('; stamps: ' + ' '.join(names))
        if cfg.get('cyc'):
            hdr.append('; cycle stamps')
    open(path, 'w').write(module_text(hdr, [k]))


if __name__ == '__main__':
    build(json.loads(sys.argv[2]) if len(sys.argv) > 2 else {}, sys.argv[1])
```

```python
import sys, struct, json, math
sys.path.insert(0, 'gen')
from asmlib import *
from common import *

FL, KVP, ST, O_, H_, ACT, STAMP = 0x0, 0x40000, 0x100000, 0x200000, 0x400000, 0x600000, 0x8000000
KVREC = 2304
R0, R1, R2 = 0, 65536, 131072
L_XS, L_WQ = R1, R2
L_PHI, L_V, L_CSX, L_CSQ = 0, 16384, 24576, 28672
L_WO = R1
L_KVB = R2 + 16384
L_BX = 3 * 32768
L_WPHI = L_WQ + 31 * 1024
LOG2E = 0x3fb8aa3b
ONES = 0x3f803f80
SPIN = 400000

S_X, S_WQKV, S_WPHI, S_WO, S_W1, S_B1, S_W2, S_OUT, S_DBG, S_WS = 4, 8, 12, 16, 20, 24, 28, 32, 36, 40
(sI, sJ, sW, sC, sCX, sCW, sT0, sT1, sT2, sT3, sONES, sSEL0, sSEL1, sLDSX, sLDSW, sCNT, sXCD, sP, sMSK, sMSK1) = range(44, 64)
S_PTR = 64
(sREC, sGAT, sFA, sFB, sFP, sOST, sOLD, sHST, sSST, sOUT, sHL0, sHL1, sSLD, sAST, sALD, sCO, sC1, sC2, sC5, sR3) = range(64, 84)
sLW2, sT4, sT5, sKH, sTT, sLW1, sRS, sLN2 = 86, 87, 88, 89, 90, 91, 3, 84
sFME, sLOC, sXID = 85, sXCD, sCX
S_TMP = 92
S_ST = 96
A_STASH = 224


def v(i, n=1):
    return 'v%d' % i if n == 1 else 'v[%d:%d]' % (i, i + n - 1)


def ac(i, n=1):
    return 'a%d' % i if n == 1 else 'a[%d:%d]' % (i, i + n - 1)


def sr(i):
    return 's[%d:%d]' % (i, i + 3)


def fbits(x):
    return struct.unpack('<I', struct.pack('<f', x))[0]


class Mark:
    def __init__(self, name):
        self.name = name


class WaitVM:
    def __init__(self, name):
        self.name = name


class WaitDS:
    def __init__(self, name):
        self.name = name


def cost(x):
    if isinstance(x, Mark):
        return 0
    if isinstance(x, (WaitVM, WaitDS)):
        return 1
    if isinstance(x, (list, tuple)):
        return sum(cost(y) for y in x)
    if callable(x):
        return getattr(x, 'cost', 4)
    mn = x.split()[0]
    if mn.startswith('v_mfma'):
        return 0
    if mn.startswith(TRANS) or mn.startswith('v_permlane'):
        return 2
    return 1


def flat(x):
    if isinstance(x, (list, tuple)):
        return [z for y in x for z in flat(y)]
    return [x]


class K(Asm):
    def __init__(self, cfg):
        super().__init__()
        self.cfg = cfg
        self.vmn = 0
        self.dsn = 0
        self.marks = {}
        self.nstamp = 0
        self.names = []
        self.stash_slots = {}

    def run(self, x):
        if isinstance(x, Mark):
            self.marks[x.name] = (self.vmn, self.dsn)
        elif isinstance(x, WaitVM):
            self('s_waitcnt vmcnt(%d)' % min(63, self.vmn - self.marks[x.name][0]))
        elif isinstance(x, WaitDS):
            self('s_waitcnt lgkmcnt(%d)' % min(15, self.dsn - self.marks[x.name][1]))
        elif isinstance(x, (list, tuple)):
            for y in x:
                self.run(y)
        elif callable(x):
            x()
        else:
            for key in self.cfg.get('skip', []):
                if x.startswith('buffer_load') and key in x:
                    return
            self(x)
            if x.startswith(('buffer_', 'global_')):
                self.vmn += 1
            elif x.startswith('ds_'):
                self.dsn += 1

    def gap(self, items):
        front, back, wr, rd = [], [], set(), set()
        blocked = False
        for x in items:
            fl = flat(x)
            strs = [Ins(y) for y in fl if isinstance(y, str)]
            is_valu = any(i.cls == 'valu' for i in strs)
            opaque = any(callable(y) for y in fl)
            r_ = set().union(*[i.reads for i in strs]) if strs else set()
            w_ = set().union(*[i.writes for i in strs]) if strs else set()
            dep = bool(r_ & wr) or bool(w_ & (wr | rd))
            if is_valu or opaque or dep or blocked:
                back.append(x)
                wr |= w_
                rd |= r_
                if not is_valu:
                    blocked = True
            else:
                front.append(x)
        self.run(front)
        self.run(back)

    def fill(self, mains, side, first=0, last=None, post=None):
        n = len(mains)
        post = post or [[] for _ in mains]
        last = n - 1 if last is None else min(last, n - 1)
        span = last - first + 1
        extra = [(cost(mains[i + 1]) if i + 1 < n else 0) + cost(post[i]) for i in range(n)]
        total = sum(cost(x) for x in side) + sum(extra[first:last + 1])
        done, used = 0, 0.0
        for i, g in enumerate(mains):
            self.run(g)
            items = list(post[i])
            if first <= i <= last:
                used += extra[i]
                target = total * (i - first + 1) / span
                while done < len(side) and (used + cost(side[done]) / 2.0 <= target or i == last):
                    items.append(side[done])
                    used += cost(side[done])
                    done += 1
            self.gap(items)
        self.run(side[done:])

    def stamp(self, name='', level=1):
        only = self.cfg.get('only')
        if self.cfg.get('stamps', 0) >= level and (only is None or name in only or name == 'end'):
            n = self.nstamp
            self.nstamp += 1
            self.names.append(name)
            self('s_memrealtime s[%d:%d]' % (S_ST, S_ST + 1))
            if self.cfg.get('cyc'):
                assert n < 32
                self('s_memtime s[%d:%d]' % (S_ST + 2, S_ST + 3))
            self('s_waitcnt lgkmcnt(0)')
            self('v_writelane_b32 v4, s%d, %d' % (S_ST, n))
            if self.cfg.get('cyc'):
                self('v_writelane_b32 v4, s%d, %d' % (S_ST + 2, 32 + n))

    def stamper(self, name, level=2):
        f = lambda: self.stamp(name, level)
        f.cost = 0
        return f

    def stash(self, name, reg):
        slot = A_STASH + 8 + len(self.stash_slots)
        assert slot < 256
        self.stash_slots[name] = slot
        self('v_accvgpr_write_b32 %s, %s' % (ac(slot), v(reg)))

    def unstash(self, name, reg):
        return 'v_accvgpr_read_b32 %s, %s' % (v(reg), ac(self.stash_slots[name]))


def mfma32(d, a_, b, c):
    return 'v_mfma_f32_32x32x16_bf16 %s, %s, %s, %s' % (d, a_, b, c)


def mfma16(d, a_, b, c):
    return 'v_mfma_f32_16x16x32_bf16 %s, %s, %s, %s' % (d, a_, b, c)


def merge(*lists):
    lists = [l for l in lists if l]
    tot = [max(1, cost(l)) for l in lists]
    idx = [0] * len(lists)
    used = [0] * len(lists)
    out = []
    while any(idx[k] < len(l) for k, l in enumerate(lists)):
        best = min((used[k] / tot[k], k) for k, l in enumerate(lists) if idx[k] < len(l))[1]
        x = lists[best][idx[best]]
        out.append(x)
        used[best] += cost(x)
        idx[best] += 1
    return out


def split_hl(src, hi_f, lo_f, tmp):
    return ['v_cvt_pk_bf16_f32 %s, %s, %s' % (v(tmp), v(src), v(src)),
            'v_and_b32 %s, 0xffff0000, %s' % (v(hi_f), v(tmp)),
            'v_sub_f32 %s, %s, %s' % (v(lo_f), v(src), v(hi_f))]


def ln_ops(s1, s2, mean, rstd):
    return ['v_mul_f32 %s, 0x3b000000, %s' % (v(mean), v(s1)),
            'v_mul_f32 %s, 0x3b000000, %s' % (v(s2), v(s2)),
            'v_fma_f32 %s, -%s, %s, %s' % (v(s2), v(mean), v(mean), v(s2)),
            'v_max_f32 %s, 0, %s' % (v(s2), v(s2)),
            'v_add_f32 %s, 0x3727c5ac, %s' % (v(s2), v(s2)),
            'v_rsq_f32 %s, %s' % (v(rstd), v(s2))]


def softmax_ops(P, E, OUT, c, t):
    o = []
    mx, mn, sp, sn = t, t + 2, t + 4, t + 6
    o.append('v_max3_f32 %s, %s, %s, %s' % (v(mx), v(P), v(P + 1), v(P + 2)))
    o.append('v_min3_f32 %s, %s, %s, %s' % (v(mn), v(P), v(P + 1), v(P + 2)))
    o.append('v_max3_f32 %s, %s, %s, %s' % (v(mx + 1), v(P + 3), v(P + 4), v(P + 5)))
    o.append('v_min3_f32 %s, %s, %s, %s' % (v(mn + 1), v(P + 3), v(P + 4), v(P + 5)))
    for n, i in enumerate(range(6, 14, 2)):
        o.append('v_max3_f32 %s, %s, %s, %s' % (v(mx + n % 2), v(mx + n % 2), v(P + i), v(P + i + 1)))
        o.append('v_min3_f32 %s, %s, %s, %s' % (v(mn + n % 2), v(mn + n % 2), v(P + i), v(P + i + 1)))
    o.append('v_max3_f32 %s, %s, %s, %s' % (v(mx), v(mx), v(P + 14), v(P + 15)))
    o.append('v_min3_f32 %s, %s, %s, %s' % (v(mn), v(mn), v(P + 14), v(P + 15)))
    o.append('v_max_f32 %s, %s, %s' % (v(mx), v(mx), v(mx + 1)))
    o.append('v_min_f32 %s, %s, %s' % (v(mn), v(mn), v(mn + 1)))
    o.append('v_mul_f32 %s, %s, %s' % (v(mx), v(mx), v(c + 1)))
    o.append('v_mul_f32 %s, %s, %s' % (v(mn), v(mn), v(c)))
    for i in range(0, 16, 2):
        o.append('v_pk_fma_f32 %s, %s, %s, %s op_sel_hi:[1,0,0]' % (v(E + i, 2), v(P + i, 2), v(c, 2), v(mx, 2)))
        o.append('v_pk_fma_f32 %s, %s, %s, %s op_sel:[0,1,0] op_sel_hi:[1,1,0]' % (v(E + 16 + i, 2), v(P + i, 2), v(c, 2), v(mn, 2)))
    for i in range(32):
        o.append('v_exp_f32 %s, %s' % (v(E + i), v(E + i)))
    o.append('v_pk_add_f32 %s, %s, %s' % (v(sp, 2), v(E, 2), v(E + 2, 2)))
    o.append('v_pk_add_f32 %s, %s, %s' % (v(sn, 2), v(E + 16, 2), v(E + 18, 2)))
    for i in range(4, 16, 2):
        o.append('v_pk_add_f32 %s, %s, %s' % (v(sp, 2), v(sp, 2), v(E + i, 2)))
        o.append('v_pk_add_f32 %s, %s, %s' % (v(sn, 2), v(sn, 2), v(E + 16 + i, 2)))
    o.append('v_add_f32 %s, %s, %s' % (v(sp), v(sp), v(sp + 1)))
    o.append('v_add_f32 %s, %s, %s' % (v(sn), v(sn), v(sn + 1)))
    o.append('v_rcp_f32 %s, %s' % (v(sp), v(sp)))
    o.append('v_rcp_f32 %s, %s' % (v(sn), v(sn)))
    for half, sm in ((0, sp), (16, sn)):
        for i in range(0, 16, 2):
            o.append('v_pk_mul_f32 %s, %s, %s op_sel_hi:[1,0]' % (v(E + half + i, 2), v(E + half + i, 2), v(sm, 2)))
        for i in range(0, 16, 2):
            o.append('v_cvt_pk_bf16_f32 %s, %s, %s' % (v(OUT + (half + i) // 2), v(E + half + i), v(E + half + i + 1)))
    return o


def gen(cfg):
    a = K(cfg)
    R = a.run
    SC = 'sc1'
    D = cfg.get('depth', 3)
    vL, vFR, vL4, vOUT = 1, 2, 3, 5
    vXD, vWD, vWQD, vXR, vWR = 6, 10, 11, 12, 16
    vA = 20
    vT = 28
    aK, aV, aQ = 32, 48, 64
    vWB = 80
    vS = 112
    X = 128
    s1a, s1b, s2a, s2b, csk, csv, csq, mean, rstd, vONE, cexp, ncexp = range(vS, vS + 12)
    vBX = vS + 12
    PA1, PA2 = A_STASH, A_STASH + 4
    vL128, vRB = vWD, vWQD
    vHH, vTRN = aK, aK + 1

    def vx(dst, terms, sadd=None, const=0, tmp=vT + 3):
        first = True
        for src, lo, n, mul in terms:
            if n:
                a('v_bfe_u32 %s, %s, %d, %d' % (v(tmp), v(src), lo, n))
                s_ = tmp
            elif lo:
                a('v_lshrrev_b32 %s, %d, %s' % (v(tmp), lo, v(src)))
                s_ = tmp
            else:
                s_ = src
            pw = mul & (mul - 1) == 0
            if first:
                if pw:
                    a('v_lshlrev_b32 %s, %d, %s' % (v(dst), mul.bit_length() - 1, v(s_)))
                else:
                    a('v_mul_u32_u24 %s, %d, %s' % (v(dst), mul, v(s_)))
                first = False
            elif pw:
                a('v_lshl_add_u32 %s, %s, %d, %s' % (v(dst), v(s_), mul.bit_length() - 1, v(dst)))
            else:
                a('v_mul_u32_u24 %s, %d, %s' % (v(tmp), mul, v(s_)))
                a('v_add_u32 %s, %s, %s' % (v(dst), v(tmp), v(dst)))
        if sadd is not None:
            a('v_add_u32 %s, s%d, %s' % (v(dst), sadd, v(dst)))
        if const:
            a('v_add_u32 %s, %d, %s' % (v(dst), const, v(dst)))

    def sx(dst, terms, const=0, tmp=sT5):
        first = True
        for src, mul in terms:
            tgt = dst if first else tmp
            if mul == 1:
                if first:
                    a('s_mov_b32 s%d, s%d' % (dst, src))
                else:
                    a('s_add_u32 s%d, s%d, s%d' % (dst, dst, src))
                first = False
                continue
            if mul & (mul - 1) == 0:
                a('s_lshl_b32 s%d, s%d, %d' % (tgt, src, mul.bit_length() - 1))
            else:
                a('s_mul_i32 s%d, s%d, %d' % (tgt, src, mul))
            if not first:
                a('s_add_u32 s%d, s%d, s%d' % (dst, dst, tmp))
            first = False
        if const:
            a('s_add_u32 s%d, s%d, %d' % (dst, dst, const))

    def step(sreg, inc, period):
        if period & (period - 1) == 0:
            return ['s_add_u32 s%d, s%d, %d' % (sreg, sreg, inc), 's_and_b32 s%d, s%d, %d' % (sreg, sreg, period - 1)]
        return ['s_add_u32 s%d, s%d, %d' % (sreg, sreg, inc),
                ['s_cmp_eq_u32 s%d, %d' % (sreg, period), 's_cmov_b32 s%d, 0' % sreg]]

    def push_flags(sbase, add, vaddr):
        lab = a.uniq('L_nopush')
        a('s_cmp_lg_u32 s%d, 0' % sW)
        a('s_cbranch_scc1 %s' % lab)
        a('s_add_u32 s%d, s%d, %d' % (sT5, sbase, add))
        a('s_mov_b64 exec, 0xffff')
        a('buffer_store_dword %s, %s, %s, s%d offen sc1' % (v(vONE), v(vaddr), sr(S_WS), sT5))
        a('s_mov_b64 exec, -1')
        a.label(lab)

    def arrive(sync):
        lab = a.uniq('L_noarr')
        a('s_cmp_lg_u32 s%d, 0' % sW)
        a('s_cbranch_scc1 %s' % lab)
        a('s_add_u32 s%d, s%d, %d' % (sT5, sFME, sync * 32768))
        a('s_mov_b64 exec, 1')
        a('s_cmp_lg_u32 s%d, 0' % sLOC)
        a('s_cbranch_scc1 %s_l' % lab)
        a('buffer_store_dword %s, %s, %s, s%d offen sc1' % (v(vONE), v(vL4), sr(S_WS), sT5))
        a('s_branch %s_e' % lab)
        a.label(lab + '_l')
        a('buffer_store_dword %s, %s, %s, s%d offen' % (v(vONE), v(vL4), sr(S_WS), sT5))
        a.label(lab + '_e')
        a('s_mov_b64 exec, -1')
        a.label(lab)

    def spin(lp, reg, srd_, soff, want):
        a.label(lp)
        a('buffer_load_dword %s, %s, %s, %s offen sc1' % (v(reg), v(vL4), sr(srd_), soff))
        a('s_add_u32 s%d, s%d, 1' % (sCNT, sCNT))
        a('s_cmp_gt_u32 s%d, %d' % (sCNT, SPIN))
        a('s_cbranch_scc1 %s_y' % lp)
        a('s_waitcnt vmcnt(0)')
        a('v_cmp_%s_u32 vcc, %d, %s' % ('eq' if want == 0 else 'ne', want, v(reg)))
        a('s_cbranch_vccnz %s' % lp)
        a.label(lp + '_y')
        a('s_waitcnt vmcnt(0)')

    def flag_addr(sync):
        return 's_add_u32 s%d, s%d, %d' % (sT5, sFP if sync == 0 else sFB, sync * 32768)

    def poll(sync, n, wave=0):
        lab = a.uniq('L_nopoll')
        a('s_cmp_lg_u32 s%d, %d' % (sW, wave))
        a('s_cbranch_scc1 %s' % lab)
        a(flag_addr(sync))
        a('s_mov_b64 exec, 0x%x' % ((1 << n) - 1))
        spin(a.uniq('L_poll'), vT + 3, S_WS, 's%d' % sT5, 1)
        a('s_mov_b64 exec, -1')
        a.label(lab)

    def check_issue(sync, reg, wave):
        def f():
            lab = a.uniq('L_noci')
            if wave is not None:
                a('s_cmp_lg_u32 s%d, %d' % (sW, wave))
                a('s_cbranch_scc1 %s' % lab)
            a(flag_addr(sync))
            a('s_mov_b64 exec, 0xffff')
            a('buffer_load_dword %s, %s, %s, s%d offen sc1' % (v(reg), v(vL4), sr(S_WS), sT5))
            a('s_mov_b64 exec, -1')
            a.label(lab)
        f.cost = 3
        return f

    def check_done(sync, n, reg, wave):
        lp = a.uniq('L_chk')
        if wave is not None:
            a('s_cmp_lg_u32 s%d, %d' % (sW, wave))
            a('s_cbranch_scc1 %s_z' % lp)
        a('s_mov_b64 exec, 0x%x' % ((1 << n) - 1))
        want = 0 if sync == 5 else 1
        a('v_cmp_%s_u32 vcc, %d, %s' % ('eq' if want == 0 else 'ne', want, v(reg)))
        a('s_cbranch_vccz %s_x' % lp)
        if sync is None:
            spin(lp, reg, S_DBG, '0', 1)
        else:
            a(flag_addr(sync))
            spin(lp, reg, S_WS, 's%d' % sT5, want)
        a.label(lp + '_x')
        if sync == 5:
            a('v_cmp_ne_u32 vcc, s%d, %s' % (sXID, v(reg)))
            a('s_cmp_eq_u64 vcc, 0')
            a('s_cselect_b32 s%d, %d, 0' % (sLOC, 1 if cfg.get('local', 1) else 0))
        a('s_mov_b64 exec, -1')
        a.label(lp + '_z')

    def dual(stores, on):
        if not on:
            R([x + ' sc1' for x in stores])
            return
        lab = a.uniq('L_dual')
        a('s_cmp_lg_u32 s%d, 0' % sLOC)
        a('s_cbranch_scc1 %s_l' % lab)
        for x in stores:
            a(x + ' sc1')
        a('s_branch %s_e' % lab)
        a.label(lab + '_l')
        R(stores)
        a.label(lab + '_e')

    def pretouch(soff, nl, dst):
        return [['s_mov_b64 exec, 0x%x' % ((1 << nl) - 1),
                 'buffer_load_dword %s, %s, %s, s%d offen sc1' % (v(dst), v(vL128), sr(S_WS), soff), 's_mov_b64 exec, -1']]

    def readback(soff, nl, dst, extra=None):
        o = ['s_mov_b64 exec, 0x%x' % ((1 << nl) - 1),
             'buffer_load_dword %s, %s, %s, s%d offen sc1' % (v(dst), v(vL128), sr(S_WS), soff)]
        if extra is not None:
            o += ['s_mov_b64 exec, 3', 'buffer_load_dword %s, %s, %s, s%d offen sc1' % (v(dst), v(vL128), sr(S_WS), extra)]
        return [o + ['s_mov_b64 exec, -1']]

    a('s_cmp_ge_u32 s2, 256')
    a('s_cbranch_scc1 L_end')
    if cfg.get('stamps'):
        a('s_memrealtime s[100:101]')
        a('s_memtime s[98:99]')
    a('s_load_dwordx16 s[%d:%d], s[0:1], 0' % (S_PTR, S_PTR + 15))
    a('s_load_dwordx4 s[%d:%d], s[0:1], 64' % (S_PTR + 16, S_PTR + 19))
    a('s_load_dwordx2 s[%d:%d], s[0:1], 80' % (S_PTR + 20, S_PTR + 21))
    a('s_getpc_b64 s[%d:%d]' % (sT2, sT2 + 1))
    a.label('L_pc')
    a('s_lshr_b32 s%d, s2, 3' % sT0)
    a('v_lshrrev_b32 %s, 6, v0' % v(vT))
    a('v_and_b32 %s, 63, v0' % v(vL))
    a('v_readfirstlane_b32 s%d, %s' % (sW, v(vT)))
    ncl = cfg.get('code_lines', 9)
    if ncl:
        a('s_mul_i32 s%d, s%d, %d' % (sT1, sT0, ncl * 128))
        a('v_lshl_add_u32 %s, v0, 7, s%d' % (v(vT + 1), sT1))
        a('v_min_u32 %s, L_end-L_pc, %s' % (v(vT + 1), v(vT + 1)))
        a('v_cmp_gt_u32 vcc, %d, v0' % ncl)
        a('s_and_saveexec_b64 s[%d:%d], vcc' % (sMSK, sMSK1))
        a('s_cbranch_execz L_nocp')
        a('global_load_dword %s, %s, s[%d:%d]' % (v(255), v(vT + 1), sT2, sT2 + 1))
        a.label('L_nocp')
        a('s_mov_b64 exec, -1')
    a('s_and_b32 s%d, s2, 7' % sXCD)
    a('s_and_b32 s%d, s%d, 15' % (sJ, sT0))
    a('s_lshr_b32 s%d, s%d, 4' % (sT2, sT0))
    sx(sI, [(sXCD, 2), (sT2, 1)])
    a('s_and_b32 s%d, s%d, 1' % (sT3, sJ))
    a('s_lshr_b32 s%d, s%d, 1' % (sT1, sJ))
    a('s_and_b32 s%d, s%d, 1' % (sT0, sXCD))
    if cfg.get('halfrot', 0):
        sx(sT4, [(sT2, 4), (sT3, 2), (sT1, 2)])
    else:
        sx(sT4, [(sT2, 4), (sT3, 2), (sT1, 1), (sT0, 1)])
    a('s_and_b32 s%d, s%d, 7' % (sT4, sT4))
    a('s_lshl_b32 s%d, s%d, 7' % (sCX, sT4))
    a('s_mul_i32 s%d, s%d, %d' % (sCW, sT4, 64 * 3072))
    sx(sT0, [(sI, 1 << 17), (sW, 1 << 15)], 2048)
    sx(sLDSX, [(sW, 1 << 14)], L_XS)
    a('s_lshl_b32 s%d, s%d, 11' % (sLDSW, sW))
    a('v_lshrrev_b32 %s, 4, %s' % (v(vT + 1), v(vL)))
    a('v_and_b32 %s, 7, %s' % (v(vT + 2), v(vL)))
    a('v_xor_b32 %s, %s, %s' % (v(vT + 1), v(vT + 1), v(vT + 2)))
    vx(vXD, [(vL, 3, 0, 1024), (vT + 1, 0, 0, 16)], sadd=sT0)
    a('v_xor_b32 %s, 64, %s' % (v(vXD + 1), v(vXD)))
    a('s_lshl_b32 s%d, s%d, 14' % (sT1, sT3))
    a('s_sub_u32 s%d, %d, s%d' % (sT2, 2 * 7168, sT1))
    a('v_add_u32 %s, %d, %s' % (v(vXD + 1), 7168, v(vXD + 1)))
    a('v_add_u32 %s, s%d, %s' % (v(vXD + 2), sT2, v(vXD)))
    a('v_add_u32 %s, s%d, %s' % (v(vXD + 3), sT2, v(vXD + 1)))
    a('v_add_u32 %s, s%d, %s' % (v(vXD), sT1, v(vXD)))
    a('v_add_u32 %s, s%d, %s' % (v(vXD + 1), sT1, v(vXD + 1)))
    a('s_lshr_b32 s%d, s2, 3' % sT1)
    sx(sT2, [(2, 16), (sW, 4)])
    sx(sT1, [(sT1, 16), (sW, 4)])
    a('v_and_b32 %s, 3, %s' % (v(vT), v(vL)))
    a('v_add_u32 %s, s%d, %s' % (v(vT + 1), sT2, v(vT)))
    a('v_add_u32 %s, s%d, %s' % (v(vT), sT1, v(vT)))
    a('v_cmp_gt_u32 vcc, 4, %s' % v(vL))
    vx(aV, [(vT + 1, 3, 0, 3072), (vT + 1, 0, 3, 128)])
    vx(aV + 1, [(vT, 0, 0, 3072)], const=384)
    a('v_cndmask_b32 %s, %s, %s, vcc' % (v(aV), v(aV + 1), v(aV)))
    a('v_lshlrev_b32 %s, 7, %s' % (v(aV + 2), v(vT + 1)))
    vx(aV + 1, [(vT, 0, 0, 1024)], const=384)
    a('v_cndmask_b32 %s, %s, %s, vcc' % (v(aV + 1), v(aV + 1), v(aV + 2)))
    a('v_lshlrev_b32 %s, 4, %s' % (v(vFR), v(vL)))
    a('s_lshl_b32 s%d, s%d, 6' % (sT2, sJ))
    vx(vWQD, [(0, 2, 0, 3072), (vL, 0, 2, 16)], sadd=sT2)
    a('v_add_u32 %s, 1024, %s' % (v(vWD), v(vWQD)))
    a('s_waitcnt lgkmcnt(0)')
    if cfg.get('stamps'):
        a('v_mov_b32 v4, 0')
        a('v_writelane_b32 v4, s100, 0')
        if cfg.get('cyc'):
            a('v_writelane_b32 v4, s98, 32')
        a.nstamp = 1
        a.names.append('start')
    a.stamp('karg', 2)
    srd(a, S_WQKV, S_PTR + 2, SIZES['wqkv'])

    def dma_w(s):
        return ['s_add_u32 m0, s%d, %d' % (sLDSW, s * 8192),
                'buffer_load_dwordx4 %s, %s, s%d offen lds' % (v(vWD), sr(S_WQKV), sCW),
                'buffer_load_dwordx4 %s, %s, s%d offen offset:1024 lds' % (v(vWD), sr(S_WQKV), sCW)] + step(sCW, 64 * 3072, 512 * 3072)

    def dma_x(s):
        return ['s_add_u32 m0, s%d, %d' % (sLDSX, (s & 3) * 4096)] + [
            'buffer_load_dwordx4 %s, %s, s%d offen offset:%d lds' % (v(vXD + q), sr(S_X), sCX, q * 1024) for q in range(4)
        ] + step(sCX, 128, 1024) + [Mark('slot%d' % s)]

    def dma_wq(s):
        return ['s_add_u32 m0, s%d, %d' % (sLDSW, L_WQ + (s >> 1) * 8192 + (s & 1) * 1024),
                'buffer_load_dwordx4 %s, %s, s%d offen lds' % (v(vWQD), sr(S_WQKV), sCW)] + step(sCW, 64 * 3072, 512 * 3072)

    a('s_cmp_lg_u32 s%d, 0' % sJ)
    a('s_cbranch_scc1 L_noclear')
    srd(a, S_WS, S_PTR + 20, SIZES['ws'])
    vx(vT, [(0, 4, 0, 128), (0, 2, 2, 32768), (0, 0, 2, 16)])
    for i in range(4):
        a('v_mov_b32 %s, 0' % v(vWB + i))
    a('s_lshl_b32 s%d, s%d, 11' % (sT2, sI))
    a('buffer_store_dwordx4 %s, %s, %s, s%d offen sc1' % (v(vWB, 4), v(vT), sr(S_WS), sT2))
    a('s_add_u32 s%d, s%d, %d' % (sT2, sT2, 4 * 32768))
    a('buffer_store_dwordx4 %s, %s, %s, s%d offen sc1' % (v(vWB, 4), v(vT), sr(S_WS), sT2))
    a.label('L_noclear')
    R(dma_w(0))
    a('s_sub_u32 s%d, s%d, 2048' % (S_PTR, S_PTR))
    a('s_subb_u32 s%d, s%d, 0' % (S_PTR + 1, S_PTR + 1))
    srd(a, S_X, S_PTR + 0, SIZES['x'] + 2048)
    dx0 = dma_x(0)
    R(dx0[:3])
    srd(a, S_WO, S_PTR + 6, SIZES['wo'])
    srd(a, S_WPHI, S_PTR + 4, SIZES['wphi'])
    if cfg.get('warm0', 1):
        a('s_mov_b64 exec, 0x%x' % (0xff if cfg.get('touch3', 1) else 0xf))
        R('buffer_load_dword %s, %s, %s, 0 offen' % (v(254), v(aV), sr(S_WQKV)))
        R('buffer_load_dword %s, %s, %s, 0 offen' % (v(253), v(aV + 1), sr(S_WO)))
    sx(sT2, [(sJ, 1024), (sW, 256)])
    sx(sT3, [(sW, 256)], L_WPHI)
    a('s_mov_b32 m0, s%d' % sT3)
    a('s_mov_b64 exec, 0xffff')
    R('buffer_load_dwordx4 %s, %s, s%d offen lds' % (v(vFR), sr(S_WPHI), sT2))
    a('s_mov_b64 exec, -1')
    R([dx0[0]] + dx0[3:])
    a.stamp('dma0', 2)
    srd(a, S_WS, S_PTR + 20, SIZES['ws'])
    srd(a, S_W1, S_PTR + 10, SIZES['w1'])
    srd(a, S_B1, S_PTR + 12, SIZES['b1'])
    srd(a, S_W2, S_PTR + 14, SIZES['w2'])
    srd(a, S_OUT, S_PTR + 16, SIZES['out'])
    srd(a, S_DBG, S_PTR + 18, SIZES['dbg'])
    srd(a, S_TMP, S_PTR + 10, SIZES['w1'])

    a('s_mov_b32 s%d, 0x%x' % (sONES, ONES))
    a('s_mov_b32 s%d, 0x3f80' % sSEL0)
    a('s_mov_b32 s%d, 0x3f800000' % sSEL1)
    a('s_mov_b32 s%d, 0' % sCNT)
    a('s_mov_b32 s%d, 0x%x' % (sRS, fbits(math.sqrt(0.5))))
    a('s_mov_b32 s%d, 0x%x' % (sLN2, fbits(math.log(2.0))))
    a('s_lshr_b32 s%d, s%d, 1' % (sKH, sW))
    a('s_and_b32 s%d, s%d, 1' % (sTT, sW))
    a('s_and_b32 s%d, s%d, 1' % (sP, sJ))
    a('s_lshr_b32 s%d, s%d, 1' % (sC, sJ))
    a('s_and_b32 s%d, s%d, 3' % (sT2, sC))
    a('s_cmp_eq_u32 s%d, 3' % sT2)
    a('s_cselect_b32 s%d, 4, 0' % sT2)
    a('s_xor_b32 s%d, s%d, s%d' % (sC, sC, sT2))
    a('s_lshl_b32 s%d, s%d, 13' % (sLW2, sW))
    a('s_lshl_b32 s%d, s%d, 12' % (sLW1, sW))
    a('v_lshrrev_b32 %s, 5, %s' % (v(vHH), v(vL)))
    a('v_lshlrev_b32 %s, 2, %s' % (v(vL4), v(vL)))
    a('v_mov_b32 %s, 1' % v(vONE))
    vx(aQ + 8, [(vL, 0, 1, 512), (vL, 1, 1, 8), (vL, 4, 1, 16), (vL, 2, 2, 32), (vHH, 0, 0, 128)], const=L_WPHI)
    a('v_bfe_u32 %s, %s, 2, 1' % (v(vT), v(vL)))
    a('v_cmp_eq_u32 s[%d:%d], 0, %s' % (sMSK, sMSK1, v(vT)))
    a('v_bfe_u32 %s, %s, 1, 3' % (v(vT + 1), v(vL)))
    a('s_lshl_b32 s%d, s%d, 1' % (sT2, sW))
    a('v_add_u32 %s, s%d, %s' % (v(vT + 2), sT2, v(vHH)))
    a('v_xor_b32 %s, %s, %s' % (v(vT + 1), v(vT + 1), v(vT + 2)))
    vx(vXR, [(vL, 0, 5, 128), (vT + 1, 0, 0, 16)], sadd=sLDSX)
    a('s_and_b32 s%d, s%d, 1' % (sT2, sJ))
    a('s_lshl_b32 s%d, s%d, 11' % (sT2, sT2))
    a('v_xor_b32 %s, s%d, %s' % (v(vXR), sT2, v(vXR)))
    for p in range(1, 4):
        a('v_xor_b32 %s, %d, %s' % (v(vXR + p), 32 * p, v(vXR)))
    vx(vOUT, [(vL, 0, 5, 1024), (vHH, 0, 0, 32)])
    vx(vWR, [(vL, 2, 2, 64), (vL, 4, 1, 32), (vL, 0, 2, 8), (vHH, 0, 0, 512)], sadd=sLDSW)
    for p in range(1, 4):
        a('v_xor_b32 %s, %d, %s' % (v(vWR + p), 2048 * p, v(vWR)))
    vx(vTRN, [(vL, 2, 2, 64), (vL, 0, 1, 32), (vL, 4, 1, 16), (vL, 1, 1, 8)])
    sx(sT2, [(sKH, 32768 + 512)], L_WO)
    vx(vT, [(vTRN, 0, 0, 1), (vHH, 0, 0, 1024)], sadd=sT2)
    a.stash('wo', vT)
    a('s_lshl_b32 s%d, s%d, 9' % (sT2, sW))
    vx(vT, [(vTRN, 0, 0, 1), (vHH, 0, 0, 4096)], sadd=sT2)
    a.stash('w1', vT)
    sx(sT2, [(sKH, 512), (sLW2, 1)])
    vx(vT, [(vTRN, 0, 0, 1), (vHH, 0, 0, 2048)], sadd=sT2)
    a.stash('w2', vT)
    vx(vT + 1, [(vL, 0, 2, 16), (vHH, 0, 0, 64)])
    sx(sT2, [(sKH, 1 << 18), (sC, 128)])
    vx(vT, [(vL, 2, 3, 1024), (vT + 1, 0, 0, 1)], sadd=sT2)
    a.stash('bdo', vT)
    sx(sT2, [(sW, 448 * 1024), (sC, 128)])
    vx(vT, [(vL, 2, 3, 1024), (vT + 1, 0, 0, 1)], sadd=sT2)
    a.stash('bd2', vT)
    sx(sT2, [(sW, 16 * 3584), (sJ, 256)], 3072)
    vx(vT, [(vL, 2, 3, 3584), (vT + 1, 0, 0, 1)], sadd=sT2)
    a.stash('bd1', vT)
    a('v_bfe_u32 %s, %s, 1, 2' % (v(vT), v(vL)))
    vx(vT + 1, [(vL, 3, 1, 2)])
    a('v_xor_b32 %s, %s, %s' % (v(vT + 1), v(vT), v(vT + 1)))
    vx(vT, [(vL, 0, 5, 64), (vT + 1, 0, 0, 16)], sadd=sLDSW)
    a('v_lshl_add_u32 %s, %s, 3, %s' % (v(vA), v(vHH), v(vT)))
    a('v_lshl_add_u32 %s, %s, 13, %s' % (v(vA + 4), v(vHH), v(vT)))
    for g in range(1, 4):
        a('v_xor_b32 %s, %d, %s' % (v(vA + g), 16 * g, v(vA)))
        a('v_xor_b32 %s, %d, %s' % (v(vA + 4 + g), 16 * g, v(vA + 4)))
    vx(vT, [(vL, 3, 1, 1), (vL, 4, 1, 2)])
    a('v_bfe_u32 %s, %s, 1, 1' % (v(vT + 1), v(vL)))
    a('v_xor_b32 %s, %s, %s' % (v(vT), v(vT), v(vT + 1)))
    vx(vT + 2, [(vL, 4, 0, 512), (vL, 2, 2, 64), (vT, 0, 0, 16), (vL, 0, 1, 8)])
    sx(sT2, [(sKH, 32), (sTT, 8192)])
    a('v_xor_b32 %s, s%d, %s' % (v(vT), sT2, v(vT + 2)))
    a.stash('kvphi', vT)
    a('s_lshl_b32 s%d, s%d, 5' % (sT2, sTT))
    a('v_xor_b32 %s, s%d, %s' % (v(vT), sT2, v(vT + 2)))
    a.stash('kvv', vT)
    vx(vT, [(0, 4, 0, 16)])
    a.stash('zst', vT)
    vx(vT + 1, [(vL, 0, 4, KVREC), (vT, 0, 0, 1)])
    a.stash('zld', vT + 1)
    sx(sT2, [(sTT, 17 * 80), (sKH, 32)], L_KVB)
    vx(vT, [(vL, 4, 0, 8)], sadd=sT2)
    a.stash('kbz', vT)
    vx(vT + 1, [(vL, 0, 3, 160), (vHH, 0, 0, 80), (vL, 3, 2, 8)], sadd=sT2)
    a.stash('kbw', vT + 1)
    a('s_lshl_b32 s%d, s%d, 9' % (sT3, sW))
    vx(vT + 1, [(vL, 0, 5, 16), (vHH, 0, 0, KVREC)], sadd=sT3)
    a.stash('gld', vT + 1)
    vx(vT + 2, [(vL, 2, 1, 8), (vL, 3, 1, 4), (vL, 0, 2, 1)])
    a('v_and_b32 %s, 16, %s' % (v(vT), v(vL)))
    a('v_cmp_eq_u32 vcc, 0, %s' % v(vT))
    a('v_cndmask_b32 %s, 16, %s, vcc' % (v(vT + 2), v(vT + 2)))
    vx(vT, [(vT + 2, 0, 0, 80), (vHH, 0, 0, 16)], const=L_KVB)
    a.stash('kbr', vT)
    sx(sT2, [(sJ, 256), (sW, 64)])
    vx(vT, [(vL, 2, 1, 32), (vL, 3, 2, 8), (vL, 0, 2, 2), (vHH, 0, 0, 8192)], sadd=sT2)
    a.stash('bias', vT)
    sx(sT2, [(sLW2, 1)], R2)
    a('v_add_u32 %s, s%d, %s' % (v(vT), sT2, v(vFR)))
    a.stash('red3', vT)
    vx(vT, [(vL, 2, 0, 1024), (vL, 0, 2, 16)], const=2048)
    a.stash('xd', vT)
    vx(vT, [(vL, 0, 5, 64), (vHH, 0, 0, 32)], sadd=sT2, const=4096)
    a.stash('xr', vT)

    sx(sGAT, [(sJ, 16 * KVREC)], KVP)
    sx(sREC, [(sGAT, 1), (sI, KVREC)])
    sx(sFA, [(sJ, 128), (sI, 4)])
    sx(sFP, [(sI, 2048), (sJ, 128)])
    sx(sFB, [(sI, 2048)])
    sx(sFME, [(sI, 2048), (sJ, 4)])
    sx(sOST, [(sI, 4 << 15), (sW, 1 << 15), (sJ, 2048)], O_)
    sx(sSLD, [(sI, 4 << 12), (sW, 1 << 12)], ST)
    sx(sAST, [(sI, 4 * 112 * 1024), (sJ, 8192), (sW, 2048)], ACT)
    sx(sALD, [(sI, 4 * 112 * 1024), (sP, 112 * 1024), (sW, 28 * 1024)], ACT)
    sx(sT2, [(sI, 4), (sP, 1), (sTT, 2)])
    sx(sT3, [(sC, 2), (sKH, 1)])
    sx(sOLD, [(sT2, 1 << 15), (sKH, 1 << 14)], O_)
    sx(sOUT, [(sT2, 1 << 15), (sT3, 64)])
    sx(sHST, [(sT2, 1 << 15), (sT3, 2048)], H_)
    sx(sSST, [(sT2, 1 << 12), (sT3, 256)], ST)
    rot = cfg.get('rot', 1)
    a('s_and_b32 s%d, s%d, %d' % (sT2, sI, 1 if cfg.get('rotw', 0) else 0))
    a('s_and_b32 s%d, s%d, %d' % (sT3, sP, 1 if cfg.get('rotw', 0) else 0))
    sx(sT3, [(sT3, 1), (sT2, 2)])
    a('s_lshr_b32 s%d, s%d, 1' % (sT0, sC))
    a('s_add_u32 s%d, s%d, s%d' % (sT0, sT0, sT3))
    a('s_and_b32 s%d, s%d, %d' % (sT0, sT0, 3 if rot else 0))
    a('s_lshl_b32 s%d, s%d, 12' % (sR3, sT0))
    sx(sCO, [(sTT, 4 << 15), (sT0, 2 << 15)])
    a('s_and_b32 s%d, s%d, %d' % (sCO, sCO, (8 << 15) - 1))
    sx(sT0, [(sJ, 1), (sT2, 2)])
    a('s_and_b32 s%d, s%d, %d' % (sT0, sT0, 3 if rot else 0))
    a('s_mul_i32 s%d, s%d, %d' % (sC1, sT0, 128 * 3584))
    sx(sT1, [(sT0, 2), (sW, 1)])
    a('s_and_b32 s%d, s%d, 7' % (sT4, sT1))
    sx(sHL0, [(sI, 4 << 15), (sT4, 4096)], H_)
    a('s_xor_b32 s%d, s%d, 4' % (sT4, sT4))
    sx(sHL1, [(sI, 4 << 15), (sT4, 4096)], H_)
    sx(sT0, [(sC, 1), (sT3, 2)])
    a('s_add_u32 s%d, s%d, -7' % (sT1, sT0))
    a('s_cselect_b32 s%d, s%d, s%d' % (sT0, sT1, sT0))
    if not rot:
        a('s_mov_b32 s%d, 0' % sT0)
    a('s_lshl_b32 s%d, s%d, 16' % (sC2, sT0))
    a('s_lshl_b32 s%d, s%d, 12' % (sC5, sT0))
    a('s_sub_u32 s%d, s%d, 3072' % (S_W1, S_W1))
    a('s_subb_u32 s%d, s%d, 0' % (S_W1 + 1, S_W1 + 1))
    a('s_cmp_ge_u32 s%d, 14' % sJ)
    a('s_cselect_b32 s%d, 0, %d' % (S_W1 + 2, SIZES['w1'] + 3072))
    for r_ in (s1a, s1b, s2a, s2b, csk, csv, csq, vBX + 2, vBX + 3):
        a('v_mov_b32 %s, 0' % v(r_))

    def warm(srd_, nbytes, dst):
        nl = nbytes // 128 // 256
        a('s_mul_i32 s%d, s2, %d' % (sT2, nl * 128))
        a('v_lshlrev_b32 %s, 7, %s' % (v(vT), v(vL)))
        a('s_mov_b32 exec_lo, 0x%x' % (((1 << nl) - 1) & 0xffffffff))
        a('s_mov_b32 exec_hi, 0x%x' % (((1 << nl) - 1) >> 32))
        a('buffer_load_dword %s, %s, %s, s%d offen' % (v(dst), v(vT), sr(srd_), sT2))
        a('s_mov_b64 exec, -1')

    def touch3(srd_, rows, pitch, off, dst, row0=None):
        nl = rows // 32
        a('s_lshr_b32 s%d, s2, 3' % sT2)
        a('s_mul_i32 s%d, s%d, %d' % (sT2, sT2, nl * pitch))
        if row0 is not None:
            a('s_add_u32 s%d, s%d, s%d' % (sT2, sT2, row0))
        a('v_mul_u32_u24 %s, %d, %s' % (v(vT), pitch, v(vL)))
        a('s_mov_b32 exec_lo, 0x%x' % (((1 << nl) - 1) & 0xffffffff))
        a('s_mov_b32 exec_hi, 0x%x' % (((1 << nl) - 1) >> 32))
        a('buffer_load_dword %s, %s, %s, s%d offen offset:%d' % (v(dst), v(vT), sr(srd_), sT2, off))
        a('s_mov_b64 exec, -1')

    def warm_big():
        a('s_cmp_lg_u32 s%d, 1' % sW)
        a('s_cbranch_scc1 L_nw1')
        warm(S_TMP, SIZES['w1'], vT + 2)
        a.label('L_nw1')
        a('s_cmp_lg_u32 s%d, 2' % sW)
        a('s_cbranch_scc1 L_nw2')
        warm(S_W2, SIZES['w2'], vT + 2)
        a.label('L_nw2')

    if cfg.get('warm1', 7) == -1:
        warm_big()
    D0 = min(D, cfg.get('d0', 2))
    for s in range(1, D0):
        R(dma_w(s) + dma_x(s))
    a.stamp('prolog')

    def wreg(s, p, m):
        if p == 0:
            return lambda o, n: v(vWB + (s & 1) * 8 + m * 4 + o, n)
        return lambda o, n: ac(128 + (s & 1) * 24 + (p - 1) * 8 + m * 4 + o, n)

    def reads(s):
        o = []
        for p in range(4):
            o.append('ds_read_b128 %s, %s offset:%d' % (v(X + (4 * s + p) * 4, 4), v(vXR + p), (s & 3) * 4096))
            for m in range(2):
                for t in range(2):
                    o.append('ds_read_b64_tr_b16 %s, %s offset:%d' % (wreg(s, p, m)(2 * t, 2), v(vWR + p), s * 8192 + m * 1024 + t * 256))
        return o

    def mains(s):
        o = []
        for p in range(4):
            for m in range(2):
                acc = v(aK if m == 0 else aV, 16)
                o.append([mfma32(acc, wreg(s, p, m)(0, 4), v(X + (4 * s + p) * 4, 4), '0' if (s == 0 and p == 0) else acc)])
        return o

    def cs_dots(s):
        o = []
        for r_ in range(4):
            o.append('v_dot2_f32_bf16 %s, %s, s%d, %s' % (v(csk), wreg(s, 0, 0)(r_, 1), sONES, v(csk)))
            o.append('v_dot2_f32_bf16 %s, %s, s%d, %s' % (v(csv), wreg(s, 0, 1)(r_, 1), sONES, v(csv)))
        return o

    def stat_dots(s):
        o = []
        for r_ in range(16):
            x = v(X + 16 * s + r_)
            p1, p2 = (s1a, s2a) if r_ & 1 else (s1b, s2b)
            o.append('v_dot2_f32_bf16 %s, %s, s%d, %s' % (v(p1), x, sONES, v(p1)))
            o.append('v_dot2_f32_bf16 %s, %s, %s, %s' % (v(p2), x, x, v(p2)))
        return o

    def a_ext(dst, cs, t):
        return split_hl(cs, t, t + 1, dst) + ['v_cvt_pk_bf16_f32 %s, %s, 0' % (v(dst + 1), v(t + 1)),
                                              'v_mov_b32 %s, 0' % v(dst + 2), 'v_mov_b32 %s, 0' % v(dst + 3)]

    phi_merge = ['ds_read_b64_tr_b16 %s, %s' % (v(aQ + 12, 2), v(aQ + 8)),
                 'ds_read_b64_tr_b16 %s, %s offset:256' % (v(aQ + 14, 2), v(aQ + 8))]
    phi_merge2 = []
    for e in range(4):
        phi_merge2.append('v_cndmask_b32 %s, 0, %s, s[%d:%d]' % (v(aQ + e), v(aQ + 12 + e), sMSK, sMSK1))
        phi_merge2.append('v_cndmask_b32 %s, %s, 0, s[%d:%d]' % (v(aQ + 4 + e), v(aQ + 12 + e), sMSK, sMSK1))
    for e in range(8):
        phi_merge2.append('v_accvgpr_write_b32 %s, %s' % (ac(PA1 + e), v(aQ + e)))

    wq = [dma_wq(s) for s in range(8)]
    R(WaitVM('slot0'))
    a('s_barrier')
    a.stamp('c0', 2)
    R(phi_merge)
    R(reads(0))
    for s in range(D0, D):
        R(dma_w(s) + dma_x(s))
    R(phi_merge2)
    late = cfg.get('p1late', 0)
    for s in range(7):
        R(WaitVM('slot%d' % (s + 1)))
        a('s_waitcnt lgkmcnt(0)')
        a('s_barrier')
        a.stamp('c%d' % (s + 1), 2)
        if s == cfg.get('sig', 5):
            a('s_or_b32 s%d, s%d, s%d' % (sT2, sJ, sW))
            a('s_cmp_lg_u32 s%d, 0' % sT2)
            a('s_cbranch_scc1 L_nosig')
            a('s_lshl_b32 s%d, s%d, 2' % (sT2, sI))
            a('s_mov_b64 exec, 1')
            a('buffer_store_dword %s, %s, %s, s%d offen sc1' % (v(vONE), v(vL4), sr(S_DBG), sT2))
            a('s_mov_b64 exec, -1')
            a.label('L_nosig')
        if s + D < 8:
            dw, dx = dma_w(s + D), dma_x(s + D)
        else:
            k0, k1 = (s + D - 8) * 8 // D, (s + D - 7) * 8 // D
            fl = [x for g in wq[k0:k1] for x in g]
            dw, dx = fl[:len(fl) // 2], fl[len(fl) // 2:]
        rd = reads(s + 1)
        allm = dw + dx
        idx = [i for i, x in enumerate(allm) if isinstance(x, str) and x.startswith('buffer_')]
        nl = min(late, len(idx))
        cut = idx[len(idx) - nl] if nl else len(allm)
        if nl and isinstance(allm[cut - 1], str) and 'm0' in allm[cut - 1]:
            cut -= 1
        a.fill(mains(s), merge(rd, allm[:cut]))
        dots = cs_dots(s) + stat_dots(s)
        rest = allm[cut:]
        groups = []
        for x in rest:
            if not groups or (isinstance(x, str) and x.startswith('buffer_') and any(isinstance(y, str) and y.startswith('buffer_') for y in groups[-1])):
                groups.append([])
            groups[-1].append(x)
        ng_ = len(groups)
        for k in range(ng_ + 1):
            R(dots[k * 40 // (ng_ + cfg.get('p1e', 0)) if ng_ else 0:(k + 1) * 40 // (ng_ + cfg.get('p1e', 0)) if ng_ else 40])
            if k < ng_:
                R(groups[k])
        if cfg.get('warm1', 7) == s:
            warm_big()
    s = 7
    R(cs_dots(s))
    a('v_lshlrev_b32 %s, 3, v0' % v(vT))
    R('ds_write_b64 %s, %s offset:%d' % (v(vT), v(csk, 2), L_CSX))
    R(stat_dots(s))
    a('v_lshlrev_b32 %s, 3, %s' % (v(vT), v(vL)))
    a('s_waitcnt lgkmcnt(0)')
    a('s_barrier')
    for w in range(4):
        R('ds_read_b64 %s, %s offset:%d' % (v(aQ + 2 * w, 2), v(vT), L_CSX + 512 * w))
    fin = ['v_add_f32 %s, %s, %s' % (v(s1a), v(s1a), v(s1b)),
           'v_add_f32 %s, %s, %s' % (v(s2a), v(s2a), v(s2b)),
           'v_permlane32_swap_b32 %s, %s' % (v(s1a), v(s2a)),
           'v_add_f32 %s, %s, %s' % (v(s1a), v(s1a), v(s2a)),
           'v_mov_b32 %s, %s' % (v(s2a), v(s1a)),
           'v_permlane32_swap_b32 %s, %s' % (v(s1a), v(s2a))]
    fin += ln_ops(s1a, s2a, mean, rstd)
    fin += ['v_sub_f32 %s, 0, %s' % (v(s1a), v(mean))]
    fin += split_hl(s1a, s1b, s2b, vT)
    fin += ['v_cvt_pk_bf16_f32 %s, %s, %s' % (v(vBX), v(s1b), v(s2b)),
            'v_cvt_pk_bf16_f32 %s, %s, 0' % (v(vBX + 1), v(s1b))]
    fin2 = ['v_add_f32 %s, %s, %s' % (v(aQ + i), v(aQ + i), v(aQ + 4 + i)) for i in range(4)]
    fin2 += ['v_add_f32 %s, %s, %s' % (v(csk + i), v(aQ + i), v(aQ + 2 + i)) for i in range(2)]
    fin2 += a_ext(aQ + 8, csk, vT + 1) + a_ext(aQ + 12, csv, vT + 1)
    k0 = (7 + D - 8) * 8 // D
    m7 = mains(7)
    m7 = [m7[i] for i in (0, 2, 4, 6, 1, 3, 5, 7)]
    a.fill(m7, merge(fin, fin2))
    a.stamp('p1end')
    R(mfma32(v(aK, 16), v(aQ + 8, 4), v(vBX, 4), v(aK, 16)))
    R(mfma32(v(aV, 16), v(aQ + 12, 4), v(vBX, 4), v(aV, 16)))
    R([x for g in wq[k0:] for x in g] + [Mark('wq')])
    a('v_lshlrev_b32 %s, 7, %s' % (v(vL128), v(vL)))
    def touches(at):
        o = []
        if cfg.get('lo', 1) and cfg.get('to', 'p1') == at:
            o += pretouch(sOST, 16, s1a)
        if cfg.get('lh', 1) and cfg.get('th', 'p1') == at:
            o += pretouch(sHST, 16, s1a) + pretouch(sSST, 2, s1a)
        return o
    if cfg.get('warm1', 7) == 7:
        warm_big()
    R(touches('p1'))
    vBD = vXD
    def blk_regs(name, reg):
        return [a.unstash(name, reg)] + ['v_add_u32 %s, %d, %s' % (v(reg + q), q * 7168, v(reg)) for q in range(1, 4)]
    R(blk_regs('bdo', vBD))
    def dma_wo(g4):
        return ['s_add_u32 m0, s%d, %d' % (sLDSX, g4 * 4096)] + [
            'buffer_load_dwordx4 %s, %s, s%d offen offset:%d lds' % (v(vBD + b), sr(S_WO), sCO, b * 1024) for b in range(4)
        ] + step(sCO, 32768, 8 * 32768)
    vB1 = vWR
    def dma_w1(g4):
        return ['s_add_u32 m0, s%d, %d' % (sLW1, g4 * 16384)] + [
            'buffer_load_dwordx4 %s, %s, s%d offen offset:%d lds' % (v(vB1 + b), sr(S_W1), sC1, b * 1024) for b in range(4)
        ] + step(sC1, 64 * 3584, 512 * 3584)
    def w2reg(ks, rho):
        return ((ks * 2 + rho) * 4 + 128) % 224
    vW2, vW2c = vS + 2, vS + 14
    REG = {0: 32768, 1: R2, 2: R2, 3: R2, 4: 0, 5: 32768, 6: 65536}
    TW2, TAC = 4, 14
    def w2_dma(q):
        o = []
        early = q < (2 if LATE2 else 3)
        for h in range(2):
            so = sC2 if early else TW2 + 2 * (q - 2) + h
            o += ['s_add_u32 m0, s%d, %d' % (sLW2, REG[q] + h * 4096)] + [
                'buffer_load_dwordx4 %s, %s, s%d offen offset:%d lds' % (v(vBD2 + b), sr(S_W2), so, b * 1024) for b in range(4)]
            if early:
                o += step(sC2, 32768, 14 * 32768)
        return o + [Mark('w2_%d' % q)]
    def tables():
        for n in range(0 if LATE2 else 2, 10):
            a('s_mov_b32 s%d, s%d' % (TW2 + n, sC2))
            R(step(sC2, 32768, 14 * 32768))
        for n in range(14):
            a('s_mov_b32 s%d, s%d' % (TAC + n, sC5))
            R(step(sC5, 2048, 14 * 2048))
    def w2_read(q, h, a_, rho):
        n, region = 2 * q + h, REG[q]
        base, off = (vW2, region) if region < R1 else ((vW2c, region - R1) if region < R2 else (vW2 + 2, region - R2))
        return ['ds_read_b64_tr_b16 %s, %s offset:%d' % (ac(w2reg(2 * n + a_, rho) + 2 * t, 2), v(base + rho),
                                                        off + h * 4096 + a_ * 1024 + t * 256) for t in range(2)]
    def w2_park(q):
        return [x for h in range(2) for a_ in range(2) for rho in range(2) for x in w2_read(q, h, a_, rho)] + [Mark('park%d' % q)]

    vBD2 = vXR
    PLAN = dict(Wa=['o0'], Wb1=['o1', 'o2'], Wb2=['o3', 'p0'], Wb3=[], Wc=[], Wd0=['g0', 'g1'], Wd=['g2', 'g3'], We=['g4', 'g5'],
                Wf0=['g6', 'g7'], Wf=['p1'])
    PLAN.update(cfg.get('plan', {}))
    ORDER = ['Wa', 'Wb1', 'Wb2', 'Wb3', 'Wc', 'Wd0', 'Wd', 'We', 'Wf0', 'Wf']
    where = {g: ORDER.index(w) for w in ORDER for g in PLAN[w]}
    LATE2 = 'p2' not in where
    assert sorted(where) == sorted(['o%d' % i for i in range(4)] + ['g%d' % i for i in range(8)] + ['p0', 'p1'] + ([] if LATE2 else ['p2']))
    assert all(where['o%d' % i] <= 4 for i in range(4)) and 1 <= where['p0'] <= 3
    assert all(where['g%d' % i] >= 4 for i in (0, 1)) and all(where['g%d' % i] >= 5 for i in (2, 3))
    assert all(where['g%d' % i] >= 7 for i in range(4, 8))
    assert (where['p1'] == 9) if LATE2 else (where['p1'] in (6, 7) and where['p2'] == 9)
    def window(w):
        o = []
        for g in PLAN[w]:
            o += {'o': dma_wo, 'g': dma_w1, 'p': w2_dma}[g[0]](int(g[1]))
            o.append(Mark(g))
        return o
    def landed(w):
        return sum(1 for i in range(8) if where['g%d' % i] <= ORDER.index(w))
    cs1 = vS + 6
    vW1 = vS + 10
    def w1_reads(k0, k1):
        o = []
        for ks in range(k0, k1):
            T, a_ = ks >> 1, ks & 1
            for t in range(2):
                off = (4 * T + a_) * 2048 + t * 256
                o.append('ds_read_b64_tr_b16 %s, %s offset:%d' % (v(X + 4 * ks + 2 * t, 2), v(vW1 + (off >> 16)), off & 0xffff))
        return o
    def w1_dots(k0, k1):
        return ['v_dot2_f32_bf16 %s, %s, s%d, %s' % (v(cs1 + (r_ & 1)), v(X + r_), sONES, '0' if r_ < 2 else v(cs1 + (r_ & 1)))
                for r_ in range(4 * k0, 4 * k1)]

    a('v_mul_f32 %s, 0x%x, %s' % (v(cexp), LOG2E, v(rstd)))
    a('v_mul_f32 %s, 0x%x, %s' % (v(ncexp), LOG2E | 0x80000000, v(rstd)))
    for i in range(8):
        a('v_cvt_pk_bf16_f32 %s, %s, %s' % (v(vWB + i), v(aK + 2 * i), v(aK + 2 * i + 1)))
    R(mfma32(v(aK, 16), ac(PA1, 4), v(vWB, 4), '0'))
    R(mfma32(v(aK, 16), ac(PA2, 4), v(vWB + 4, 4), v(aK, 16)))
    for i in range(16):
        a('v_mul_f32 %s, %s, %s' % (v(aV + i), v(aV + i), v(rstd)))
    for i in range(8):
        a('v_cvt_pk_bf16_f32 %s, %s, %s' % (v(aQ + i), v(aV + 2 * i), v(aV + 2 * i + 1)))
    for g in range(4):
        R('ds_write_b64 %s, %s offset:%d' % (v(vA + g), v(aQ + 2 * g, 2), L_V))
    a.stamp('phik', 2)
    sm = softmax_ops(aK, vWB, aV, cexp, aQ + 8)
    R(sm[:34])
    R(merge(sm[34:66], window('Wa')))
    R(sm[66:-16])
    for q in range(2):
        R('ds_write_b128 %s, %s offset:%d' % (v(vA + 4 + q), v(aV + 4 * q, 4), L_PHI))
    R(sm[-16:])
    for q in range(2, 4):
        R('ds_write_b128 %s, %s offset:%d' % (v(vA + 4 + q), v(aV + 4 * q, 4), L_PHI))
    vKV = vXR
    R([a.unstash('kvphi', vKV), a.unstash('kvv', vKV + 2), 'v_xor_b32 %s, 32, %s' % (v(vKV + 1), v(vKV)),
       'v_xor_b32 %s, 32, %s' % (v(vKV + 3), v(vKV + 2))])
    for i in range(4):
        a('v_mov_b32 %s, s%d' % (v(aQ + 12 + i), sONES))
    a('s_waitcnt lgkmcnt(0)')
    a('s_barrier')
    a.stamp('B1')
    for s in range(4):
        R('ds_read_b64_tr_b16 %s, %s offset:%d' % (v(vWB + 8 * s, 2), v(vKV), L_PHI + 2048 * s))
        R('ds_read_b64_tr_b16 %s, %s offset:%d' % (v(vWB + 8 * s + 2, 2), v(vKV + 1), L_PHI + 2048 * s + 256))
        R('ds_read_b64_tr_b16 %s, %s offset:%d' % (v(vWB + 8 * s + 4, 2), v(vKV + 2), L_V + 2048 * s))
        R('ds_read_b64_tr_b16 %s, %s offset:%d' % (v(vWB + 8 * s + 6, 2), v(vKV + 3), L_V + 2048 * s + 256))
    vDB = vA + 2
    R('buffer_load_dword %s, %s, %s, 0 offen sc1' % (v(vDB), v(vL4), sr(S_DBG)))
    a('v_lshlrev_b32 %s, 3, v0' % v(vA))
    R(a.unstash('zst', vA + 1))
    for s in range(4):
        R(mfma16(v(aK, 4), v(vWB + 8 * s, 4), v(vWB + 8 * s + 4, 4), '0' if s == 0 else v(aK, 4)))
        R(mfma16(v(aK + 4, 4), v(vWB + 8 * s, 4), v(aQ + 12, 4), '0' if s == 0 else v(aK + 4, 4)))
    for p in range(4):
        a('v_add_u32 %s, %d, %s' % (v(vWR + p), L_WQ, v(vWR + p)))
    R(blk_regs('bd2', vBD2))
    a('v_cvt_pk_bf16_f32 %s, %s, %s' % (v(aQ), v(aK), v(aK + 1)))
    a('v_cvt_pk_bf16_f32 %s, %s, %s' % (v(aQ + 1), v(aK + 2), v(aK + 3)))
    R('buffer_store_dwordx2 %s, %s, %s, s%d offen sc1' % (v(aQ, 2), v(vA), sr(S_WS), sREC))
    a('s_mov_b32 exec_lo, 0x00010001')
    a('s_mov_b32 exec_hi, 0x00010001')
    R('buffer_store_dwordx4 %s, %s, %s, s%d offen offset:2048 sc1' % (v(aK + 4, 4), v(vA + 1), sr(S_WS), sREC))
    R(Mark('kv'))
    a('s_mov_b64 exec, -1')
    a.stamp('kvst', 2)

    R(WaitVM('wq'))
    a('s_barrier')
    a.stamp('Bq', 2)
    def qoff(s):
        return (s >> 1) * 8192 + (s & 1) * 1024
    order = [(s, p) for p in range(4) for s in range(8)]
    def qreg(n):
        return (lambda o, k: v(vWB + 4 * n + o, k)) if n < 8 else (lambda o, k: ac(4 * (n - 8) + o, k))
    def qread(n):
        s, p = order[n]
        return ['ds_read_b64_tr_b16 %s, %s offset:%d' % (qreg(n)(2 * t, 2), v(vWR + p), qoff(s) + t * 256) for t in range(2)] + [Mark('q%d' % n)]
    for n in range(12):
        R(qread(n))
    a('v_mov_b32 %s, 0' % v(vT + 1))
    R(WaitDS('q7'))
    for r_ in range(32):
        d = csq if r_ & 1 else vT + 1
        a('v_dot2_f32_bf16 %s, %s, s%d, %s' % (v(d), v(vWB + r_), sONES, v(d)))
    a('v_lshlrev_b32 %s, 2, v0' % v(vT))
    a('v_add_f32 %s, %s, %s' % (v(csq), v(csq), v(vT + 1)))
    R('ds_write_b32 %s, %s offset:%d' % (v(vT), v(csq), L_CSQ))
    a.stamp('qdot', 2)
    qm, qp = [], []
    for n in range(32):
        s, p = order[n]
        g = []
        if n >= 8 and n % 4 == 0:
            g.append(WaitDS('q%d' % (n + 3)))
        g.append(mfma32(v(aQ, 16), qreg(n)(0, 4), v(X + (4 * s + p) * 4, 4), '0' if n == 0 else v(aQ, 16)))
        qm.append(g)
        qp.append(qread(n + 12) if n + 12 < 32 else [])
    n1 = cfg.get('q1', 12)
    a.fill(qm[:n1], window('Wb1') + ['v_lshlrev_b32 %s, 11, %s' % (v(vT), v(vL))], post=qp[:n1])
    a.stamp('q1', 2)
    R(WaitVM('kv'))
    a.stamp('kvack', 2)
    check_done(None, 16, vDB, 0)
    a('s_waitcnt lgkmcnt(0)')
    a('s_barrier')
    push_flags(sFA, 0, vT)
    lab = a.uniq('L_noid')
    a('s_getreg_b32 s%d, hwreg(HW_REG_XCC_ID, 0, 4)' % sXID)
    a('s_add_u32 s%d, s%d, 1' % (sXID, sXID))
    a('s_cmp_lg_u32 s%d, 0' % sW)
    a('s_cbranch_scc1 %s' % lab)
    a('s_add_u32 s%d, s%d, %d' % (sT5, sFME, 5 * 32768))
    a('v_mov_b32 %s, s%d' % (v(vT + 3), sXID))
    a('s_mov_b64 exec, 1')
    a('buffer_store_dword %s, %s, %s, s%d offen sc1' % (v(vT + 3), v(vL4), sr(S_WS), sT5))
    a('s_mov_b64 exec, -1')
    a.label(lab)
    a.stamp('pushA')
    R(touches('pa'))
    qx = ['ds_read_b32 %s, %s offset:%d' % (v(vA + 4 + w), v(vL4), L_CSQ + 256 * w) for w in range(4)]
    qy = ['v_add_f32 %s, %s, %s' % (v(vA + 4), v(vA + 4), v(vA + 5)),
          'v_add_f32 %s, %s, %s' % (v(vA + 6), v(vA + 6), v(vA + 7)),
          'v_add_f32 %s, %s, %s' % (v(csq), v(vA + 4), v(vA + 6))] + a_ext(vA + 4, csq, vT + 1)
    a.fill(qm[n1:], qx + merge(window('Wb2'), qy), post=qp[n1:])
    R(mfma32(v(aQ, 16), v(vA + 4, 4), v(vBX, 4), v(aQ, 16)))
    XR = vWB + 24
    R([a.unstash('w2', vW2), 'v_xor_b32 %s, 512, %s' % (v(vW2 + 1), v(vW2)),
       'v_add_u32 %s, %d, %s' % (v(vW2 + 2), R2, v(vW2)), 'v_add_u32 %s, %d, %s' % (v(vW2 + 3), R2, v(vW2 + 1))])
    R(a.unstash('bd1', vB1))
    for q in range(1, 4):
        a('v_add_u32 %s, %d, %s' % (v(vB1 + q), (q >> 1) * 8 * 3584 + (q & 1) * 128 - 1024 * q, v(vB1)))
    R(window('Wb3'))
    R(touches('b3'))
    a.stamp('qgemm', 2)
    for i in range(8):
        a('v_cvt_pk_bf16_f32 %s, %s, %s' % (v(vWB + i), v(aQ + 2 * i), v(aQ + 2 * i + 1)))
    R(mfma32(v(aK, 16), ac(PA1, 4), v(vWB, 4), '0'))
    R(mfma32(v(aK, 16), ac(PA2, 4), v(vWB + 4, 4), v(aK, 16)))
    R([a.unstash('gld', vA), a.unstash('zld', vA + 1), a.unstash('kbw', vA + 2), a.unstash('kbz', vA + 3), a.unstash('kbr', vA + 4),
       'v_lshlrev_b32 %s, 7, %s' % (v(vL128), v(vL))])
    PQ = aQ
    sm = softmax_ops(aK, vWB, PQ, cexp, aV)
    for q in range(4):
        sm.append('v_permlane32_swap_b32 %s, %s' % (v(PQ + q), v(PQ + 4 + q)))
        sm.append('v_permlane32_swap_b32 %s, %s' % (v(PQ + 8 + q), v(PQ + 12 + q)))
    ns = cfg.get('smpre', 0)
    R(sm[:ns])
    a.stamp('qsm', 2)

    poll(0, 16)
    a('s_barrier')
    a.stamp('gotA')
    G = X + 64
    GZ = X + 96
    gl = []
    for p in range(8):
        g = ['buffer_load_dwordx4 %s, %s, %s, s%d offen sc1' % (v(G + 4 * p, 4), v(vA), sr(S_WS), sGAT)]
        if p == 0:
            g.append('buffer_load_dwordx4 %s, %s, %s, s%d offen offset:2048 sc1' % (v(GZ, 4), v(vA + 1), sr(S_WS), sGAT))
        if p < 7:
            g.append('s_add_u32 s%d, s%d, %d' % (sGAT, sGAT, 2 * KVREC))
        if p % 2 == 1:
            g.append(Mark('g%d' % (p // 2)))
        gl.append(g)
    ng = cfg.get('gfirst', 8)
    R(gl[:ng])
    a.stamp('gl', 2)
    R(WaitVM('p0'))
    R(w2_park(0))
    a.stamp('park0', 2)
    e0 = max(ns, cfg.get('gsplit', 66))
    R(sm[ns:e0])
    R(gl[ng:])
    vID = vS + 1
    R(check_issue(5, vID, None))
    lab = a.uniq('L_nowf')
    a('s_cmp_lg_u32 s%d, 1' % sW)
    a('s_cbranch_scc1 %s' % lab)
    a('v_lshlrev_b32 %s, 15, %s' % (v(vRB), v(vL)))
    a('s_mov_b64 exec, 0x1e')
    a('buffer_load_dword %s, %s, %s, s%d offen sc1' % (v(vRB), v(vRB), sr(S_WS), sFB))
    a('s_mov_b64 exec, -1')
    a.label(lab)
    R(window('Wc'))
    R(touches('wc'))
    a.stamp('gl2', 2)
    R(sm[e0:])
    a.stamp('sm2', 2)
    R([a.unstash('xd', vT), 'v_add_u32 %s, %d, %s' % (v(vT + 1), 16384 - 1024, v(vT)),
       's_add_u32 m0, s%d, %d' % (sLW2, R2 + 4096),
       'buffer_load_dwordx4 %s, %s, s%d offen lds' % (v(vT), sr(S_X), sOUT),
       'buffer_load_dwordx4 %s, %s, s%d offen offset:1024 lds' % (v(vT + 1), sr(S_X), sOUT), Mark('xr')])
    a.stamp('qsm2', 2)
    for sh in (1, 2, 4, 8):
        for i in range(4):
            a('v_add_f32_dpp %s, %s, %s row_ror:%d row_mask:0xf bank_mask:0xf' % (v(GZ + i), v(GZ + i), v(GZ + i), sh))
    a('v_cvt_pk_bf16_f32 %s, %s, %s' % (v(aK + 6), v(GZ), v(GZ + 1)))
    a('v_cvt_pk_bf16_f32 %s, %s, %s' % (v(aK + 7), v(GZ + 2), v(GZ + 3)))
    R('ds_write_b64 %s, %s offset:%d' % (v(vA + 3), v(aK + 6, 2), 16 * 80))
    S8 = aK + 8
    for p in range(8):
        if p % 2 == 0:
            R(WaitVM('g%d' % (p // 2)))
        for i in range(8):
            a('v_dot2_f32_bf16 %s, %s, s%d, %s' % (v(S8 + i), v(G + 4 * p + (i >> 1)), sSEL1 if i & 1 else sSEL0,
                                                  '0' if p == 0 else v(S8 + i)))
    for i in range(4):
        a('v_permlane32_swap_b32 %s, %s' % (v(S8 + i), v(S8 + 4 + i)))
    a('v_pk_add_f32 %s, %s, %s' % (v(aK, 2), v(S8, 2), v(S8 + 4, 2)))
    a('v_pk_add_f32 %s, %s, %s' % (v(aK + 2, 2), v(S8 + 2, 2), v(S8 + 6, 2)))
    a('v_cvt_pk_bf16_f32 %s, %s, %s' % (v(aK + 4), v(aK), v(aK + 1)))
    a('v_cvt_pk_bf16_f32 %s, %s, %s' % (v(aK + 5), v(aK + 2), v(aK + 3)))
    a.stamp('gdot', 2)
    R('ds_write_b64 %s, %s' % (v(vA + 2), v(aK + 4, 2)))
    check_done(5, 16, vID, None)
    R(WaitVM('o3'))
    a('s_waitcnt lgkmcnt(0)')
    a('s_barrier')
    a.stamp('B4', 2)
    for h in range(2):
        for s in range(2):
            R('ds_read_b128 %s, %s offset:%d' % (v(vWB + (h * 2 + s) * 4, 4), v(vA + 4), h * 17 * 80 + s * 32))
    for h in range(2):
        acc = v(aK if h == 0 else aV, 16)
        R(mfma32(acc, v(vWB + h * 8, 4), v(PQ + 4 * h, 4), '0'))
        R(mfma32(acc, v(vWB + h * 8 + 4, 4), v(PQ + 8 + 4 * h, 4), acc))
    for h in range(2):
        acc = aK if h == 0 else aV
        a('v_add_f32 %s, 0x358637bd, %s' % (v(acc + 8), v(acc + 8)))
        a('v_rcp_f32 %s, %s' % (v(acc + 8), v(acc + 8)))
        for i in range(8):
            a('v_mul_f32 %s, %s, %s' % (v(acc + i), v(acc + i), v(acc + 8)))
        for i in range(4):
            a('v_cvt_pk_bf16_f32 %s, %s, %s' % (v(acc + 12 + i), v(acc + 2 * i), v(acc + 2 * i + 1)))
        dual(['buffer_store_dwordx4 %s, %s, %s, s%d offen offset:%d' % (v(acc + 12, 4), v(vFR), sr(S_WS), sOST, h * 1024)], cfg.get('lo', 1))
    R(Mark('o'))
    a.stamp('ost', 2)
    vWO = vXD
    R([a.unstash('wo', vWO), 'v_xor_b32 %s, 512, %s' % (v(vWO + 1), v(vWO))])
    R([a.unstash('w1', vW1), 'v_add_u32 %s, 65536, %s' % (v(vW1 + 1), v(vW1)), a.unstash('xr', vT)])
    R([a.unstash('red3', vA), 'v_xor_b32 %s, 16384, %s' % (v(vA + 1), v(vA))])
    wop = []
    for s in range(16):
        for rho in range(2):
            for t in range(2):
                wop.append('ds_read_b64_tr_b16 %s, %s offset:%d' % (ac((s * 2 + rho) * 4 + 2 * t, 2), v(vWO + rho), s * 2048 + t * 256))
    R(merge(wop, window('Wd0')))
    R(WaitVM('o'))
    a('s_barrier')
    arrive(1)
    a.stamp('pushB')
    R(['ds_read_b128 %s, %s' % (v(XR, 4), v(vT)), 'ds_read_b128 %s, %s offset:16' % (v(XR + 4, 4), v(vT))])
    k1 = 4 * landed('Wc')
    R(merge(w1_reads(0, k1), window('Wd')))
    R(Mark('Wd'))
    for i in range(8):
        a('v_lshlrev_b32 %s, 16, %s' % (v(aQ + 2 * i), v(XR + i)))
        a('v_and_b32 %s, 0xffff0000, %s' % (v(aQ + 2 * i + 1), v(XR + i)))
    a.stamp('wopark', 2)

    poll(1, 16)
    R(WaitVM('Wd'))
    a('s_waitcnt lgkmcnt(0)')
    a('s_barrier')
    a.stamp('gotB')
    OB = X + 64
    ol = []
    for s in range(16):
        g = []
        if s % 4 == 0:
            g += ['s_add_u32 s%d, s%d, s%d' % (sT2, sR3, sOLD)] + step(sR3, 4096, 16384)
        g.append('buffer_load_dwordx4 %s, %s, %s, s%d offen offset:%d %s' % (v(OB + 4 * s, 4), v(vFR), sr(S_WS), sT2, (s % 4) * 1024, SC))
        ol.append(g)
    no = cfg.get('ofirst', 10)
    R(ol[:no])
    a.stamp('old', 2)
    pm = []
    for s in range(16):
        for rho in range(2):
            acc = v(aK if rho == 0 else aV, 16)
            pm.append([mfma32(acc, ac((s * 2 + rho) * 4, 4), v(OB + 4 * s, 4), '0' if s == 0 else acc)])
    k2 = min(16, 4 * landed('Wd'))
    R(w1_reads(k1, k2))
    if where['p1'] == 6:
        R(w2_park(1))
    a.stamp('park1', 2)
    post = [[] for _ in pm]
    for k, g in enumerate(ol[no:]):
        post[2 * k] = g
    if where['p1'] != 7:
        a.fill(pm, window('We'), cfg.get('wefirst', 14), post=post)
    else:
        a.fill(pm, window('We') + [WaitVM('p1')] + w2_park(1), 14, post=post)
    a.stamp('p3mf', 2)
    for q in range(4):
        R('ds_write_b128 %s, %s offset:%d' % (v(vA), v(aV + 4 * q, 4), q * 1024))
    for i in range(0, 16, 2):
        a('v_pk_add_f32 %s, %s, %s' % (v(aK + i, 2), v(aK + i, 2), v(aQ + i, 2)))
    a('s_waitcnt lgkmcnt(0)')
    a('s_barrier')
    for q in range(4):
        R('ds_read_b128 %s, %s offset:%d' % (v(aV + 4 * q, 4), v(vA + 1), q * 1024))
    HP = vA
    for half in range(2):
        for i in range(8 * half, 8 * half + 8, 2):
            a('v_pk_add_f32 %s, %s, %s' % (v(aK + i, 2), v(aK + i, 2), v(aV + i, 2)))
        for i in range(8 * half, 8 * half + 8, 2):
            a('v_cvt_pk_bf16_f32 %s, %s, %s' % (v(HP + i // 2), v(aK + i), v(aK + i + 1)))
        dual(['buffer_store_dwordx4 %s, %s, %s, s%d offen offset:%d' % (v(HP + 4 * half, 4), v(vFR), sr(S_WS), sHST, half * 1024)], cfg.get('lh', 1))
    for i in range(8):
        a('v_dot2_f32_bf16 %s, %s, s%d, %s' % (v(vT), v(HP + i), sONES, '0' if i == 0 else v(vT)))
        a('v_dot2_f32_bf16 %s, %s, %s, %s' % (v(vT + 1), v(HP + i), v(HP + i), '0' if i == 0 else v(vT + 1)))
    a('v_permlane32_swap_b32 %s, %s' % (v(vT), v(vT + 1)))
    a('v_add_f32 %s, %s, %s' % (v(vT), v(vT), v(vT + 1)))
    dual(['buffer_store_dword %s, %s, %s, s%d offen' % (v(vT), v(vL4), sr(S_WS), sSST)], cfg.get('lh', 1))
    R(Mark('h'))
    a.stamp('hst', 2)
    R(a.unstash('bias', vT + 2))
    R('buffer_load_ushort %s, %s, %s, 0 offen' % (v(vS + 12), v(vT + 2), sr(S_B1)))
    R(window('Wf0'))
    R(w1_dots(0, k2))
    R(['v_add_u32 %s, %d, %s' % (v(vW2c), R1, v(vW2)), 'v_add_u32 %s, %d, %s' % (v(vW2c + 1), R1, v(vW2 + 1))])
    R(WaitVM('h'))
    if cfg.get('rbh', 0):
        R(readback(sHST, 16, vRB, sSST))
    a('s_barrier')
    arrive(2)
    a.stamp('pushC')
    R(window('Wf'))
    vAL = vXD + 2
    a('v_add_u32 %s, s%d, %s' % (v(vAL), sALD, v(vFR)))
    a('v_add_u32 %s, %d, %s' % (v(vAL + 1), 2 * 112 * 1024, v(vAL)))
    vHR = vWR + 2
    a('v_mov_b32 %s, %s' % (v(vHR), v(vFR)))
    a('v_add_u32 %s, 65536, %s' % (v(vHR + 1), v(vFR)))
    a('s_lshl_b32 s%d, s%d, 10' % (sT2, sW))
    a('v_add_u32 %s, s%d, %s' % (v(vWR), sT2, v(vHR + 1)))
    BX4 = vWB + 24
    AXR = vWB + 28
    a('v_mov_b32 %s, 0' % v(BX4 + 3))
    a('s_cmp_ge_u32 s%d, 14' % sJ)
    a('s_cbranch_scc1 L_idle')
    k3 = min(cfg.get('k3', 16), 4 * landed('We'))
    R(w1_reads(k2, k3))
    R(w1_dots(k2, k3))
    sx(sT2, [(sJ, 80 * 128), (sW, 20 * 128)])
    sx(sT3, [(sI, 4 << 15)], H_)
    a('v_lshlrev_b32 %s, 7, %s' % (v(vT + 1), v(vL)))
    a('v_add_u32 %s, s%d, %s' % (v(vT + 1), sT2, v(vT + 1)))
    a('v_min_u32 %s, %d, %s' % (v(vT + 1), 131072 - 128, v(vT + 1)))
    a.stamp('w1park', 2)

    poll(2, 16)
    R(WaitVM('g7'))
    a('s_waitcnt lgkmcnt(0)')
    a('s_barrier')
    a.stamp('gotC')
    def h_dma(tau, half):
        sb = sHL1 if half else sHL0
        return ['s_add_u32 m0, s%d, %d' % (sLW1, tau * 32768 + half * 16384)] + [
            'buffer_load_dwordx4 %s, %s, s%d offen offset:%d %s lds' % (v(vFR), sr(S_WS), sb, b * 1024, SC) for b in range(4)
        ] + ['s_add_u32 s%d, s%d, 32768' % (sb, sb), Mark('h%d%d' % (tau, half))]
    R(h_dma(0, 0))
    R(h_dma(0, 1))
    SB = aQ
    L_ST = L_BX + 8192
    st_dma = ['s_add_u32 m0, s%d, %d' % (sLW1, L_ST)] + [
        'buffer_load_dwordx4 %s, %s, s%d offen offset:%d %s lds' % (v(vFR), sr(S_WS), sSLD, b * 1024, SC) for b in range(4)] + [Mark('st')]
    st_reads = [WaitVM('st')] + ['ds_read_b32 %s, %s offset:%d' % (v(SB + ct), v(vWR + 1), ct * 256) for ct in range(16)]
    a('s_add_u32 s%d, s%d, %d' % (sT2, sLW1, L_ST))
    a('v_add_u32 %s, s%d, %s' % (v(vWR + 1), sT2, v(vL4)))
    if cfg.get('touchh', 0):
        a('s_mov_b64 exec, 0xfffff')
        R('buffer_load_dword %s, %s, %s, s%d offen %s' % (v(vT + 2), v(vT + 1), sr(S_WS), sT3, SC))
        a('s_mov_b64 exec, -1')
    R(w1_reads(k3, 32))
    tables()
    kd1, kd2 = cfg.get('dots', [20, 26])
    R(w1_dots(k3, kd1))
    aext = ['v_add_f32 %s, %s, %s' % (v(AXR + 3), v(cs1), v(cs1 + 1))] + split_hl(AXR + 3, vT + 1, vT, AXR) + [
        'v_cvt_pk_bf16_f32 %s, %s, 0' % (v(AXR + 1), v(vT)),
        'v_lshl_or_b32 %s, %s, 16, %s' % (v(AXR + 1), v(vS + 12), v(AXR + 1)),
        'v_mov_b32 %s, %s' % (v(AXR + 2), v(vS + 12)), 'v_mov_b32 %s, 0' % v(AXR + 3)]
    a('s_waitcnt lgkmcnt(0)')
    a.stamp('w1b', 2)
    BXA = A_STASH
    vCK = vS + 1
    NR, LA = 12, 8
    def bread(n):
        tau, ks = n >> 5, n & 31
        off = tau * 32768 + ks * 1024
        return ['ds_read_b128 %s, %s offset:%d' % (ac(4 * (n % NR), 4), v(vHR + (off >> 16)), off & 0xffff), Mark('b%d' % n)]
    stats = []
    for i in range(8):
        stats.append('v_add_f32 %s, %s, %s' % (v(SB + i), v(SB + i), v(SB + 8 + i)))
    for i in range(4):
        stats.append('v_add_f32 %s, %s, %s' % (v(SB + i), v(SB + i), v(SB + 4 + i)))
    stats += ['v_add_f32 %s, %s, %s' % (v(SB), v(SB), v(SB + 2)), 'v_add_f32 %s, %s, %s' % (v(SB + 1), v(SB + 1), v(SB + 3)),
              'v_add_f32 %s, %s, %s' % (v(SB), v(SB), v(SB + 1)), 'v_mov_b32 %s, %s' % (v(SB + 1), v(SB)),
              'v_permlane32_swap_b32 %s, %s' % (v(SB), v(SB + 1))]
    stats += ln_ops(SB, SB + 1, SB + 2, SB + 15)
    stats += ['v_mul_f32 %s, %s, %s' % (v(SB + 4), v(SB + 1), v(SB + 15)), 'v_sub_f32 %s, 0, %s' % (v(SB + 2), v(SB + 2))]
    stats += split_hl(SB + 2, SB + 5, SB + 6, SB + 3) + split_hl(SB + 4, SB + 7, SB + 8, SB + 3)
    stats += ['v_cvt_pk_bf16_f32 %s, %s, %s' % (v(SB + 12), v(SB + 5), v(SB + 6)),
              'v_cvt_pk_bf16_f32 %s, %s, %s' % (v(SB + 13), v(SB + 5), v(SB + 7)),
              'v_cvt_pk_bf16_f32 %s, %s, 0' % (v(SB + 14), v(SB + 8)),
              'v_mul_f32 %s, 0x%x, %s' % (v(SB + 15), LOG2E, v(SB + 15)),
              'ds_write_b128 %s, %s offset:%d' % (v(vWR), v(SB + 12, 4), L_BX - 65536)]

    ACCS = [aK, aV, vWB + 8]
    PKS = [aQ, aQ + 8]
    T = lambda e: v(vWB + e % 4)
    Y = lambda e: v(ACCS[(e >> 4) % 3] + (e & 15))
    C1 = lambda e: v(vS + 12 + ((e >> 4) & 1))
    def elem_ops(m):
        E, o = m >> 1, []
        ok = lambda e: 0 <= e < 64
        if m % 2 == 0:
            if ok(E):
                o.append('v_mul_f32 %s, %s, %s' % (Y(E), Y(E), C1(E)))
            if ok(E - 1):
                o.append('v_fma_f32 %s, %s, s%d, s%d' % (T(E - 1), T(E - 1), sRS, sRS))
            if ok(E):
                o.append('v_exp_f32 %s, %s' % (T(E), Y(E)))
        else:
            if ok(E - 1):
                o.append('v_fma_f32 %s, %s, %s, 0.5' % (T(E - 1), T(E - 1), T(E - 1)))
            if ok(E - 2):
                o.append('v_fma_f32 %s, -%s, %s, %s' % (Y(E - 2), T(E - 2), Y(E - 2), Y(E - 2)))
            if ok(E - 1):
                o.append('v_rcp_f32 %s, %s' % (T(E - 1), T(E - 1)))
            if ok(E - 2) and E & 1:
                e = E - 2
                o.append('v_cvt_pk_bf16_f32 %s, %s, %s' % (v(PKS[(e >> 4) & 1] + (e & 15) // 2), Y(e - 1), Y(e)))
        return o
    def act_store(tau):
        return ['buffer_store_dwordx4 %s, %s, %s, s%d offen offset:%d %s' % (v(PKS[tau & 1] + 4 * h, 4), v(vFR), sr(S_WS), sAST, h * 1024, SC)
                for h in range(2)] + ['s_add_u32 s%d, s%d, %d' % (sAST, sAST, 112 * 1024), Mark('act%d' % tau)]
    def ext_regs(tau):
        return ['v_accvgpr_read_b32 %s, %s' % (v(BX4 + i), ac(BXA + 4 * tau + i)) for i in range(3)] + [
            'v_accvgpr_read_b32 %s, %s' % (C1(16 * tau), ac(BXA + 4 * tau + 3))]
    bx_reads = ['ds_read_b128 %s, %s offset:%d' % (ac(BXA + 4 * t_, 4), v(vHR + 1), L_BX - 65536 + t_ * 1024) for t_ in range(4)]

    bars = {10: 'h01', 26: 'h11', 58: 'h21', 90: 'h31'}
    lim = lambda n: 16 if n < 10 else (32 if n < 26 else (64 if n < 58 else (96 if n < 90 else 128)))
    M0 = 36
    def paced(items):
        out, cur = [], []
        for x in items:
            if isinstance(x, str) and x.startswith('buffer_'):
                out.append(cur + [x])
                cur = []
            elif isinstance(x, str) and 'm0' in x:
                cur.append(x)
            else:
                out[-1].append(x)
        return out
    at_mem, at_val = {}, {}
    kd = cfg.get('pushd', 128)
    busy = [-1]
    def place(n0, items, every=2):
        assert n0 > busy[0], (n0, busy)
        for k, g in enumerate(paced(items)):
            busy[0] = n0 + int(k * every)
            at_mem.setdefault(busy[0], []).extend(g)
    P = dict(h1=[0, 2], h2=[16, 1.5], p3=[28, 1], p4=[36, 2], h3=[58, 2], p5=[76, 2], p6=[92, 1.5])
    if LATE2:
        P = dict(h1=[6, 2], h2=[24, 2], p2=[40, 2], h3=[58, 2], p4=[74, 1.75], p5=[88, 2], p3=[106, 1.25], p6=[116, 1.25])
    P.update(cfg.get('p4plan', {}))
    assert P['p4'][0] >= 26 and P['h3'][0] >= 58 and P['p5'][0] >= 58 and P['p6'][0] >= 90
    place(0, st_dma, 1.5)
    ns_ = cfg.get('stn', 14)
    for k in range(4):
        at_mem.setdefault(ns_ + k // 2, []).extend(st_reads[4 * k + (1 if k else 0):4 * k + 5])
    pk = w2_park(1 if LATE2 else 2)
    for k in range(8):
        at_mem.setdefault(k, []).extend(pk[2 * k:2 * k + 2] + ([pk[16]] if k == 7 else []))
    if LATE2:
        assert P['p2'][0] > 10
        n2 = cfg.get('park2', 66)
        pk = w2_park(2)
        at_mem.setdefault(n2, []).append(WaitVM('w2_2'))
        for k in range(16):
            at_mem.setdefault(n2 + 1 + 2 * k, []).extend([pk[k]] + ([pk[16]] if k == 15 else []))
        assert P['p3'][0] >= n2 + 36
        at_mem.setdefault(P['p3'][0] - 1, []).append(WaitDS('park2'))
    else:
        assert P['p3'][0] > 10
    for name in sorted(P, key=lambda z: P[z][0]):
        t_ = int(name[1])
        place(P[name][0], h_dma(t_, 0) + h_dma(t_, 1) if name[0] == 'h' else w2_dma(t_), P[name][1])
    at_mem.setdefault(27, []).extend(bx_reads)
    ks0 = cfg.get('st0', M0 + 38)
    assert ks0 >= M0 + 36
    at_mem.setdefault(ks0, []).extend(act_store(0))
    at_mem.setdefault(M0 + 68, []).extend(act_store(1))
    nsp = 25 - (ns_ + 3)
    per = (len(stats) + nsp - 1) // nsp
    for k in range(nsp):
        at_val.setdefault(ns_ + 3 + k, []).extend(stats[k * per:(k + 1) * per])
    at_val.setdefault(26, []).extend(aext[:4])
    at_val.setdefault(27, []).extend(aext[4:])
    for tau in range(4):
        er = ext_regs(tau)
        at_val.setdefault(32 * tau + 29, []).extend(er[:2])
        at_val.setdefault(32 * tau + 30, []).extend(er[2:3])
        at_val.setdefault(32 * tau + 31, []).extend(er[3:])
    R(WaitVM('h00'))
    a('s_barrier')
    a.stamp('h00', 2)
    for n in range(LA):
        R(bread(n))
    nxt = LA
    for n in range(128):
        tau, ks = n >> 5, n & 31
        acc = v(ACCS[tau % 3], 16)
        if n == 10:
            R(w1_dots(kd1, kd2))
        if n == 26:
            R(w1_dots(kd2, 32))
        if n in bars:
            R([WaitVM(bars[n]), 's_waitcnt lgkmcnt(0)', 's_barrier'])
            a.stamp('bar%d' % n, 2)
        if n == kd:
            R(WaitVM('act1'))
            a('s_barrier')
            arrive(3)
            a.stamp('pushD', 2)
        if n % 4 == 0 and n not in bars:
            R(WaitDS('b%d' % min(n + 3, nxt - 1)))
        R(mfma32(acc, v(X + 4 * ks, 4), ac(4 * (n % NR), 4), '0' if ks == 0 else acc))
        if ks == 31:
            R(mfma32(acc, v(AXR, 4), v(BX4, 4), acc))
        mem = at_mem.pop(n, [])
        R([x for x in mem if isinstance(x, str) and 'm0,' in x])
        k = 0
        while nxt < min(n + LA + 2, lim(n + 1) if n + 1 not in bars else lim(n)) and k < 2:
            R(bread(nxt))
            nxt += 1
            k += 1
        R([x for x in mem if not (isinstance(x, str) and 'm0,' in x)])
        R(elem_ops(n - M0) if n >= M0 else [])
        R(at_val.pop(n, []))
        if ks == 31:
            a.stamp('t%d' % tau, 2)
    assert not at_mem and not at_val, (at_mem.keys(), at_val.keys())
    PRE = cfg.get('p5pre', 12)
    def bload(n):
        t, ks = n // 28, n % 28
        return ['buffer_load_dwordx4 %s, %s, %s, s%d offen offset:%d %s' % (
            v(X + 4 * (n % 32), 4), v(vAL + t), sr(S_WS), TAC + ks // 2, (ks % 2) * 1024, SC), Mark('a%d' % n)]
    tail = [x for m in range(128 - M0, 134) for x in elem_ops(m)]
    h0, h2, h1 = cfg.get('tail', [0, 24, 30])
    ev = {}
    def pd():
        R(WaitVM('act1'))
        a('s_barrier')
        arrive(3)
        a.stamp('pushD', 2)
    assert h1 >= sum(len(elem_ops(m)) for m in range(128 - M0, 100))
    if kd >= 128:
        ev.setdefault(h0, []).append(pd)
    ev.setdefault(h2, []).append(check_issue(3, vCK, 3))
    ev.setdefault(h1, []).append(act_store(2))
    for k in range(len(tail) + 1):
        R(ev.pop(k, []))
        if k < len(tail):
            R(tail[k])
    assert not ev
    R(act_store(3))
    a.stamp('mish', 2)
    check_done(3, 14, vCK, 3)
    a('s_barrier')
    a.stamp('gotD')
    for n in range(PRE):
        R(bload(n))
    R(WaitVM('act3'))
    a('s_barrier')
    arrive(4)
    a.stamp('pushE', 2)
    join = (a.vmn, a.dsn)
    a('s_branch L_p5')
    a.label('L_idle')
    saved = dict(a.marks)
    if (cfg.get('lo', 1) or cfg.get('lh', 1)) and cfg.get('wb', 1):
        lab = a.uniq('L_nowb')
        a('s_cmp_lg_u32 s%d, 14' % sJ)
        a('s_cbranch_scc1 %s' % lab)
        poll(2, 16)
        a('s_cmp_lg_u32 s%d, 0' % sW)
        a('s_cbranch_scc1 %s' % lab)
        for _ in range(cfg.get('wbdelay', 0)):
            a('s_sleep 8')
        a('buffer_wbl2 sc1')
        a.label(lab)
    tables()
    a('s_waitcnt vmcnt(0)')
    a('s_barrier')
    if LATE2:
        R(w2_park(1))
        a('s_waitcnt lgkmcnt(0)')
        R(w2_dma(2))
        a('s_waitcnt vmcnt(0)')
    R(w2_park(2))
    a('s_waitcnt lgkmcnt(0)')
    for q in range(3, 7):
        R(w2_dma(q))
    poll(3, 14, 3)
    a('s_barrier')
    for n in range(PRE):
        R(bload(n))
    a.vmn, a.dsn = join
    a.marks = saved
    a.label('L_p5')

    ACC = 32
    def areads(ks):
        n, a_ = ks >> 1, ks & 1
        q, h = n >> 1, n & 1
        if q < 3:
            return []
        return w2_read(q, h, a_, 0) + w2_read(q, h, a_, 1)
    vRW, vRR, vOS = vWR, vS + 2, vS + 3
    pre = ['v_lshrrev_b32 %s, 5, %s' % (v(vT), v(vL)), 'v_lshlrev_b32 %s, 6, %s' % (v(vT), v(vT)),
           'v_xor_b32 %s, %s, %s' % (v(vT), v(vT), v(vFR)),
           's_mul_i32 s%d, s%d, %d' % (sT2, sKH, 4096 + 128), 's_add_u32 s%d, s%d, s%d' % (sT2, sT2, sLW2),
           'v_xor_b32 %s, s%d, %s' % (v(vRW), sT2, v(vT)), 'v_xor_b32 %s, 32, %s' % (v(vRW + 1), v(vRW)),
           'v_xor_b32 %s, %d, %s' % (v(vRW + 2), 4096 + 128, v(vRW)), 'v_xor_b32 %s, %d, %s' % (v(vRW + 3), 4096 + 128 + 32, v(vRW))]
    pre2 = ['s_lshl_b32 s%d, s%d, 3' % (sT2, sW), 'v_lshrrev_b32 %s, 3, %s' % (v(vT), v(vL)),
            'v_add_u32 %s, s%d, %s' % (v(vT), sT2, v(vT)),
            'v_and_b32 %s, 7, %s' % (v(vT + 1), v(vL)),
            'v_lshlrev_b32 %s, 4, %s' % (v(vOS), v(vT + 1)), 'v_lshl_add_u32 %s, %s, 10, %s' % (v(vOS), v(vT), v(vOS)),
            'v_lshlrev_b32 %s, 1, %s' % (v(vT + 2), v(vT + 1)), 'v_xor_b32 %s, %s, %s' % (v(vT), v(vT), v(vT + 2)),
            'v_lshlrev_b32 %s, 4, %s' % (v(vRR), v(vT)),
            'v_bfe_u32 %s, %s, 1, 1' % (v(vT + 2), v(vL)), 'v_lshl_add_u32 %s, %s, 9, %s' % (v(vRR), v(vT + 2), v(vRR)),
            'v_and_b32 %s, 1, %s' % (v(vT + 2), v(vL)), 'v_lshl_add_u32 %s, %s, 11, %s' % (v(vRR), v(vT + 2), v(vRR)),
            'v_bfe_u32 %s, %s, 2, 1' % (v(vT + 2), v(vL)), 'v_lshl_add_u32 %s, %s, 12, %s' % (v(vRR), v(vT + 2), v(vRR)),
            's_lshl_b32 s%d, s%d, 16' % (sT2, sTT), 's_lshl_b32 s%d, s%d, 6' % (sT3, sKH),
            's_add_u32 s%d, s%d, s%d' % (sT2, sT2, sT3), 's_sub_u32 s%d, s%d, s%d' % (sOUT, sOUT, sT2)]
    def red_writes(t):
        return ['ds_write_b128 %s, %s offset:%d' % (v(vRW + 2 * rc + (q >> 1)), v(ACC + 16 * (2 * t + rc) + 4 * q, 4), t * 32768 + q * 1024)
                for rc in (1, 0) for q in range(4)]
    HU = vWB + 16
    unpack = []
    for i in range(8):
        unpack.append('v_lshlrev_b32 %s, 16, %s' % (v(HU + 2 * i), v(HP + i)))
        unpack.append('v_and_b32 %s, 0xffff0000, %s' % (v(HU + 2 * i + 1), v(HP + i)))
    sM0, sM1 = sT0, sT1
    res0 = ['v_fma_f32 %s, %s, s%d, %s' % (v(ACC + i), v(HU + i), sM0, v(ACC + i)) for i in range(16)]
    res1 = ['v_mul_f32 %s, s%d, %s' % (v(ACC + 32 + i), sM1, v(HU + i)) for i in range(16)]
    def red_reads(t, dst):
        return ['ds_read_b128 %s, %s offset:%d' % (v(dst + 8 * src + 4 * e, 4), v(vRR), t * 32768 + src * 8192 + e * 1024)
                for src in range(4) for e in range(2)]
    def red_sum(t, dst):
        o = ['v_add_f32 %s, %s, %s' % (v(dst + i), v(dst + i), v(dst + 8 + i)) for i in range(8)]
        o += ['v_add_f32 %s, %s, %s' % (v(dst + 16 + i), v(dst + 16 + i), v(dst + 24 + i)) for i in range(8)]
        o += ['v_add_f32 %s, %s, %s' % (v(dst + i), v(dst + i), v(dst + 16 + i)) for i in range(8)]
        o += ['v_mul_f32 %s, s%d, %s' % (v(dst + i), sLN2, v(dst + i)) for i in range(8)]
        o += ['v_cvt_pk_bf16_f32 %s, %s, %s' % (v(dst + 8 + i), v(dst + 2 * i), v(dst + 2 * i + 1)) for i in range(4)]
        o += ['buffer_store_dwordx4 %s, %s, %s, s%d offen %s' % (v(dst + 8, 4), v(vOS), sr(S_OUT), sOUT, cfg.get('outf', 'sc1'))]
        if t == 0:
            o.append('s_add_u32 s%d, s%d, 65536' % (sOUT, sOUT))
        return o
    a('s_cmp_eq_u32 s%d, 0' % sTT)
    a('s_cselect_b32 s%d, 0x%x, 0' % (sM0, LOG2E))
    a('s_cselect_b32 s%d, 0, 0x%x' % (sM1, LOG2E))
    ALA = 3
    sched = {}
    def put(n0, items, per):
        for k in range(0, len(items), per):
            sched.setdefault(n0 + k // per, []).extend(items[k:k + per])
    put(1, pre, 5)
    put(3, unpack, 4)
    put(28, pre2, 7)
    rw = red_writes(0)
    put(30, rw[:4], 2)
    put(7, res1, 8)
    put(31, res0, 8)
    put(33, rw[4:], 2)
    put(38, red_reads(0, ACC), 4)
    put(41, red_sum(0, ACC), 8)
    order5 = [(n, rc) for n in range(56) for rc in range(2)]
    nl = cfg.get('lastsplit', 6)
    if nl:
        order5 = order5[:-2 * nl] + [(n, 1) for n in range(56 - nl, 56)] + [(n, 0) for n in range(56 - nl, 56)]
    rw1 = red_writes(1)
    for n in range(56):
        t, ks = n // 28, n % 28
        side = []
        if t == 0 and ks + ALA < 28:
            side += areads(ks + ALA)
        if n == 28 - PRE - 3:
            R(check_issue(4, vCK, 3))
        if n == 28 - PRE:
            check_done(4, 14, vCK, 3)
            a('s_barrier')
            a.stamp('gotE', 2)
        if n == 38:
            a('s_waitcnt lgkmcnt(0)')
            a('s_barrier')
        if n + PRE < 56:
            side += bload(n + PRE)
        side += sched.pop(n, [])
        mm = []
        for n_, rc in order5[2 * n:2 * n + 2]:
            t_, ks_ = n_ // 28, n_ % 28
            acc = v(ACC + 16 * (2 * t_ + rc), 16)
            mm.append([mfma32(acc, ac(w2reg(ks_, rc), 4), v(X + 4 * (n_ % 32), 4), '0' if (ks_ == 0 and (t_, rc) != (1, 0)) else acc)])
        if nl and n == 55:
            side += rw1[:4]
        a.fill(mm, side)
    assert not sched
    a.stamp('p5mf')
    R(rw1[4:] if nl else rw1)
    a('s_waitcnt lgkmcnt(0)')
    a('s_barrier')
    a.stamp('B12', 2)
    R(red_reads(1, ACC))
    R(red_sum(1, ACC))
    if cfg.get('stamps'):
        a('s_waitcnt vmcnt(0)')
        a.stamp('end')
        assert a.nstamp <= 64
        a('s_cmp_lg_u32 s%d, %d' % (sW, cfg.get('swave', 0)))
        a('s_cbranch_scc1 L_end')
        if 'dirty' in cfg:
            a('s_lshl_b32 s%d, s2, 16' % sT0)
            a('s_add_u32 s%d, s%d, 0x2000000' % (sT0, sT0))
            for n in range(cfg['dirty']):
                a('buffer_store_dwordx4 %s, %s, %s, s%d offen %s' % (v(X, 4), v(vFR), sr(S_WS), sT0, cfg.get('dirtyf', '')))
                a('s_add_u32 s%d, s%d, 1024' % (sT0, sT0))
            a('s_waitcnt vmcnt(0)')
        if 'probe' in cfg:
            a('v_readlane_b32 s%d, v4, %d' % (sT0, cfg['probe']))
            a('v_readlane_b32 s%d, v4, 0' % sT2)
            a('s_sub_u32 s%d, s%d, s%d' % (sT0, sT0, sT2))
            a('s_cmp_ge_u32 s%d, 14' % sJ)
            a('s_cselect_b32 s%d, 0, s%d' % (sT0, sT0))
            a('s_min_u32 s%d, s%d, 10000' % (sT0, sT0))
            a('s_lshl_b32 s%d, s%d, 2' % (sT0, sT0))
            a('s_add_u32 s%d, s%d, 10000' % (sT0, sT0))
            a.label('L_probe')
            a('s_memrealtime s[%d:%d]' % (S_ST, S_ST + 1))
            a('s_waitcnt lgkmcnt(0)')
            a('s_sub_u32 s%d, s%d, s%d' % (sT1, S_ST, sT2))
            a('s_cmp_lt_u32 s%d, s%d' % (sT1, sT0))
            a('s_cbranch_scc1 L_probe')
        a('s_lshl_b32 s%d, s2, 8' % sT0)
        a('s_add_u32 s%d, s%d, 0x%x' % (sT0, sT0, STAMP))
        a('buffer_store_dword v4, %s, %s, s%d offen' % (v(vL4), sr(S_WS), sT0))
    a.label('L_end')
    a('s_endpgm')
    return finalize(a), a.names


HEADER = open('header.txt').read().rstrip('\n').split('\n')


def build(cfg, path):
    body, names = gen(cfg)
    k = kernel_text(NAME + '_kernel', body, vgprs=512, accum=256, sgprs=102)
    hdr = HEADER + ['; @launch grid=(256,1,1) block=(256,1,1) lds=163840']
    if names:
        hdr.append('; stamps: ' + ' '.join(names))
        if cfg.get('cyc'):
            hdr.append('; cycle stamps')
    open(path, 'w').write(module_text(hdr, [k]))


if __name__ == '__main__':
    build(json.loads(sys.argv[2]) if len(sys.argv) > 2 else {}, sys.argv[1])
```

```python
import sys, struct, json, math, re
sys.path.insert(0, 'gen')
from asmlib import *
from common import *

FL, KVP, ST, O_, H_, ACT, STAMP = 0x0, 0x40000, 0x100000, 0x200000, 0x400000, 0x600000, 0x8000000
KVREC = 2304
EPOCH = FL + 7 * 32768
R0, R1, R2 = 0, 65536, 131072
L_XS, L_WQ = R1, R2
L_PHI, L_V, L_CSX, L_CSQ = 0, 16384, 24576, 28672
L_WO = R1
L_KVB = R2 + 16384
L_BX = 3 * 32768
L_WPHI = L_WQ + 31 * 1024
LOG2E = 0x3fb8aa3b
ONES = 0x3f803f80
SPIN = 400000

S_X, S_WQKV, S_WPHI, S_WO, S_W1, S_B1, S_W2, S_OUT, S_DBG, S_WS = 4, 8, 12, 16, 20, 24, 28, 32, 36, 40
(sI, sJ, sW, sC, sCX, sCW, sT0, sT1, sT2, sT3, sONES, sSEL0, sSEL1, sLDSX, sLDSW, sCNT, sXCD, sP, sMSK, sMSK1) = range(44, 64)
S_PTR = 64
(sREC, sGAT, sFA, sFB, sFP, sOST, sOLD, sHST, sSST, sOUT, sHL0, sHL1, sSLD, sAST, sALD, sCO, sC1, sC2, sC5, sR3) = range(64, 84)
sLW2, sT4, sT5, sKH, sTT, sLW1, sRS, sLN2 = 86, 87, 88, 89, 90, 91, 3, 84
sFME, sLOC, sXID = 85, sXCD, sCX
sTAG = S_DBG
S_TMP = 92
S_ST = 96
A_STASH = 224


def v(i, n=1):
    return 'v%d' % i if n == 1 else 'v[%d:%d]' % (i, i + n - 1)


def ac(i, n=1):
    return 'a%d' % i if n == 1 else 'a[%d:%d]' % (i, i + n - 1)


def sr(i):
    return 's[%d:%d]' % (i, i + 3)


def fbits(x):
    return struct.unpack('<I', struct.pack('<f', x))[0]


class Mark:
    def __init__(self, name):
        self.name = name


class WaitVM:
    def __init__(self, name):
        self.name = name


class WaitDS:
    def __init__(self, name):
        self.name = name


def cost(x):
    if isinstance(x, Mark):
        return 0
    if isinstance(x, (WaitVM, WaitDS)):
        return 1
    if isinstance(x, (list, tuple)):
        return sum(cost(y) for y in x)
    if callable(x):
        return getattr(x, 'cost', 4)
    mn = x.split()[0]
    if mn.startswith('v_mfma'):
        return 0
    if mn.startswith(TRANS) or mn.startswith('v_permlane'):
        return 2
    return 1


def flat(x):
    if isinstance(x, (list, tuple)):
        return [z for y in x for z in flat(y)]
    return [x]


class K(Asm):
    def __init__(self, cfg):
        super().__init__()
        self.cfg = cfg
        self.vmn = 0
        self.dsn = 0
        self.marks = {}
        self.nstamp = 0
        self.names = []
        self.stash_slots = {}

    def run(self, x):
        if isinstance(x, Mark):
            self.marks[x.name] = (self.vmn, self.dsn)
        elif isinstance(x, WaitVM):
            self('s_waitcnt vmcnt(%d)' % min(63, self.vmn - self.marks[x.name][0]))
        elif isinstance(x, WaitDS):
            self('s_waitcnt lgkmcnt(%d)' % min(15, self.dsn - self.marks[x.name][1]))
        elif isinstance(x, (list, tuple)):
            for y in x:
                self.run(y)
        elif callable(x):
            x()
        else:
            for key in self.cfg.get('skip', []):
                if x.startswith('buffer_load') and key in x:
                    return
            for key in self.cfg.get('skipre', []):
                if re.search(key, x):
                    return
            self(x)
            if x.startswith(('buffer_', 'global_')):
                self.vmn += 1
            elif x.startswith('ds_'):
                self.dsn += 1

    def gap(self, items):
        front, back, wr, rd = [], [], set(), set()
        blocked = False
        for x in items:
            fl = flat(x)
            strs = [Ins(y) for y in fl if isinstance(y, str)]
            is_valu = any(i.cls == 'valu' for i in strs)
            opaque = any(callable(y) for y in fl)
            r_ = set().union(*[i.reads for i in strs]) if strs else set()
            w_ = set().union(*[i.writes for i in strs]) if strs else set()
            dep = bool(r_ & wr) or bool(w_ & (wr | rd))
            if is_valu or opaque or dep or blocked:
                back.append(x)
                wr |= w_
                rd |= r_
                if not is_valu:
                    blocked = True
            else:
                front.append(x)
        self.run(front)
        self.run(back)

    def fill(self, mains, side, first=0, last=None, post=None):
        n = len(mains)
        post = post or [[] for _ in mains]
        last = n - 1 if last is None else min(last, n - 1)
        span = last - first + 1
        extra = [(cost(mains[i + 1]) if i + 1 < n else 0) + cost(post[i]) for i in range(n)]
        total = sum(cost(x) for x in side) + sum(extra[first:last + 1])
        done, used = 0, 0.0
        for i, g in enumerate(mains):
            self.run(g)
            items = list(post[i])
            if first <= i <= last:
                used += extra[i]
                target = total * (i - first + 1) / span
                while done < len(side) and (used + cost(side[done]) / 2.0 <= target or i == last):
                    items.append(side[done])
                    used += cost(side[done])
                    done += 1
            self.gap(items)
        self.run(side[done:])

    def stamp(self, name='', level=1):
        only = self.cfg.get('only')
        if self.cfg.get('stamps', 0) >= level and (only is None or name in only or name == 'end'):
            n = self.nstamp
            self.nstamp += 1
            self.names.append(name)
            self('s_memrealtime s[%d:%d]' % (S_ST, S_ST + 1))
            if self.cfg.get('cyc'):
                assert n < 32
                self('s_memtime s[%d:%d]' % (S_ST + 2, S_ST + 3))
            self('s_waitcnt lgkmcnt(0)')
            self('v_writelane_b32 v4, s%d, %d' % (S_ST, n))
            if self.cfg.get('cyc'):
                self('v_writelane_b32 v4, s%d, %d' % (S_ST + 2, 32 + n))

    def stamper(self, name, level=2):
        f = lambda: self.stamp(name, level)
        f.cost = 0
        return f

    def stash(self, name, reg):
        slot = A_STASH + 8 + len(self.stash_slots)
        assert slot < 256
        self.stash_slots[name] = slot
        self('v_accvgpr_write_b32 %s, %s' % (ac(slot), v(reg)))

    def unstash(self, name, reg):
        return 'v_accvgpr_read_b32 %s, %s' % (v(reg), ac(self.stash_slots[name]))


def mfma32(d, a_, b, c):
    return 'v_mfma_f32_32x32x16_bf16 %s, %s, %s, %s' % (d, a_, b, c)


def mfma16(d, a_, b, c):
    return 'v_mfma_f32_16x16x32_bf16 %s, %s, %s, %s' % (d, a_, b, c)


def merge(*lists):
    lists = [l for l in lists if l]
    tot = [max(1, cost(l)) for l in lists]
    idx = [0] * len(lists)
    used = [0] * len(lists)
    out = []
    while any(idx[k] < len(l) for k, l in enumerate(lists)):
        best = min((used[k] / tot[k], k) for k, l in enumerate(lists) if idx[k] < len(l))[1]
        x = lists[best][idx[best]]
        out.append(x)
        used[best] += cost(x)
        idx[best] += 1
    return out


def split_hl(src, hi_f, lo_f, tmp):
    return ['v_cvt_pk_bf16_f32 %s, %s, %s' % (v(tmp), v(src), v(src)),
            'v_and_b32 %s, 0xffff0000, %s' % (v(hi_f), v(tmp)),
            'v_sub_f32 %s, %s, %s' % (v(lo_f), v(src), v(hi_f))]


def ln_ops(s1, s2, mean, rstd):
    return ['v_mul_f32 %s, 0x3b000000, %s' % (v(mean), v(s1)),
            'v_mul_f32 %s, 0x3b000000, %s' % (v(s2), v(s2)),
            'v_fma_f32 %s, -%s, %s, %s' % (v(s2), v(mean), v(mean), v(s2)),
            'v_max_f32 %s, 0, %s' % (v(s2), v(s2)),
            'v_add_f32 %s, 0x3727c5ac, %s' % (v(s2), v(s2)),
            'v_rsq_f32 %s, %s' % (v(rstd), v(s2))]


def softmax_ops(P, E, OUT, c, t):
    o = []
    mx, mn, sp, sn = t, t + 2, t + 4, t + 6
    o.append('v_max3_f32 %s, %s, %s, %s' % (v(mx), v(P), v(P + 1), v(P + 2)))
    o.append('v_min3_f32 %s, %s, %s, %s' % (v(mn), v(P), v(P + 1), v(P + 2)))
    o.append('v_max3_f32 %s, %s, %s, %s' % (v(mx + 1), v(P + 3), v(P + 4), v(P + 5)))
    o.append('v_min3_f32 %s, %s, %s, %s' % (v(mn + 1), v(P + 3), v(P + 4), v(P + 5)))
    for n, i in enumerate(range(6, 14, 2)):
        o.append('v_max3_f32 %s, %s, %s, %s' % (v(mx + n % 2), v(mx + n % 2), v(P + i), v(P + i + 1)))
        o.append('v_min3_f32 %s, %s, %s, %s' % (v(mn + n % 2), v(mn + n % 2), v(P + i), v(P + i + 1)))
    o.append('v_max3_f32 %s, %s, %s, %s' % (v(mx), v(mx), v(P + 14), v(P + 15)))
    o.append('v_min3_f32 %s, %s, %s, %s' % (v(mn), v(mn), v(P + 14), v(P + 15)))
    o.append('v_max_f32 %s, %s, %s' % (v(mx), v(mx), v(mx + 1)))
    o.append('v_min_f32 %s, %s, %s' % (v(mn), v(mn), v(mn + 1)))
    o.append('v_mul_f32 %s, %s, %s' % (v(mx), v(mx), v(c + 1)))
    o.append('v_mul_f32 %s, %s, %s' % (v(mn), v(mn), v(c)))
    for i in range(0, 16, 2):
        o.append('v_pk_fma_f32 %s, %s, %s, %s op_sel_hi:[1,0,0]' % (v(E + i, 2), v(P + i, 2), v(c, 2), v(mx, 2)))
        o.append('v_pk_fma_f32 %s, %s, %s, %s op_sel:[0,1,0] op_sel_hi:[1,1,0]' % (v(E + 16 + i, 2), v(P + i, 2), v(c, 2), v(mn, 2)))
    for i in range(32):
        o.append('v_exp_f32 %s, %s' % (v(E + i), v(E + i)))
    o.append('v_pk_add_f32 %s, %s, %s' % (v(sp, 2), v(E, 2), v(E + 2, 2)))
    o.append('v_pk_add_f32 %s, %s, %s' % (v(sn, 2), v(E + 16, 2), v(E + 18, 2)))
    for i in range(4, 16, 2):
        o.append('v_pk_add_f32 %s, %s, %s' % (v(sp, 2), v(sp, 2), v(E + i, 2)))
        o.append('v_pk_add_f32 %s, %s, %s' % (v(sn, 2), v(sn, 2), v(E + 16 + i, 2)))
    o.append('v_add_f32 %s, %s, %s' % (v(sp), v(sp), v(sp + 1)))
    o.append('v_add_f32 %s, %s, %s' % (v(sn), v(sn), v(sn + 1)))
    o.append('v_rcp_f32 %s, %s' % (v(sp), v(sp)))
    o.append('v_rcp_f32 %s, %s' % (v(sn), v(sn)))
    for half, sm in ((0, sp), (16, sn)):
        for i in range(0, 16, 2):
            o.append('v_pk_mul_f32 %s, %s, %s op_sel_hi:[1,0]' % (v(E + half + i, 2), v(E + half + i, 2), v(sm, 2)))
        for i in range(0, 16, 2):
            o.append('v_cvt_pk_bf16_f32 %s, %s, %s' % (v(OUT + (half + i) // 2), v(E + half + i), v(E + half + i + 1)))
    return o


def gen(cfg):
    a = K(cfg)
    R = a.run
    SC = 'sc1'
    D = cfg.get('depth', 3)
    vL, vFR, vL4, vOUT = 1, 2, 3, 5
    vXD, vWD, vWQD, vXR, vWR = 6, 10, 11, 12, 16
    vA = 20
    vT = 28
    aK, aV, aQ = 32, 48, 64
    vWB = 80
    vS = 112
    X = 128
    s1a, s1b, s2a, s2b, csk, csv, csq, mean, rstd, vONE, cexp, ncexp = range(vS, vS + 12)
    vBX = vS + 12
    PA1, PA2 = A_STASH, A_STASH + 4
    vL128, vRB = vWD, vWQD
    vHH, vTRN = aK, aK + 1

    def vx(dst, terms, sadd=None, const=0, tmp=vT + 3):
        first = True
        for src, lo, n, mul in terms:
            if n:
                a('v_bfe_u32 %s, %s, %d, %d' % (v(tmp), v(src), lo, n))
                s_ = tmp
            elif lo:
                a('v_lshrrev_b32 %s, %d, %s' % (v(tmp), lo, v(src)))
                s_ = tmp
            else:
                s_ = src
            pw = mul & (mul - 1) == 0
            if first:
                if pw:
                    a('v_lshlrev_b32 %s, %d, %s' % (v(dst), mul.bit_length() - 1, v(s_)))
                else:
                    a('v_mul_u32_u24 %s, %d, %s' % (v(dst), mul, v(s_)))
                first = False
            elif pw:
                a('v_lshl_add_u32 %s, %s, %d, %s' % (v(dst), v(s_), mul.bit_length() - 1, v(dst)))
            else:
                a('v_mul_u32_u24 %s, %d, %s' % (v(tmp), mul, v(s_)))
                a('v_add_u32 %s, %s, %s' % (v(dst), v(tmp), v(dst)))
        if sadd is not None:
            a('v_add_u32 %s, s%d, %s' % (v(dst), sadd, v(dst)))
        if const:
            a('v_add_u32 %s, %d, %s' % (v(dst), const, v(dst)))

    def sx(dst, terms, const=0, tmp=sT5):
        first = True
        for src, mul in terms:
            tgt = dst if first else tmp
            if mul == 1:
                if first:
                    a('s_mov_b32 s%d, s%d' % (dst, src))
                else:
                    a('s_add_u32 s%d, s%d, s%d' % (dst, dst, src))
                first = False
                continue
            if mul & (mul - 1) == 0:
                a('s_lshl_b32 s%d, s%d, %d' % (tgt, src, mul.bit_length() - 1))
            else:
                a('s_mul_i32 s%d, s%d, %d' % (tgt, src, mul))
            if not first:
                a('s_add_u32 s%d, s%d, s%d' % (dst, dst, tmp))
            first = False
        if const:
            a('s_add_u32 s%d, s%d, %d' % (dst, dst, const))

    def step(sreg, inc, period):
        if period & (period - 1) == 0:
            return ['s_add_u32 s%d, s%d, %d' % (sreg, sreg, inc), 's_and_b32 s%d, s%d, %d' % (sreg, sreg, period - 1)]
        return ['s_add_u32 s%d, s%d, %d' % (sreg, sreg, inc),
                ['s_cmp_eq_u32 s%d, %d' % (sreg, period), 's_cmov_b32 s%d, 0' % sreg]]

    def push_flags(sbase, add, vaddr):
        lab = a.uniq('L_nopush')
        a('s_cmp_lg_u32 s%d, 0' % sW)
        a('s_cbranch_scc1 %s' % lab)
        a('s_add_u32 s%d, s%d, %d' % (sT5, sbase, add))
        a('s_mov_b64 exec, 0xffff')
        a('buffer_store_dword %s, %s, %s, s%d offen sc1' % (v(vONE), v(vaddr), sr(S_WS), sT5))
        a('s_mov_b64 exec, -1')
        a.label(lab)

    def arrive(sync):
        lab = a.uniq('L_noarr')
        a('s_cmp_lg_u32 s%d, 0' % sW)
        a('s_cbranch_scc1 %s' % lab)
        a('s_add_u32 s%d, s%d, %d' % (sT5, sFME, sync * 32768))
        a('s_mov_b64 exec, 1')
        a('s_cmp_lg_u32 s%d, 0' % sLOC)
        a('s_cbranch_scc1 %s_l' % lab)
        a('buffer_store_dword %s, %s, %s, s%d offen sc1' % (v(vONE), v(vL4), sr(S_WS), sT5))
        a('s_branch %s_e' % lab)
        a.label(lab + '_l')
        a('buffer_store_dword %s, %s, %s, s%d offen' % (v(vONE), v(vL4), sr(S_WS), sT5))
        a.label(lab + '_e')
        a('s_mov_b64 exec, -1')
        a.label(lab)

    def not_ready(reg, sync):
        if sync == 5:
            a('v_subrev_u32 %s, s%d, %s' % (v(reg), sTAG, v(reg)))
            a('v_cmp_le_u32 vcc, 16, %s' % v(reg))
        else:
            a('v_cmp_ne_u32 vcc, s%d, %s' % (sTAG, v(reg)))

    def spin(lp, reg, srd_, soff, sync):
        a.label(lp)
        a('buffer_load_dword %s, %s, %s, %s offen sc1' % (v(reg), v(vL4), sr(srd_), soff))
        a('s_add_u32 s%d, s%d, 1' % (sCNT, sCNT))
        a('s_cmp_gt_u32 s%d, %d' % (sCNT, SPIN))
        a('s_cbranch_scc1 %s_y' % lp)
        a('s_waitcnt vmcnt(0)')
        not_ready(reg, sync)
        a('s_cbranch_vccnz %s' % lp)
        a.label(lp + '_y')
        a('s_waitcnt vmcnt(0)')

    def flag_addr(sync):
        return 's_add_u32 s%d, s%d, %d' % (sT5, sFP if sync == 0 else sFB, sync * 32768)

    def poll(sync, n, wave=0):
        lab = a.uniq('L_nopoll')
        a('s_cmp_lg_u32 s%d, %d' % (sW, wave))
        a('s_cbranch_scc1 %s' % lab)
        a(flag_addr(sync))
        a('s_mov_b64 exec, 0x%x' % ((1 << n) - 1))
        spin(a.uniq('L_poll'), vT + 3, S_WS, 's%d' % sT5, sync)
        a('s_mov_b64 exec, -1')
        a.label(lab)

    def check_issue(sync, reg, wave):
        def f():
            lab = a.uniq('L_noci')
            if wave is not None:
                a('s_cmp_lg_u32 s%d, %d' % (sW, wave))
                a('s_cbranch_scc1 %s' % lab)
            a(flag_addr(sync))
            a('s_mov_b64 exec, 0xffff')
            a('buffer_load_dword %s, %s, %s, s%d offen sc1' % (v(reg), v(vL4), sr(S_WS), sT5))
            a('s_mov_b64 exec, -1')
            a.label(lab)
        f.cost = 3
        return f

    def check_done(sync, n, reg, wave):
        lp = a.uniq('L_chk')
        if wave is not None:
            a('s_cmp_lg_u32 s%d, %d' % (sW, wave))
            a('s_cbranch_scc1 %s_z' % lp)
        a('s_mov_b64 exec, 0x%x' % ((1 << n) - 1))
        not_ready(reg, sync)
        a('s_cbranch_vccz %s_x' % lp)
        a(flag_addr(sync))
        spin(lp, reg, S_WS, 's%d' % sT5, sync)
        a.label(lp + '_x')
        if sync == 5:
            a('v_cmp_ne_u32 vcc, s%d, %s' % (sXID, v(reg)))
            a('s_cmp_eq_u64 vcc, 0')
            a('s_cselect_b32 s%d, %d, 0' % (sLOC, 1 if cfg.get('local', 1) else 0))
        a('s_mov_b64 exec, -1')
        a.label(lp + '_z')

    def code_touch(nl, wave, dst):
        lab = a.uniq('L_ct')
        a('s_cmp_lg_u32 s%d, %d' % (sW, wave))
        a('s_cbranch_scc1 %s_e' % lab)
        a('s_getpc_b64 s[%d:%d]' % (S_TMP, S_TMP + 1))
        a.label(lab)
        a('s_lshr_b32 s%d, s2, 3' % sT5)
        a('s_mul_i32 s%d, s%d, %d' % (sT5, sT5, nl * 128))
        a('v_lshl_add_u32 %s, %s, 7, s%d' % (v(dst), v(vL), sT5))
        a('v_min_u32 %s, L_end-%s, %s' % (v(dst), lab, v(dst)))
        a('s_mov_b64 exec, 0x%x' % ((1 << nl) - 1))
        a('global_load_dword %s, %s, s[%d:%d]' % (v(dst), v(dst), S_TMP, S_TMP + 1))
        a('s_mov_b64 exec, -1')
        a.label(lab + '_e')

    def dual(stores, on):
        if not on:
            R([x + ' sc1' for x in stores])
            return
        lab = a.uniq('L_dual')
        a('s_cmp_lg_u32 s%d, 0' % sLOC)
        a('s_cbranch_scc1 %s_l' % lab)
        for x in stores:
            a(x + ' sc1')
        a('s_branch %s_e' % lab)
        a.label(lab + '_l')
        R(stores)
        a.label(lab + '_e')

    def pretouch(soff, nl, dst):
        return [['s_mov_b64 exec, 0x%x' % ((1 << nl) - 1),
                 'buffer_load_dword %s, %s, %s, s%d offen sc1' % (v(dst), v(vL128), sr(S_WS), soff), 's_mov_b64 exec, -1']]

    def readback(soff, nl, dst, extra=None):
        o = ['s_mov_b64 exec, 0x%x' % ((1 << nl) - 1),
             'buffer_load_dword %s, %s, %s, s%d offen sc1' % (v(dst), v(vL128), sr(S_WS), soff)]
        if extra is not None:
            o += ['s_mov_b64 exec, 3', 'buffer_load_dword %s, %s, %s, s%d offen sc1' % (v(dst), v(vL128), sr(S_WS), extra)]
        return [o + ['s_mov_b64 exec, -1']]

    a('s_cmp_ge_u32 s2, 256')
    a('s_cbranch_scc1 L_end')
    if cfg.get('stamps'):
        a('s_memrealtime s[100:101]')
        a('s_memtime s[98:99]')
    a('s_load_dwordx16 s[%d:%d], s[0:1], 0' % (S_PTR, S_PTR + 15))
    a('s_load_dwordx4 s[%d:%d], s[0:1], 64' % (S_PTR + 16, S_PTR + 19))
    a('s_load_dwordx2 s[%d:%d], s[0:1], 80' % (S_PTR + 20, S_PTR + 21))
    a('s_getpc_b64 s[%d:%d]' % (sT2, sT2 + 1))
    a.label('L_pc')
    a('s_lshr_b32 s%d, s2, 3' % sT0)
    a('v_lshrrev_b32 %s, 6, v0' % v(vT))
    a('v_and_b32 %s, 63, v0' % v(vL))
    a('v_readfirstlane_b32 s%d, %s' % (sW, v(vT)))
    ncl = cfg.get('code_lines', 9)
    if ncl:
        a('s_mul_i32 s%d, s%d, %d' % (sT1, sT0, ncl * 128))
        a('v_lshl_add_u32 %s, v0, 7, s%d' % (v(vT + 1), sT1))
        a('v_min_u32 %s, L_end-L_pc, %s' % (v(vT + 1), v(vT + 1)))
        a('v_cmp_gt_u32 vcc, %d, v0' % ncl)
        a('s_and_saveexec_b64 s[%d:%d], vcc' % (sMSK, sMSK1))
        a('s_cbranch_execz L_nocp')
        a('global_load_dword %s, %s, s[%d:%d]' % (v(255), v(vT + 1), sT2, sT2 + 1))
        a.label('L_nocp')
        a('s_mov_b64 exec, -1')
    a('s_and_b32 s%d, s2, 7' % sXCD)
    a('s_and_b32 s%d, s%d, 15' % (sJ, sT0))
    a('s_lshr_b32 s%d, s%d, 4' % (sT2, sT0))
    sx(sI, [(sXCD, 2), (sT2, 1)])
    a('s_and_b32 s%d, s%d, 1' % (sT3, sJ))
    a('s_lshr_b32 s%d, s%d, 1' % (sT1, sJ))
    a('s_and_b32 s%d, s%d, 1' % (sT0, sXCD))
    if cfg.get('halfrot', 0):
        sx(sT4, [(sT2, 4), (sT3, 2), (sT1, 2)])
    else:
        sx(sT4, [(sT2, 4), (sT3, 2), (sT1, 1), (sT0, 1)])
    a('s_and_b32 s%d, s%d, 7' % (sT4, sT4))
    a('s_lshl_b32 s%d, s%d, 7' % (sCX, sT4))
    a('s_mul_i32 s%d, s%d, %d' % (sCW, sT4, 64 * 3072))
    sx(sT0, [(sI, 1 << 17), (sW, 1 << 15)], 2048)
    sx(sLDSX, [(sW, 1 << 14)], L_XS)
    a('s_lshl_b32 s%d, s%d, 11' % (sLDSW, sW))
    a('v_lshrrev_b32 %s, 4, %s' % (v(vT + 1), v(vL)))
    a('v_and_b32 %s, 7, %s' % (v(vT + 2), v(vL)))
    a('v_xor_b32 %s, %s, %s' % (v(vT + 1), v(vT + 1), v(vT + 2)))
    vx(vXD, [(vL, 3, 0, 1024), (vT + 1, 0, 0, 16)], sadd=sT0)
    a('v_xor_b32 %s, 64, %s' % (v(vXD + 1), v(vXD)))
    a('s_lshl_b32 s%d, s%d, 14' % (sT1, sT3))
    a('s_sub_u32 s%d, %d, s%d' % (sT2, 2 * 7168, sT1))
    a('v_add_u32 %s, %d, %s' % (v(vXD + 1), 7168, v(vXD + 1)))
    a('v_add_u32 %s, s%d, %s' % (v(vXD + 2), sT2, v(vXD)))
    a('v_add_u32 %s, s%d, %s' % (v(vXD + 3), sT2, v(vXD + 1)))
    a('v_add_u32 %s, s%d, %s' % (v(vXD), sT1, v(vXD)))
    a('v_add_u32 %s, s%d, %s' % (v(vXD + 1), sT1, v(vXD + 1)))
    def touch_addr():
        a('s_lshr_b32 s%d, s2, 3' % sT1)
        sx(sT2, [(2, 16), (sW, 4)])
        sx(sT1, [(sT1, 16), (sW, 4)])
        a('v_and_b32 %s, 3, %s' % (v(vT), v(vL)))
        a('v_add_u32 %s, s%d, %s' % (v(vT + 1), sT2, v(vT)))
        a('v_add_u32 %s, s%d, %s' % (v(vT), sT1, v(vT)))
        a('v_cmp_gt_u32 vcc, 4, %s' % v(vL))
        vx(aV, [(vT + 1, 3, 0, 3072), (vT + 1, 0, 3, 128)])
        vx(aV + 1, [(vT, 0, 0, 3072)], const=384)
        a('v_cndmask_b32 %s, %s, %s, vcc' % (v(aV), v(aV + 1), v(aV)))
        a('v_lshlrev_b32 %s, 7, %s' % (v(aV + 2), v(vT + 1)))
        vx(aV + 1, [(vT, 0, 0, 1024)], const=384)
        a('v_cndmask_b32 %s, %s, %s, vcc' % (v(aV + 1), v(aV + 1), v(aV + 2)))
        a('v_lshlrev_b32 %s, 4, %s' % (v(vFR), v(vL)))
    if not cfg.get('latet', 1):
        touch_addr()
    a('s_lshl_b32 s%d, s%d, 6' % (sT2, sJ))
    vx(vWQD, [(0, 2, 0, 3072), (vL, 0, 2, 16)], sadd=sT2)
    a('v_add_u32 %s, 1024, %s' % (v(vWD), v(vWQD)))
    a('s_waitcnt lgkmcnt(0)')
    if cfg.get('stamps'):
        a('v_mov_b32 v4, 0')
        a('v_writelane_b32 v4, s100, 0')
        if cfg.get('cyc'):
            a('v_writelane_b32 v4, s98, 32')
        a.nstamp = 1
        a.names.append('start')
    a.stamp('karg', 2)
    srd(a, S_WQKV, S_PTR + 2, SIZES['wqkv'])

    def dma_w(s):
        return ['s_add_u32 m0, s%d, %d' % (sLDSW, s * 8192),
                'buffer_load_dwordx4 %s, %s, s%d offen lds' % (v(vWD), sr(S_WQKV), sCW),
                'buffer_load_dwordx4 %s, %s, s%d offen offset:1024 lds' % (v(vWD), sr(S_WQKV), sCW)] + step(sCW, 64 * 3072, 512 * 3072)

    def dma_x(s):
        return ['s_add_u32 m0, s%d, %d' % (sLDSX, (s & 3) * 4096)] + [
            'buffer_load_dwordx4 %s, %s, s%d offen offset:%d lds' % (v(vXD + q), sr(S_X), sCX, q * 1024) for q in range(4)
        ] + step(sCX, 128, 1024) + [Mark('slot%d' % s)]

    def dma_wq(s):
        return ['s_add_u32 m0, s%d, %d' % (sLDSW, L_WQ + (s >> 1) * 8192 + (s & 1) * 1024),
                'buffer_load_dwordx4 %s, %s, s%d offen lds' % (v(vWQD), sr(S_WQKV), sCW)] + step(sCW, 64 * 3072, 512 * 3072)

    a('s_load_dword s%d, s[%d:%d], 0x%x' % (sTAG, S_PTR + 20, S_PTR + 21, EPOCH))
    R(dma_w(0))
    a('s_sub_u32 s%d, s%d, 2048' % (S_PTR, S_PTR))
    a('s_subb_u32 s%d, s%d, 0' % (S_PTR + 1, S_PTR + 1))
    srd(a, S_X, S_PTR + 0, SIZES['x'] + 2048)
    dx0 = dma_x(0)
    R(dx0[:3])
    if cfg.get('latet', 1):
        touch_addr()
    srd(a, S_WO, S_PTR + 6, SIZES['wo'])
    srd(a, S_WPHI, S_PTR + 4, SIZES['wphi'])
    if cfg.get('warm0', 1):
        a('s_mov_b64 exec, 0x%x' % (0xff if cfg.get('touch3', 0) else 0xf))
        R('buffer_load_dword %s, %s, %s, 0 offen' % (v(254), v(aV), sr(S_WQKV)))
        R('buffer_load_dword %s, %s, %s, 0 offen' % (v(253), v(aV + 1), sr(S_WO)))
    if cfg.get('touchkv', 1):
        a('s_mov_b64 exec, 0xf0')
        R('buffer_load_dword %s, %s, %s, 0 offen offset:1024' % (v(252), v(aV), sr(S_WQKV)))
        R('buffer_load_dword %s, %s, %s, 0 offen offset:2048' % (v(251), v(aV), sr(S_WQKV)))
    sx(sT2, [(sJ, 1024), (sW, 256)])
    sx(sT3, [(sW, 256)], L_WPHI)
    a('s_mov_b32 m0, s%d' % sT3)
    a('s_mov_b64 exec, 0xffff')
    R('buffer_load_dwordx4 %s, %s, s%d offen lds' % (v(vFR), sr(S_WPHI), sT2))
    a('s_mov_b64 exec, -1')
    R([dx0[0]] + dx0[3:])
    a.stamp('dma0', 2)
    srd(a, S_WS, S_PTR + 20, SIZES['ws'])
    srd(a, S_W1, S_PTR + 10, SIZES['w1'])
    srd(a, S_B1, S_PTR + 12, SIZES['b1'])
    srd(a, S_W2, S_PTR + 14, SIZES['w2'])
    srd(a, S_OUT, S_PTR + 16, SIZES['out'])
    srd(a, S_TMP, S_PTR + 10, SIZES['w1'])

    a('s_mov_b32 s%d, 0x%x' % (sONES, ONES))
    a('s_mov_b32 s%d, 0x3f80' % sSEL0)
    a('s_mov_b32 s%d, 0x3f800000' % sSEL1)
    a('s_mov_b32 s%d, 0' % sCNT)
    a('s_mov_b32 s%d, 0x%x' % (sRS, fbits(math.sqrt(0.5))))
    a('s_mov_b32 s%d, 0x%x' % (sLN2, fbits(math.log(2.0))))
    a('s_lshr_b32 s%d, s%d, 1' % (sKH, sW))
    a('s_and_b32 s%d, s%d, 1' % (sTT, sW))
    a('s_and_b32 s%d, s%d, 1' % (sP, sJ))
    a('s_lshr_b32 s%d, s%d, 1' % (sC, sJ))
    a('s_and_b32 s%d, s%d, 3' % (sT2, sC))
    a('s_cmp_eq_u32 s%d, 3' % sT2)
    a('s_cselect_b32 s%d, 4, 0' % sT2)
    a('s_xor_b32 s%d, s%d, s%d' % (sC, sC, sT2))
    a('s_lshl_b32 s%d, s%d, 13' % (sLW2, sW))
    a('s_lshl_b32 s%d, s%d, 12' % (sLW1, sW))
    a('v_lshrrev_b32 %s, 5, %s' % (v(vHH), v(vL)))
    a('v_lshlrev_b32 %s, 2, %s' % (v(vL4), v(vL)))
    vx(aQ + 8, [(vL, 0, 1, 512), (vL, 1, 1, 8), (vL, 4, 1, 16), (vL, 2, 2, 32), (vHH, 0, 0, 128)], const=L_WPHI)
    a('v_bfe_u32 %s, %s, 2, 1' % (v(vT), v(vL)))
    a('v_cmp_eq_u32 s[%d:%d], 0, %s' % (sMSK, sMSK1, v(vT)))
    a('v_bfe_u32 %s, %s, 1, 3' % (v(vT + 1), v(vL)))
    a('s_lshl_b32 s%d, s%d, 1' % (sT2, sW))
    a('v_add_u32 %s, s%d, %s' % (v(vT + 2), sT2, v(vHH)))
    a('v_xor_b32 %s, %s, %s' % (v(vT + 1), v(vT + 1), v(vT + 2)))
    vx(vXR, [(vL, 0, 5, 128), (vT + 1, 0, 0, 16)], sadd=sLDSX)
    a('s_and_b32 s%d, s%d, 1' % (sT2, sJ))
    a('s_lshl_b32 s%d, s%d, 11' % (sT2, sT2))
    a('v_xor_b32 %s, s%d, %s' % (v(vXR), sT2, v(vXR)))
    for p in range(1, 4):
        a('v_xor_b32 %s, %d, %s' % (v(vXR + p), 32 * p, v(vXR)))
    vx(vOUT, [(vL, 0, 5, 1024), (vHH, 0, 0, 32)])
    vx(vWR, [(vL, 2, 2, 64), (vL, 4, 1, 32), (vL, 0, 2, 8), (vHH, 0, 0, 512)], sadd=sLDSW)
    for p in range(1, 4):
        a('v_xor_b32 %s, %d, %s' % (v(vWR + p), 2048 * p, v(vWR)))
    vx(vTRN, [(vL, 2, 2, 64), (vL, 0, 1, 32), (vL, 4, 1, 16), (vL, 1, 1, 8)])
    sx(sT2, [(sKH, 32768 + 512)], L_WO)
    vx(vT, [(vTRN, 0, 0, 1), (vHH, 0, 0, 1024)], sadd=sT2)
    a.stash('wo', vT)
    a('s_lshl_b32 s%d, s%d, 9' % (sT2, sW))
    vx(vT, [(vTRN, 0, 0, 1), (vHH, 0, 0, 4096)], sadd=sT2)
    a.stash('w1', vT)
    sx(sT2, [(sKH, 512), (sLW2, 1)])
    vx(vT, [(vTRN, 0, 0, 1), (vHH, 0, 0, 2048)], sadd=sT2)
    a.stash('w2', vT)
    vx(vT + 1, [(vL, 0, 2, 16), (vHH, 0, 0, 64)])
    sx(sT2, [(sKH, 1 << 18), (sC, 128)])
    vx(vT, [(vL, 2, 3, 1024), (vT + 1, 0, 0, 1)], sadd=sT2)
    a.stash('bdo', vT)
    sx(sT2, [(sW, 448 * 1024), (sC, 128)])
    vx(vT, [(vL, 2, 3, 1024), (vT + 1, 0, 0, 1)], sadd=sT2)
    a.stash('bd2', vT)
    sx(sT2, [(sW, 16 * 3584), (sJ, 256)], 3072)
    vx(vT, [(vL, 2, 3, 3584), (vT + 1, 0, 0, 1)], sadd=sT2)
    a.stash('bd1', vT)
    a('v_bfe_u32 %s, %s, 1, 2' % (v(vT), v(vL)))
    vx(vT + 1, [(vL, 3, 1, 2)])
    a('v_xor_b32 %s, %s, %s' % (v(vT + 1), v(vT), v(vT + 1)))
    vx(vT, [(vL, 0, 5, 64), (vT + 1, 0, 0, 16)], sadd=sLDSW)
    a('v_lshl_add_u32 %s, %s, 3, %s' % (v(vA), v(vHH), v(vT)))
    a('v_lshl_add_u32 %s, %s, 13, %s' % (v(vA + 4), v(vHH), v(vT)))
    for g in range(1, 4):
        a('v_xor_b32 %s, %d, %s' % (v(vA + g), 16 * g, v(vA)))
        a('v_xor_b32 %s, %d, %s' % (v(vA + 4 + g), 16 * g, v(vA + 4)))
    vx(vT, [(vL, 3, 1, 1), (vL, 4, 1, 2)])
    a('v_bfe_u32 %s, %s, 1, 1' % (v(vT + 1), v(vL)))
    a('v_xor_b32 %s, %s, %s' % (v(vT), v(vT), v(vT + 1)))
    vx(vT + 2, [(vL, 4, 0, 512), (vL, 2, 2, 64), (vT, 0, 0, 16), (vL, 0, 1, 8)])
    sx(sT2, [(sKH, 32), (sTT, 8192)])
    a('v_xor_b32 %s, s%d, %s' % (v(vT), sT2, v(vT + 2)))
    a.stash('kvphi', vT)
    a('s_lshl_b32 s%d, s%d, 5' % (sT2, sTT))
    a('v_xor_b32 %s, s%d, %s' % (v(vT), sT2, v(vT + 2)))
    a.stash('kvv', vT)
    vx(vT, [(0, 4, 0, 16)])
    a.stash('zst', vT)
    vx(vT + 1, [(vL, 0, 4, KVREC), (vT, 0, 0, 1)])
    a.stash('zld', vT + 1)
    sx(sT2, [(sTT, 17 * 80), (sKH, 32)], L_KVB)
    vx(vT, [(vL, 4, 0, 8)], sadd=sT2)
    a.stash('kbz', vT)
    vx(vT + 1, [(vL, 0, 3, 160), (vHH, 0, 0, 80), (vL, 3, 2, 8)], sadd=sT2)
    a.stash('kbw', vT + 1)
    a('s_lshl_b32 s%d, s%d, 9' % (sT3, sW))
    vx(vT + 1, [(vL, 0, 5, 16), (vHH, 0, 0, KVREC)], sadd=sT3)
    a.stash('gld', vT + 1)
    vx(vT + 2, [(vL, 2, 1, 8), (vL, 3, 1, 4), (vL, 0, 2, 1)])
    a('v_and_b32 %s, 16, %s' % (v(vT), v(vL)))
    a('v_cmp_eq_u32 vcc, 0, %s' % v(vT))
    a('v_cndmask_b32 %s, 16, %s, vcc' % (v(vT + 2), v(vT + 2)))
    vx(vT, [(vT + 2, 0, 0, 80), (vHH, 0, 0, 16)], const=L_KVB)
    a.stash('kbr', vT)
    sx(sT2, [(sJ, 256), (sW, 64)])
    vx(vT, [(vL, 2, 1, 32), (vL, 3, 2, 8), (vL, 0, 2, 2), (vHH, 0, 0, 8192)], sadd=sT2)
    a.stash('bias', vT)
    sx(sT2, [(sLW2, 1)], R2)
    a('v_add_u32 %s, s%d, %s' % (v(vT), sT2, v(vFR)))
    a.stash('red3', vT)
    vx(vT, [(vL, 2, 0, 1024), (vL, 0, 2, 16)], const=2048)
    a.stash('xd', vT)
    vx(vT, [(vL, 0, 5, 64), (vHH, 0, 0, 32)], sadd=sT2, const=4096)
    a.stash('xr', vT)

    sx(sGAT, [(sJ, 16 * KVREC)], KVP)
    sx(sREC, [(sGAT, 1), (sI, KVREC)])
    sx(sFA, [(sJ, 128), (sI, 4)])
    sx(sFP, [(sI, 2048), (sJ, 128)])
    sx(sFB, [(sI, 2048)])
    sx(sFME, [(sI, 2048), (sJ, 4)])
    sx(sOST, [(sI, 4 << 15), (sW, 1 << 15), (sJ, 2048)], O_)
    sx(sSLD, [(sI, 4 << 12), (sW, 1 << 12)], ST)
    sx(sAST, [(sI, 4 * 112 * 1024), (sJ, 8192), (sW, 2048)], ACT)
    sx(sALD, [(sI, 4 * 112 * 1024), (sP, 112 * 1024), (sW, 28 * 1024)], ACT)
    sx(sT2, [(sI, 4), (sP, 1), (sTT, 2)])
    sx(sT3, [(sC, 2), (sKH, 1)])
    sx(sOLD, [(sT2, 1 << 15), (sKH, 1 << 14)], O_)
    sx(sOUT, [(sT2, 1 << 15), (sT3, 64)])
    sx(sHST, [(sT2, 1 << 15), (sT3, 2048)], H_)
    sx(sSST, [(sT2, 1 << 12), (sT3, 256)], ST)
    rot = cfg.get('rot', 1)
    a('s_and_b32 s%d, s%d, %d' % (sT2, sI, 1 if cfg.get('rotw', 0) else 0))
    a('s_and_b32 s%d, s%d, %d' % (sT3, sP, 1 if cfg.get('rotw', 0) else 0))
    sx(sT3, [(sT3, 1), (sT2, 2)])
    a('s_lshr_b32 s%d, s%d, 1' % (sT0, sC))
    a('s_add_u32 s%d, s%d, s%d' % (sT0, sT0, sT3))
    a('s_and_b32 s%d, s%d, %d' % (sT0, sT0, 3 if rot else 0))
    a('s_lshl_b32 s%d, s%d, 12' % (sR3, sT0))
    sx(sCO, [(sTT, 4 << 15), (sT0, 2 << 15)])
    a('s_and_b32 s%d, s%d, %d' % (sCO, sCO, (8 << 15) - 1))
    sx(sT0, [(sJ, 1), (sT2, 2)])
    a('s_and_b32 s%d, s%d, %d' % (sT0, sT0, 3 if rot else 0))
    a('s_mul_i32 s%d, s%d, %d' % (sC1, sT0, 128 * 3584))
    sx(sT1, [(sT0, 2), (sW, 1)])
    a('s_and_b32 s%d, s%d, 7' % (sT4, sT1))
    sx(sHL0, [(sI, 4 << 15), (sT4, 4096)], H_)
    a('s_xor_b32 s%d, s%d, 4' % (sT4, sT4))
    sx(sHL1, [(sI, 4 << 15), (sT4, 4096)], H_)
    sx(sT0, [(sC, 1), (sT3, 2)])
    a('s_add_u32 s%d, s%d, -7' % (sT1, sT0))
    a('s_cselect_b32 s%d, s%d, s%d' % (sT0, sT1, sT0))
    if not rot:
        a('s_mov_b32 s%d, 0' % sT0)
    a('s_lshl_b32 s%d, s%d, 16' % (sC2, sT0))
    a('s_lshl_b32 s%d, s%d, 12' % (sC5, sT0))
    a('s_sub_u32 s%d, s%d, 3072' % (S_W1, S_W1))
    a('s_subb_u32 s%d, s%d, 0' % (S_W1 + 1, S_W1 + 1))
    a('s_cmp_ge_u32 s%d, 14' % sJ)
    a('s_cselect_b32 s%d, 0, %d' % (S_W1 + 2, SIZES['w1'] + 3072))
    for r_ in (s1a, s1b, s2a, s2b, csk, csv, csq, vBX + 2, vBX + 3):
        a('v_mov_b32 %s, 0' % v(r_))

    def warm(srd_, nbytes, dst):
        nl = nbytes // 128 // 256
        a('s_mul_i32 s%d, s2, %d' % (sT2, nl * 128))
        a('v_lshlrev_b32 %s, 7, %s' % (v(vT), v(vL)))
        a('s_mov_b32 exec_lo, 0x%x' % (((1 << nl) - 1) & 0xffffffff))
        a('s_mov_b32 exec_hi, 0x%x' % (((1 << nl) - 1) >> 32))
        a('buffer_load_dword %s, %s, %s, s%d offen' % (v(dst), v(vT), sr(srd_), sT2))
        a('s_mov_b64 exec, -1')

    def touch3(srd_, rows, pitch, off, dst, row0=None):
        nl = rows // 32
        a('s_lshr_b32 s%d, s2, 3' % sT2)
        a('s_mul_i32 s%d, s%d, %d' % (sT2, sT2, nl * pitch))
        if row0 is not None:
            a('s_add_u32 s%d, s%d, s%d' % (sT2, sT2, row0))
        a('v_mul_u32_u24 %s, %d, %s' % (v(vT), pitch, v(vL)))
        a('s_mov_b32 exec_lo, 0x%x' % (((1 << nl) - 1) & 0xffffffff))
        a('s_mov_b32 exec_hi, 0x%x' % (((1 << nl) - 1) >> 32))
        a('buffer_load_dword %s, %s, %s, s%d offen offset:%d' % (v(dst), v(vT), sr(srd_), sT2, off))
        a('s_mov_b64 exec, -1')

    def warm_big():
        a('s_cmp_lg_u32 s%d, 1' % sW)
        a('s_cbranch_scc1 L_nw1')
        warm(S_TMP, SIZES['w1'], vT + 2)
        a.label('L_nw1')
        a('s_cmp_lg_u32 s%d, 2' % sW)
        a('s_cbranch_scc1 L_nw2')
        warm(S_W2, SIZES['w2'], vT + 2)
        a.label('L_nw2')

    if cfg.get('warm1', 7) == -1:
        warm_big()
    a('s_waitcnt lgkmcnt(0)')
    a('s_mul_i32 s%d, s%d, 0x9e3779b1' % (sTAG, sTAG))
    a('s_add_u32 s%d, s%d, 0x7f4a7c15' % (sTAG, sTAG))
    a('v_mov_b32 %s, s%d' % (v(vONE), sTAG))
    D0 = min(D, cfg.get('d0', 2))
    for s in range(1, D0):
        R(dma_w(s) + dma_x(s))
    a.stamp('prolog')

    def wreg(s, p, m):
        if p == 0:
            return lambda o, n: v(vWB + (s & 1) * 8 + m * 4 + o, n)
        return lambda o, n: ac(128 + (s & 1) * 24 + (p - 1) * 8 + m * 4 + o, n)

    def reads(s):
        o = []
        for p in range(4):
            o.append('ds_read_b128 %s, %s offset:%d' % (v(X + (4 * s + p) * 4, 4), v(vXR + p), (s & 3) * 4096))
            for m in range(2):
                for t in range(2):
                    o.append('ds_read_b64_tr_b16 %s, %s offset:%d' % (wreg(s, p, m)(2 * t, 2), v(vWR + p), s * 8192 + m * 1024 + t * 256))
        return o

    def mains(s):
        o = []
        for p in range(4):
            for m in range(2):
                acc = v(aK if m == 0 else aV, 16)
                o.append([mfma32(acc, wreg(s, p, m)(0, 4), v(X + (4 * s + p) * 4, 4), '0' if (s == 0 and p == 0) else acc)])
        return o

    def cs_dots(s):
        o = []
        for r_ in range(4):
            o.append('v_dot2_f32_bf16 %s, %s, s%d, %s' % (v(csk), wreg(s, 0, 0)(r_, 1), sONES, v(csk)))
            o.append('v_dot2_f32_bf16 %s, %s, s%d, %s' % (v(csv), wreg(s, 0, 1)(r_, 1), sONES, v(csv)))
        return o

    def stat_dots(s):
        o = []
        for r_ in range(16):
            x = v(X + 16 * s + r_)
            p1, p2 = (s1a, s2a) if r_ & 1 else (s1b, s2b)
            o.append('v_dot2_f32_bf16 %s, %s, s%d, %s' % (v(p1), x, sONES, v(p1)))
            o.append('v_dot2_f32_bf16 %s, %s, %s, %s' % (v(p2), x, x, v(p2)))
        return o

    def a_ext(dst, cs, t):
        return split_hl(cs, t, t + 1, dst) + ['v_cvt_pk_bf16_f32 %s, %s, 0' % (v(dst + 1), v(t + 1)),
                                              'v_mov_b32 %s, 0' % v(dst + 2), 'v_mov_b32 %s, 0' % v(dst + 3)]

    phi_merge = ['ds_read_b64_tr_b16 %s, %s' % (v(aQ + 12, 2), v(aQ + 8)),
                 'ds_read_b64_tr_b16 %s, %s offset:256' % (v(aQ + 14, 2), v(aQ + 8))]
    phi_merge2 = []
    for e in range(4):
        phi_merge2.append('v_cndmask_b32 %s, 0, %s, s[%d:%d]' % (v(aQ + e), v(aQ + 12 + e), sMSK, sMSK1))
        phi_merge2.append('v_cndmask_b32 %s, %s, 0, s[%d:%d]' % (v(aQ + 4 + e), v(aQ + 12 + e), sMSK, sMSK1))
    for e in range(8):
        phi_merge2.append('v_accvgpr_write_b32 %s, %s' % (ac(PA1 + e), v(aQ + e)))

    wq = [dma_wq(s) for s in range(8)]
    R(WaitVM('slot0'))
    a('s_barrier')
    a.stamp('c0', 2)
    R(phi_merge)
    R(reads(0))
    for s in range(D0, D):
        R(dma_w(s) + dma_x(s))
    R(phi_merge2)
    late = cfg.get('p1late', 0)
    for s in range(7):
        R(WaitVM('slot%d' % (s + 1)))
        a('s_waitcnt lgkmcnt(0)')
        a('s_barrier')
        a.stamp('c%d' % (s + 1), 2)
        if s + D < 8:
            dw, dx = dma_w(s + D), dma_x(s + D)
        else:
            k0, k1 = (s + D - 8) * 8 // D, (s + D - 7) * 8 // D
            fl = [x for g in wq[k0:k1] for x in g]
            dw, dx = fl[:len(fl) // 2], fl[len(fl) // 2:]
        rd = reads(s + 1)
        allm = dw + dx
        idx = [i for i, x in enumerate(allm) if isinstance(x, str) and x.startswith('buffer_')]
        nl = min(late, len(idx))
        cut = idx[len(idx) - nl] if nl else len(allm)
        if nl and isinstance(allm[cut - 1], str) and 'm0' in allm[cut - 1]:
            cut -= 1
        a.fill(mains(s), merge(rd, allm[:cut]))
        dots = cs_dots(s) + stat_dots(s)
        rest = allm[cut:]
        groups = []
        for x in rest:
            if not groups or (isinstance(x, str) and x.startswith('buffer_') and any(isinstance(y, str) and y.startswith('buffer_') for y in groups[-1])):
                groups.append([])
            groups[-1].append(x)
        ng_ = len(groups)
        for k in range(ng_ + 1):
            R(dots[k * 40 // (ng_ + cfg.get('p1e', 0)) if ng_ else 0:(k + 1) * 40 // (ng_ + cfg.get('p1e', 0)) if ng_ else 40])
            if k < ng_:
                R(groups[k])
        if cfg.get('warm1', 7) == s:
            warm_big()
    s = 7
    R(cs_dots(s))
    a('v_lshlrev_b32 %s, 3, v0' % v(vT))
    R('ds_write_b64 %s, %s offset:%d' % (v(vT), v(csk, 2), L_CSX))
    R(stat_dots(s))
    a('v_lshlrev_b32 %s, 3, %s' % (v(vT), v(vL)))
    a('s_waitcnt lgkmcnt(0)')
    a('s_barrier')
    for w in range(4):
        R('ds_read_b64 %s, %s offset:%d' % (v(aQ + 2 * w, 2), v(vT), L_CSX + 512 * w))
    fin = ['v_add_f32 %s, %s, %s' % (v(s1a), v(s1a), v(s1b)),
           'v_add_f32 %s, %s, %s' % (v(s2a), v(s2a), v(s2b)),
           'v_permlane32_swap_b32 %s, %s' % (v(s1a), v(s2a)),
           'v_add_f32 %s, %s, %s' % (v(s1a), v(s1a), v(s2a)),
           'v_mov_b32 %s, %s' % (v(s2a), v(s1a)),
           'v_permlane32_swap_b32 %s, %s' % (v(s1a), v(s2a))]
    fin += ln_ops(s1a, s2a, mean, rstd)
    fin += ['v_sub_f32 %s, 0, %s' % (v(s1a), v(mean))]
    fin += split_hl(s1a, s1b, s2b, vT)
    fin += ['v_cvt_pk_bf16_f32 %s, %s, %s' % (v(vBX), v(s1b), v(s2b)),
            'v_cvt_pk_bf16_f32 %s, %s, 0' % (v(vBX + 1), v(s1b))]
    fin2 = ['v_add_f32 %s, %s, %s' % (v(aQ + i), v(aQ + i), v(aQ + 4 + i)) for i in range(4)]
    fin2 += ['v_add_f32 %s, %s, %s' % (v(csk + i), v(aQ + i), v(aQ + 2 + i)) for i in range(2)]
    fin2 += a_ext(aQ + 8, csk, vT + 1) + a_ext(aQ + 12, csv, vT + 1)
    k0 = (7 + D - 8) * 8 // D
    m7 = mains(7)
    m7 = [m7[i] for i in (0, 2, 4, 6, 1, 3, 5, 7)]
    a.fill(m7, merge(fin, fin2))
    a.stamp('p1end')
    R(mfma32(v(aK, 16), v(aQ + 8, 4), v(vBX, 4), v(aK, 16)))
    R(mfma32(v(aV, 16), v(aQ + 12, 4), v(vBX, 4), v(aV, 16)))
    R([x for g in wq[k0:] for x in g] + [Mark('wq')])
    a('v_lshlrev_b32 %s, 7, %s' % (v(vL128), v(vL)))
    def touches(at):
        o = []
        if cfg.get('lo', 0) and cfg.get('to', 'p1') == at:
            o += pretouch(sOST, 16, s1a)
        if cfg.get('lh', 0) and cfg.get('th', 'p1') == at:
            o += pretouch(sHST, 16, s1a) + pretouch(sSST, 2, s1a)
        return o
    if cfg.get('warm1', 7) == 7:
        warm_big()
    R(touches('p1'))
    if cfg.get('wflag', 1):
        a('v_lshlrev_b32 %s, 15, %s' % (v(vRB), v(vL)))
        a('s_cmp_eq_u32 s%d, 0' % sW)
        a('s_cselect_b32 s%d, s%d, s%d' % (sT2, sFP, sFB))
        a('s_cselect_b32 exec_lo, 1, 0x3e')
        a('s_mov_b32 exec_hi, 0')
        a('s_cmp_gt_u32 s%d, 1' % sW)
        a('s_cbranch_scc1 L_nowfl')
        a('buffer_load_dword %s, %s, %s, s%d offen sc1' % (v(vRB), v(vRB), sr(S_WS), sT2))
        a.label('L_nowfl')
        a('s_mov_b64 exec, -1')
    vBD = vXD
    def blk_regs(name, reg):
        return [a.unstash(name, reg)] + ['v_add_u32 %s, %d, %s' % (v(reg + q), q * 7168, v(reg)) for q in range(1, 4)]
    R(blk_regs('bdo', vBD))
    def dma_wo(g4):
        return ['s_add_u32 m0, s%d, %d' % (sLDSX, g4 * 4096)] + [
            'buffer_load_dwordx4 %s, %s, s%d offen offset:%d lds' % (v(vBD + b), sr(S_WO), sCO, b * 1024) for b in range(4)
        ] + step(sCO, 32768, 8 * 32768)
    vB1 = vWR
    def dma_w1(g4):
        return ['s_add_u32 m0, s%d, %d' % (sLW1, g4 * 16384)] + [
            'buffer_load_dwordx4 %s, %s, s%d offen offset:%d lds' % (v(vB1 + b), sr(S_W1), sC1, b * 1024) for b in range(4)
        ] + step(sC1, 64 * 3584, 512 * 3584)
    def w2reg(ks, rho):
        return ((ks * 2 + rho) * 4 + 128) % 224
    vW2, vW2c = vS + 2, vS + 14
    REG = {0: 32768, 1: R2, 2: R2, 3: R2, 4: 0, 5: 32768, 6: 65536}
    TW2, TAC = 4, 14
    def w2_dma(q):
        o = []
        early = q < (2 if LATE2 else 3)
        for h in range(2):
            so = sC2 if early else TW2 + 2 * (q - 2) + h
            o += ['s_add_u32 m0, s%d, %d' % (sLW2, REG[q] + h * 4096)] + [
                'buffer_load_dwordx4 %s, %s, s%d offen offset:%d lds' % (v(vBD2 + b), sr(S_W2), so, b * 1024) for b in range(4)]
            if early:
                o += step(sC2, 32768, 14 * 32768)
        return o + [Mark('w2_%d' % q)]
    def tables():
        o = []
        for n in range(0 if LATE2 else 2, 10):
            o += ['s_mov_b32 s%d, s%d' % (TW2 + n, sC2)] + step(sC2, 32768, 14 * 32768)
        for n in range(14):
            o += ['s_mov_b32 s%d, s%d' % (TAC + n, sC5)] + step(sC5, 2048, 14 * 2048)
        return o
    def w2_read(q, h, a_, rho):
        n, region = 2 * q + h, REG[q]
        base, off = (vW2, region) if region < R1 else ((vW2c, region - R1) if region < R2 else (vW2 + 2, region - R2))
        return ['ds_read_b64_tr_b16 %s, %s offset:%d' % (ac(w2reg(2 * n + a_, rho) + 2 * t, 2), v(base + rho),
                                                        off + h * 4096 + a_ * 1024 + t * 256) for t in range(2)]
    def w2_park(q):
        return [x for h in range(2) for a_ in range(2) for rho in range(2) for x in w2_read(q, h, a_, rho)] + [Mark('park%d' % q)]

    vBD2 = vXR
    PLAN = dict(Wa=['o0'], Wb1=['o1', 'o2'], Wb2=['o3', 'p0'], Wb3=[], Wc=[], Wd0=['g0', 'g1'], Wd=['g2', 'g3'], We=['g4', 'g5'],
                Wf0=['g6', 'g7'], Wf=['p1'])
    PLAN.update(cfg.get('plan', {}))
    ORDER = ['Wa', 'Wb1', 'Wb2', 'Wb3', 'Wc', 'Wd0', 'Wd', 'We', 'Wf0', 'Wf']
    where = {g: ORDER.index(w) for w in ORDER for g in PLAN[w]}
    LATE2 = 'p2' not in where
    assert sorted(where) == sorted(['o%d' % i for i in range(4)] + ['g%d' % i for i in range(8)] + ['p0', 'p1'] + ([] if LATE2 else ['p2']))
    assert all(where['o%d' % i] <= 4 for i in range(4)) and 1 <= where['p0'] <= 3
    assert all(where['g%d' % i] >= 4 for i in (0, 1)) and all(where['g%d' % i] >= 5 for i in (2, 3))
    assert all(where['g%d' % i] >= 7 for i in range(4, 8))
    assert (where['p1'] == 9) if LATE2 else (where['p1'] in (6, 7) and where['p2'] == 9)
    def window(w):
        o = []
        for g in PLAN[w]:
            o += {'o': dma_wo, 'g': dma_w1, 'p': w2_dma}[g[0]](int(g[1]))
            o.append(Mark(g))
        return o
    def landed(w):
        return sum(1 for i in range(8) if where['g%d' % i] <= ORDER.index(w))
    cs1 = vS + 6
    vW1 = vS + 10
    def w1_reads(k0, k1):
        o = []
        for ks in range(k0, k1):
            T, a_ = ks >> 1, ks & 1
            for t in range(2):
                off = (4 * T + a_) * 2048 + t * 256
                o.append('ds_read_b64_tr_b16 %s, %s offset:%d' % (v(X + 4 * ks + 2 * t, 2), v(vW1 + (off >> 16)), off & 0xffff))
        return o
    def w1_dots(k0, k1):
        return ['v_dot2_f32_bf16 %s, %s, s%d, %s' % (v(cs1 + (r_ & 1)), v(X + r_), sONES, '0' if r_ < 2 else v(cs1 + (r_ & 1)))
                for r_ in range(4 * k0, 4 * k1)]

    a('v_mul_f32 %s, 0x%x, %s' % (v(cexp), LOG2E, v(rstd)))
    a('v_mul_f32 %s, 0x%x, %s' % (v(ncexp), LOG2E | 0x80000000, v(rstd)))
    for i in range(8):
        a('v_cvt_pk_bf16_f32 %s, %s, %s' % (v(vWB + i), v(aK + 2 * i), v(aK + 2 * i + 1)))
    R(mfma32(v(aK, 16), ac(PA1, 4), v(vWB, 4), '0'))
    R(mfma32(v(aK, 16), ac(PA2, 4), v(vWB + 4, 4), v(aK, 16)))
    for i in range(16):
        a('v_mul_f32 %s, %s, %s' % (v(aV + i), v(aV + i), v(rstd)))
    for i in range(8):
        a('v_cvt_pk_bf16_f32 %s, %s, %s' % (v(aQ + i), v(aV + 2 * i), v(aV + 2 * i + 1)))
    for g in range(4):
        R('ds_write_b64 %s, %s offset:%d' % (v(vA + g), v(aQ + 2 * g, 2), L_V))
    a.stamp('phik', 2)
    sm = softmax_ops(aK, vWB, aV, cexp, aQ + 8)
    R(sm[:34])
    R(merge(sm[34:66], window('Wa')))
    R(sm[66:-16])
    for q in range(2):
        R('ds_write_b128 %s, %s offset:%d' % (v(vA + 4 + q), v(aV + 4 * q, 4), L_PHI))
    R(sm[-16:])
    for q in range(2, 4):
        R('ds_write_b128 %s, %s offset:%d' % (v(vA + 4 + q), v(aV + 4 * q, 4), L_PHI))
    vKV = vXR
    R([a.unstash('kvphi', vKV), a.unstash('kvv', vKV + 2), 'v_xor_b32 %s, 32, %s' % (v(vKV + 1), v(vKV)),
       'v_xor_b32 %s, 32, %s' % (v(vKV + 3), v(vKV + 2))])
    for i in range(4):
        a('v_mov_b32 %s, s%d' % (v(aQ + 12 + i), sONES))
    a('s_waitcnt lgkmcnt(0)')
    a('s_barrier')
    a.stamp('B1')
    for s in range(4):
        R('ds_read_b64_tr_b16 %s, %s offset:%d' % (v(vWB + 8 * s, 2), v(vKV), L_PHI + 2048 * s))
        R('ds_read_b64_tr_b16 %s, %s offset:%d' % (v(vWB + 8 * s + 2, 2), v(vKV + 1), L_PHI + 2048 * s + 256))
        R('ds_read_b64_tr_b16 %s, %s offset:%d' % (v(vWB + 8 * s + 4, 2), v(vKV + 2), L_V + 2048 * s))
        R('ds_read_b64_tr_b16 %s, %s offset:%d' % (v(vWB + 8 * s + 6, 2), v(vKV + 3), L_V + 2048 * s + 256))
    a('v_lshlrev_b32 %s, 3, v0' % v(vA))
    R(a.unstash('zst', vA + 1))
    for s in range(4):
        R(mfma16(v(aK, 4), v(vWB + 8 * s, 4), v(vWB + 8 * s + 4, 4), '0' if s == 0 else v(aK, 4)))
        R(mfma16(v(aK + 4, 4), v(vWB + 8 * s, 4), v(aQ + 12, 4), '0' if s == 0 else v(aK + 4, 4)))
    for p in range(4):
        a('v_add_u32 %s, %d, %s' % (v(vWR + p), L_WQ, v(vWR + p)))
    R(blk_regs('bd2', vBD2))
    a('v_cvt_pk_bf16_f32 %s, %s, %s' % (v(aQ), v(aK), v(aK + 1)))
    a('v_cvt_pk_bf16_f32 %s, %s, %s' % (v(aQ + 1), v(aK + 2), v(aK + 3)))
    R('buffer_store_dwordx2 %s, %s, %s, s%d offen sc1' % (v(aQ, 2), v(vA), sr(S_WS), sREC))
    a('s_mov_b32 exec_lo, 0x00010001')
    a('s_mov_b32 exec_hi, 0x00010001')
    R('buffer_store_dwordx4 %s, %s, %s, s%d offen offset:2048 sc1' % (v(aK + 4, 4), v(vA + 1), sr(S_WS), sREC))
    R(Mark('kv'))
    a('s_mov_b64 exec, -1')
    a.stamp('kvst', 2)

    R(WaitVM('wq'))
    a('s_barrier')
    a.stamp('Bq', 2)
    def qoff(s):
        return (s >> 1) * 8192 + (s & 1) * 1024
    order = [(s, p) for p in range(4) for s in range(8)]
    def qreg(n):
        return (lambda o, k: v(vWB + 4 * n + o, k)) if n < 8 else (lambda o, k: ac(4 * (n - 8) + o, k))
    def qread(n):
        s, p = order[n]
        return ['ds_read_b64_tr_b16 %s, %s offset:%d' % (qreg(n)(2 * t, 2), v(vWR + p), qoff(s) + t * 256) for t in range(2)] + [Mark('q%d' % n)]
    for n in range(12):
        R(qread(n))
    a('v_mov_b32 %s, 0' % v(vT + 1))
    R(WaitDS('q7'))
    for r_ in range(32):
        d = csq if r_ & 1 else vT + 1
        a('v_dot2_f32_bf16 %s, %s, s%d, %s' % (v(d), v(vWB + r_), sONES, v(d)))
    a('v_lshlrev_b32 %s, 2, v0' % v(vT))
    a('v_add_f32 %s, %s, %s' % (v(csq), v(csq), v(vT + 1)))
    R('ds_write_b32 %s, %s offset:%d' % (v(vT), v(csq), L_CSQ))
    a.stamp('qdot', 2)
    qm, qp = [], []
    for n in range(32):
        s, p = order[n]
        g = []
        if n >= 8 and n % 4 == 0:
            g.append(WaitDS('q%d' % (n + 3)))
        g.append(mfma32(v(aQ, 16), qreg(n)(0, 4), v(X + (4 * s + p) * 4, 4), '0' if n == 0 else v(aQ, 16)))
        qm.append(g)
        qp.append(qread(n + 12) if n + 12 < 32 else [])
    n1 = cfg.get('q1', 12)
    a.fill(qm[:n1], window('Wb1') + ['v_lshlrev_b32 %s, 11, %s' % (v(vT), v(vL))], post=qp[:n1])
    a.stamp('q1', 2)
    R(WaitVM('kv'))
    a.stamp('kvack', 2)
    a('s_waitcnt lgkmcnt(0)')
    a('s_barrier')
    push_flags(sFA, 0, vT)
    lab = a.uniq('L_noid')
    a('s_getreg_b32 s%d, hwreg(HW_REG_XCC_ID, 0, 4)' % sXID)
    a('s_cmp_lg_u32 s%d, 0' % sW)
    a('s_cbranch_scc1 %s' % lab)
    a('s_add_u32 s%d, s%d, %d' % (sT5, sFME, 5 * 32768))
    a('v_add_u32 %s, s%d, %s' % (v(vT + 3), sXID, v(vONE)))
    a('s_mov_b64 exec, 1')
    a('buffer_store_dword %s, %s, %s, s%d offen sc1' % (v(vT + 3), v(vL4), sr(S_WS), sT5))
    a('s_mov_b64 exec, -1')
    a.label(lab)
    a.stamp('pushA')
    if cfg.get('ct1', 2):
        code_touch(cfg.get('ct1', 2), 2, vRB)
    R(touches('pa'))
    qx = ['ds_read_b32 %s, %s offset:%d' % (v(vA + 4 + w), v(vL4), L_CSQ + 256 * w) for w in range(4)]
    qy = ['v_add_f32 %s, %s, %s' % (v(vA + 4), v(vA + 4), v(vA + 5)),
          'v_add_f32 %s, %s, %s' % (v(vA + 6), v(vA + 6), v(vA + 7)),
          'v_add_f32 %s, %s, %s' % (v(csq), v(vA + 4), v(vA + 6))] + a_ext(vA + 4, csq, vT + 1)
    a.fill(qm[n1:], qx + merge(window('Wb2'), qy), post=qp[n1:])
    R(mfma32(v(aQ, 16), v(vA + 4, 4), v(vBX, 4), v(aQ, 16)))
    XR = vWB + 24
    R([a.unstash('w2', vW2), 'v_xor_b32 %s, 512, %s' % (v(vW2 + 1), v(vW2)),
       'v_add_u32 %s, %d, %s' % (v(vW2 + 2), R2, v(vW2)), 'v_add_u32 %s, %d, %s' % (v(vW2 + 3), R2, v(vW2 + 1))])
    R(a.unstash('bd1', vB1))
    for q in range(1, 4):
        a('v_add_u32 %s, %d, %s' % (v(vB1 + q), (q >> 1) * 8 * 3584 + (q & 1) * 128 - 1024 * q, v(vB1)))
    R(window('Wb3'))
    R(touches('b3'))
    a.stamp('qgemm', 2)
    for i in range(8):
        a('v_cvt_pk_bf16_f32 %s, %s, %s' % (v(vWB + i), v(aQ + 2 * i), v(aQ + 2 * i + 1)))
    R(mfma32(v(aK, 16), ac(PA1, 4), v(vWB, 4), '0'))
    R(mfma32(v(aK, 16), ac(PA2, 4), v(vWB + 4, 4), v(aK, 16)))
    R([a.unstash('gld', vA), a.unstash('zld', vA + 1), a.unstash('kbw', vA + 2), a.unstash('kbz', vA + 3), a.unstash('kbr', vA + 4),
       'v_lshlrev_b32 %s, 7, %s' % (v(vL128), v(vL))])
    PQ = aQ
    sm = softmax_ops(aK, vWB, PQ, cexp, aV)
    for q in range(4):
        sm.append('v_permlane32_swap_b32 %s, %s' % (v(PQ + q), v(PQ + 4 + q)))
        sm.append('v_permlane32_swap_b32 %s, %s' % (v(PQ + 8 + q), v(PQ + 12 + q)))
    ns = cfg.get('smpre', 20)
    R(sm[:ns])
    a.stamp('qsm', 2)

    poll(0, 16)
    a('s_barrier')
    a.stamp('gotA')
    G = X + 64
    GZ = X + 96
    gl = []
    for p in range(8):
        g = ['buffer_load_dwordx4 %s, %s, %s, s%d offen sc1' % (v(G + 4 * p, 4), v(vA), sr(S_WS), sGAT)]
        if p == 0:
            g.append('buffer_load_dwordx4 %s, %s, %s, s%d offen offset:2048 sc1' % (v(GZ, 4), v(vA + 1), sr(S_WS), sGAT))
        if p < 7:
            g.append('s_add_u32 s%d, s%d, %d' % (sGAT, sGAT, 2 * KVREC))
        if p % 2 == 1:
            g.append(Mark('g%d' % (p // 2)))
        gl.append(g)
    ng = cfg.get('gfirst', 8)
    R(gl[:ng])
    a.stamp('gl', 2)
    R(WaitVM('p0'))
    R(w2_park(0))
    a.stamp('park0', 2)
    e0 = max(ns, cfg.get('gsplit', 66))
    R(sm[ns:e0])
    R(gl[ng:])
    vID = vS + 1
    R(check_issue(5, vID, None))
    lab = a.uniq('L_nowf')
    a('s_cmp_lg_u32 s%d, 1' % sW)
    a('s_cbranch_scc1 %s' % lab)
    a('v_lshlrev_b32 %s, 15, %s' % (v(vRB), v(vL)))
    a('s_mov_b64 exec, 0x1e')
    a('buffer_load_dword %s, %s, %s, s%d offen sc1' % (v(vRB), v(vRB), sr(S_WS), sFB))
    a('s_mov_b64 exec, -1')
    a.label(lab)
    R(window('Wc'))
    R(touches('wc'))
    a.stamp('gl2', 2)
    R(sm[e0:])
    a.stamp('sm2', 2)
    R([a.unstash('xd', vT), 'v_add_u32 %s, %d, %s' % (v(vT + 1), 16384 - 1024, v(vT)),
       's_add_u32 m0, s%d, %d' % (sLW2, R2 + 4096),
       'buffer_load_dwordx4 %s, %s, s%d offen lds' % (v(vT), sr(S_X), sOUT),
       'buffer_load_dwordx4 %s, %s, s%d offen offset:1024 lds' % (v(vT + 1), sr(S_X), sOUT), Mark('xr')])
    a.stamp('qsm2', 2)
    for sh in (1, 2, 4, 8):
        for i in range(4):
            a('v_add_f32_dpp %s, %s, %s row_ror:%d row_mask:0xf bank_mask:0xf' % (v(GZ + i), v(GZ + i), v(GZ + i), sh))
    a('v_cvt_pk_bf16_f32 %s, %s, %s' % (v(aK + 6), v(GZ), v(GZ + 1)))
    a('v_cvt_pk_bf16_f32 %s, %s, %s' % (v(aK + 7), v(GZ + 2), v(GZ + 3)))
    R('ds_write_b64 %s, %s offset:%d' % (v(vA + 3), v(aK + 6, 2), 16 * 80))
    S8 = aK + 8
    for p in range(8):
        if p % 2 == 0:
            R(WaitVM('g%d' % (p // 2)))
        for i in range(8):
            a('v_dot2_f32_bf16 %s, %s, s%d, %s' % (v(S8 + i), v(G + 4 * p + (i >> 1)), sSEL1 if i & 1 else sSEL0,
                                                  '0' if p == 0 else v(S8 + i)))
    for i in range(4):
        a('v_permlane32_swap_b32 %s, %s' % (v(S8 + i), v(S8 + 4 + i)))
    a('v_pk_add_f32 %s, %s, %s' % (v(aK, 2), v(S8, 2), v(S8 + 4, 2)))
    a('v_pk_add_f32 %s, %s, %s' % (v(aK + 2, 2), v(S8 + 2, 2), v(S8 + 6, 2)))
    a('v_cvt_pk_bf16_f32 %s, %s, %s' % (v(aK + 4), v(aK), v(aK + 1)))
    a('v_cvt_pk_bf16_f32 %s, %s, %s' % (v(aK + 5), v(aK + 2), v(aK + 3)))
    a.stamp('gdot', 2)
    R('ds_write_b64 %s, %s' % (v(vA + 2), v(aK + 4, 2)))
    check_done(5, 16, vID, None)
    R(WaitVM('o3'))
    a('s_waitcnt lgkmcnt(0)')
    a('s_barrier')
    a.stamp('B4', 2)
    for h in range(2):
        for s in range(2):
            R('ds_read_b128 %s, %s offset:%d' % (v(vWB + (h * 2 + s) * 4, 4), v(vA + 4), h * 17 * 80 + s * 32))
    for h in range(2):
        acc = v(aK if h == 0 else aV, 16)
        R(mfma32(acc, v(vWB + h * 8, 4), v(PQ + 4 * h, 4), '0'))
        R(mfma32(acc, v(vWB + h * 8 + 4, 4), v(PQ + 8 + 4 * h, 4), acc))
    for h in range(2):
        acc = aK if h == 0 else aV
        a('v_add_f32 %s, 0x358637bd, %s' % (v(acc + 8), v(acc + 8)))
        a('v_rcp_f32 %s, %s' % (v(acc + 8), v(acc + 8)))
        for i in range(8):
            a('v_mul_f32 %s, %s, %s' % (v(acc + i), v(acc + i), v(acc + 8)))
        for i in range(4):
            a('v_cvt_pk_bf16_f32 %s, %s, %s' % (v(acc + 12 + i), v(acc + 2 * i), v(acc + 2 * i + 1)))
        dual(['buffer_store_dwordx4 %s, %s, %s, s%d offen offset:%d' % (v(acc + 12, 4), v(vFR), sr(S_WS), sOST, h * 1024)], cfg.get('lo', 0))
    R(Mark('o'))
    a.stamp('ost', 2)
    vWO = vXD
    R([a.unstash('wo', vWO), 'v_xor_b32 %s, 512, %s' % (v(vWO + 1), v(vWO))])
    R([a.unstash('w1', vW1), 'v_add_u32 %s, 65536, %s' % (v(vW1 + 1), v(vW1)), a.unstash('xr', vT)])
    R([a.unstash('red3', vA), 'v_xor_b32 %s, 16384, %s' % (v(vA + 1), v(vA))])
    wop = []
    for s in range(16):
        for rho in range(2):
            for t in range(2):
                wop.append('ds_read_b64_tr_b16 %s, %s offset:%d' % (ac((s * 2 + rho) * 4 + 2 * t, 2), v(vWO + rho), s * 2048 + t * 256))
    R(merge(wop, window('Wd0')))
    R(WaitVM('o'))
    a('s_barrier')
    arrive(1)
    a.stamp('pushB')
    if cfg.get('ct3', 0):
        code_touch(cfg.get('ct3', 0), 2, vRB)
    R(['ds_read_b128 %s, %s' % (v(XR, 4), v(vT)), 'ds_read_b128 %s, %s offset:16' % (v(XR + 4, 4), v(vT))])
    k1 = 4 * landed('Wc')
    R(merge(w1_reads(0, k1), window('Wd')))
    R(Mark('Wd'))
    for i in range(8):
        a('v_lshlrev_b32 %s, 16, %s' % (v(aQ + 2 * i), v(XR + i)))
        a('v_and_b32 %s, 0xffff0000, %s' % (v(aQ + 2 * i + 1), v(XR + i)))
    a.stamp('wopark', 2)

    poll(1, 16)
    R(WaitVM('Wd'))
    a('s_waitcnt lgkmcnt(0)')
    a('s_barrier')
    a.stamp('gotB')
    OB = X + 64
    ol = []
    for s in range(16):
        g = []
        if s % 4 == 0:
            g += ['s_add_u32 s%d, s%d, s%d' % (sT2, sR3, sOLD)] + step(sR3, 4096, 16384)
        g.append('buffer_load_dwordx4 %s, %s, %s, s%d offen offset:%d %s' % (v(OB + 4 * s, 4), v(vFR), sr(S_WS), sT2, (s % 4) * 1024, SC))
        ol.append(g)
    no = cfg.get('ofirst', 10)
    R(ol[:no])
    a.stamp('old', 2)
    pm = []
    for s in range(16):
        for rho in range(2):
            acc = v(aK if rho == 0 else aV, 16)
            pm.append([mfma32(acc, ac((s * 2 + rho) * 4, 4), v(OB + 4 * s, 4), '0' if s == 0 else acc)])
    k2 = min(16, 4 * landed('Wd'))
    R(w1_reads(k1, k2))
    if where['p1'] == 6:
        R(w2_park(1))
    a.stamp('park1', 2)
    post = [[] for _ in pm]
    for k, g in enumerate(ol[no:]):
        post[2 * k] = g
    if where['p1'] != 7:
        a.fill(pm, window('We'), cfg.get('wefirst', 14), post=post)
    else:
        a.fill(pm, window('We') + [WaitVM('p1')] + w2_park(1), 14, post=post)
    a.stamp('p3mf', 2)
    for q in range(4):
        R('ds_write_b128 %s, %s offset:%d' % (v(vA), v(aV + 4 * q, 4), q * 1024))
    for i in range(0, 16, 2):
        a('v_pk_add_f32 %s, %s, %s' % (v(aK + i, 2), v(aK + i, 2), v(aQ + i, 2)))
    a('s_waitcnt lgkmcnt(0)')
    a('s_barrier')
    for q in range(4):
        R('ds_read_b128 %s, %s offset:%d' % (v(aV + 4 * q, 4), v(vA + 1), q * 1024))
    HP = vA
    for half in range(2):
        for i in range(8 * half, 8 * half + 8, 2):
            a('v_pk_add_f32 %s, %s, %s' % (v(aK + i, 2), v(aK + i, 2), v(aV + i, 2)))
        for i in range(8 * half, 8 * half + 8, 2):
            a('v_cvt_pk_bf16_f32 %s, %s, %s' % (v(HP + i // 2), v(aK + i), v(aK + i + 1)))
        dual(['buffer_store_dwordx4 %s, %s, %s, s%d offen offset:%d' % (v(HP + 4 * half, 4), v(vFR), sr(S_WS), sHST, half * 1024)], cfg.get('lh', 0))
    for i in range(8):
        a('v_dot2_f32_bf16 %s, %s, s%d, %s' % (v(vT), v(HP + i), sONES, '0' if i == 0 else v(vT)))
        a('v_dot2_f32_bf16 %s, %s, %s, %s' % (v(vT + 1), v(HP + i), v(HP + i), '0' if i == 0 else v(vT + 1)))
    a('v_permlane32_swap_b32 %s, %s' % (v(vT), v(vT + 1)))
    a('v_add_f32 %s, %s, %s' % (v(vT), v(vT), v(vT + 1)))
    dual(['buffer_store_dword %s, %s, %s, s%d offen' % (v(vT), v(vL4), sr(S_WS), sSST)], cfg.get('lh', 0))
    R(Mark('h'))
    a.stamp('hst', 2)
    R(a.unstash('bias', vT + 2))
    R('buffer_load_ushort %s, %s, %s, 0 offen' % (v(vS + 12), v(vT + 2), sr(S_B1)))
    R(window('Wf0'))
    R(w1_dots(0, k2))
    R(['v_add_u32 %s, %d, %s' % (v(vW2c), R1, v(vW2)), 'v_add_u32 %s, %d, %s' % (v(vW2c + 1), R1, v(vW2 + 1))])
    R(WaitVM('h'))
    if cfg.get('rbh', 0):
        R(readback(sHST, 16, vRB, sSST))
    a('s_barrier')
    arrive(2)
    a.stamp('pushC')
    if cfg.get('ct2', 4):
        code_touch(cfg.get('ct2', 4), 2, vRB)
    a('s_or_b32 s%d, s%d, s%d' % (sT2, sFME, sW))
    a('s_cmp_lg_u32 s%d, %d' % (sT2, 15 * 4))
    a('s_cbranch_scc1 L_noep')
    a('s_mov_b32 s%d, 0x%x' % (sT2, EPOCH))
    a('s_mov_b64 exec, 1')
    a('buffer_store_dword %s, %s, %s, s%d offen sc1' % (v(vONE), v(vL4), sr(S_WS), sT2))
    a('s_mov_b64 exec, -1')
    a.label('L_noep')
    R(window('Wf'))
    vAL = vXD + 2
    a('v_add_u32 %s, s%d, %s' % (v(vAL), sALD, v(vFR)))
    a('v_add_u32 %s, %d, %s' % (v(vAL + 1), 2 * 112 * 1024, v(vAL)))
    vHR = vWR + 2
    a('v_mov_b32 %s, %s' % (v(vHR), v(vFR)))
    a('v_add_u32 %s, 65536, %s' % (v(vHR + 1), v(vFR)))
    a('s_lshl_b32 s%d, s%d, 10' % (sT2, sW))
    a('v_add_u32 %s, s%d, %s' % (v(vWR), sT2, v(vHR + 1)))
    BX4 = vWB + 24
    AXR = vWB + 28
    a('v_mov_b32 %s, 0' % v(BX4 + 3))
    a('s_cmp_ge_u32 s%d, 14' % sJ)
    a('s_cbranch_scc1 L_idle')
    k3 = min(cfg.get('k3', 16), 4 * landed('We'))
    R(w1_reads(k2, k3))
    R(w1_dots(k2, k3))
    sx(sT2, [(sJ, 80 * 128), (sW, 20 * 128)])
    sx(sT3, [(sI, 4 << 15)], H_)
    a('v_lshlrev_b32 %s, 7, %s' % (v(vT + 1), v(vL)))
    a('v_add_u32 %s, s%d, %s' % (v(vT + 1), sT2, v(vT + 1)))
    a('v_min_u32 %s, %d, %s' % (v(vT + 1), 131072 - 128, v(vT + 1)))
    a.stamp('w1park', 2)

    poll(2, 16)
    R(WaitVM('g7'))
    a('s_waitcnt lgkmcnt(0)')
    a('s_barrier')
    a.stamp('gotC')
    def h_dma(tau, half):
        sb = sHL1 if half else sHL0
        return ['s_add_u32 m0, s%d, %d' % (sLW1, tau * 32768 + half * 16384)] + [
            'buffer_load_dwordx4 %s, %s, s%d offen offset:%d %s lds' % (v(vFR), sr(S_WS), sb, b * 1024, SC) for b in range(4)
        ] + ['s_add_u32 s%d, s%d, 32768' % (sb, sb), Mark('h%d%d' % (tau, half))]
    R(h_dma(0, 0))
    R(h_dma(0, 1))
    SB = aQ
    L_ST = L_BX + 8192
    st_dma = ['s_add_u32 m0, s%d, %d' % (sLW1, L_ST)] + [
        'buffer_load_dwordx4 %s, %s, s%d offen offset:%d %s lds' % (v(vFR), sr(S_WS), sSLD, b * 1024, SC) for b in range(4)] + [Mark('st')]
    st_reads = [WaitVM('st')] + ['ds_read_b32 %s, %s offset:%d' % (v(SB + ct), v(vWR + 1), ct * 256) for ct in range(16)]
    a('s_add_u32 s%d, s%d, %d' % (sT2, sLW1, L_ST))
    a('v_add_u32 %s, s%d, %s' % (v(vWR + 1), sT2, v(vL4)))
    if cfg.get('touchh', 0):
        a('s_mov_b64 exec, 0xfffff')
        R('buffer_load_dword %s, %s, %s, s%d offen %s' % (v(vT + 2), v(vT + 1), sr(S_WS), sT3, SC))
        a('s_mov_b64 exec, -1')
    H1E = cfg.get('h1e', 0)
    for hh_ in range(H1E):
        R(h_dma(1, hh_))
    R(w1_reads(k3, 32))
    TSH = cfg.get('tshadow', 1)
    if not TSH:
        R(tables())
    kd1, kd2 = cfg.get('dots', [32, 32])
    R(w1_dots(k3, kd1))
    aext = ['v_add_f32 %s, %s, %s' % (v(AXR + 3), v(cs1), v(cs1 + 1))] + split_hl(AXR + 3, vT + 1, vT, AXR) + [
        'v_cvt_pk_bf16_f32 %s, %s, 0' % (v(AXR + 1), v(vT)),
        'v_lshl_or_b32 %s, %s, 16, %s' % (v(AXR + 1), v(vS + 12), v(AXR + 1)),
        'v_mov_b32 %s, %s' % (v(AXR + 2), v(vS + 12)), 'v_mov_b32 %s, 0' % v(AXR + 3)]
    a('s_waitcnt lgkmcnt(0)')
    a.stamp('w1b', 2)
    BXA = A_STASH
    vCK = vS + 1
    NR, LA = 12, 8
    def bread(n):
        tau, ks = n >> 5, n & 31
        off = tau * 32768 + ks * 1024
        return ['ds_read_b128 %s, %s offset:%d' % (ac(4 * (n % NR), 4), v(vHR + (off >> 16)), off & 0xffff), Mark('b%d' % n)]
    stats = []
    for i in range(8):
        stats.append('v_add_f32 %s, %s, %s' % (v(SB + i), v(SB + i), v(SB + 8 + i)))
    for i in range(4):
        stats.append('v_add_f32 %s, %s, %s' % (v(SB + i), v(SB + i), v(SB + 4 + i)))
    stats += ['v_add_f32 %s, %s, %s' % (v(SB), v(SB), v(SB + 2)), 'v_add_f32 %s, %s, %s' % (v(SB + 1), v(SB + 1), v(SB + 3)),
              'v_add_f32 %s, %s, %s' % (v(SB), v(SB), v(SB + 1)), 'v_mov_b32 %s, %s' % (v(SB + 1), v(SB)),
              'v_permlane32_swap_b32 %s, %s' % (v(SB), v(SB + 1))]
    stats += ln_ops(SB, SB + 1, SB + 2, SB + 15)
    stats += ['v_mul_f32 %s, %s, %s' % (v(SB + 4), v(SB + 1), v(SB + 15)), 'v_sub_f32 %s, 0, %s' % (v(SB + 2), v(SB + 2))]
    stats += split_hl(SB + 2, SB + 5, SB + 6, SB + 3) + split_hl(SB + 4, SB + 7, SB + 8, SB + 3)
    stats += ['v_cvt_pk_bf16_f32 %s, %s, %s' % (v(SB + 12), v(SB + 5), v(SB + 6)),
              'v_cvt_pk_bf16_f32 %s, %s, %s' % (v(SB + 13), v(SB + 5), v(SB + 7)),
              'v_cvt_pk_bf16_f32 %s, %s, 0' % (v(SB + 14), v(SB + 8)),
              'v_mul_f32 %s, 0x%x, %s' % (v(SB + 15), LOG2E, v(SB + 15)),
              'ds_write_b128 %s, %s offset:%d' % (v(vWR), v(SB + 12, 4), L_BX - 65536)]

    ACCS = [aK, aV, vWB + 8]
    PKS = [aQ, aQ + 8]
    T = lambda e: v(vWB + e % 4)
    Y = lambda e: v(ACCS[(e >> 4) % 3] + (e & 15))
    C1 = lambda e: v(vS + 12 + ((e >> 4) & 1))
    def elem_ops(m, lim_=64):
        E, o = m >> 1, []
        ok = lambda e: 0 <= e < lim_
        if m % 2 == 0:
            if ok(E):
                o.append('v_mul_f32 %s, %s, %s' % (Y(E), Y(E), C1(E)))
            if ok(E - 1):
                o.append('v_fma_f32 %s, %s, s%d, s%d' % (T(E - 1), T(E - 1), sRS, sRS))
            if ok(E):
                o.append('v_exp_f32 %s, %s' % (T(E), Y(E)))
        else:
            if ok(E - 1):
                o.append('v_fma_f32 %s, %s, %s, 0.5' % (T(E - 1), T(E - 1), T(E - 1)))
            if ok(E - 2):
                o.append('v_fma_f32 %s, -%s, %s, %s' % (Y(E - 2), T(E - 2), Y(E - 2), Y(E - 2)))
            if ok(E - 1):
                o.append('v_rcp_f32 %s, %s' % (T(E - 1), T(E - 1)))
            if ok(E - 2) and E & 1:
                e = E - 2
                o.append('v_cvt_pk_bf16_f32 %s, %s, %s' % (v(PKS[(e >> 4) & 1] + (e & 15) // 2), Y(e - 1), Y(e)))
        return o
    def act_store(tau):
        return ['buffer_store_dwordx4 %s, %s, %s, s%d offen offset:%d %s' % (v(PKS[tau & 1] + 4 * h, 4), v(vFR), sr(S_WS), sAST, h * 1024, SC)
                for h in range(2)] + ['s_add_u32 s%d, s%d, %d' % (sAST, sAST, 112 * 1024), Mark('act%d' % tau)]
    def ext_regs(tau):
        return ['v_accvgpr_read_b32 %s, %s' % (v(BX4 + i), ac(BXA + 4 * tau + i)) for i in range(3)] + [
            'v_accvgpr_read_b32 %s, %s' % (C1(16 * tau), ac(BXA + 4 * tau + 3))]
    bx_reads = ['ds_read_b128 %s, %s offset:%d' % (ac(BXA + 4 * t_, 4), v(vHR + 1), L_BX - 65536 + t_ * 1024) for t_ in range(4)]

    bars = {10: 'h01', 26: 'h11', 58: 'h21', 90: 'h31'}
    lim = lambda n: 16 if n < 10 else (32 if n < 26 else (64 if n < 58 else (96 if n < 90 else 128)))
    M0 = 36
    def paced(items):
        out, cur = [], []
        for x in items:
            if isinstance(x, str) and x.startswith('buffer_'):
                out.append(cur + [x])
                cur = []
            elif isinstance(x, str) and 'm0' in x:
                cur.append(x)
            else:
                out[-1].append(x)
        return out
    at_mem, at_val = {}, {}
    kd = cfg.get('pushd', 128)
    busy = [-1]
    def place(n0, items, every=2):
        assert n0 > busy[0], (n0, busy)
        for k, g in enumerate(paced(items)):
            busy[0] = n0 + int(k * every)
            at_mem.setdefault(busy[0], []).extend(g)
    P = dict(h1=[0, 2], h2=[16, 1.5], p3=[28, 1], p4=[36, 2], h3=[58, 2], p5=[76, 2], p6=[92, 1.5])
    if LATE2:
        P = dict(h1=[6, 2], h2=[24, 2], p2=[40, 2], h3=[58, 2], p4=[74, 1.75], p5=[88, 2], p3=[106, 1.25], p6=[116, 1.25])
    P.update(cfg.get('p4plan', {}))
    assert P['p4'][0] >= 26 and P['h3'][0] >= 58 and P['p5'][0] >= 58 and P['p6'][0] >= 90
    if TSH:
        tb = tables()
        for k in range(0, len(tb), 3):
            at_mem.setdefault(8 + k // 3, []).extend(tb[k:k + 3])
    stp = cfg.get('stp', [0, 1.5])
    if stp[0] < P['h1'][0]:
        place(stp[0], st_dma, stp[1])
    ns_ = cfg.get('stn', 14)
    for k in range(4):
        at_mem.setdefault(ns_ + k // 2, []).extend(st_reads[4 * k + (1 if k else 0):4 * k + 5])
    pk = w2_park(1 if LATE2 else 2)
    for k in range(8):
        at_mem.setdefault(k, []).extend(pk[2 * k:2 * k + 2] + ([pk[16]] if k == 7 else []))
    if LATE2:
        assert P['p2'][0] > 10
        n2 = cfg.get('park2', 66)
        pk = w2_park(2)
        at_mem.setdefault(n2, []).append(WaitVM('w2_2'))
        for k in range(16):
            at_mem.setdefault(n2 + 1 + 2 * k, []).extend([pk[k]] + ([pk[16]] if k == 15 else []))
        assert P['p3'][0] >= n2 + 36
        at_mem.setdefault(P['p3'][0] - 1, []).append(WaitDS('park2'))
    else:
        assert P['p3'][0] > 10
    for name in sorted(P, key=lambda z: P[z][0]):
        t_ = int(name[1])
        if name == 'h1':
            items = [x for hh_ in range(H1E, 2) for x in h_dma(1, hh_)]
            if items:
                place(P[name][0], items, P[name][1])
            if stp[0] > P['h1'][0]:
                place(stp[0], st_dma, stp[1])
        else:
            place(P[name][0], h_dma(t_, 0) + h_dma(t_, 1) if name[0] == 'h' else w2_dma(t_), P[name][1])
    at_mem.setdefault(27, []).extend(bx_reads)
    ks0 = cfg.get('st0', M0 + 38)
    assert ks0 >= M0 + 36
    at_mem.setdefault(ks0, []).extend(act_store(0))
    at_mem.setdefault(M0 + 68, []).extend(act_store(1))
    nsp = 25 - (ns_ + 3)
    per = (len(stats) + nsp - 1) // nsp
    for k in range(nsp):
        at_val.setdefault(ns_ + 3 + k, []).extend(stats[k * per:(k + 1) * per])
    at_val.setdefault(26, []).extend(aext[:4])
    at_val.setdefault(27, []).extend(aext[4:])
    for tau in range(4):
        er = ext_regs(tau)
        at_val.setdefault(32 * tau + 29, []).extend(er[:2])
        at_val.setdefault(32 * tau + 30, []).extend(er[2:3])
        at_val.setdefault(32 * tau + 31, []).extend(er[3:])
    R(WaitVM('h00'))
    a('s_barrier')
    a.stamp('h00', 2)
    for n in range(LA):
        R(bread(n))
    nxt = LA
    for n in range(128):
        tau, ks = n >> 5, n & 31
        acc = v(ACCS[tau % 3], 16)
        if n == 10:
            R(w1_dots(kd1, kd2))
        if n == 26:
            R(w1_dots(kd2, 32))
        if n in bars:
            R([WaitVM(bars[n]), 's_waitcnt lgkmcnt(0)', 's_barrier'])
            a.stamp('bar%d' % n, 2)
        if n == kd:
            R(WaitVM('act1'))
            a('s_barrier')
            arrive(3)
            a.stamp('pushD', 2)
        wp = cfg.get('wpar', 2)
        if (n % 4 == wp or n == 0) and n not in bars:
            R(WaitDS('b%d' % min(n + 3, nxt - 1)))
        if n in cfg.get('nstamp', []):
            a.stamp('n%d' % n, 2)
        R(mfma32(acc, v(X + 4 * ks, 4), ac(4 * (n % NR), 4), '0' if ks == 0 else acc))
        if ks == 31:
            R(mfma32(acc, v(AXR, 4), v(BX4, 4), acc))
        mem = at_mem.pop(n, [])
        R([x for x in mem if isinstance(x, str) and 'm0,' in x])
        k = 0
        while nxt < min(n + LA + 2, lim(n + 1) if n + 1 not in bars else lim(n)) and k < 2:
            R(bread(nxt))
            nxt += 1
            k += 1
        R([x for x in mem if not (isinstance(x, str) and 'm0,' in x)])
        R(elem_ops(n - M0) if n >= M0 else [])
        R(at_val.pop(n, []))
        if ks == 31:
            a.stamp('t%d' % tau, 2)
    assert not at_mem and not at_val, (at_mem.keys(), at_val.keys())
    PRE = cfg.get('p5pre', 12)
    def bload(n):
        t, ks = n // 28, n % 28
        return ['buffer_load_dwordx4 %s, %s, %s, s%d offen offset:%d %s' % (
            v(X + 4 * (n % 32), 4), v(vAL + t), sr(S_WS), TAC + ks // 2, (ks % 2) * 1024, SC), Mark('a%d' % n)]
    tail = [x for m in range(128 - M0, 100) for x in elem_ops(m, 48)]
    n2_ = len(tail)
    if cfg.get('pktail', 1):
        A3, E3, K3 = ACCS[0], vWB + 8, vT
        tail += ['v_mov_b32 %s, s%d' % (v(K3), sRS), 'v_mov_b32 %s, 0.5' % v(K3 + 1)]
        for g in range(0, 16, 8):
            r2, r1 = range(g, g + 8, 2), range(g, g + 8)
            tail += ['v_pk_mul_f32 %s, %s, %s op_sel:[0,1] op_sel_hi:[1,1]' % (v(A3 + i, 2), v(A3 + i, 2), v(vS + 12, 2)) for i in r2]
            tail += ['v_exp_f32 %s, %s' % (v(E3 + i), v(A3 + i)) for i in r1]
            tail += ['v_pk_fma_f32 %s, %s, %s, %s op_sel_hi:[1,0,0]' % (v(E3 + i, 2), v(E3 + i, 2), v(K3, 2), v(K3, 2)) for i in r2]
            tail += ['v_pk_fma_f32 %s, %s, %s, %s op_sel:[0,0,1] op_sel_hi:[1,1,1]' % (v(E3 + i, 2), v(E3 + i, 2), v(E3 + i, 2), v(K3, 2)) for i in r2]
            tail += ['v_rcp_f32 %s, %s' % (v(E3 + i), v(E3 + i)) for i in r1]
            tail += ['v_pk_fma_f32 %s, %s, %s, %s neg_lo:[1,0,0] neg_hi:[1,0,0]' % (v(A3 + i, 2), v(E3 + i, 2), v(A3 + i, 2), v(A3 + i, 2)) for i in r2]
            tail += ['v_cvt_pk_bf16_f32 %s, %s, %s' % (v(PKS[1] + i // 2), v(A3 + i), v(A3 + i + 1)) for i in r2]
    else:
        tail = [x for m in range(128 - M0, 134) for x in elem_ops(m)]
        n2_ = sum(len(elem_ops(m)) for m in range(128 - M0, 100))
    mid = cfg.get('mid', 0)
    h0, h2, h1 = cfg.get('tail', [0, n2_ - 4, n2_])
    ev = {}
    def pd():
        R(WaitVM('act1'))
        a('s_barrier')
        arrive(3)
        a.stamp('pushD', 2)
    def cd():
        check_done(3, 14, vCK, 3)
        a('s_barrier')
        a.stamp('gotD')
    if kd >= 128:
        ev.setdefault(h0, []).append(pd)
    ev.setdefault(h2, []).append(check_issue(3, vCK, 3))
    if mid:
        ev.setdefault(h1, []).append(cd)
        left = len(tail) - h1
        for k in range(mid):
            ev.setdefault(h1 + (k // 2) * 2 * left // max(mid, 1), []).append(bload(k))
    else:
        assert h1 >= n2_
        ev.setdefault(h1, []).append(act_store(2))
    for k in range(len(tail) + 1):
        R(ev.pop(k, []))
        if k < len(tail):
            R(tail[k])
    assert not ev
    if mid:
        for n in range(mid, cfg.get('mid2', mid)):
            R(bload(n))
        R(act_store(2))
    R(act_store(3))
    a.stamp('mish', 2)
    if not mid:
        cd()
    for n in range(max(mid, cfg.get('mid2', mid)), PRE):
        R(bload(n))
    ke = cfg.get('pushe', -1 if not mid else mid - 1)
    def pe():
        R(WaitVM('act3'))
        a('s_barrier')
        lab = a.uniq('L_noe')
        a('s_cmp_ge_u32 s%d, 14' % sJ)
        a('s_cbranch_scc1 %s' % lab)
        arrive(4)
        a.label(lab)
        a.stamp('pushE', 2)
    if ke < 0:
        pe()
    join = (a.vmn, a.dsn)
    a('s_branch L_p5')
    a.label('L_idle')
    saved = dict(a.marks)
    if (cfg.get('lo', 0) or cfg.get('lh', 0)) and cfg.get('wb', 1):
        lab = a.uniq('L_nowb')
        a('s_cmp_lg_u32 s%d, 14' % sJ)
        a('s_cbranch_scc1 %s' % lab)
        poll(2, 16)
        a('s_cmp_lg_u32 s%d, 0' % sW)
        a('s_cbranch_scc1 %s' % lab)
        for _ in range(cfg.get('wbdelay', 0)):
            a('s_sleep 8')
        a('buffer_wbl2 sc1')
        a.label(lab)
    R(tables())
    a('s_waitcnt vmcnt(0)')
    a('s_barrier')
    if LATE2:
        R(w2_park(1))
        a('s_waitcnt lgkmcnt(0)')
        R(w2_dma(2))
        a('s_waitcnt vmcnt(0)')
    R(w2_park(2))
    a('s_waitcnt lgkmcnt(0)')
    for q in range(3, 7):
        R(w2_dma(q))
    poll(3, 14, 3)
    a('s_barrier')
    for n in range(PRE):
        R(bload(n))
    a.vmn, a.dsn = join
    a.marks = saved
    a.label('L_p5')

    ACC = 32
    def areads(ks):
        n, a_ = ks >> 1, ks & 1
        q, h = n >> 1, n & 1
        if q < 3:
            return []
        return w2_read(q, h, a_, 0) + w2_read(q, h, a_, 1)
    vRW, vRR, vOS = vWR, vS + 2, vS + 3
    pre = ['v_lshrrev_b32 %s, 5, %s' % (v(vT), v(vL)), 'v_lshlrev_b32 %s, 6, %s' % (v(vT), v(vT)),
           'v_xor_b32 %s, %s, %s' % (v(vT), v(vT), v(vFR)),
           's_mul_i32 s%d, s%d, %d' % (sT2, sKH, 4096 + 128), 's_add_u32 s%d, s%d, s%d' % (sT2, sT2, sLW2),
           'v_xor_b32 %s, s%d, %s' % (v(vRW), sT2, v(vT)), 'v_xor_b32 %s, 32, %s' % (v(vRW + 1), v(vRW)),
           'v_xor_b32 %s, %d, %s' % (v(vRW + 2), 4096 + 128, v(vRW)), 'v_xor_b32 %s, %d, %s' % (v(vRW + 3), 4096 + 128 + 32, v(vRW))]
    pre2 = ['s_lshl_b32 s%d, s%d, 3' % (sT2, sW), 'v_lshrrev_b32 %s, 3, %s' % (v(vT), v(vL)),
            'v_add_u32 %s, s%d, %s' % (v(vT), sT2, v(vT)),
            'v_and_b32 %s, 7, %s' % (v(vT + 1), v(vL)),
            'v_lshlrev_b32 %s, 4, %s' % (v(vOS), v(vT + 1)), 'v_lshl_add_u32 %s, %s, 10, %s' % (v(vOS), v(vT), v(vOS)),
            'v_lshlrev_b32 %s, 1, %s' % (v(vT + 2), v(vT + 1)), 'v_xor_b32 %s, %s, %s' % (v(vT), v(vT), v(vT + 2)),
            'v_lshlrev_b32 %s, 4, %s' % (v(vRR), v(vT)),
            'v_bfe_u32 %s, %s, 1, 1' % (v(vT + 2), v(vL)), 'v_lshl_add_u32 %s, %s, 9, %s' % (v(vRR), v(vT + 2), v(vRR)),
            'v_and_b32 %s, 1, %s' % (v(vT + 2), v(vL)), 'v_lshl_add_u32 %s, %s, 11, %s' % (v(vRR), v(vT + 2), v(vRR)),
            'v_bfe_u32 %s, %s, 2, 1' % (v(vT + 2), v(vL)), 'v_lshl_add_u32 %s, %s, 12, %s' % (v(vRR), v(vT + 2), v(vRR)),
            's_lshl_b32 s%d, s%d, 16' % (sT2, sTT), 's_lshl_b32 s%d, s%d, 6' % (sT3, sKH),
            's_add_u32 s%d, s%d, s%d' % (sT2, sT2, sT3), 's_sub_u32 s%d, s%d, s%d' % (sOUT, sOUT, sT2)]
    def red_writes(t):
        return ['ds_write_b128 %s, %s offset:%d' % (v(vRW + 2 * rc + (q >> 1)), v(ACC + 16 * (2 * t + rc) + 4 * q, 4), t * 32768 + q * 1024)
                for rc in (1, 0) for q in range(4)]
    HU = vWB + 16
    unpack = []
    for i in range(8):
        unpack.append('v_lshlrev_b32 %s, 16, %s' % (v(HU + 2 * i), v(HP + i)))
        unpack.append('v_and_b32 %s, 0xffff0000, %s' % (v(HU + 2 * i + 1), v(HP + i)))
    sM0, sM1 = sT0, sT1
    res0 = ['v_fma_f32 %s, %s, s%d, %s' % (v(ACC + i), v(HU + i), sM0, v(ACC + i)) for i in range(16)]
    res1 = ['v_mul_f32 %s, s%d, %s' % (v(ACC + 32 + i), sM1, v(HU + i)) for i in range(16)]
    def red_reads(t, dst):
        return ['ds_read_b128 %s, %s offset:%d' % (v(dst + 8 * src + 4 * e, 4), v(vRR), t * 32768 + src * 8192 + e * 1024)
                for src in range(4) for e in range(2)]
    def red_sum(t, dst):
        o = ['v_add_f32 %s, %s, %s' % (v(dst + i), v(dst + i), v(dst + 8 + i)) for i in range(8)]
        o += ['v_add_f32 %s, %s, %s' % (v(dst + 16 + i), v(dst + 16 + i), v(dst + 24 + i)) for i in range(8)]
        o += ['v_add_f32 %s, %s, %s' % (v(dst + i), v(dst + i), v(dst + 16 + i)) for i in range(8)]
        o += ['v_mul_f32 %s, s%d, %s' % (v(dst + i), sLN2, v(dst + i)) for i in range(8)]
        o += ['v_cvt_pk_bf16_f32 %s, %s, %s' % (v(dst + 8 + i), v(dst + 2 * i), v(dst + 2 * i + 1)) for i in range(4)]
        o += ['buffer_store_dwordx4 %s, %s, %s, s%d offen %s' % (v(dst + 8, 4), v(vOS), sr(S_OUT), sOUT, cfg.get('outf', 'sc1'))]
        if t == 0:
            o.append('s_add_u32 s%d, s%d, 65536' % (sOUT, sOUT))
        return o
    a('s_cmp_eq_u32 s%d, 0' % sTT)
    a('s_cselect_b32 s%d, 0x%x, 0' % (sM0, LOG2E))
    a('s_cselect_b32 s%d, 0, 0x%x' % (sM1, LOG2E))
    ALA = 3
    sched = {}
    def put(n0, items, per):
        for k in range(0, len(items), per):
            sched.setdefault(n0 + k // per, []).extend(items[k:k + per])
    put(1, pre, 5)
    put(3, unpack, 4)
    put(28, pre2, 7)
    rw = red_writes(0)
    put(30, rw[:4], 2)
    put(7, res1, 8)
    put(31, res0, 8)
    put(33, rw[4:], 2)
    put(38, red_reads(0, ACC), 4)
    put(41, red_sum(0, ACC), 8)
    order5 = [(n, rc) for n in range(56) for rc in range(2)]
    nl = cfg.get('lastsplit', 6)
    if nl:
        order5 = order5[:-2 * nl] + [(n, 1) for n in range(56 - nl, 56)] + [(n, 0) for n in range(56 - nl, 56)]
    rw1 = red_writes(1)
    for n in range(56):
        t, ks = n // 28, n % 28
        side = []
        if t == 0 and ks + ALA < 28:
            side += areads(ks + ALA)
        if n == 28 - PRE - 3:
            R(check_issue(4, vCK, 3))
        if n == 28 - PRE:
            check_done(4, 14, vCK, 3)
            a('s_barrier')
            a.stamp('gotE', 2)
        if n == 38:
            a('s_waitcnt lgkmcnt(0)')
            a('s_barrier')
        if n + PRE < 56:
            side += bload(n + PRE)
        side += sched.pop(n, [])
        mm = []
        for n_, rc in order5[2 * n:2 * n + 2]:
            t_, ks_ = n_ // 28, n_ % 28
            acc = v(ACC + 16 * (2 * t_ + rc), 16)
            mm.append([mfma32(acc, ac(w2reg(ks_, rc), 4), v(X + 4 * (n_ % 32), 4), '0' if (ks_ == 0 and (t_, rc) != (1, 0)) else acc)])
        if nl and n == 55:
            side += rw1[:4]
        a.fill(mm, side)
        if n == ke:
            pe()
    assert not sched
    a.stamp('p5mf')
    R(rw1[4:] if nl else rw1)
    a('s_waitcnt lgkmcnt(0)')
    a('s_barrier')
    a.stamp('B12', 2)
    R(red_reads(1, ACC))
    R(red_sum(1, ACC))
    if cfg.get('stamps'):
        a('s_waitcnt vmcnt(0)')
        a.stamp('end')
        assert a.nstamp <= 64
        a('s_cmp_lg_u32 s%d, %d' % (sW, cfg.get('swave', 0)))
        a('s_cbranch_scc1 L_end')
        if 'dirty' in cfg:
            a('s_lshl_b32 s%d, s2, 16' % sT0)
            a('s_add_u32 s%d, s%d, 0x2000000' % (sT0, sT0))
            for n in range(cfg['dirty']):
                a('buffer_store_dwordx4 %s, %s, %s, s%d offen %s' % (v(X, 4), v(vFR), sr(S_WS), sT0, cfg.get('dirtyf', '')))
                a('s_add_u32 s%d, s%d, 1024' % (sT0, sT0))
            a('s_waitcnt vmcnt(0)')
        if 'probe' in cfg:
            a('v_readlane_b32 s%d, v4, %d' % (sT0, cfg['probe']))
            a('v_readlane_b32 s%d, v4, 0' % sT2)
            a('s_sub_u32 s%d, s%d, s%d' % (sT0, sT0, sT2))
            a('s_cmp_ge_u32 s%d, 14' % sJ)
            a('s_cselect_b32 s%d, 0, s%d' % (sT0, sT0))
            a('s_min_u32 s%d, s%d, 10000' % (sT0, sT0))
            a('s_lshl_b32 s%d, s%d, 2' % (sT0, sT0))
            a('s_add_u32 s%d, s%d, 10000' % (sT0, sT0))
            a.label('L_probe')
            a('s_memrealtime s[%d:%d]' % (S_ST, S_ST + 1))
            a('s_waitcnt lgkmcnt(0)')
            a('s_sub_u32 s%d, s%d, s%d' % (sT1, S_ST, sT2))
            a('s_cmp_lt_u32 s%d, s%d' % (sT1, sT0))
            a('s_cbranch_scc1 L_probe')
        a('s_lshl_b32 s%d, s2, 8' % sT0)
        a('s_add_u32 s%d, s%d, 0x%x' % (sT0, sT0, STAMP))
        a('buffer_store_dword v4, %s, %s, s%d offen' % (v(vL4), sr(S_WS), sT0))
    a.label('L_end')
    a('s_endpgm')
    return finalize(a), a.names


HEADER = open('header.txt').read().rstrip('\n').split('\n')


def build(cfg, path):
    body, names = gen(cfg)
    k = kernel_text(NAME + '_kernel', body, vgprs=512, accum=256, sgprs=102)
    hdr = HEADER + ['; @launch grid=(256,1,1) block=(256,1,1) lds=163840']
    if names:
        hdr.append('; stamps: ' + ' '.join(names))
        if cfg.get('cyc'):
            hdr.append('; cycle stamps')
    open(path, 'w').write(module_text(hdr, [k]))


if __name__ == '__main__':
    build(json.loads(sys.argv[2]) if len(sys.argv) > 2 else {}, sys.argv[1])
```

```python
import sys, struct, json, math, re
sys.path.insert(0, 'gen')
from asmlib import *
from common import *

FL, KVP, ST, O_, H_, ACT, STAMP = 0x0, 0x40000, 0x100000, 0x200000, 0x400000, 0x600000, 0x8000000
KVREC = 2304
EPOCH = FL + 7 * 32768
R0, R1, R2 = 0, 65536, 131072
L_XS, L_WQ = R1, R2
L_PHI, L_V, L_CSX, L_CSQ = 0, 16384, 24576, 28672
L_WO = R1
L_KVB = R2 + 16384
L_BX = 3 * 32768
L_WPHI = L_WQ + 31 * 1024
LOG2E = 0x3fb8aa3b
ONES = 0x3f803f80
SPIN = 400000

S_X, S_WQKV, S_WPHI, S_WO, S_W1, S_B1, S_W2, S_OUT, S_DBG, S_WS = 4, 8, 12, 16, 20, 24, 28, 32, 36, 40
(sI, sJ, sW, sC, sCX, sCW, sT0, sT1, sT2, sT3, sONES, sSEL0, sSEL1, sLDSX, sLDSW, sCNT, sXCD, sP, sMSK, sMSK1) = range(44, 64)
S_PTR = 64
(sREC, sGAT, sFA, sFB, sFP, sOST, sOLD, sHST, sSST, sOUT, sHL0, sHL1, sSLD, sAST, sALD, sCO, sC1, sC2, sC5, sR3) = range(64, 84)
sLW2, sT4, sT5, sKH, sTT, sLW1, sRS, sLN2 = 86, 87, 88, 89, 90, 91, 3, 84
sFME, sLOC, sXID = 85, sXCD, sCX
sTAG = S_DBG
S_TMP = 92
S_ST = 96
A_STASH = 224


def v(i, n=1):
    return 'v%d' % i if n == 1 else 'v[%d:%d]' % (i, i + n - 1)


def ac(i, n=1):
    return 'a%d' % i if n == 1 else 'a[%d:%d]' % (i, i + n - 1)


def sr(i):
    return 's[%d:%d]' % (i, i + 3)


def fbits(x):
    return struct.unpack('<I', struct.pack('<f', x))[0]


class Mark:
    def __init__(self, name):
        self.name = name


class WaitVM:
    def __init__(self, name):
        self.name = name


class WaitDS:
    def __init__(self, name):
        self.name = name


def cost(x):
    if isinstance(x, Mark):
        return 0
    if isinstance(x, (WaitVM, WaitDS)):
        return 1
    if isinstance(x, (list, tuple)):
        return sum(cost(y) for y in x)
    if callable(x):
        return getattr(x, 'cost', 4)
    mn = x.split()[0]
    if mn.startswith('v_mfma'):
        return 0
    if mn.startswith(TRANS) or mn.startswith('v_permlane'):
        return 2
    return 1


def flat(x):
    if isinstance(x, (list, tuple)):
        return [z for y in x for z in flat(y)]
    return [x]


class K(Asm):
    def __init__(self, cfg):
        super().__init__()
        self.cfg = cfg
        self.vmn = 0
        self.dsn = 0
        self.marks = {}
        self.nstamp = 0
        self.names = []
        self.stash_slots = {}

    def run(self, x):
        if isinstance(x, Mark):
            self.marks[x.name] = (self.vmn, self.dsn)
        elif isinstance(x, WaitVM):
            self('s_waitcnt vmcnt(%d)' % min(63, self.vmn - self.marks[x.name][0]))
        elif isinstance(x, WaitDS):
            self('s_waitcnt lgkmcnt(%d)' % min(15, self.dsn - self.marks[x.name][1]))
        elif isinstance(x, (list, tuple)):
            for y in x:
                self.run(y)
        elif callable(x):
            x()
        else:
            for key in self.cfg.get('skip', []):
                if x.startswith('buffer_load') and key in x:
                    return
            for key in self.cfg.get('skipre', []):
                if re.search(key, x):
                    return
            self(x)
            if x.startswith(('buffer_', 'global_')):
                self.vmn += 1
            elif x.startswith('ds_'):
                self.dsn += 1

    def gap(self, items):
        front, back, wr, rd = [], [], set(), set()
        blocked = False
        for x in items:
            fl = flat(x)
            strs = [Ins(y) for y in fl if isinstance(y, str)]
            is_valu = any(i.cls == 'valu' for i in strs)
            opaque = any(callable(y) for y in fl)
            r_ = set().union(*[i.reads for i in strs]) if strs else set()
            w_ = set().union(*[i.writes for i in strs]) if strs else set()
            dep = bool(r_ & wr) or bool(w_ & (wr | rd))
            if is_valu or opaque or dep or blocked:
                back.append(x)
                wr |= w_
                rd |= r_
                if not is_valu:
                    blocked = True
            else:
                front.append(x)
        self.run(front)
        self.run(back)

    def fill(self, mains, side, first=0, last=None, post=None):
        n = len(mains)
        post = post or [[] for _ in mains]
        last = n - 1 if last is None else min(last, n - 1)
        span = last - first + 1
        extra = [(cost(mains[i + 1]) if i + 1 < n else 0) + cost(post[i]) for i in range(n)]
        total = sum(cost(x) for x in side) + sum(extra[first:last + 1])
        done, used = 0, 0.0
        for i, g in enumerate(mains):
            self.run(g)
            items = list(post[i])
            if first <= i <= last:
                used += extra[i]
                target = total * (i - first + 1) / span
                while done < len(side) and (used + cost(side[done]) / 2.0 <= target or i == last):
                    items.append(side[done])
                    used += cost(side[done])
                    done += 1
            self.gap(items)
        self.run(side[done:])

    def stamp(self, name='', level=1):
        only = self.cfg.get('only')
        if self.cfg.get('stamps', 0) >= level and (only is None or name in only or name == 'end'):
            n = self.nstamp
            self.nstamp += 1
            self.names.append(name)
            self('s_memrealtime s[%d:%d]' % (S_ST, S_ST + 1))
            if self.cfg.get('cyc'):
                assert n < 32
                self('s_memtime s[%d:%d]' % (S_ST + 2, S_ST + 3))
            self('s_waitcnt lgkmcnt(0)')
            self('v_writelane_b32 v4, s%d, %d' % (S_ST, n))
            if self.cfg.get('cyc'):
                self('v_writelane_b32 v4, s%d, %d' % (S_ST + 2, 32 + n))

    def stamper(self, name, level=2):
        f = lambda: self.stamp(name, level)
        f.cost = 0
        return f

    def stash(self, name, reg):
        slot = A_STASH + 8 + len(self.stash_slots)
        assert slot < 256
        self.stash_slots[name] = slot
        self('v_accvgpr_write_b32 %s, %s' % (ac(slot), v(reg)))

    def unstash(self, name, reg):
        return 'v_accvgpr_read_b32 %s, %s' % (v(reg), ac(self.stash_slots[name]))


def mfma32(d, a_, b, c):
    return 'v_mfma_f32_32x32x16_bf16 %s, %s, %s, %s' % (d, a_, b, c)


def mfma16(d, a_, b, c):
    return 'v_mfma_f32_16x16x32_bf16 %s, %s, %s, %s' % (d, a_, b, c)


def merge(*lists):
    lists = [l for l in lists if l]
    tot = [max(1, cost(l)) for l in lists]
    idx = [0] * len(lists)
    used = [0] * len(lists)
    out = []
    while any(idx[k] < len(l) for k, l in enumerate(lists)):
        best = min((used[k] / tot[k], k) for k, l in enumerate(lists) if idx[k] < len(l))[1]
        x = lists[best][idx[best]]
        out.append(x)
        used[best] += cost(x)
        idx[best] += 1
    return out


def split_hl(src, hi_f, lo_f, tmp):
    return ['v_cvt_pk_bf16_f32 %s, %s, %s' % (v(tmp), v(src), v(src)),
            'v_and_b32 %s, 0xffff0000, %s' % (v(hi_f), v(tmp)),
            'v_sub_f32 %s, %s, %s' % (v(lo_f), v(src), v(hi_f))]


def ln_ops(s1, s2, mean, rstd):
    return ['v_mul_f32 %s, 0x3b000000, %s' % (v(mean), v(s1)),
            'v_mul_f32 %s, 0x3b000000, %s' % (v(s2), v(s2)),
            'v_fma_f32 %s, -%s, %s, %s' % (v(s2), v(mean), v(mean), v(s2)),
            'v_max_f32 %s, 0, %s' % (v(s2), v(s2)),
            'v_add_f32 %s, 0x3727c5ac, %s' % (v(s2), v(s2)),
            'v_rsq_f32 %s, %s' % (v(rstd), v(s2))]


def softmax_ops(P, E, OUT, c, t):
    o = []
    mx, mn, sp, sn = t, t + 2, t + 4, t + 6
    o.append('v_max3_f32 %s, %s, %s, %s' % (v(mx), v(P), v(P + 1), v(P + 2)))
    o.append('v_min3_f32 %s, %s, %s, %s' % (v(mn), v(P), v(P + 1), v(P + 2)))
    o.append('v_max3_f32 %s, %s, %s, %s' % (v(mx + 1), v(P + 3), v(P + 4), v(P + 5)))
    o.append('v_min3_f32 %s, %s, %s, %s' % (v(mn + 1), v(P + 3), v(P + 4), v(P + 5)))
    for n, i in enumerate(range(6, 14, 2)):
        o.append('v_max3_f32 %s, %s, %s, %s' % (v(mx + n % 2), v(mx + n % 2), v(P + i), v(P + i + 1)))
        o.append('v_min3_f32 %s, %s, %s, %s' % (v(mn + n % 2), v(mn + n % 2), v(P + i), v(P + i + 1)))
    o.append('v_max3_f32 %s, %s, %s, %s' % (v(mx), v(mx), v(P + 14), v(P + 15)))
    o.append('v_min3_f32 %s, %s, %s, %s' % (v(mn), v(mn), v(P + 14), v(P + 15)))
    o.append('v_max_f32 %s, %s, %s' % (v(mx), v(mx), v(mx + 1)))
    o.append('v_min_f32 %s, %s, %s' % (v(mn), v(mn), v(mn + 1)))
    o.append('v_mul_f32 %s, %s, %s' % (v(mx), v(mx), v(c + 1)))
    o.append('v_mul_f32 %s, %s, %s' % (v(mn), v(mn), v(c)))
    for i in range(0, 16, 2):
        o.append('v_pk_fma_f32 %s, %s, %s, %s op_sel_hi:[1,0,0]' % (v(E + i, 2), v(P + i, 2), v(c, 2), v(mx, 2)))
        o.append('v_pk_fma_f32 %s, %s, %s, %s op_sel:[0,1,0] op_sel_hi:[1,1,0]' % (v(E + 16 + i, 2), v(P + i, 2), v(c, 2), v(mn, 2)))
    for i in range(32):
        o.append('v_exp_f32 %s, %s' % (v(E + i), v(E + i)))
    o.append('v_pk_add_f32 %s, %s, %s' % (v(sp, 2), v(E, 2), v(E + 2, 2)))
    o.append('v_pk_add_f32 %s, %s, %s' % (v(sn, 2), v(E + 16, 2), v(E + 18, 2)))
    for i in range(4, 16, 2):
        o.append('v_pk_add_f32 %s, %s, %s' % (v(sp, 2), v(sp, 2), v(E + i, 2)))
        o.append('v_pk_add_f32 %s, %s, %s' % (v(sn, 2), v(sn, 2), v(E + 16 + i, 2)))
    o.append('v_add_f32 %s, %s, %s' % (v(sp), v(sp), v(sp + 1)))
    o.append('v_add_f32 %s, %s, %s' % (v(sn), v(sn), v(sn + 1)))
    o.append('v_rcp_f32 %s, %s' % (v(sp), v(sp)))
    o.append('v_rcp_f32 %s, %s' % (v(sn), v(sn)))
    for half, sm in ((0, sp), (16, sn)):
        for i in range(0, 16, 2):
            o.append('v_pk_mul_f32 %s, %s, %s op_sel_hi:[1,0]' % (v(E + half + i, 2), v(E + half + i, 2), v(sm, 2)))
        for i in range(0, 16, 2):
            o.append('v_cvt_pk_bf16_f32 %s, %s, %s' % (v(OUT + (half + i) // 2), v(E + half + i), v(E + half + i + 1)))
    return o


def gen(cfg):
    a = K(cfg)
    R = a.run
    SC = 'sc1'
    D = cfg.get('depth', 3)
    vL, vFR, vL4, vOUT = 1, 2, 3, 5
    vXD, vWD, vWQD, vXR, vWR = 6, 10, 11, 12, 16
    vA = 20
    vT = 28
    aK, aV, aQ = 32, 48, 64
    vWB = 80
    vS = 112
    X = 128
    s1a, s1b, s2a, s2b, csk, csv, csq, mean, rstd, vONE, cexp, ncexp = range(vS, vS + 12)
    vBX = vS + 12
    PA1, PA2 = A_STASH, A_STASH + 4
    vL128, vRB = vWD, vWQD
    vHH, vTRN = aK, aK + 1

    def vx(dst, terms, sadd=None, const=0, tmp=vT + 3):
        first = True
        for src, lo, n, mul in terms:
            if n:
                a('v_bfe_u32 %s, %s, %d, %d' % (v(tmp), v(src), lo, n))
                s_ = tmp
            elif lo:
                a('v_lshrrev_b32 %s, %d, %s' % (v(tmp), lo, v(src)))
                s_ = tmp
            else:
                s_ = src
            pw = mul & (mul - 1) == 0
            if first:
                if pw:
                    a('v_lshlrev_b32 %s, %d, %s' % (v(dst), mul.bit_length() - 1, v(s_)))
                else:
                    a('v_mul_u32_u24 %s, %d, %s' % (v(dst), mul, v(s_)))
                first = False
            elif pw:
                a('v_lshl_add_u32 %s, %s, %d, %s' % (v(dst), v(s_), mul.bit_length() - 1, v(dst)))
            else:
                a('v_mul_u32_u24 %s, %d, %s' % (v(tmp), mul, v(s_)))
                a('v_add_u32 %s, %s, %s' % (v(dst), v(tmp), v(dst)))
        if sadd is not None:
            a('v_add_u32 %s, s%d, %s' % (v(dst), sadd, v(dst)))
        if const:
            a('v_add_u32 %s, %d, %s' % (v(dst), const, v(dst)))

    def sx(dst, terms, const=0, tmp=sT5):
        first = True
        for src, mul in terms:
            tgt = dst if first else tmp
            if mul == 1:
                if first:
                    a('s_mov_b32 s%d, s%d' % (dst, src))
                else:
                    a('s_add_u32 s%d, s%d, s%d' % (dst, dst, src))
                first = False
                continue
            if mul & (mul - 1) == 0:
                a('s_lshl_b32 s%d, s%d, %d' % (tgt, src, mul.bit_length() - 1))
            else:
                a('s_mul_i32 s%d, s%d, %d' % (tgt, src, mul))
            if not first:
                a('s_add_u32 s%d, s%d, s%d' % (dst, dst, tmp))
            first = False
        if const:
            a('s_add_u32 s%d, s%d, %d' % (dst, dst, const))

    def step(sreg, inc, period):
        if period & (period - 1) == 0:
            return ['s_add_u32 s%d, s%d, %d' % (sreg, sreg, inc), 's_and_b32 s%d, s%d, %d' % (sreg, sreg, period - 1)]
        return ['s_add_u32 s%d, s%d, %d' % (sreg, sreg, inc),
                ['s_cmp_eq_u32 s%d, %d' % (sreg, period), 's_cmov_b32 s%d, 0' % sreg]]

    def push_flags(sbase, add, vaddr):
        lab = a.uniq('L_nopush')
        a('s_cmp_lg_u32 s%d, 0' % sW)
        a('s_cbranch_scc1 %s' % lab)
        a('s_add_u32 s%d, s%d, %d' % (sT5, sbase, add))
        a('s_mov_b64 exec, 0xffff')
        a('buffer_store_dword %s, %s, %s, s%d offen sc1' % (v(vONE), v(vaddr), sr(S_WS), sT5))
        a('s_mov_b64 exec, -1')
        a.label(lab)

    def arrive(sync):
        lab = a.uniq('L_noarr')
        a('s_cmp_lg_u32 s%d, 0' % sW)
        a('s_cbranch_scc1 %s' % lab)
        a('s_add_u32 s%d, s%d, %d' % (sT5, sFME, sync * 32768))
        a('s_mov_b64 exec, 1')
        a('s_cmp_lg_u32 s%d, 0' % sLOC)
        a('s_cbranch_scc1 %s_l' % lab)
        a('buffer_store_dword %s, %s, %s, s%d offen sc1' % (v(vONE), v(vL4), sr(S_WS), sT5))
        a('s_branch %s_e' % lab)
        a.label(lab + '_l')
        a('buffer_store_dword %s, %s, %s, s%d offen' % (v(vONE), v(vL4), sr(S_WS), sT5))
        a.label(lab + '_e')
        a('s_mov_b64 exec, -1')
        a.label(lab)

    def not_ready(reg, sync):
        if sync == 5:
            a('v_subrev_u32 %s, s%d, %s' % (v(reg), sTAG, v(reg)))
            a('v_cmp_le_u32 vcc, 16, %s' % v(reg))
        else:
            a('v_cmp_ne_u32 vcc, s%d, %s' % (sTAG, v(reg)))

    def spin(lp, reg, srd_, soff, sync):
        a.label(lp)
        a('buffer_load_dword %s, %s, %s, %s offen sc1' % (v(reg), v(vL4), sr(srd_), soff))
        a('s_add_u32 s%d, s%d, 1' % (sCNT, sCNT))
        a('s_cmp_gt_u32 s%d, %d' % (sCNT, SPIN))
        a('s_cbranch_scc1 %s_y' % lp)
        a('s_waitcnt vmcnt(0)')
        not_ready(reg, sync)
        a('s_cbranch_vccnz %s' % lp)
        a.label(lp + '_y')
        a('s_waitcnt vmcnt(0)')

    def flag_addr(sync):
        return 's_add_u32 s%d, s%d, %d' % (sT5, sFP if sync == 0 else sFB, sync * 32768)

    def poll(sync, n, wave=0):
        lab = a.uniq('L_nopoll')
        a('s_cmp_lg_u32 s%d, %d' % (sW, wave))
        a('s_cbranch_scc1 %s' % lab)
        a(flag_addr(sync))
        a('s_mov_b64 exec, 0x%x' % ((1 << n) - 1))
        spin(a.uniq('L_poll'), vT + 3, S_WS, 's%d' % sT5, sync)
        a('s_mov_b64 exec, -1')
        a.label(lab)

    def check_issue(sync, reg, wave):
        def f():
            lab = a.uniq('L_noci')
            if wave is not None:
                a('s_cmp_lg_u32 s%d, %d' % (sW, wave))
                a('s_cbranch_scc1 %s' % lab)
            a(flag_addr(sync))
            a('s_mov_b64 exec, 0xffff')
            a('buffer_load_dword %s, %s, %s, s%d offen sc1' % (v(reg), v(vL4), sr(S_WS), sT5))
            a('s_mov_b64 exec, -1')
            a.label(lab)
        f.cost = 3
        return f

    def check_done(sync, n, reg, wave):
        lp = a.uniq('L_chk')
        if wave is not None:
            a('s_cmp_lg_u32 s%d, %d' % (sW, wave))
            a('s_cbranch_scc1 %s_z' % lp)
        a('s_mov_b64 exec, 0x%x' % ((1 << n) - 1))
        not_ready(reg, sync)
        a('s_cbranch_vccz %s_x' % lp)
        a(flag_addr(sync))
        spin(lp, reg, S_WS, 's%d' % sT5, sync)
        a.label(lp + '_x')
        if sync == 5:
            a('v_cmp_ne_u32 vcc, s%d, %s' % (sXID, v(reg)))
            a('s_cmp_eq_u64 vcc, 0')
            a('s_cselect_b32 s%d, %d, 0' % (sLOC, 1 if cfg.get('local', 1) else 0))
        a('s_mov_b64 exec, -1')
        a.label(lp + '_z')

    def code_touch(nl, wave, dst):
        lab = a.uniq('L_ct')
        a('s_cmp_lg_u32 s%d, %d' % (sW, wave))
        a('s_cbranch_scc1 %s_e' % lab)
        a('s_getpc_b64 s[%d:%d]' % (S_TMP, S_TMP + 1))
        a.label(lab)
        a('s_lshr_b32 s%d, s2, 3' % sT5)
        a('s_mul_i32 s%d, s%d, %d' % (sT5, sT5, nl * 128))
        a('v_lshl_add_u32 %s, %s, 7, s%d' % (v(dst), v(vL), sT5))
        a('v_min_u32 %s, L_end-%s, %s' % (v(dst), lab, v(dst)))
        a('s_mov_b64 exec, 0x%x' % ((1 << nl) - 1))
        a('global_load_dword %s, %s, s[%d:%d]' % (v(dst), v(dst), S_TMP, S_TMP + 1))
        a('s_mov_b64 exec, -1')
        a.label(lab + '_e')

    def dual(stores, on):
        if not on:
            R([x + ' sc1' for x in stores])
            return
        lab = a.uniq('L_dual')
        a('s_cmp_lg_u32 s%d, 0' % sLOC)
        a('s_cbranch_scc1 %s_l' % lab)
        for x in stores:
            a(x + ' sc1')
        a('s_branch %s_e' % lab)
        a.label(lab + '_l')
        R(stores)
        a.label(lab + '_e')

    def pretouch(soff, nl, dst):
        return [['s_mov_b64 exec, 0x%x' % ((1 << nl) - 1),
                 'buffer_load_dword %s, %s, %s, s%d offen sc1' % (v(dst), v(vL128), sr(S_WS), soff), 's_mov_b64 exec, -1']]

    def readback(soff, nl, dst, extra=None):
        o = ['s_mov_b64 exec, 0x%x' % ((1 << nl) - 1),
             'buffer_load_dword %s, %s, %s, s%d offen sc1' % (v(dst), v(vL128), sr(S_WS), soff)]
        if extra is not None:
            o += ['s_mov_b64 exec, 3', 'buffer_load_dword %s, %s, %s, s%d offen sc1' % (v(dst), v(vL128), sr(S_WS), extra)]
        return [o + ['s_mov_b64 exec, -1']]

    a('s_cmp_ge_u32 s2, 256')
    a('s_cbranch_scc1 L_end')
    if cfg.get('stamps'):
        a('s_memrealtime s[100:101]')
        a('s_memtime s[98:99]')
    a('s_load_dwordx16 s[%d:%d], s[0:1], 0' % (S_PTR, S_PTR + 15))
    a('s_load_dwordx4 s[%d:%d], s[0:1], 64' % (S_PTR + 16, S_PTR + 19))
    a('s_load_dwordx2 s[%d:%d], s[0:1], 80' % (S_PTR + 20, S_PTR + 21))
    a('s_getpc_b64 s[%d:%d]' % (sT2, sT2 + 1))
    a.label('L_pc')
    a('s_lshr_b32 s%d, s2, 3' % sT0)
    a('v_lshrrev_b32 %s, 6, v0' % v(vT))
    a('v_and_b32 %s, 63, v0' % v(vL))
    a('v_readfirstlane_b32 s%d, %s' % (sW, v(vT)))
    ncl = cfg.get('code_lines', 9)
    if ncl:
        a('s_mul_i32 s%d, s%d, %d' % (sT1, sT0, ncl * 128))
        a('v_lshl_add_u32 %s, v0, 7, s%d' % (v(vT + 1), sT1))
        a('v_min_u32 %s, L_end-L_pc, %s' % (v(vT + 1), v(vT + 1)))
        a('v_cmp_gt_u32 vcc, %d, v0' % ncl)
        a('s_and_saveexec_b64 s[%d:%d], vcc' % (sMSK, sMSK1))
        a('s_cbranch_execz L_nocp')
        a('global_load_dword %s, %s, s[%d:%d]' % (v(255), v(vT + 1), sT2, sT2 + 1))
        a.label('L_nocp')
        a('s_mov_b64 exec, -1')
    a('s_and_b32 s%d, s2, 7' % sXCD)
    a('s_and_b32 s%d, s%d, 15' % (sJ, sT0))
    a('s_lshr_b32 s%d, s%d, 4' % (sT2, sT0))
    sx(sI, [(sXCD, 2), (sT2, 1)])
    a('s_and_b32 s%d, s%d, 1' % (sT3, sJ))
    a('s_lshr_b32 s%d, s%d, 1' % (sT1, sJ))
    a('s_and_b32 s%d, s%d, 1' % (sT0, sXCD))
    if cfg.get('halfrot', 0):
        sx(sT4, [(sT2, 4), (sT3, 2), (sT1, 2)])
    else:
        sx(sT4, [(sT2, 4), (sT3, 2), (sT1, 1), (sT0, 1)])
    a('s_and_b32 s%d, s%d, 7' % (sT4, sT4))
    a('s_lshl_b32 s%d, s%d, 7' % (sCX, sT4))
    a('s_mul_i32 s%d, s%d, %d' % (sCW, sT4, 64 * 3072))
    sx(sT0, [(sI, 1 << 17), (sW, 1 << 15)], 2048)
    sx(sLDSX, [(sW, 1 << 14)], L_XS)
    a('s_lshl_b32 s%d, s%d, 11' % (sLDSW, sW))
    a('v_lshrrev_b32 %s, 4, %s' % (v(vT + 1), v(vL)))
    a('v_and_b32 %s, 7, %s' % (v(vT + 2), v(vL)))
    a('v_xor_b32 %s, %s, %s' % (v(vT + 1), v(vT + 1), v(vT + 2)))
    vx(vXD, [(vL, 3, 0, 1024), (vT + 1, 0, 0, 16)], sadd=sT0)
    a('v_xor_b32 %s, 64, %s' % (v(vXD + 1), v(vXD)))
    a('s_lshl_b32 s%d, s%d, 14' % (sT1, sT3))
    a('s_sub_u32 s%d, %d, s%d' % (sT2, 2 * 7168, sT1))
    a('v_add_u32 %s, %d, %s' % (v(vXD + 1), 7168, v(vXD + 1)))
    a('v_add_u32 %s, s%d, %s' % (v(vXD + 2), sT2, v(vXD)))
    a('v_add_u32 %s, s%d, %s' % (v(vXD + 3), sT2, v(vXD + 1)))
    a('v_add_u32 %s, s%d, %s' % (v(vXD), sT1, v(vXD)))
    a('v_add_u32 %s, s%d, %s' % (v(vXD + 1), sT1, v(vXD + 1)))
    def touch_addr():
        a('s_lshr_b32 s%d, s2, 3' % sT1)
        sx(sT2, [(2, 16), (sW, 4)])
        sx(sT1, [(sT1, 16), (sW, 4)])
        a('v_and_b32 %s, 3, %s' % (v(vT), v(vL)))
        a('v_add_u32 %s, s%d, %s' % (v(vT + 1), sT2, v(vT)))
        a('v_add_u32 %s, s%d, %s' % (v(vT), sT1, v(vT)))
        a('v_cmp_gt_u32 vcc, 4, %s' % v(vL))
        vx(aV, [(vT + 1, 3, 0, 3072), (vT + 1, 0, 3, 128)])
        vx(aV + 1, [(vT, 0, 0, 3072)], const=384)
        a('v_cndmask_b32 %s, %s, %s, vcc' % (v(aV), v(aV + 1), v(aV)))
        a('v_lshlrev_b32 %s, 7, %s' % (v(aV + 2), v(vT + 1)))
        vx(aV + 1, [(vT, 0, 0, 1024)], const=384)
        a('v_cndmask_b32 %s, %s, %s, vcc' % (v(aV + 1), v(aV + 1), v(aV + 2)))
        a('v_lshlrev_b32 %s, 4, %s' % (v(vFR), v(vL)))
    if not cfg.get('latet', 1):
        touch_addr()
    a('s_lshl_b32 s%d, s%d, 6' % (sT2, sJ))
    vx(vWQD, [(0, 2, 0, 3072), (vL, 0, 2, 16)], sadd=sT2)
    a('v_add_u32 %s, 1024, %s' % (v(vWD), v(vWQD)))
    a('s_waitcnt lgkmcnt(0)')
    if cfg.get('stamps'):
        a('v_mov_b32 v4, 0')
        a('v_writelane_b32 v4, s100, 0')
        if cfg.get('cyc'):
            a('v_writelane_b32 v4, s98, 32')
        a.nstamp = 1
        a.names.append('start')
    a.stamp('karg', 2)
    srd(a, S_WQKV, S_PTR + 2, SIZES['wqkv'])

    def dma_w(s):
        return ['s_add_u32 m0, s%d, %d' % (sLDSW, s * 8192),
                'buffer_load_dwordx4 %s, %s, s%d offen %slds' % (v(vWD), sr(S_WQKV), sCW, 'nt ' if s < cfg.get('wnt', 0) else ''),
                'buffer_load_dwordx4 %s, %s, s%d offen offset:1024 %slds' % (v(vWD), sr(S_WQKV), sCW, 'nt ' if s < cfg.get('wnt', 0) else '')] + step(sCW, 64 * 3072, 512 * 3072)

    def dma_x(s):
        return ['s_add_u32 m0, s%d, %d' % (sLDSX, (s & 3) * 4096)] + [
            'buffer_load_dwordx4 %s, %s, s%d offen offset:%d %slds' % (v(vXD + q), sr(S_X), sCX, q * 1024, cfg.get('xf', 'nt') + ' ' if s < cfg.get('xnt', 0) else '') for q in range(4)
        ] + step(sCX, 128, 1024) + [Mark('slot%d' % s)]

    def dma_wq(s):
        return ['s_add_u32 m0, s%d, %d' % (sLDSW, L_WQ + (s >> 1) * 8192 + (s & 1) * 1024),
                'buffer_load_dwordx4 %s, %s, s%d offen lds' % (v(vWQD), sr(S_WQKV), sCW)] + step(sCW, 64 * 3072, 512 * 3072)

    a('s_load_dword s%d, s[%d:%d], 0x%x' % (sTAG, S_PTR + 20, S_PTR + 21, EPOCH))
    R(dma_w(0))
    a('s_sub_u32 s%d, s%d, 2048' % (S_PTR, S_PTR))
    a('s_subb_u32 s%d, s%d, 0' % (S_PTR + 1, S_PTR + 1))
    srd(a, S_X, S_PTR + 0, SIZES['x'] + 2048)
    dx0 = dma_x(0)
    R(dx0[:3])
    if cfg.get('latet', 1):
        touch_addr()
    srd(a, S_WO, S_PTR + 6, SIZES['wo'])
    srd(a, S_WPHI, S_PTR + 4, SIZES['wphi'])
    if cfg.get('warm0', 1):
        a('s_mov_b64 exec, 0x%x' % (0xff if cfg.get('touch3', 0) else 0xf))
        R('buffer_load_dword %s, %s, %s, 0 offen' % (v(254), v(aV), sr(S_WQKV)))
        R('buffer_load_dword %s, %s, %s, 0 offen' % (v(253), v(aV + 1), sr(S_WO)))
    if cfg.get('touchkv', 1):
        a('s_mov_b64 exec, 0xf0')
        R('buffer_load_dword %s, %s, %s, 0 offen offset:1024' % (v(252), v(aV), sr(S_WQKV)))
        R('buffer_load_dword %s, %s, %s, 0 offen offset:2048' % (v(251), v(aV), sr(S_WQKV)))
    sx(sT2, [(sJ, 1024), (sW, 256)])
    sx(sT3, [(sW, 256)], L_WPHI)
    a('s_mov_b32 m0, s%d' % sT3)
    a('s_mov_b64 exec, 0xffff')
    R('buffer_load_dwordx4 %s, %s, s%d offen lds' % (v(vFR), sr(S_WPHI), sT2))
    a('s_mov_b64 exec, -1')
    R([dx0[0]] + dx0[3:])
    a.stamp('dma0', 2)
    srd(a, S_WS, S_PTR + 20, SIZES['ws'])
    srd(a, S_W1, S_PTR + 10, SIZES['w1'])
    srd(a, S_B1, S_PTR + 12, SIZES['b1'])
    srd(a, S_W2, S_PTR + 14, SIZES['w2'])
    srd(a, S_OUT, S_PTR + 16, SIZES['out'])
    srd(a, S_TMP, S_PTR + 10, SIZES['w1'])

    a('s_mov_b32 s%d, 0x%x' % (sONES, ONES))
    a('s_mov_b32 s%d, 0x3f80' % sSEL0)
    a('s_mov_b32 s%d, 0x3f800000' % sSEL1)
    a('s_mov_b32 s%d, 0' % sCNT)
    a('s_mov_b32 s%d, 0x%x' % (sRS, fbits(math.sqrt(0.5))))
    a('s_mov_b32 s%d, 0x%x' % (sLN2, fbits(math.log(2.0))))
    a('s_lshr_b32 s%d, s%d, 1' % (sKH, sW))
    a('s_and_b32 s%d, s%d, 1' % (sTT, sW))
    a('s_and_b32 s%d, s%d, 1' % (sP, sJ))
    a('s_lshr_b32 s%d, s%d, 1' % (sC, sJ))
    a('s_and_b32 s%d, s%d, 3' % (sT2, sC))
    a('s_cmp_eq_u32 s%d, 3' % sT2)
    a('s_cselect_b32 s%d, 4, 0' % sT2)
    a('s_xor_b32 s%d, s%d, s%d' % (sC, sC, sT2))
    a('s_lshl_b32 s%d, s%d, 13' % (sLW2, sW))
    a('s_lshl_b32 s%d, s%d, 12' % (sLW1, sW))
    a('v_lshrrev_b32 %s, 5, %s' % (v(vHH), v(vL)))
    a('v_lshlrev_b32 %s, 2, %s' % (v(vL4), v(vL)))
    vx(aQ + 8, [(vL, 0, 1, 512), (vL, 1, 1, 8), (vL, 4, 1, 16), (vL, 2, 2, 32), (vHH, 0, 0, 128)], const=L_WPHI)
    a('v_bfe_u32 %s, %s, 2, 1' % (v(vT), v(vL)))
    a('v_cmp_eq_u32 s[%d:%d], 0, %s' % (sMSK, sMSK1, v(vT)))
    a('v_bfe_u32 %s, %s, 1, 3' % (v(vT + 1), v(vL)))
    a('s_lshl_b32 s%d, s%d, 1' % (sT2, sW))
    a('v_add_u32 %s, s%d, %s' % (v(vT + 2), sT2, v(vHH)))
    a('v_xor_b32 %s, %s, %s' % (v(vT + 1), v(vT + 1), v(vT + 2)))
    vx(vXR, [(vL, 0, 5, 128), (vT + 1, 0, 0, 16)], sadd=sLDSX)
    a('s_and_b32 s%d, s%d, 1' % (sT2, sJ))
    a('s_lshl_b32 s%d, s%d, 11' % (sT2, sT2))
    a('v_xor_b32 %s, s%d, %s' % (v(vXR), sT2, v(vXR)))
    for p in range(1, 4):
        a('v_xor_b32 %s, %d, %s' % (v(vXR + p), 32 * p, v(vXR)))
    vx(vOUT, [(vL, 0, 5, 1024), (vHH, 0, 0, 32)])
    vx(vWR, [(vL, 2, 2, 64), (vL, 4, 1, 32), (vL, 0, 2, 8), (vHH, 0, 0, 512)], sadd=sLDSW)
    for p in range(1, 4):
        a('v_xor_b32 %s, %d, %s' % (v(vWR + p), 2048 * p, v(vWR)))
    vx(vTRN, [(vL, 2, 2, 64), (vL, 0, 1, 32), (vL, 4, 1, 16), (vL, 1, 1, 8)])
    sx(sT2, [(sKH, 32768 + 512)], L_WO)
    vx(vT, [(vTRN, 0, 0, 1), (vHH, 0, 0, 1024)], sadd=sT2)
    a.stash('wo', vT)
    a('s_lshl_b32 s%d, s%d, 9' % (sT2, sW))
    vx(vT, [(vTRN, 0, 0, 1), (vHH, 0, 0, 4096)], sadd=sT2)
    a.stash('w1', vT)
    sx(sT2, [(sKH, 512), (sLW2, 1)])
    vx(vT, [(vTRN, 0, 0, 1), (vHH, 0, 0, 2048)], sadd=sT2)
    a.stash('w2', vT)
    vx(vT + 1, [(vL, 0, 2, 16), (vHH, 0, 0, 64)])
    sx(sT2, [(sKH, 1 << 18), (sC, 128)])
    vx(vT, [(vL, 2, 3, 1024), (vT + 1, 0, 0, 1)], sadd=sT2)
    a.stash('bdo', vT)
    sx(sT2, [(sW, 448 * 1024), (sC, 128)])
    vx(vT, [(vL, 2, 3, 1024), (vT + 1, 0, 0, 1)], sadd=sT2)
    a.stash('bd2', vT)
    sx(sT2, [(sW, 16 * 3584), (sJ, 256)], 3072)
    vx(vT, [(vL, 2, 3, 3584), (vT + 1, 0, 0, 1)], sadd=sT2)
    a.stash('bd1', vT)
    a('v_bfe_u32 %s, %s, 1, 2' % (v(vT), v(vL)))
    vx(vT + 1, [(vL, 3, 1, 2)])
    a('v_xor_b32 %s, %s, %s' % (v(vT + 1), v(vT), v(vT + 1)))
    vx(vT, [(vL, 0, 5, 64), (vT + 1, 0, 0, 16)], sadd=sLDSW)
    a('v_lshl_add_u32 %s, %s, 3, %s' % (v(vA), v(vHH), v(vT)))
    a('v_lshl_add_u32 %s, %s, 13, %s' % (v(vA + 4), v(vHH), v(vT)))
    for g in range(1, 4):
        a('v_xor_b32 %s, %d, %s' % (v(vA + g), 16 * g, v(vA)))
        a('v_xor_b32 %s, %d, %s' % (v(vA + 4 + g), 16 * g, v(vA + 4)))
    vx(vT, [(vL, 3, 1, 1), (vL, 4, 1, 2)])
    a('v_bfe_u32 %s, %s, 1, 1' % (v(vT + 1), v(vL)))
    a('v_xor_b32 %s, %s, %s' % (v(vT), v(vT), v(vT + 1)))
    vx(vT + 2, [(vL, 4, 0, 512), (vL, 2, 2, 64), (vT, 0, 0, 16), (vL, 0, 1, 8)])
    sx(sT2, [(sKH, 32), (sTT, 8192)])
    a('v_xor_b32 %s, s%d, %s' % (v(vT), sT2, v(vT + 2)))
    a.stash('kvphi', vT)
    a('s_lshl_b32 s%d, s%d, 5' % (sT2, sTT))
    a('v_xor_b32 %s, s%d, %s' % (v(vT), sT2, v(vT + 2)))
    a.stash('kvv', vT)
    vx(vT, [(0, 4, 0, 16)])
    a.stash('zst', vT)
    vx(vT + 1, [(vL, 0, 4, KVREC), (vT, 0, 0, 1)])
    a.stash('zld', vT + 1)
    sx(sT2, [(sTT, 17 * 80), (sKH, 32)], L_KVB)
    vx(vT, [(vL, 4, 0, 8)], sadd=sT2)
    a.stash('kbz', vT)
    vx(vT + 1, [(vL, 0, 3, 160), (vHH, 0, 0, 80), (vL, 3, 2, 8)], sadd=sT2)
    a.stash('kbw', vT + 1)
    a('s_lshl_b32 s%d, s%d, 9' % (sT3, sW))
    vx(vT + 1, [(vL, 0, 5, 16), (vHH, 0, 0, KVREC)], sadd=sT3)
    a.stash('gld', vT + 1)
    vx(vT + 2, [(vL, 2, 1, 8), (vL, 3, 1, 4), (vL, 0, 2, 1)])
    a('v_and_b32 %s, 16, %s' % (v(vT), v(vL)))
    a('v_cmp_eq_u32 vcc, 0, %s' % v(vT))
    a('v_cndmask_b32 %s, 16, %s, vcc' % (v(vT + 2), v(vT + 2)))
    vx(vT, [(vT + 2, 0, 0, 80), (vHH, 0, 0, 16)], const=L_KVB)
    a.stash('kbr', vT)
    sx(sT2, [(sJ, 256), (sW, 64)])
    vx(vT, [(vL, 2, 1, 32), (vL, 3, 2, 8), (vL, 0, 2, 2), (vHH, 0, 0, 8192)], sadd=sT2)
    a.stash('bias', vT)
    sx(sT2, [(sLW2, 1)], R2)
    a('v_add_u32 %s, s%d, %s' % (v(vT), sT2, v(vFR)))
    a.stash('red3', vT)
    vx(vT, [(vL, 2, 0, 1024), (vL, 0, 2, 16)], const=2048)
    a.stash('xd', vT)
    vx(vT, [(vL, 0, 5, 64), (vHH, 0, 0, 32)], sadd=sT2, const=4096)
    a.stash('xr', vT)

    sx(sGAT, [(sJ, 16 * KVREC)], KVP)
    sx(sREC, [(sGAT, 1), (sI, KVREC)])
    sx(sFA, [(sJ, 128), (sI, 4)])
    sx(sFP, [(sI, 2048), (sJ, 128)])
    sx(sFB, [(sI, 2048)])
    sx(sFME, [(sI, 2048), (sJ, 4)])
    sx(sOST, [(sI, 4 << 15), (sW, 1 << 15), (sJ, 2048)], O_)
    sx(sSLD, [(sI, 4 << 12), (sW, 1 << 12)], ST)
    sx(sAST, [(sI, 4 * 112 * 1024), (sJ, 8192), (sW, 2048)], ACT)
    sx(sALD, [(sI, 4 * 112 * 1024), (sP, 112 * 1024), (sW, 28 * 1024)], ACT)
    sx(sT2, [(sI, 4), (sP, 1), (sTT, 2)])
    sx(sT3, [(sC, 2), (sKH, 1)])
    sx(sOLD, [(sT2, 1 << 15), (sKH, 1 << 14)], O_)
    sx(sOUT, [(sT2, 1 << 15), (sT3, 64)])
    sx(sHST, [(sT2, 1 << 15), (sT3, 2048)], H_)
    sx(sSST, [(sT2, 1 << 12), (sT3, 256)], ST)
    rot = cfg.get('rot', 1)
    a('s_and_b32 s%d, s%d, %d' % (sT2, sI, 1 if cfg.get('rotw', 0) else 0))
    a('s_and_b32 s%d, s%d, %d' % (sT3, sP, 1 if cfg.get('rotw', 0) else 0))
    sx(sT3, [(sT3, 1), (sT2, 2)])
    a('s_lshr_b32 s%d, s%d, 1' % (sT0, sC))
    a('s_add_u32 s%d, s%d, s%d' % (sT0, sT0, sT3))
    a('s_and_b32 s%d, s%d, %d' % (sT0, sT0, 3 if rot else 0))
    a('s_lshl_b32 s%d, s%d, 12' % (sR3, sT0))
    sx(sCO, [(sTT, 4 << 15), (sT0, 2 << 15)])
    a('s_and_b32 s%d, s%d, %d' % (sCO, sCO, (8 << 15) - 1))
    sx(sT0, [(sJ, 1), (sT2, 2)])
    a('s_and_b32 s%d, s%d, %d' % (sT0, sT0, 3 if rot else 0))
    a('s_mul_i32 s%d, s%d, %d' % (sC1, sT0, 128 * 3584))
    sx(sT1, [(sT0, 2), (sW, 1)])
    a('s_and_b32 s%d, s%d, 7' % (sT4, sT1))
    sx(sHL0, [(sI, 4 << 15), (sT4, 4096)], H_)
    a('s_xor_b32 s%d, s%d, 4' % (sT4, sT4))
    sx(sHL1, [(sI, 4 << 15), (sT4, 4096)], H_)
    sx(sT0, [(sC, 1), (sT3, 2)])
    a('s_add_u32 s%d, s%d, -7' % (sT1, sT0))
    a('s_cselect_b32 s%d, s%d, s%d' % (sT0, sT1, sT0))
    if not rot:
        a('s_mov_b32 s%d, 0' % sT0)
    a('s_lshl_b32 s%d, s%d, 16' % (sC2, sT0))
    a('s_lshl_b32 s%d, s%d, 12' % (sC5, sT0))
    a('s_sub_u32 s%d, s%d, 3072' % (S_W1, S_W1))
    a('s_subb_u32 s%d, s%d, 0' % (S_W1 + 1, S_W1 + 1))
    a('s_cmp_ge_u32 s%d, 14' % sJ)
    a('s_cselect_b32 s%d, 0, %d' % (S_W1 + 2, SIZES['w1'] + 3072))
    for r_ in (s1a, s1b, s2a, s2b, csk, csv, csq, vBX + 2, vBX + 3):
        a('v_mov_b32 %s, 0' % v(r_))

    def warm(srd_, nbytes, dst):
        nl = nbytes // 128 // 256
        a('s_mul_i32 s%d, s2, %d' % (sT2, nl * 128))
        a('v_lshlrev_b32 %s, 7, %s' % (v(vT), v(vL)))
        a('s_mov_b32 exec_lo, 0x%x' % (((1 << nl) - 1) & 0xffffffff))
        a('s_mov_b32 exec_hi, 0x%x' % (((1 << nl) - 1) >> 32))
        a('buffer_load_dword %s, %s, %s, s%d offen' % (v(dst), v(vT), sr(srd_), sT2))
        a('s_mov_b64 exec, -1')

    def touch3(srd_, rows, pitch, off, dst, row0=None):
        nl = rows // 32
        a('s_lshr_b32 s%d, s2, 3' % sT2)
        a('s_mul_i32 s%d, s%d, %d' % (sT2, sT2, nl * pitch))
        if row0 is not None:
            a('s_add_u32 s%d, s%d, s%d' % (sT2, sT2, row0))
        a('v_mul_u32_u24 %s, %d, %s' % (v(vT), pitch, v(vL)))
        a('s_mov_b32 exec_lo, 0x%x' % (((1 << nl) - 1) & 0xffffffff))
        a('s_mov_b32 exec_hi, 0x%x' % (((1 << nl) - 1) >> 32))
        a('buffer_load_dword %s, %s, %s, s%d offen offset:%d' % (v(dst), v(vT), sr(srd_), sT2, off))
        a('s_mov_b64 exec, -1')

    def warm_big():
        a('s_cmp_lg_u32 s%d, 1' % sW)
        a('s_cbranch_scc1 L_nw1')
        warm(S_TMP, SIZES['w1'], vT + 2)
        a.label('L_nw1')
        a('s_cmp_lg_u32 s%d, 2' % sW)
        a('s_cbranch_scc1 L_nw2')
        warm(S_W2, SIZES['w2'], vT + 2)
        a.label('L_nw2')

    if cfg.get('warm1', 7) == -1:
        warm_big()
    a('s_waitcnt lgkmcnt(0)')
    a('s_mul_i32 s%d, s%d, 0x9e3779b1' % (sTAG, sTAG))
    a('s_add_u32 s%d, s%d, 0x7f4a7c15' % (sTAG, sTAG))
    a('v_mov_b32 %s, s%d' % (v(vONE), sTAG))
    D0 = min(D, cfg.get('d0', 2))
    for s in range(1, D0):
        R(dma_w(s) + dma_x(s))
    a.stamp('prolog')

    def wreg(s, p, m):
        if p == 0:
            return lambda o, n: v(vWB + (s & 1) * 8 + m * 4 + o, n)
        return lambda o, n: ac(128 + (s & 1) * 24 + (p - 1) * 8 + m * 4 + o, n)

    def reads(s):
        o = []
        for p in range(4):
            o.append('ds_read_b128 %s, %s offset:%d' % (v(X + (4 * s + p) * 4, 4), v(vXR + p), (s & 3) * 4096))
            for m in range(2):
                for t in range(2):
                    o.append('ds_read_b64_tr_b16 %s, %s offset:%d' % (wreg(s, p, m)(2 * t, 2), v(vWR + p), s * 8192 + m * 1024 + t * 256))
        return o

    def mains(s):
        o = []
        for p in range(4):
            for m in range(2):
                acc = v(aK if m == 0 else aV, 16)
                o.append([mfma32(acc, wreg(s, p, m)(0, 4), v(X + (4 * s + p) * 4, 4), '0' if (s == 0 and p == 0) else acc)])
        return o

    def cs_dots(s):
        o = []
        for r_ in range(4):
            o.append('v_dot2_f32_bf16 %s, %s, s%d, %s' % (v(csk), wreg(s, 0, 0)(r_, 1), sONES, v(csk)))
            o.append('v_dot2_f32_bf16 %s, %s, s%d, %s' % (v(csv), wreg(s, 0, 1)(r_, 1), sONES, v(csv)))
        return o

    def stat_dots(s):
        o = []
        for r_ in range(16):
            x = v(X + 16 * s + r_)
            p1, p2 = (s1a, s2a) if r_ & 1 else (s1b, s2b)
            o.append('v_dot2_f32_bf16 %s, %s, s%d, %s' % (v(p1), x, sONES, v(p1)))
            o.append('v_dot2_f32_bf16 %s, %s, %s, %s' % (v(p2), x, x, v(p2)))
        return o

    def a_ext(dst, cs, t):
        return split_hl(cs, t, t + 1, dst) + ['v_cvt_pk_bf16_f32 %s, %s, 0' % (v(dst + 1), v(t + 1)),
                                              'v_mov_b32 %s, 0' % v(dst + 2), 'v_mov_b32 %s, 0' % v(dst + 3)]

    phi_merge = ['ds_read_b64_tr_b16 %s, %s' % (v(aQ + 12, 2), v(aQ + 8)),
                 'ds_read_b64_tr_b16 %s, %s offset:256' % (v(aQ + 14, 2), v(aQ + 8))]
    phi_merge2 = []
    for e in range(4):
        phi_merge2.append('v_cndmask_b32 %s, 0, %s, s[%d:%d]' % (v(aQ + e), v(aQ + 12 + e), sMSK, sMSK1))
        phi_merge2.append('v_cndmask_b32 %s, %s, 0, s[%d:%d]' % (v(aQ + 4 + e), v(aQ + 12 + e), sMSK, sMSK1))
    for e in range(8):
        phi_merge2.append('v_accvgpr_write_b32 %s, %s' % (ac(PA1 + e), v(aQ + e)))

    wq = [dma_wq(s) for s in range(8)]
    R(WaitVM('slot0'))
    a('s_barrier')
    a.stamp('c0', 2)
    R(phi_merge)
    R(reads(0))
    for s in range(D0, D):
        R(dma_w(s) + dma_x(s))
    R(phi_merge2)
    late = cfg.get('p1late', 0)
    for s in range(7):
        R(WaitVM('slot%d' % (s + 1)))
        a('s_waitcnt lgkmcnt(0)')
        a('s_barrier')
        a.stamp('c%d' % (s + 1), 2)
        if s + D < 8:
            dw, dx = dma_w(s + D), dma_x(s + D)
        else:
            k0, k1 = (s + D - 8) * 8 // D, (s + D - 7) * 8 // D
            fl = [x for g in wq[k0:k1] for x in g]
            dw, dx = fl[:len(fl) // 2], fl[len(fl) // 2:]
        rd = reads(s + 1)
        allm = dw + dx
        idx = [i for i, x in enumerate(allm) if isinstance(x, str) and x.startswith('buffer_')]
        nl = min(late, len(idx))
        cut = idx[len(idx) - nl] if nl else len(allm)
        if nl and isinstance(allm[cut - 1], str) and 'm0' in allm[cut - 1]:
            cut -= 1
        a.fill(mains(s), merge(rd, allm[:cut]))
        dots = cs_dots(s) + stat_dots(s)
        rest = allm[cut:]
        groups = []
        for x in rest:
            if not groups or (isinstance(x, str) and x.startswith('buffer_') and any(isinstance(y, str) and y.startswith('buffer_') for y in groups[-1])):
                groups.append([])
            groups[-1].append(x)
        ng_ = len(groups)
        for k in range(ng_ + 1):
            R(dots[k * 40 // (ng_ + cfg.get('p1e', 0)) if ng_ else 0:(k + 1) * 40 // (ng_ + cfg.get('p1e', 0)) if ng_ else 40])
            if k < ng_:
                R(groups[k])
        if cfg.get('warm1', 7) == s:
            warm_big()
    s = 7
    R(cs_dots(s))
    a('v_lshlrev_b32 %s, 3, v0' % v(vT))
    R('ds_write_b64 %s, %s offset:%d' % (v(vT), v(csk, 2), L_CSX))
    R(stat_dots(s))
    a('v_lshlrev_b32 %s, 3, %s' % (v(vT), v(vL)))
    a('s_waitcnt lgkmcnt(0)')
    a('s_barrier')
    for w in range(4):
        R('ds_read_b64 %s, %s offset:%d' % (v(aQ + 2 * w, 2), v(vT), L_CSX + 512 * w))
    fin = ['v_add_f32 %s, %s, %s' % (v(s1a), v(s1a), v(s1b)),
           'v_add_f32 %s, %s, %s' % (v(s2a), v(s2a), v(s2b)),
           'v_permlane32_swap_b32 %s, %s' % (v(s1a), v(s2a)),
           'v_add_f32 %s, %s, %s' % (v(s1a), v(s1a), v(s2a)),
           'v_mov_b32 %s, %s' % (v(s2a), v(s1a)),
           'v_permlane32_swap_b32 %s, %s' % (v(s1a), v(s2a))]
    fin += ln_ops(s1a, s2a, mean, rstd)
    fin += ['v_sub_f32 %s, 0, %s' % (v(s1a), v(mean))]
    fin += split_hl(s1a, s1b, s2b, vT)
    fin += ['v_cvt_pk_bf16_f32 %s, %s, %s' % (v(vBX), v(s1b), v(s2b)),
            'v_cvt_pk_bf16_f32 %s, %s, 0' % (v(vBX + 1), v(s1b))]
    fin2 = ['v_add_f32 %s, %s, %s' % (v(aQ + i), v(aQ + i), v(aQ + 4 + i)) for i in range(4)]
    fin2 += ['v_add_f32 %s, %s, %s' % (v(csk + i), v(aQ + i), v(aQ + 2 + i)) for i in range(2)]
    fin2 += a_ext(aQ + 8, csk, vT + 1) + a_ext(aQ + 12, csv, vT + 1)
    k0 = (7 + D - 8) * 8 // D
    m7 = mains(7)
    m7 = [m7[i] for i in (0, 2, 4, 6, 1, 3, 5, 7)]
    a.fill(m7, merge(fin, fin2))
    a.stamp('p1end')
    R(mfma32(v(aK, 16), v(aQ + 8, 4), v(vBX, 4), v(aK, 16)))
    R(mfma32(v(aV, 16), v(aQ + 12, 4), v(vBX, 4), v(aV, 16)))
    R([x for g in wq[k0:] for x in g] + [Mark('wq')])
    a('v_lshlrev_b32 %s, 7, %s' % (v(vL128), v(vL)))
    def touches(at):
        o = []
        if cfg.get('lo', 0) and cfg.get('to', 'p1') == at:
            o += pretouch(sOST, 16, s1a)
        if cfg.get('lh', 0) and cfg.get('th', 'p1') == at:
            o += pretouch(sHST, 16, s1a) + pretouch(sSST, 2, s1a)
        return o
    if cfg.get('warm1', 7) == 7:
        warm_big()
    R(touches('p1'))
    if cfg.get('wflag', 1):
        a('v_lshlrev_b32 %s, 15, %s' % (v(vRB), v(vL)))
        a('s_cmp_eq_u32 s%d, 0' % sW)
        a('s_cselect_b32 s%d, s%d, s%d' % (sT2, sFP, sFB))
        a('s_cselect_b32 exec_lo, 1, 0x3e')
        a('s_mov_b32 exec_hi, 0')
        a('s_cmp_gt_u32 s%d, 1' % sW)
        a('s_cbranch_scc1 L_nowfl')
        a('buffer_load_dword %s, %s, %s, s%d offen sc1' % (v(vRB), v(vRB), sr(S_WS), sT2))
        a.label('L_nowfl')
        a('s_mov_b64 exec, -1')
    vBD = vXD
    def blk_regs(name, reg):
        return [a.unstash(name, reg)] + ['v_add_u32 %s, %d, %s' % (v(reg + q), q * 7168, v(reg)) for q in range(1, 4)]
    R(blk_regs('bdo', vBD))
    def dma_wo(g4):
        return ['s_add_u32 m0, s%d, %d' % (sLDSX, g4 * 4096)] + [
            'buffer_load_dwordx4 %s, %s, s%d offen offset:%d lds' % (v(vBD + b), sr(S_WO), sCO, b * 1024) for b in range(4)
        ] + step(sCO, 32768, 8 * 32768)
    vB1 = vWR
    def dma_w1(g4):
        return ['s_add_u32 m0, s%d, %d' % (sLW1, g4 * 16384)] + [
            'buffer_load_dwordx4 %s, %s, s%d offen offset:%d lds' % (v(vB1 + b), sr(S_W1), sC1, b * 1024) for b in range(4)
        ] + step(sC1, 64 * 3584, 512 * 3584)
    def w2reg(ks, rho):
        return ((ks * 2 + rho) * 4 + 128) % 224
    vW2, vW2c = vS + 2, vS + 14
    REG = {0: 32768, 1: R2, 2: R2, 3: R2, 4: 0, 5: 32768, 6: 65536}
    TW2, TAC = 4, 14
    def w2_dma(q):
        o = []
        early = q < (2 if LATE2 else 3)
        for h in range(2):
            so = sC2 if early else TW2 + 2 * (q - 2) + h
            o += ['s_add_u32 m0, s%d, %d' % (sLW2, REG[q] + h * 4096)] + [
                'buffer_load_dwordx4 %s, %s, s%d offen offset:%d lds' % (v(vBD2 + b), sr(S_W2), so, b * 1024) for b in range(4)]
            if early:
                o += step(sC2, 32768, 14 * 32768)
        return o + [Mark('w2_%d' % q)]
    def tables():
        o = []
        for n in range(0 if LATE2 else 2, 10):
            o += ['s_mov_b32 s%d, s%d' % (TW2 + n, sC2)] + step(sC2, 32768, 14 * 32768)
        for n in range(14):
            o += ['s_mov_b32 s%d, s%d' % (TAC + n, sC5)] + step(sC5, 2048, 14 * 2048)
        return o
    def w2_read(q, h, a_, rho):
        n, region = 2 * q + h, REG[q]
        base, off = (vW2, region) if region < R1 else ((vW2c, region - R1) if region < R2 else (vW2 + 2, region - R2))
        return ['ds_read_b64_tr_b16 %s, %s offset:%d' % (ac(w2reg(2 * n + a_, rho) + 2 * t, 2), v(base + rho),
                                                        off + h * 4096 + a_ * 1024 + t * 256) for t in range(2)]
    def w2_park(q):
        return [x for h in range(2) for a_ in range(2) for rho in range(2) for x in w2_read(q, h, a_, rho)] + [Mark('park%d' % q)]

    vBD2 = vXR
    PLAN = dict(Wa=['o0'], Wb1=['o1', 'o2'], Wb2=['o3', 'p0'], Wb3=[], Wc=[], Wd0=['g0', 'g1'], Wd=['g2', 'g3'], We=['g4', 'g5'],
                Wf0=['g6', 'g7'], Wf=['p1'])
    PLAN.update(cfg.get('plan', {}))
    ORDER = ['Wa', 'Wb1', 'Wb2', 'Wb3', 'Wc', 'Wd0', 'Wd', 'We', 'Wf0', 'Wf']
    where = {g: ORDER.index(w) for w in ORDER for g in PLAN[w]}
    LATE2 = 'p2' not in where
    assert sorted(where) == sorted(['o%d' % i for i in range(4)] + ['g%d' % i for i in range(8)] + ['p0', 'p1'] + ([] if LATE2 else ['p2']))
    assert all(where['o%d' % i] <= 4 for i in range(4)) and 1 <= where['p0'] <= 3
    assert all(where['g%d' % i] >= 4 for i in (0, 1)) and all(where['g%d' % i] >= 5 for i in (2, 3))
    assert all(where['g%d' % i] >= 7 for i in range(4, 8))
    assert (where['p1'] == 9) if LATE2 else (where['p1'] in (6, 7) and where['p2'] == 9)
    def window(w):
        o = []
        for g in PLAN[w]:
            o += {'o': dma_wo, 'g': dma_w1, 'p': w2_dma}[g[0]](int(g[1]))
            o.append(Mark(g))
        return o
    def landed(w):
        return sum(1 for i in range(8) if where['g%d' % i] <= ORDER.index(w))
    cs1 = vS + 6
    vW1 = vS + 10
    def w1_reads(k0, k1):
        o = []
        for ks in range(k0, k1):
            T, a_ = ks >> 1, ks & 1
            for t in range(2):
                off = (4 * T + a_) * 2048 + t * 256
                o.append('ds_read_b64_tr_b16 %s, %s offset:%d' % (v(X + 4 * ks + 2 * t, 2), v(vW1 + (off >> 16)), off & 0xffff))
        return o
    def w1_dots(k0, k1):
        return ['v_dot2_f32_bf16 %s, %s, s%d, %s' % (v(cs1 + (r_ & 1)), v(X + r_), sONES, '0' if r_ < 2 else v(cs1 + (r_ & 1)))
                for r_ in range(4 * k0, 4 * k1)]

    a('v_mul_f32 %s, 0x%x, %s' % (v(cexp), LOG2E, v(rstd)))
    a('v_mul_f32 %s, 0x%x, %s' % (v(ncexp), LOG2E | 0x80000000, v(rstd)))
    for i in range(8):
        a('v_cvt_pk_bf16_f32 %s, %s, %s' % (v(vWB + i), v(aK + 2 * i), v(aK + 2 * i + 1)))
    R(mfma32(v(aK, 16), ac(PA1, 4), v(vWB, 4), '0'))
    R(mfma32(v(aK, 16), ac(PA2, 4), v(vWB + 4, 4), v(aK, 16)))
    nv_ = cfg.get('vplain', 8)
    for i in range(nv_):
        a('v_mul_f32 %s, %s, %s' % (v(aV + i), v(aV + i), v(rstd)))
    for i in range(nv_, 16, 2):
        a('v_pk_mul_f32 %s, %s, %s op_sel_hi:[1,0]' % (v(aV + i, 2), v(aV + i, 2), v(rstd, 2)))
    for i in range(8):
        a('v_cvt_pk_bf16_f32 %s, %s, %s' % (v(aQ + i), v(aV + 2 * i), v(aV + 2 * i + 1)))
    for g in range(4):
        R('ds_write_b64 %s, %s offset:%d' % (v(vA + g), v(aQ + 2 * g, 2), L_V))
    a.stamp('phik', 2)
    sm = softmax_ops(aK, vWB, aV, cexp, aQ + 8)
    R(sm[:34])
    R(merge(sm[34:66], window('Wa')))
    R(sm[66:-16])
    for q in range(2):
        R('ds_write_b128 %s, %s offset:%d' % (v(vA + 4 + q), v(aV + 4 * q, 4), L_PHI))
    R(sm[-16:])
    for q in range(2, 4):
        R('ds_write_b128 %s, %s offset:%d' % (v(vA + 4 + q), v(aV + 4 * q, 4), L_PHI))
    vKV = vXR
    R([a.unstash('kvphi', vKV), a.unstash('kvv', vKV + 2), 'v_xor_b32 %s, 32, %s' % (v(vKV + 1), v(vKV)),
       'v_xor_b32 %s, 32, %s' % (v(vKV + 3), v(vKV + 2))])
    for i in range(4):
        a('v_mov_b32 %s, s%d' % (v(aQ + 12 + i), sONES))
    a('s_waitcnt lgkmcnt(0)')
    a('s_barrier')
    a.stamp('B1')
    for s in range(4):
        R('ds_read_b64_tr_b16 %s, %s offset:%d' % (v(vWB + 8 * s, 2), v(vKV), L_PHI + 2048 * s))
        R('ds_read_b64_tr_b16 %s, %s offset:%d' % (v(vWB + 8 * s + 2, 2), v(vKV + 1), L_PHI + 2048 * s + 256))
        R('ds_read_b64_tr_b16 %s, %s offset:%d' % (v(vWB + 8 * s + 4, 2), v(vKV + 2), L_V + 2048 * s))
        R('ds_read_b64_tr_b16 %s, %s offset:%d' % (v(vWB + 8 * s + 6, 2), v(vKV + 3), L_V + 2048 * s + 256))
    a('v_lshlrev_b32 %s, 3, v0' % v(vA))
    R(a.unstash('zst', vA + 1))
    for s in range(4):
        R(mfma16(v(aK, 4), v(vWB + 8 * s, 4), v(vWB + 8 * s + 4, 4), '0' if s == 0 else v(aK, 4)))
        R(mfma16(v(aK + 4, 4), v(vWB + 8 * s, 4), v(aQ + 12, 4), '0' if s == 0 else v(aK + 4, 4)))
    for p in range(4):
        a('v_add_u32 %s, %d, %s' % (v(vWR + p), L_WQ, v(vWR + p)))
    R(blk_regs('bd2', vBD2))
    a('v_cvt_pk_bf16_f32 %s, %s, %s' % (v(aQ), v(aK), v(aK + 1)))
    a('v_cvt_pk_bf16_f32 %s, %s, %s' % (v(aQ + 1), v(aK + 2), v(aK + 3)))
    R('buffer_store_dwordx2 %s, %s, %s, s%d offen sc1' % (v(aQ, 2), v(vA), sr(S_WS), sREC))
    a('s_mov_b32 exec_lo, 0x00010001')
    a('s_mov_b32 exec_hi, 0x00010001')
    R('buffer_store_dwordx4 %s, %s, %s, s%d offen offset:2048 sc1' % (v(aK + 4, 4), v(vA + 1), sr(S_WS), sREC))
    R(Mark('kv'))
    a('s_mov_b64 exec, -1')
    a.stamp('kvst', 2)

    R(WaitVM('wq'))
    a('s_barrier')
    a.stamp('Bq', 2)
    def qoff(s):
        return (s >> 1) * 8192 + (s & 1) * 1024
    order = [(s, p) for p in range(4) for s in range(8)]
    def qreg(n):
        return (lambda o, k: v(vWB + 4 * n + o, k)) if n < 8 else (lambda o, k: ac(4 * (n - 8) + o, k))
    def qread(n):
        s, p = order[n]
        return ['ds_read_b64_tr_b16 %s, %s offset:%d' % (qreg(n)(2 * t, 2), v(vWR + p), qoff(s) + t * 256) for t in range(2)] + [Mark('q%d' % n)]
    for n in range(12):
        R(qread(n))
    a('v_mov_b32 %s, 0' % v(vT + 1))
    R(WaitDS('q7'))
    for r_ in range(32):
        d = csq if r_ & 1 else vT + 1
        a('v_dot2_f32_bf16 %s, %s, s%d, %s' % (v(d), v(vWB + r_), sONES, v(d)))
    a('v_lshlrev_b32 %s, 2, v0' % v(vT))
    a('v_add_f32 %s, %s, %s' % (v(csq), v(csq), v(vT + 1)))
    R('ds_write_b32 %s, %s offset:%d' % (v(vT), v(csq), L_CSQ))
    a.stamp('qdot', 2)
    qm, qp = [], []
    for n in range(32):
        s, p = order[n]
        g = []
        if n >= 8 and n % 4 == 0:
            g.append(WaitDS('q%d' % (n + 3)))
        g.append(mfma32(v(aQ, 16), qreg(n)(0, 4), v(X + (4 * s + p) * 4, 4), '0' if n == 0 else v(aQ, 16)))
        qm.append(g)
        qp.append(qread(n + 12) if n + 12 < 32 else [])
    n1 = cfg.get('q1', 12)
    a.fill(qm[:n1], window('Wb1') + ['v_lshlrev_b32 %s, 11, %s' % (v(vT), v(vL))], post=qp[:n1])
    a.stamp('q1', 2)
    R(WaitVM('kv'))
    a.stamp('kvack', 2)
    a('s_waitcnt lgkmcnt(0)')
    a('s_barrier')
    push_flags(sFA, 0, vT)
    lab = a.uniq('L_noid')
    a('s_getreg_b32 s%d, hwreg(HW_REG_XCC_ID, 0, 4)' % sXID)
    a('s_cmp_lg_u32 s%d, 0' % sW)
    a('s_cbranch_scc1 %s' % lab)
    a('s_add_u32 s%d, s%d, %d' % (sT5, sFME, 5 * 32768))
    a('v_add_u32 %s, s%d, %s' % (v(vT + 3), sXID, v(vONE)))
    a('s_mov_b64 exec, 1')
    a('buffer_store_dword %s, %s, %s, s%d offen sc1' % (v(vT + 3), v(vL4), sr(S_WS), sT5))
    a('s_mov_b64 exec, -1')
    a.label(lab)
    a.stamp('pushA')
    if cfg.get('ct1', 2):
        code_touch(cfg.get('ct1', 2), 2, vRB)
    R(touches('pa'))
    qx = ['ds_read_b32 %s, %s offset:%d' % (v(vA + 4 + w), v(vL4), L_CSQ + 256 * w) for w in range(4)]
    qy = ['v_add_f32 %s, %s, %s' % (v(vA + 4), v(vA + 4), v(vA + 5)),
          'v_add_f32 %s, %s, %s' % (v(vA + 6), v(vA + 6), v(vA + 7)),
          'v_add_f32 %s, %s, %s' % (v(csq), v(vA + 4), v(vA + 6))] + a_ext(vA + 4, csq, vT + 1)
    a.fill(qm[n1:], qx + merge(window('Wb2'), qy), post=qp[n1:])
    R(mfma32(v(aQ, 16), v(vA + 4, 4), v(vBX, 4), v(aQ, 16)))
    XR = vWB + 24
    R([a.unstash('w2', vW2), 'v_xor_b32 %s, 512, %s' % (v(vW2 + 1), v(vW2)),
       'v_add_u32 %s, %d, %s' % (v(vW2 + 2), R2, v(vW2)), 'v_add_u32 %s, %d, %s' % (v(vW2 + 3), R2, v(vW2 + 1))])
    R(a.unstash('bd1', vB1))
    for q in range(1, 4):
        a('v_add_u32 %s, %d, %s' % (v(vB1 + q), (q >> 1) * 8 * 3584 + (q & 1) * 128 - 1024 * q, v(vB1)))
    R(window('Wb3'))
    R(touches('b3'))
    a.stamp('qgemm', 2)
    for i in range(8):
        a('v_cvt_pk_bf16_f32 %s, %s, %s' % (v(vWB + i), v(aQ + 2 * i), v(aQ + 2 * i + 1)))
    R(mfma32(v(aK, 16), ac(PA1, 4), v(vWB, 4), '0'))
    R(mfma32(v(aK, 16), ac(PA2, 4), v(vWB + 4, 4), v(aK, 16)))
    R([a.unstash('gld', vA), a.unstash('zld', vA + 1), a.unstash('kbw', vA + 2), a.unstash('kbz', vA + 3), a.unstash('kbr', vA + 4),
       'v_lshlrev_b32 %s, 7, %s' % (v(vL128), v(vL))])
    PQ = aQ
    sm = softmax_ops(aK, vWB, PQ, cexp, aV)
    for q in range(4):
        sm.append('v_permlane32_swap_b32 %s, %s' % (v(PQ + q), v(PQ + 4 + q)))
        sm.append('v_permlane32_swap_b32 %s, %s' % (v(PQ + 8 + q), v(PQ + 12 + q)))
    ns = cfg.get('smpre', 20)
    R(sm[:ns])
    a.stamp('qsm', 2)

    poll(0, 16)
    a('s_barrier')
    a.stamp('gotA')
    G = X + 64
    GZ = X + 96
    gl = []
    for p in range(8):
        g = ['buffer_load_dwordx4 %s, %s, %s, s%d offen sc1' % (v(G + 4 * p, 4), v(vA), sr(S_WS), sGAT)]
        if p == 0:
            g.append('buffer_load_dwordx4 %s, %s, %s, s%d offen offset:2048 sc1' % (v(GZ, 4), v(vA + 1), sr(S_WS), sGAT))
        if p < 7:
            g.append('s_add_u32 s%d, s%d, %d' % (sGAT, sGAT, 2 * KVREC))
        if p % 2 == 1:
            g.append(Mark('g%d' % (p // 2)))
        gl.append(g)
    ng = cfg.get('gfirst', 8)
    R(gl[:ng])
    a.stamp('gl', 2)
    R(WaitVM('p0'))
    R(w2_park(0))
    a.stamp('park0', 2)
    e0 = max(ns, cfg.get('gsplit', 66))
    R(sm[ns:e0])
    R(gl[ng:])
    vID = vS + 1
    R(check_issue(5, vID, None))
    lab = a.uniq('L_nowf')
    a('s_cmp_lg_u32 s%d, 1' % sW)
    a('s_cbranch_scc1 %s' % lab)
    a('v_lshlrev_b32 %s, 15, %s' % (v(vRB), v(vL)))
    a('s_mov_b64 exec, 0x1e')
    a('buffer_load_dword %s, %s, %s, s%d offen sc1' % (v(vRB), v(vRB), sr(S_WS), sFB))
    a('s_mov_b64 exec, -1')
    a.label(lab)
    R(window('Wc'))
    R(touches('wc'))
    a.stamp('gl2', 2)
    R(sm[e0:])
    a.stamp('sm2', 2)
    R([a.unstash('xd', vT), 'v_add_u32 %s, %d, %s' % (v(vT + 1), 16384 - 1024, v(vT)),
       's_add_u32 m0, s%d, %d' % (sLW2, R2 + 4096),
       'buffer_load_dwordx4 %s, %s, s%d offen lds' % (v(vT), sr(S_X), sOUT),
       'buffer_load_dwordx4 %s, %s, s%d offen offset:1024 lds' % (v(vT + 1), sr(S_X), sOUT), Mark('xr')])
    a.stamp('qsm2', 2)
    for sh in (1, 2, 4, 8):
        for i in range(4):
            a('v_add_f32_dpp %s, %s, %s row_ror:%d row_mask:0xf bank_mask:0xf' % (v(GZ + i), v(GZ + i), v(GZ + i), sh))
    a('v_cvt_pk_bf16_f32 %s, %s, %s' % (v(aK + 6), v(GZ), v(GZ + 1)))
    a('v_cvt_pk_bf16_f32 %s, %s, %s' % (v(aK + 7), v(GZ + 2), v(GZ + 3)))
    R('ds_write_b64 %s, %s offset:%d' % (v(vA + 3), v(aK + 6, 2), 16 * 80))
    S8 = aK + 8
    for p in range(8):
        if p % 2 == 0:
            R(WaitVM('g%d' % (p // 2)))
        for i in range(8):
            a('v_dot2_f32_bf16 %s, %s, s%d, %s' % (v(S8 + i), v(G + 4 * p + (i >> 1)), sSEL1 if i & 1 else sSEL0,
                                                  '0' if p == 0 else v(S8 + i)))
    for i in range(4):
        a('v_permlane32_swap_b32 %s, %s' % (v(S8 + i), v(S8 + 4 + i)))
    a('v_pk_add_f32 %s, %s, %s' % (v(aK, 2), v(S8, 2), v(S8 + 4, 2)))
    a('v_pk_add_f32 %s, %s, %s' % (v(aK + 2, 2), v(S8 + 2, 2), v(S8 + 6, 2)))
    a('v_cvt_pk_bf16_f32 %s, %s, %s' % (v(aK + 4), v(aK), v(aK + 1)))
    a('v_cvt_pk_bf16_f32 %s, %s, %s' % (v(aK + 5), v(aK + 2), v(aK + 3)))
    a.stamp('gdot', 2)
    R('ds_write_b64 %s, %s' % (v(vA + 2), v(aK + 4, 2)))
    check_done(5, 16, vID, None)
    R(WaitVM('o3'))
    a('s_waitcnt lgkmcnt(0)')
    a('s_barrier')
    a.stamp('B4', 2)
    for h in range(2):
        for s in range(2):
            R('ds_read_b128 %s, %s offset:%d' % (v(vWB + (h * 2 + s) * 4, 4), v(vA + 4), h * 17 * 80 + s * 32))
    for h in range(2):
        acc = v(aK if h == 0 else aV, 16)
        R(mfma32(acc, v(vWB + h * 8, 4), v(PQ + 4 * h, 4), '0'))
        R(mfma32(acc, v(vWB + h * 8 + 4, 4), v(PQ + 8 + 4 * h, 4), acc))
    for h in range(2):
        acc = aK if h == 0 else aV
        a('v_add_f32 %s, 0x358637bd, %s' % (v(acc + 8), v(acc + 8)))
        a('v_rcp_f32 %s, %s' % (v(acc + 8), v(acc + 8)))
        if h == 0:
            for i in range(8):
                a('v_mul_f32 %s, %s, %s' % (v(acc + i), v(acc + i), v(acc + 8)))
        else:
            for i in range(0, 8, 2):
                a('v_pk_mul_f32 %s, %s, %s op_sel_hi:[1,0]' % (v(acc + i, 2), v(acc + i, 2), v(acc + 8, 2)))
        for i in range(4):
            a('v_cvt_pk_bf16_f32 %s, %s, %s' % (v(acc + 12 + i), v(acc + 2 * i), v(acc + 2 * i + 1)))
        dual(['buffer_store_dwordx4 %s, %s, %s, s%d offen offset:%d' % (v(acc + 12, 4), v(vFR), sr(S_WS), sOST, h * 1024)], cfg.get('lo', 0))
    R(Mark('o'))
    a.stamp('ost', 2)
    vWO = vXD
    R([a.unstash('wo', vWO), 'v_xor_b32 %s, 512, %s' % (v(vWO + 1), v(vWO))])
    R([a.unstash('w1', vW1), 'v_add_u32 %s, 65536, %s' % (v(vW1 + 1), v(vW1)), a.unstash('xr', vT)])
    R([a.unstash('red3', vA), 'v_xor_b32 %s, 16384, %s' % (v(vA + 1), v(vA))])
    wop = []
    for s in range(16):
        for rho in range(2):
            for t in range(2):
                wop.append('ds_read_b64_tr_b16 %s, %s offset:%d' % (ac((s * 2 + rho) * 4 + 2 * t, 2), v(vWO + rho), s * 2048 + t * 256))
    R(merge(wop, window('Wd0')))
    R(WaitVM('o'))
    a('s_barrier')
    arrive(1)
    a.stamp('pushB')
    if cfg.get('ct3', 2):
        code_touch(cfg.get('ct3', 2), 2, vRB)
    R(['ds_read_b128 %s, %s' % (v(XR, 4), v(vT)), 'ds_read_b128 %s, %s offset:16' % (v(XR + 4, 4), v(vT))])
    k1 = 4 * landed('Wc')
    R(merge(w1_reads(0, k1), window('Wd')))
    R(Mark('Wd'))
    for i in range(8):
        a('v_lshlrev_b32 %s, 16, %s' % (v(aQ + 2 * i), v(XR + i)))
        a('v_and_b32 %s, 0xffff0000, %s' % (v(aQ + 2 * i + 1), v(XR + i)))
    a.stamp('wopark', 2)

    poll(1, 16)
    R(WaitVM('Wd'))
    a('s_waitcnt lgkmcnt(0)')
    a('s_barrier')
    a.stamp('gotB')
    OB = X + 64
    ol = []
    for s in range(16):
        g = []
        if s % 4 == 0:
            g += ['s_add_u32 s%d, s%d, s%d' % (sT2, sR3, sOLD)] + step(sR3, 4096, 16384)
        g.append('buffer_load_dwordx4 %s, %s, %s, s%d offen offset:%d %s' % (v(OB + 4 * s, 4), v(vFR), sr(S_WS), sT2, (s % 4) * 1024, SC))
        ol.append(g)
    no = cfg.get('ofirst', 10)
    R(ol[:no])
    a.stamp('old', 2)
    n3 = cfg.get('p3split', 5)
    o3 = [(s, rho) for s in range(16 - n3) for rho in range(2)] + [(s, 1) for s in range(16 - n3, 16)] + [(s, 0) for s in range(16 - n3, 16)]
    pm = []
    for s, rho in o3:
        acc = v(aK if rho == 0 else aV, 16)
        pm.append([mfma32(acc, ac((s * 2 + rho) * 4, 4), v(OB + 4 * s, 4), (v(aQ, 16) if rho == 0 else '0') if s == 0 else acc)])
    k2 = min(16, 4 * landed('Wd'))
    R(w1_reads(k1, k2))
    if where['p1'] == 6:
        R(w2_park(1))
    a.stamp('park1', 2)
    post = [[] for _ in pm]
    for k, g in enumerate(ol[no:]):
        post[2 * k] = g
    r3w = ['ds_write_b128 %s, %s offset:%d' % (v(vA), v(aV + 4 * q, 4), q * 1024) for q in range(4)]
    if n3 >= 4:
        post[30] = post[30] + r3w[:2]
        post[31] = post[31] + r3w[2:]
        r3w = []
    if where['p1'] != 7:
        a.fill(pm, window('We'), cfg.get('wefirst', 14), 28, post=post)
    else:
        a.fill(pm, window('We') + [WaitVM('p1')] + w2_park(1), 14, post=post)
    a.stamp('p3mf', 2)
    R(r3w)
    a('s_waitcnt lgkmcnt(0)')
    a('s_barrier')
    for q in range(4):
        R('ds_read_b128 %s, %s offset:%d' % (v(aV + 4 * q, 4), v(vA + 1), q * 1024))
    HP = vA
    for half in range(2):
        for i in range(8 * half, 8 * half + 8, 2):
            a('v_pk_add_f32 %s, %s, %s' % (v(aK + i, 2), v(aK + i, 2), v(aV + i, 2)))
        for i in range(8 * half, 8 * half + 8, 2):
            a('v_cvt_pk_bf16_f32 %s, %s, %s' % (v(HP + i // 2), v(aK + i), v(aK + i + 1)))
        dual(['buffer_store_dwordx4 %s, %s, %s, s%d offen offset:%d' % (v(HP + 4 * half, 4), v(vFR), sr(S_WS), sHST, half * 1024)], cfg.get('lh', 0))
    for i in range(8):
        a('v_dot2_f32_bf16 %s, %s, s%d, %s' % (v(vT), v(HP + i), sONES, '0' if i == 0 else v(vT)))
        a('v_dot2_f32_bf16 %s, %s, %s, %s' % (v(vT + 1), v(HP + i), v(HP + i), '0' if i == 0 else v(vT + 1)))
    a('v_permlane32_swap_b32 %s, %s' % (v(vT), v(vT + 1)))
    a('v_add_f32 %s, %s, %s' % (v(vT), v(vT), v(vT + 1)))
    dual(['buffer_store_dword %s, %s, %s, s%d offen' % (v(vT), v(vL4), sr(S_WS), sSST)], cfg.get('lh', 0))
    R(Mark('h'))
    a.stamp('hst', 2)
    R(a.unstash('bias', vT + 2))
    R('buffer_load_ushort %s, %s, %s, 0 offen' % (v(vS + 12), v(vT + 2), sr(S_B1)))
    R(window('Wf0'))
    R(w1_dots(0, k2))
    R(['v_add_u32 %s, %d, %s' % (v(vW2c), R1, v(vW2)), 'v_add_u32 %s, %d, %s' % (v(vW2c + 1), R1, v(vW2 + 1))])
    R(WaitVM('h'))
    if cfg.get('rbh', 0):
        R(readback(sHST, 16, vRB, sSST))
    a('s_barrier')
    arrive(2)
    a.stamp('pushC')
    if cfg.get('ct2', 4):
        code_touch(cfg.get('ct2', 4), 2, vRB)
    a('s_or_b32 s%d, s%d, s%d' % (sT2, sFME, sW))
    a('s_cmp_lg_u32 s%d, %d' % (sT2, 15 * 4))
    a('s_cbranch_scc1 L_noep')
    a('s_mov_b32 s%d, 0x%x' % (sT2, EPOCH))
    a('s_mov_b64 exec, 1')
    a('buffer_store_dword %s, %s, %s, s%d offen sc1' % (v(vONE), v(vL4), sr(S_WS), sT2))
    a('s_mov_b64 exec, -1')
    a.label('L_noep')
    R(window('Wf'))
    vAL = vXD + 2
    a('v_add_u32 %s, s%d, %s' % (v(vAL), sALD, v(vFR)))
    a('v_add_u32 %s, %d, %s' % (v(vAL + 1), 2 * 112 * 1024, v(vAL)))
    vHR = vWR + 2
    a('v_mov_b32 %s, %s' % (v(vHR), v(vFR)))
    a('v_add_u32 %s, 65536, %s' % (v(vHR + 1), v(vFR)))
    a('s_lshl_b32 s%d, s%d, 10' % (sT2, sW))
    a('v_add_u32 %s, s%d, %s' % (v(vWR), sT2, v(vHR + 1)))
    BX4 = vWB + 24
    AXR = vWB + 28
    a('v_mov_b32 %s, 0' % v(BX4 + 3))
    a('s_cmp_ge_u32 s%d, 14' % sJ)
    a('s_cbranch_scc1 L_idle')
    k3 = min(cfg.get('k3', 16), 4 * landed('We'))
    R(w1_reads(k2, k3))
    R(w1_dots(k2, k3))
    sx(sT2, [(sJ, 80 * 128), (sW, 20 * 128)])
    sx(sT3, [(sI, 4 << 15)], H_)
    a('v_lshlrev_b32 %s, 7, %s' % (v(vT + 1), v(vL)))
    a('v_add_u32 %s, s%d, %s' % (v(vT + 1), sT2, v(vT + 1)))
    a('v_min_u32 %s, %d, %s' % (v(vT + 1), 131072 - 128, v(vT + 1)))
    a.stamp('w1park', 2)

    poll(2, 16)
    R(WaitVM('g7'))
    a('s_waitcnt lgkmcnt(0)')
    a('s_barrier')
    a.stamp('gotC')
    def h_dma(tau, half):
        sb = sHL1 if half else sHL0
        return ['s_add_u32 m0, s%d, %d' % (sLW1, tau * 32768 + half * 16384)] + [
            'buffer_load_dwordx4 %s, %s, s%d offen offset:%d %s lds' % (v(vFR), sr(S_WS), sb, b * 1024, SC) for b in range(4)
        ] + ['s_add_u32 s%d, s%d, 32768' % (sb, sb), Mark('h%d%d' % (tau, half))]
    R(h_dma(0, 0))
    R(h_dma(0, 1))
    SB = aQ
    L_ST = L_BX + 8192
    st_dma = ['s_add_u32 m0, s%d, %d' % (sLW1, L_ST)] + [
        'buffer_load_dwordx4 %s, %s, s%d offen offset:%d %s lds' % (v(vFR), sr(S_WS), sSLD, b * 1024, SC) for b in range(4)] + [Mark('st')]
    st_reads = [WaitVM('st')] + ['ds_read_b32 %s, %s offset:%d' % (v(SB + ct), v(vWR + 1), ct * 256) for ct in range(16)]
    a('s_add_u32 s%d, s%d, %d' % (sT2, sLW1, L_ST))
    a('v_add_u32 %s, s%d, %s' % (v(vWR + 1), sT2, v(vL4)))
    if cfg.get('touchh', 0):
        a('s_mov_b64 exec, 0xfffff')
        R('buffer_load_dword %s, %s, %s, s%d offen %s' % (v(vT + 2), v(vT + 1), sr(S_WS), sT3, SC))
        a('s_mov_b64 exec, -1')
    H1E = cfg.get('h1e', 0)
    for hh_ in range(H1E):
        R(h_dma(1, hh_))
    R(w1_reads(k3, 32))
    TSH = cfg.get('tshadow', 1)
    if not TSH:
        R(tables())
    kd1, kd2 = cfg.get('dots', [32, 32])
    R(w1_dots(k3, kd1))
    aext = ['v_add_f32 %s, %s, %s' % (v(AXR + 3), v(cs1), v(cs1 + 1))] + split_hl(AXR + 3, vT + 1, vT, AXR) + [
        'v_cvt_pk_bf16_f32 %s, %s, 0' % (v(AXR + 1), v(vT)),
        'v_lshl_or_b32 %s, %s, 16, %s' % (v(AXR + 1), v(vS + 12), v(AXR + 1)),
        'v_mov_b32 %s, %s' % (v(AXR + 2), v(vS + 12)), 'v_mov_b32 %s, 0' % v(AXR + 3)]
    a('s_waitcnt lgkmcnt(0)')
    a.stamp('w1b', 2)
    BXA = A_STASH
    vCK = vS + 1
    NR, LA = 12, 8
    def bread(n):
        tau, ks = n >> 5, n & 31
        off = tau * 32768 + ks * 1024
        return ['ds_read_b128 %s, %s offset:%d' % (ac(4 * (n % NR), 4), v(vHR + (off >> 16)), off & 0xffff), Mark('b%d' % n)]
    stats = []
    for i in range(8):
        stats.append('v_add_f32 %s, %s, %s' % (v(SB + i), v(SB + i), v(SB + 8 + i)))
    for i in range(4):
        stats.append('v_add_f32 %s, %s, %s' % (v(SB + i), v(SB + i), v(SB + 4 + i)))
    stats += ['v_add_f32 %s, %s, %s' % (v(SB), v(SB), v(SB + 2)), 'v_add_f32 %s, %s, %s' % (v(SB + 1), v(SB + 1), v(SB + 3)),
              'v_add_f32 %s, %s, %s' % (v(SB), v(SB), v(SB + 1)), 'v_mov_b32 %s, %s' % (v(SB + 1), v(SB)),
              'v_permlane32_swap_b32 %s, %s' % (v(SB), v(SB + 1))]
    stats += ln_ops(SB, SB + 1, SB + 2, SB + 15)
    stats += ['v_mul_f32 %s, %s, %s' % (v(SB + 4), v(SB + 1), v(SB + 15)), 'v_sub_f32 %s, 0, %s' % (v(SB + 2), v(SB + 2))]
    stats += split_hl(SB + 2, SB + 5, SB + 6, SB + 3) + split_hl(SB + 4, SB + 7, SB + 8, SB + 3)
    stats += ['v_cvt_pk_bf16_f32 %s, %s, %s' % (v(SB + 12), v(SB + 5), v(SB + 6)),
              'v_cvt_pk_bf16_f32 %s, %s, %s' % (v(SB + 13), v(SB + 5), v(SB + 7)),
              'v_cvt_pk_bf16_f32 %s, %s, 0' % (v(SB + 14), v(SB + 8)),
              'v_mul_f32 %s, 0x%x, %s' % (v(SB + 15), LOG2E, v(SB + 15)),
              'ds_write_b128 %s, %s offset:%d' % (v(vWR), v(SB + 12, 4), L_BX - 65536)]

    ACCS = [aK, aV, vWB + 8]
    PKS = [aQ, aQ + 8]
    T = lambda e: v(vWB + e % 4)
    Y = lambda e: v(ACCS[(e >> 4) % 3] + (e & 15))
    C1 = lambda e: v(vS + 12 + ((e >> 4) & 1))
    def elem_ops(m, lim_=64):
        E, o = m >> 1, []
        ok = lambda e: 0 <= e < lim_
        if m % 2 == 0:
            if ok(E):
                o.append('v_mul_f32 %s, %s, %s' % (Y(E), Y(E), C1(E)))
            if ok(E - 1):
                o.append('v_fma_f32 %s, %s, s%d, s%d' % (T(E - 1), T(E - 1), sRS, sRS))
            if ok(E):
                o.append('v_exp_f32 %s, %s' % (T(E), Y(E)))
        else:
            if ok(E - 1):
                o.append('v_fma_f32 %s, %s, %s, 0.5' % (T(E - 1), T(E - 1), T(E - 1)))
            if ok(E - 2):
                o.append('v_fma_f32 %s, -%s, %s, %s' % (Y(E - 2), T(E - 2), Y(E - 2), Y(E - 2)))
            if ok(E - 1):
                o.append('v_rcp_f32 %s, %s' % (T(E - 1), T(E - 1)))
            if ok(E - 2) and E & 1:
                e = E - 2
                o.append('v_cvt_pk_bf16_f32 %s, %s, %s' % (v(PKS[(e >> 4) & 1] + (e & 15) // 2), Y(e - 1), Y(e)))
        return o
    def act_store(tau):
        return ['buffer_store_dwordx4 %s, %s, %s, s%d offen offset:%d %s' % (v(PKS[tau & 1] + 4 * h, 4), v(vFR), sr(S_WS), sAST, h * 1024, SC)
                for h in range(2)] + ['s_add_u32 s%d, s%d, %d' % (sAST, sAST, 112 * 1024), Mark('act%d' % tau)]
    def ext_regs(tau):
        return ['v_accvgpr_read_b32 %s, %s' % (v(BX4 + i), ac(BXA + 4 * tau + i)) for i in range(3)] + [
            'v_accvgpr_read_b32 %s, %s' % (C1(16 * tau), ac(BXA + 4 * tau + 3))]
    bx_reads = ['ds_read_b128 %s, %s offset:%d' % (ac(BXA + 4 * t_, 4), v(vHR + 1), L_BX - 65536 + t_ * 1024) for t_ in range(4)]

    bars = {10: 'h01', 26: 'h11', 58: 'h21', 90: 'h31'}
    lim = lambda n: 16 if n < 10 else (32 if n < 26 else (64 if n < 58 else (96 if n < 90 else 128)))
    M0 = 36
    def paced(items):
        out, cur = [], []
        for x in items:
            if isinstance(x, str) and x.startswith('buffer_'):
                out.append(cur + [x])
                cur = []
            elif isinstance(x, str) and 'm0' in x:
                cur.append(x)
            else:
                out[-1].append(x)
        return out
    at_mem, at_val = {}, {}
    kd = cfg.get('pushd', 128)
    busy = [-1]
    def place(n0, items, every=2):
        assert n0 > busy[0], (n0, busy)
        for k, g in enumerate(paced(items)):
            busy[0] = n0 + int(k * every)
            at_mem.setdefault(busy[0], []).extend(g)
    P = dict(h1=[0, 2], h2=[16, 1.5], p3=[28, 1], p4=[36, 2], h3=[58, 2], p5=[76, 2], p6=[92, 1.5])
    if LATE2:
        P = dict(h1=[6, 2], h2=[24, 2], p2=[40, 2], h3=[58, 2], p4=[74, 1.75], p5=[88, 2], p3=[106, 1.25], p6=[116, 1.25])
    P.update(cfg.get('p4plan', {}))
    assert P['p4'][0] >= 26 and P['h3'][0] >= 58 and P['p5'][0] >= 58 and P['p6'][0] >= 90
    if TSH:
        tb = tables()
        for k in range(0, len(tb), 3):
            at_mem.setdefault(8 + k // 3, []).extend(tb[k:k + 3])
    stp = cfg.get('stp', [0, 1.5])
    if stp[0] < P['h1'][0]:
        place(stp[0], st_dma, stp[1])
    ns_ = cfg.get('stn', 14)
    for k in range(4):
        at_mem.setdefault(ns_ + k // 2, []).extend(st_reads[4 * k + (1 if k else 0):4 * k + 5])
    pk = w2_park(1 if LATE2 else 2)
    for k in range(8):
        at_mem.setdefault(k, []).extend(pk[2 * k:2 * k + 2] + ([pk[16]] if k == 7 else []))
    if LATE2:
        assert P['p2'][0] > 10
        n2 = cfg.get('park2', 66)
        pk = w2_park(2)
        at_mem.setdefault(n2, []).append(WaitVM('w2_2'))
        for k in range(16):
            at_mem.setdefault(n2 + 1 + 2 * k, []).extend([pk[k]] + ([pk[16]] if k == 15 else []))
        assert P['p3'][0] >= n2 + 36
        at_mem.setdefault(P['p3'][0] - 1, []).append(WaitDS('park2'))
    else:
        assert P['p3'][0] > 10
    for name in sorted(P, key=lambda z: P[z][0]):
        t_ = int(name[1])
        if name == 'h1':
            items = [x for hh_ in range(H1E, 2) for x in h_dma(1, hh_)]
            if items:
                place(P[name][0], items, P[name][1])
            if stp[0] > P['h1'][0]:
                place(stp[0], st_dma, stp[1])
        else:
            place(P[name][0], h_dma(t_, 0) + h_dma(t_, 1) if name[0] == 'h' else w2_dma(t_), P[name][1])
    at_mem.setdefault(27, []).extend(bx_reads)
    ks0 = cfg.get('st0', M0 + 38)
    assert ks0 >= M0 + 36
    at_mem.setdefault(ks0, []).extend(act_store(0))
    at_mem.setdefault(M0 + 68, []).extend(act_store(1))
    nsp = 25 - (ns_ + 3)
    per = (len(stats) + nsp - 1) // nsp
    for k in range(nsp):
        at_val.setdefault(ns_ + 3 + k, []).extend(stats[k * per:(k + 1) * per])
    at_val.setdefault(26, []).extend(aext[:4])
    at_val.setdefault(27, []).extend(aext[4:])
    for tau in range(4):
        er = ext_regs(tau)
        at_val.setdefault(32 * tau + 29, []).extend(er[:2])
        at_val.setdefault(32 * tau + 30, []).extend(er[2:3])
        at_val.setdefault(32 * tau + 31, []).extend(er[3:])
    R(WaitVM('h00'))
    a('s_barrier')
    a.stamp('h00', 2)
    for n in range(LA):
        R(bread(n))
    nxt = LA
    for n in range(128):
        tau, ks = n >> 5, n & 31
        acc = v(ACCS[tau % 3], 16)
        if n == 10:
            R(w1_dots(kd1, kd2))
        if n == 26:
            R(w1_dots(kd2, 32))
        if n in bars:
            R([WaitVM(bars[n]), 's_waitcnt lgkmcnt(0)', 's_barrier'])
            a.stamp('bar%d' % n, 2)
        if n == kd:
            R(WaitVM('act1'))
            a('s_barrier')
            arrive(3)
            a.stamp('pushD', 2)
        wp = cfg.get('wpar', 2)
        if (n % 4 == wp or n == 0) and n not in bars:
            R(WaitDS('b%d' % min(n + 3, nxt - 1)))
        if n in cfg.get('nstamp', []):
            a.stamp('n%d' % n, 2)
        R(mfma32(acc, v(X + 4 * ks, 4), ac(4 * (n % NR), 4), '0' if ks == 0 else acc))
        if ks == 31:
            R(mfma32(acc, v(AXR, 4), v(BX4, 4), acc))
        mem = at_mem.pop(n, [])
        R([x for x in mem if isinstance(x, str) and 'm0,' in x])
        k = 0
        while nxt < min(n + LA + 2, lim(n + 1) if n + 1 not in bars else lim(n)) and k < 2:
            R(bread(nxt))
            nxt += 1
            k += 1
        R([x for x in mem if not (isinstance(x, str) and 'm0,' in x)])
        R(elem_ops(n - M0) if n >= M0 else [])
        R(at_val.pop(n, []))
        if ks == 31:
            a.stamp('t%d' % tau, 2)
    assert not at_mem and not at_val, (at_mem.keys(), at_val.keys())
    PRE = cfg.get('p5pre', 12)
    def bload(n):
        t, ks = n // 28, n % 28
        return ['buffer_load_dwordx4 %s, %s, %s, s%d offen offset:%d %s' % (
            v(X + 4 * (n % 32), 4), v(vAL + t), sr(S_WS), TAC + ks // 2, (ks % 2) * 1024, SC), Mark('a%d' % n)]
    tail = [x for m in range(128 - M0, 100) for x in elem_ops(m, 48)]
    n2_ = len(tail)
    if cfg.get('pktail', 1):
        A3, E3, K3 = ACCS[0], vWB + 8, vT
        tail += ['v_mov_b32 %s, s%d' % (v(K3), sRS), 'v_mov_b32 %s, 0.5' % v(K3 + 1)]
        for g in range(0, 16, 8):
            r2, r1 = range(g, g + 8, 2), range(g, g + 8)
            tail += ['v_pk_mul_f32 %s, %s, %s op_sel:[0,1] op_sel_hi:[1,1]' % (v(A3 + i, 2), v(A3 + i, 2), v(vS + 12, 2)) for i in r2]
            tail += ['v_exp_f32 %s, %s' % (v(E3 + i), v(A3 + i)) for i in r1]
            tail += ['v_pk_fma_f32 %s, %s, %s, %s op_sel_hi:[1,0,0]' % (v(E3 + i, 2), v(E3 + i, 2), v(K3, 2), v(K3, 2)) for i in r2]
            tail += ['v_pk_fma_f32 %s, %s, %s, %s op_sel:[0,0,1] op_sel_hi:[1,1,1]' % (v(E3 + i, 2), v(E3 + i, 2), v(E3 + i, 2), v(K3, 2)) for i in r2]
            tail += ['v_rcp_f32 %s, %s' % (v(E3 + i), v(E3 + i)) for i in r1]
            tail += ['v_pk_fma_f32 %s, %s, %s, %s neg_lo:[1,0,0] neg_hi:[1,0,0]' % (v(A3 + i, 2), v(E3 + i, 2), v(A3 + i, 2), v(A3 + i, 2)) for i in r2]
            tail += ['v_cvt_pk_bf16_f32 %s, %s, %s' % (v(PKS[1] + i // 2), v(A3 + i), v(A3 + i + 1)) for i in r2]
    else:
        tail = [x for m in range(128 - M0, 134) for x in elem_ops(m)]
        n2_ = sum(len(elem_ops(m)) for m in range(128 - M0, 100))
    mid = cfg.get('mid', 0)
    h0, h2, h1 = cfg.get('tail', [0, n2_ - 4, n2_])
    ev = {}
    def pd():
        R(WaitVM('act1'))
        a('s_barrier')
        arrive(3)
        a.stamp('pushD', 2)
    def cd():
        check_done(3, 14, vCK, 3)
        a('s_barrier')
        a.stamp('gotD')
    if kd >= 128:
        ev.setdefault(h0, []).append(pd)
    ev.setdefault(h2, []).append(check_issue(3, vCK, 3))
    if mid:
        ev.setdefault(h1, []).append(cd)
        left = len(tail) - h1
        for k in range(mid):
            ev.setdefault(h1 + (k // 2) * 2 * left // max(mid, 1), []).append(bload(k))
    else:
        assert h1 >= n2_
        ev.setdefault(h1, []).append(act_store(2))
    for k in range(len(tail) + 1):
        R(ev.pop(k, []))
        if k < len(tail):
            R(tail[k])
    assert not ev
    if mid:
        for n in range(mid, cfg.get('mid2', mid)):
            R(bload(n))
        R(act_store(2))
    R(act_store(3))
    a.stamp('mish', 2)
    if not mid:
        cd()
    for n in range(max(mid, cfg.get('mid2', mid)), PRE):
        R(bload(n))
    ke = cfg.get('pushe', -1 if not mid else mid - 1)
    def pe():
        R(WaitVM('act3'))
        a('s_barrier')
        lab = a.uniq('L_noe')
        a('s_cmp_ge_u32 s%d, 14' % sJ)
        a('s_cbranch_scc1 %s' % lab)
        arrive(4)
        a.label(lab)
        a.stamp('pushE', 2)
    if ke < 0:
        pe()
    join = (a.vmn, a.dsn)
    a('s_branch L_p5')
    a.label('L_idle')
    saved = dict(a.marks)
    if (cfg.get('lo', 0) or cfg.get('lh', 0)) and cfg.get('wb', 1):
        lab = a.uniq('L_nowb')
        a('s_cmp_lg_u32 s%d, 14' % sJ)
        a('s_cbranch_scc1 %s' % lab)
        poll(2, 16)
        a('s_cmp_lg_u32 s%d, 0' % sW)
        a('s_cbranch_scc1 %s' % lab)
        for _ in range(cfg.get('wbdelay', 0)):
            a('s_sleep 8')
        a('buffer_wbl2 sc1')
        a.label(lab)
    R(tables())
    a('s_waitcnt vmcnt(0)')
    a('s_barrier')
    if LATE2:
        R(w2_park(1))
        a('s_waitcnt lgkmcnt(0)')
        R(w2_dma(2))
        a('s_waitcnt vmcnt(0)')
    R(w2_park(2))
    a('s_waitcnt lgkmcnt(0)')
    for q in range(3, 7):
        R(w2_dma(q))
    poll(3, 14, 3)
    a('s_barrier')
    for n in range(PRE):
        R(bload(n))
    a.vmn, a.dsn = join
    a.marks = saved
    a.label('L_p5')

    ACC = 32
    def areads(ks):
        n, a_ = ks >> 1, ks & 1
        q, h = n >> 1, n & 1
        if q < 3:
            return []
        return w2_read(q, h, a_, 0) + w2_read(q, h, a_, 1)
    vRW, vRR, vOS = vWR, vS + 2, vS + 3
    pre = ['v_lshrrev_b32 %s, 5, %s' % (v(vT), v(vL)), 'v_lshlrev_b32 %s, 6, %s' % (v(vT), v(vT)),
           'v_xor_b32 %s, %s, %s' % (v(vT), v(vT), v(vFR)),
           's_mul_i32 s%d, s%d, %d' % (sT2, sKH, 4096 + 128), 's_add_u32 s%d, s%d, s%d' % (sT2, sT2, sLW2),
           'v_xor_b32 %s, s%d, %s' % (v(vRW), sT2, v(vT)), 'v_xor_b32 %s, 32, %s' % (v(vRW + 1), v(vRW)),
           'v_xor_b32 %s, %d, %s' % (v(vRW + 2), 4096 + 128, v(vRW)), 'v_xor_b32 %s, %d, %s' % (v(vRW + 3), 4096 + 128 + 32, v(vRW))]
    pre2 = ['s_lshl_b32 s%d, s%d, 3' % (sT2, sW), 'v_lshrrev_b32 %s, 3, %s' % (v(vT), v(vL)),
            'v_add_u32 %s, s%d, %s' % (v(vT), sT2, v(vT)),
            'v_and_b32 %s, 7, %s' % (v(vT + 1), v(vL)),
            'v_lshlrev_b32 %s, 4, %s' % (v(vOS), v(vT + 1)), 'v_lshl_add_u32 %s, %s, 10, %s' % (v(vOS), v(vT), v(vOS)),
            'v_lshlrev_b32 %s, 1, %s' % (v(vT + 2), v(vT + 1)), 'v_xor_b32 %s, %s, %s' % (v(vT), v(vT), v(vT + 2)),
            'v_lshlrev_b32 %s, 4, %s' % (v(vRR), v(vT)),
            'v_bfe_u32 %s, %s, 1, 1' % (v(vT + 2), v(vL)), 'v_lshl_add_u32 %s, %s, 9, %s' % (v(vRR), v(vT + 2), v(vRR)),
            'v_and_b32 %s, 1, %s' % (v(vT + 2), v(vL)), 'v_lshl_add_u32 %s, %s, 11, %s' % (v(vRR), v(vT + 2), v(vRR)),
            'v_bfe_u32 %s, %s, 2, 1' % (v(vT + 2), v(vL)), 'v_lshl_add_u32 %s, %s, 12, %s' % (v(vRR), v(vT + 2), v(vRR)),
            's_lshl_b32 s%d, s%d, 16' % (sT2, sTT), 's_lshl_b32 s%d, s%d, 6' % (sT3, sKH),
            's_add_u32 s%d, s%d, s%d' % (sT2, sT2, sT3), 's_sub_u32 s%d, s%d, s%d' % (sOUT, sOUT, sT2)]
    def red_writes(t):
        return ['ds_write_b128 %s, %s offset:%d' % (v(vRW + 2 * rc + (q >> 1)), v(ACC + 16 * (2 * t + rc) + 4 * q, 4), t * 32768 + q * 1024)
                for rc in (1, 0) for q in range(4)]
    HU = vWB + 16
    unpack = []
    for i in range(8):
        unpack.append('v_lshlrev_b32 %s, 16, %s' % (v(HU + 2 * i), v(HP + i)))
        unpack.append('v_and_b32 %s, 0xffff0000, %s' % (v(HU + 2 * i + 1), v(HP + i)))
    sM0, sM1 = sT0, sT1
    res0 = ['v_fma_f32 %s, %s, s%d, %s' % (v(ACC + i), v(HU + i), sM0, v(ACC + i)) for i in range(16)]
    res1 = ['v_mul_f32 %s, s%d, %s' % (v(ACC + 32 + i), sM1, v(HU + i)) for i in range(16)]
    def red_reads(t, dst):
        return ['ds_read_b128 %s, %s offset:%d' % (v(dst + 8 * src + 4 * e, 4), v(vRR), t * 32768 + src * 8192 + e * 1024)
                for src in range(4) for e in range(2)]
    def red_sum(t, dst):
        o = ['v_add_f32 %s, %s, %s' % (v(dst + i), v(dst + i), v(dst + 8 + i)) for i in range(8)]
        o += ['v_add_f32 %s, %s, %s' % (v(dst + 16 + i), v(dst + 16 + i), v(dst + 24 + i)) for i in range(8)]
        o += ['v_add_f32 %s, %s, %s' % (v(dst + i), v(dst + i), v(dst + 16 + i)) for i in range(8)]
        o += ['v_mul_f32 %s, s%d, %s' % (v(dst + i), sLN2, v(dst + i)) for i in range(8)]
        o += ['v_cvt_pk_bf16_f32 %s, %s, %s' % (v(dst + 8 + i), v(dst + 2 * i), v(dst + 2 * i + 1)) for i in range(4)]
        o += ['buffer_store_dwordx4 %s, %s, %s, s%d offen %s' % (v(dst + 8, 4), v(vOS), sr(S_OUT), sOUT, cfg.get('outf', 'sc1'))]
        if t == 0:
            o.append('s_add_u32 s%d, s%d, 65536' % (sOUT, sOUT))
        return o
    a('s_cmp_eq_u32 s%d, 0' % sTT)
    a('s_cselect_b32 s%d, 0x%x, 0' % (sM0, LOG2E))
    a('s_cselect_b32 s%d, 0, 0x%x' % (sM1, LOG2E))
    ALA = 3
    sched = {}
    def put(n0, items, per):
        for k in range(0, len(items), per):
            sched.setdefault(n0 + k // per, []).extend(items[k:k + per])
    put(1, pre, 5)
    put(3, unpack, 4)
    put(28, pre2, 7)
    rw = red_writes(0)
    put(30, rw[:4], 2)
    put(7, res1, 8)
    put(31, res0, 8)
    put(33, rw[4:], 2)
    put(38, red_reads(0, ACC), 4)
    put(41, red_sum(0, ACC), 8)
    order5 = [(n, rc) for n in range(56) for rc in range(2)]
    nl = cfg.get('lastsplit', 6)
    if nl:
        order5 = order5[:-2 * nl] + [(n, 1) for n in range(56 - nl, 56)] + [(n, 0) for n in range(56 - nl, 56)]
    rw1 = red_writes(1)
    for n in range(56):
        t, ks = n // 28, n % 28
        side = []
        if t == 0 and ks + ALA < 28:
            side += areads(ks + ALA)
        if n == 28 - PRE - 3:
            R(check_issue(4, vCK, 3))
        if n == 28 - PRE:
            check_done(4, 14, vCK, 3)
            a('s_barrier')
            a.stamp('gotE', 2)
        if n == 38:
            a('s_waitcnt lgkmcnt(0)')
            a('s_barrier')
        if n + PRE < 56:
            side += bload(n + PRE)
        side += sched.pop(n, [])
        mm = []
        for n_, rc in order5[2 * n:2 * n + 2]:
            t_, ks_ = n_ // 28, n_ % 28
            acc = v(ACC + 16 * (2 * t_ + rc), 16)
            mm.append([mfma32(acc, ac(w2reg(ks_, rc), 4), v(X + 4 * (n_ % 32), 4), '0' if (ks_ == 0 and (t_, rc) != (1, 0)) else acc)])
        if nl and n == 55:
            side += rw1[:4]
        a.fill(mm, side)
        if n == ke:
            pe()
    assert not sched
    a.stamp('p5mf')
    R(rw1[4:] if nl else rw1)
    a('s_waitcnt lgkmcnt(0)')
    a('s_barrier')
    a.stamp('B12', 2)
    R(red_reads(1, ACC))
    R(red_sum(1, ACC))
    if cfg.get('stamps'):
        a('s_waitcnt vmcnt(0)')
        a.stamp('end')
        assert a.nstamp <= 64
        a('s_cmp_lg_u32 s%d, %d' % (sW, cfg.get('swave', 0)))
        a('s_cbranch_scc1 L_end')
        if 'dirty' in cfg:
            a('s_lshl_b32 s%d, s2, 16' % sT0)
            a('s_add_u32 s%d, s%d, 0x2000000' % (sT0, sT0))
            for n in range(cfg['dirty']):
                a('buffer_store_dwordx4 %s, %s, %s, s%d offen %s' % (v(X, 4), v(vFR), sr(S_WS), sT0, cfg.get('dirtyf', '')))
                a('s_add_u32 s%d, s%d, 1024' % (sT0, sT0))
            a('s_waitcnt vmcnt(0)')
        if 'probe' in cfg:
            a('v_readlane_b32 s%d, v4, %d' % (sT0, cfg['probe']))
            a('v_readlane_b32 s%d, v4, 0' % sT2)
            a('s_sub_u32 s%d, s%d, s%d' % (sT0, sT0, sT2))
            a('s_cmp_ge_u32 s%d, 14' % sJ)
            a('s_cselect_b32 s%d, 0, s%d' % (sT0, sT0))
            a('s_min_u32 s%d, s%d, 10000' % (sT0, sT0))
            a('s_lshl_b32 s%d, s%d, 2' % (sT0, sT0))
            a('s_add_u32 s%d, s%d, 10000' % (sT0, sT0))
            a.label('L_probe')
            a('s_memrealtime s[%d:%d]' % (S_ST, S_ST + 1))
            a('s_waitcnt lgkmcnt(0)')
            a('s_sub_u32 s%d, s%d, s%d' % (sT1, S_ST, sT2))
            a('s_cmp_lt_u32 s%d, s%d' % (sT1, sT0))
            a('s_cbranch_scc1 L_probe')
        a('s_lshl_b32 s%d, s2, 8' % sT0)
        a('s_add_u32 s%d, s%d, 0x%x' % (sT0, sT0, STAMP))
        a('buffer_store_dword v4, %s, %s, s%d offen' % (v(vL4), sr(S_WS), sT0))
    a.label('L_end')
    a('s_endpgm')
    return finalize(a), a.names


HEADER = open('header.txt').read().rstrip('\n').split('\n')


def build(cfg, path):
    body, names = gen(cfg)
    k = kernel_text(NAME + '_kernel', body, vgprs=512, accum=256, sgprs=102)
    hdr = HEADER + ['; @launch grid=(256,1,1) block=(256,1,1) lds=163840']
    if names:
        hdr.append('; stamps: ' + ' '.join(names))
        if cfg.get('cyc'):
            hdr.append('; cycle stamps')
    open(path, 'w').write(module_text(hdr, [k]))


if __name__ == '__main__':
    build(json.loads(sys.argv[2]) if len(sys.argv) > 2 else {}, sys.argv[1])
```

```python
import sys, struct, json, math, re
sys.path.insert(0, 'gen')
from asmlib import *
from common import *

FL, KVP, ST, O_, H_, ACT, STAMP = 0x0, 0x40000, 0x100000, 0x200000, 0x400000, 0x600000, 0x8000000
KVREC = 2304
EPOCH = FL + 7 * 32768
XB = 0xE00000
R0, R1, R2 = 0, 65536, 131072
L_XS, L_WQ = R1, R2
L_PHI, L_V, L_CSX, L_CSQ = 0, 16384, 24576, 28672
L_WO = R1
L_KVB = R2 + 16384
L_BX = 3 * 32768
L_WPHI = L_WQ + 31 * 1024
LOG2E = 0x3fb8aa3b
ONES = 0x3f803f80
SPIN = 400000

S_X, S_WQKV, S_WPHI, S_WO, S_W1, S_B1, S_W2, S_OUT, S_DBG, S_WS = 4, 8, 12, 16, 20, 24, 28, 32, 36, 40
(sI, sJ, sW, sC, sCX, sCW, sT0, sT1, sT2, sT3, sONES, sSEL0, sSEL1, sLDSX, sLDSW, sCNT, sXCD, sP, sMSK, sMSK1) = range(44, 64)
S_PTR = 64
(sREC, sGAT, sFA, sFB, sFP, sOST, sOLD, sHST, sSST, sOUT, sHL0, sHL1, sSLD, sAST, sALD, sCO, sC1, sC2, sC5, sR3) = range(64, 84)
sLW2, sT4, sT5, sKH, sTT, sLW1, sRS, sLN2 = 86, 87, 88, 89, 90, 91, 3, 84
sFME, sLOC, sXID = 85, sXCD, sCX
sTAG = S_DBG
S_TMP = 92
S_ST = 96
A_STASH = 224


def v(i, n=1):
    return 'v%d' % i if n == 1 else 'v[%d:%d]' % (i, i + n - 1)


def ac(i, n=1):
    return 'a%d' % i if n == 1 else 'a[%d:%d]' % (i, i + n - 1)


def sr(i):
    return 's[%d:%d]' % (i, i + 3)


def fbits(x):
    return struct.unpack('<I', struct.pack('<f', x))[0]


class Mark:
    def __init__(self, name):
        self.name = name


class WaitVM:
    def __init__(self, name):
        self.name = name


class WaitDS:
    def __init__(self, name):
        self.name = name


def cost(x):
    if isinstance(x, Mark):
        return 0
    if isinstance(x, (WaitVM, WaitDS)):
        return 1
    if isinstance(x, (list, tuple)):
        return sum(cost(y) for y in x)
    if callable(x):
        return getattr(x, 'cost', 4)
    mn = x.split()[0]
    if mn.startswith('v_mfma'):
        return 0
    if mn.startswith(TRANS) or mn.startswith('v_permlane'):
        return 2
    return 1


def flat(x):
    if isinstance(x, (list, tuple)):
        return [z for y in x for z in flat(y)]
    return [x]


class K(Asm):
    def __init__(self, cfg):
        super().__init__()
        self.cfg = cfg
        self.vmn = 0
        self.dsn = 0
        self.marks = {}
        self.nstamp = 0
        self.names = []
        self.stash_slots = {}

    def run(self, x):
        if isinstance(x, Mark):
            self.marks[x.name] = (self.vmn, self.dsn)
        elif isinstance(x, WaitVM):
            self('s_waitcnt vmcnt(%d)' % min(63, self.vmn - self.marks[x.name][0]))
        elif isinstance(x, WaitDS):
            self('s_waitcnt lgkmcnt(%d)' % min(15, self.dsn - self.marks[x.name][1]))
        elif isinstance(x, (list, tuple)):
            for y in x:
                self.run(y)
        elif callable(x):
            x()
        else:
            for key in self.cfg.get('skip', []):
                if x.startswith('buffer_load') and key in x:
                    return
            for key in self.cfg.get('skipre', []):
                if re.search(key, x):
                    return
            self(x)
            if x.startswith(('buffer_', 'global_')):
                self.vmn += 1
            elif x.startswith('ds_'):
                self.dsn += 1

    def gap(self, items):
        front, back, wr, rd = [], [], set(), set()
        blocked = False
        for x in items:
            fl = flat(x)
            strs = [Ins(y) for y in fl if isinstance(y, str)]
            is_valu = any(i.cls == 'valu' for i in strs)
            opaque = any(callable(y) for y in fl)
            r_ = set().union(*[i.reads for i in strs]) if strs else set()
            w_ = set().union(*[i.writes for i in strs]) if strs else set()
            dep = bool(r_ & wr) or bool(w_ & (wr | rd))
            if is_valu or opaque or dep or blocked:
                back.append(x)
                wr |= w_
                rd |= r_
                if not is_valu:
                    blocked = True
            else:
                front.append(x)
        self.run(front)
        self.run(back)

    def fill(self, mains, side, first=0, last=None, post=None):
        n = len(mains)
        post = post or [[] for _ in mains]
        last = n - 1 if last is None else min(last, n - 1)
        span = last - first + 1
        extra = [(cost(mains[i + 1]) if i + 1 < n else 0) + cost(post[i]) for i in range(n)]
        total = sum(cost(x) for x in side) + sum(extra[first:last + 1])
        done, used = 0, 0.0
        for i, g in enumerate(mains):
            self.run(g)
            items = list(post[i])
            if first <= i <= last:
                used += extra[i]
                target = total * (i - first + 1) / span
                while done < len(side) and (used + cost(side[done]) / 2.0 <= target or i == last):
                    items.append(side[done])
                    used += cost(side[done])
                    done += 1
            self.gap(items)
        self.run(side[done:])

    def stamp(self, name='', level=1):
        only = self.cfg.get('only')
        if self.cfg.get('stamps', 0) >= level and (only is None or name in only or name == 'end'):
            n = self.nstamp
            self.nstamp += 1
            self.names.append(name)
            self('s_memrealtime s[%d:%d]' % (S_ST, S_ST + 1))
            if self.cfg.get('cyc'):
                assert n < 32
                self('s_memtime s[%d:%d]' % (S_ST + 2, S_ST + 3))
            self('s_waitcnt lgkmcnt(0)')
            self('v_writelane_b32 v4, s%d, %d' % (S_ST, n))
            if self.cfg.get('cyc'):
                self('v_writelane_b32 v4, s%d, %d' % (S_ST + 2, 32 + n))

    def stamper(self, name, level=2):
        f = lambda: self.stamp(name, level)
        f.cost = 0
        return f

    def stash(self, name, reg):
        slot = A_STASH + 8 + len(self.stash_slots)
        assert slot < 256
        self.stash_slots[name] = slot
        self('v_accvgpr_write_b32 %s, %s' % (ac(slot), v(reg)))

    def unstash(self, name, reg):
        return 'v_accvgpr_read_b32 %s, %s' % (v(reg), ac(self.stash_slots[name]))


def mfma32(d, a_, b, c):
    return 'v_mfma_f32_32x32x16_bf16 %s, %s, %s, %s' % (d, a_, b, c)


def mfma16(d, a_, b, c):
    return 'v_mfma_f32_16x16x32_bf16 %s, %s, %s, %s' % (d, a_, b, c)


def merge(*lists):
    lists = [l for l in lists if l]
    tot = [max(1, cost(l)) for l in lists]
    idx = [0] * len(lists)
    used = [0] * len(lists)
    out = []
    while any(idx[k] < len(l) for k, l in enumerate(lists)):
        best = min((used[k] / tot[k], k) for k, l in enumerate(lists) if idx[k] < len(l))[1]
        x = lists[best][idx[best]]
        out.append(x)
        used[best] += cost(x)
        idx[best] += 1
    return out


def split_hl(src, hi_f, lo_f, tmp):
    return ['v_cvt_pk_bf16_f32 %s, %s, %s' % (v(tmp), v(src), v(src)),
            'v_and_b32 %s, 0xffff0000, %s' % (v(hi_f), v(tmp)),
            'v_sub_f32 %s, %s, %s' % (v(lo_f), v(src), v(hi_f))]


def ln_ops(s1, s2, mean, rstd):
    return ['v_mul_f32 %s, 0x3b000000, %s' % (v(mean), v(s1)),
            'v_mul_f32 %s, 0x3b000000, %s' % (v(s2), v(s2)),
            'v_fma_f32 %s, -%s, %s, %s' % (v(s2), v(mean), v(mean), v(s2)),
            'v_max_f32 %s, 0, %s' % (v(s2), v(s2)),
            'v_add_f32 %s, 0x3727c5ac, %s' % (v(s2), v(s2)),
            'v_rsq_f32 %s, %s' % (v(rstd), v(s2))]


def softmax_ops(P, E, OUT, c, t):
    o = []
    mx, mn, sp, sn = t, t + 2, t + 4, t + 6
    o.append('v_max3_f32 %s, %s, %s, %s' % (v(mx), v(P), v(P + 1), v(P + 2)))
    o.append('v_min3_f32 %s, %s, %s, %s' % (v(mn), v(P), v(P + 1), v(P + 2)))
    o.append('v_max3_f32 %s, %s, %s, %s' % (v(mx + 1), v(P + 3), v(P + 4), v(P + 5)))
    o.append('v_min3_f32 %s, %s, %s, %s' % (v(mn + 1), v(P + 3), v(P + 4), v(P + 5)))
    for n, i in enumerate(range(6, 14, 2)):
        o.append('v_max3_f32 %s, %s, %s, %s' % (v(mx + n % 2), v(mx + n % 2), v(P + i), v(P + i + 1)))
        o.append('v_min3_f32 %s, %s, %s, %s' % (v(mn + n % 2), v(mn + n % 2), v(P + i), v(P + i + 1)))
    o.append('v_max3_f32 %s, %s, %s, %s' % (v(mx), v(mx), v(P + 14), v(P + 15)))
    o.append('v_min3_f32 %s, %s, %s, %s' % (v(mn), v(mn), v(P + 14), v(P + 15)))
    o.append('v_max_f32 %s, %s, %s' % (v(mx), v(mx), v(mx + 1)))
    o.append('v_min_f32 %s, %s, %s' % (v(mn), v(mn), v(mn + 1)))
    o.append('v_mul_f32 %s, %s, %s' % (v(mx), v(mx), v(c + 1)))
    o.append('v_mul_f32 %s, %s, %s' % (v(mn), v(mn), v(c)))
    for i in range(0, 16, 2):
        o.append('v_pk_fma_f32 %s, %s, %s, %s op_sel_hi:[1,0,0]' % (v(E + i, 2), v(P + i, 2), v(c, 2), v(mx, 2)))
        o.append('v_pk_fma_f32 %s, %s, %s, %s op_sel:[0,1,0] op_sel_hi:[1,1,0]' % (v(E + 16 + i, 2), v(P + i, 2), v(c, 2), v(mn, 2)))
    for i in range(32):
        o.append('v_exp_f32 %s, %s' % (v(E + i), v(E + i)))
    o.append('v_pk_add_f32 %s, %s, %s' % (v(sp, 2), v(E, 2), v(E + 2, 2)))
    o.append('v_pk_add_f32 %s, %s, %s' % (v(sn, 2), v(E + 16, 2), v(E + 18, 2)))
    for i in range(4, 16, 2):
        o.append('v_pk_add_f32 %s, %s, %s' % (v(sp, 2), v(sp, 2), v(E + i, 2)))
        o.append('v_pk_add_f32 %s, %s, %s' % (v(sn, 2), v(sn, 2), v(E + 16 + i, 2)))
    o.append('v_add_f32 %s, %s, %s' % (v(sp), v(sp), v(sp + 1)))
    o.append('v_add_f32 %s, %s, %s' % (v(sn), v(sn), v(sn + 1)))
    o.append('v_rcp_f32 %s, %s' % (v(sp), v(sp)))
    o.append('v_rcp_f32 %s, %s' % (v(sn), v(sn)))
    for half, sm in ((0, sp), (16, sn)):
        for i in range(0, 16, 2):
            o.append('v_pk_mul_f32 %s, %s, %s op_sel_hi:[1,0]' % (v(E + half + i, 2), v(E + half + i, 2), v(sm, 2)))
        for i in range(0, 16, 2):
            o.append('v_cvt_pk_bf16_f32 %s, %s, %s' % (v(OUT + (half + i) // 2), v(E + half + i), v(E + half + i + 1)))
    return o


def gen(cfg):
    a = K(cfg)
    R = a.run
    SC = 'sc1'
    D = cfg.get('depth', 3)
    vL, vFR, vL4, vOUT = 1, 2, 3, 5
    vXD, vWD, vWQD, vXR, vWR = 6, 10, 11, 12, 16
    vA = 20
    vT = 28
    aK, aV, aQ = 32, 48, 64
    vWB = 80
    vS = 112
    X = 128
    s1a, s1b, s2a, s2b, csk, csv, csq, mean, rstd, vONE, cexp, ncexp = range(vS, vS + 12)
    vBX = vS + 12
    PA1, PA2 = A_STASH, A_STASH + 4
    vL128, vRB = vWD, vWQD
    vHH, vTRN = aK, aK + 1

    def vx(dst, terms, sadd=None, const=0, tmp=vT + 3):
        first = True
        for src, lo, n, mul in terms:
            if n:
                a('v_bfe_u32 %s, %s, %d, %d' % (v(tmp), v(src), lo, n))
                s_ = tmp
            elif lo:
                a('v_lshrrev_b32 %s, %d, %s' % (v(tmp), lo, v(src)))
                s_ = tmp
            else:
                s_ = src
            pw = mul & (mul - 1) == 0
            if first:
                if pw:
                    a('v_lshlrev_b32 %s, %d, %s' % (v(dst), mul.bit_length() - 1, v(s_)))
                else:
                    a('v_mul_u32_u24 %s, %d, %s' % (v(dst), mul, v(s_)))
                first = False
            elif pw:
                a('v_lshl_add_u32 %s, %s, %d, %s' % (v(dst), v(s_), mul.bit_length() - 1, v(dst)))
            else:
                a('v_mul_u32_u24 %s, %d, %s' % (v(tmp), mul, v(s_)))
                a('v_add_u32 %s, %s, %s' % (v(dst), v(tmp), v(dst)))
        if sadd is not None:
            a('v_add_u32 %s, s%d, %s' % (v(dst), sadd, v(dst)))
        if const:
            a('v_add_u32 %s, %d, %s' % (v(dst), const, v(dst)))

    def sx(dst, terms, const=0, tmp=sT5):
        first = True
        for src, mul in terms:
            tgt = dst if first else tmp
            if mul == 1:
                if first:
                    a('s_mov_b32 s%d, s%d' % (dst, src))
                else:
                    a('s_add_u32 s%d, s%d, s%d' % (dst, dst, src))
                first = False
                continue
            if mul & (mul - 1) == 0:
                a('s_lshl_b32 s%d, s%d, %d' % (tgt, src, mul.bit_length() - 1))
            else:
                a('s_mul_i32 s%d, s%d, %d' % (tgt, src, mul))
            if not first:
                a('s_add_u32 s%d, s%d, s%d' % (dst, dst, tmp))
            first = False
        if const:
            a('s_add_u32 s%d, s%d, %d' % (dst, dst, const))

    def step(sreg, inc, period):
        if period & (period - 1) == 0:
            return ['s_add_u32 s%d, s%d, %d' % (sreg, sreg, inc), 's_and_b32 s%d, s%d, %d' % (sreg, sreg, period - 1)]
        return ['s_add_u32 s%d, s%d, %d' % (sreg, sreg, inc),
                ['s_cmp_eq_u32 s%d, %d' % (sreg, period), 's_cmov_b32 s%d, 0' % sreg]]

    def push_flags(sbase, add, vaddr):
        lab = a.uniq('L_nopush')
        a('s_cmp_lg_u32 s%d, 0' % sW)
        a('s_cbranch_scc1 %s' % lab)
        a('s_add_u32 s%d, s%d, %d' % (sT5, sbase, add))
        a('s_mov_b64 exec, 0xffff')
        a('buffer_store_dword %s, %s, %s, s%d offen sc1' % (v(vONE), v(vaddr), sr(S_WS), sT5))
        a('s_mov_b64 exec, -1')
        a.label(lab)

    def arrive(sync, line=0):
        lab = a.uniq('L_noarr')
        a('s_cmp_lg_u32 s%d, 0' % sW)
        a('s_cbranch_scc1 %s' % lab)
        a('s_add_u32 s%d, s%d, %d' % (sT5, sFME, sync * 32768 + line * 128))
        a('s_mov_b64 exec, 1')
        a('s_cmp_lg_u32 s%d, 0' % sLOC)
        a('s_cbranch_scc1 %s_l' % lab)
        a('buffer_store_dword %s, %s, %s, s%d offen sc1' % (v(vONE), v(vL4), sr(S_WS), sT5))
        a('s_branch %s_e' % lab)
        a.label(lab + '_l')
        a('buffer_store_dword %s, %s, %s, s%d offen' % (v(vONE), v(vL4), sr(S_WS), sT5))
        a.label(lab + '_e')
        a('s_mov_b64 exec, -1')
        a.label(lab)

    def not_ready(reg, sync):
        if sync == 5:
            a('v_subrev_u32 %s, s%d, %s' % (v(reg), sTAG, v(reg)))
            a('v_cmp_le_u32 vcc, 16, %s' % v(reg))
        else:
            a('v_cmp_ne_u32 vcc, s%d, %s' % (sTAG, v(reg)))

    def spin(lp, reg, srd_, soff, sync):
        a.label(lp)
        a('buffer_load_dword %s, %s, %s, %s offen sc1' % (v(reg), v(vL4), sr(srd_), soff))
        a('s_add_u32 s%d, s%d, 1' % (sCNT, sCNT))
        a('s_cmp_gt_u32 s%d, %d' % (sCNT, SPIN))
        a('s_cbranch_scc1 %s_y' % lp)
        a('s_waitcnt vmcnt(0)')
        not_ready(reg, sync)
        a('s_cbranch_vccnz %s' % lp)
        a.label(lp + '_y')
        a('s_waitcnt vmcnt(0)')

    def flag_addr(sync):
        if isinstance(sync, tuple):
            return 's_add_u32 s%d, s%d, %d' % (sT5, sync[2] if len(sync) > 2 else sFB, sync[0] * 32768 + sync[1] * 128)
        return 's_add_u32 s%d, s%d, %d' % (sT5, sFP if sync == 0 else sFB, sync * 32768)

    def poll(sync, n, wave=0):
        lab = a.uniq('L_nopoll')
        a('s_cmp_lg_u32 s%d, %d' % (sW, wave))
        a('s_cbranch_scc1 %s' % lab)
        a(flag_addr(sync))
        a('s_mov_b64 exec, 0x%x' % ((1 << n) - 1))
        spin(a.uniq('L_poll'), vT + 3, S_WS, 's%d' % sT5, sync)
        a('s_mov_b64 exec, -1')
        a.label(lab)

    def check_issue(sync, reg, wave):
        def f():
            lab = a.uniq('L_noci')
            if wave is not None:
                a('s_cmp_lg_u32 s%d, %d' % (sW, wave))
                a('s_cbranch_scc1 %s' % lab)
            a(flag_addr(sync))
            a('s_mov_b64 exec, 0xffff')
            a('buffer_load_dword %s, %s, %s, s%d offen sc1' % (v(reg), v(vL4), sr(S_WS), sT5))
            a('s_mov_b64 exec, -1')
            a.label(lab)
        f.cost = 3
        return f

    def check_done(sync, n, reg, wave):
        lp = a.uniq('L_chk')
        if wave is not None:
            a('s_cmp_lg_u32 s%d, %d' % (sW, wave))
            a('s_cbranch_scc1 %s_z' % lp)
        a('s_mov_b64 exec, 0x%x' % ((1 << n) - 1))
        not_ready(reg, sync)
        a('s_cbranch_vccz %s_x' % lp)
        a(flag_addr(sync))
        spin(lp, reg, S_WS, 's%d' % sT5, sync)
        a.label(lp + '_x')
        if sync == 5:
            a('v_cmp_ne_u32 vcc, s%d, %s' % (sXID, v(reg)))
            a('s_cmp_eq_u64 vcc, 0')
            a('s_cselect_b32 s%d, %d, 0' % (sLOC, 1 if cfg.get('local', 1) else 0))
        a('s_mov_b64 exec, -1')
        a.label(lp + '_z')

    def code_touch(nl, wave, dst):
        lab = a.uniq('L_ct')
        a('s_cmp_lg_u32 s%d, %d' % (sW, wave))
        a('s_cbranch_scc1 %s_e' % lab)
        a('s_getpc_b64 s[%d:%d]' % (S_TMP, S_TMP + 1))
        a.label(lab)
        a('s_lshr_b32 s%d, s2, 3' % sT5)
        a('s_mul_i32 s%d, s%d, %d' % (sT5, sT5, nl * 128))
        a('v_lshl_add_u32 %s, %s, 7, s%d' % (v(dst), v(vL), sT5))
        a('v_min_u32 %s, L_end-%s, %s' % (v(dst), lab, v(dst)))
        a('s_mov_b64 exec, 0x%x' % ((1 << nl) - 1))
        a('global_load_dword %s, %s, s[%d:%d]' % (v(dst), v(dst), S_TMP, S_TMP + 1))
        a('s_mov_b64 exec, -1')
        a.label(lab + '_e')

    def dual(stores, on):
        if not on:
            R([x + ' sc1' for x in stores])
            return
        lab = a.uniq('L_dual')
        a('s_cmp_lg_u32 s%d, 0' % sLOC)
        a('s_cbranch_scc1 %s_l' % lab)
        for x in stores:
            a(x + ' sc1')
        a('s_branch %s_e' % lab)
        a.label(lab + '_l')
        R(stores)
        a.label(lab + '_e')

    def pretouch(soff, nl, dst):
        return [['s_mov_b64 exec, 0x%x' % ((1 << nl) - 1),
                 'buffer_load_dword %s, %s, %s, s%d offen sc1' % (v(dst), v(vL128), sr(S_WS), soff), 's_mov_b64 exec, -1']]

    def readback(soff, nl, dst, extra=None):
        o = ['s_mov_b64 exec, 0x%x' % ((1 << nl) - 1),
             'buffer_load_dword %s, %s, %s, s%d offen sc1' % (v(dst), v(vL128), sr(S_WS), soff)]
        if extra is not None:
            o += ['s_mov_b64 exec, 3', 'buffer_load_dword %s, %s, %s, s%d offen sc1' % (v(dst), v(vL128), sr(S_WS), extra)]
        return [o + ['s_mov_b64 exec, -1']]

    a('s_cmp_ge_u32 s2, 256')
    a('s_cbranch_scc1 L_end')
    if cfg.get('stamps'):
        a('s_memrealtime s[100:101]')
        a('s_memtime s[98:99]')
    a('s_load_dwordx16 s[%d:%d], s[0:1], 0' % (S_PTR, S_PTR + 15))
    a('s_load_dwordx4 s[%d:%d], s[0:1], 64' % (S_PTR + 16, S_PTR + 19))
    a('s_load_dwordx2 s[%d:%d], s[0:1], 80' % (S_PTR + 20, S_PTR + 21))
    a('s_getpc_b64 s[%d:%d]' % (sT2, sT2 + 1))
    a.label('L_pc')
    a('s_lshr_b32 s%d, s2, 3' % sT0)
    a('v_lshrrev_b32 %s, 6, v0' % v(vT))
    a('v_and_b32 %s, 63, v0' % v(vL))
    a('v_readfirstlane_b32 s%d, %s' % (sW, v(vT)))
    ncl = cfg.get('code_lines', 9)
    if ncl:
        a('s_mul_i32 s%d, s%d, %d' % (sT1, sT0, ncl * 128))
        a('v_lshl_add_u32 %s, v0, 7, s%d' % (v(vT + 1), sT1))
        a('v_min_u32 %s, L_end-L_pc, %s' % (v(vT + 1), v(vT + 1)))
        a('v_cmp_gt_u32 vcc, %d, v0' % ncl)
        a('s_and_saveexec_b64 s[%d:%d], vcc' % (sMSK, sMSK1))
        a('s_cbranch_execz L_nocp')
        a('global_load_dword %s, %s, s[%d:%d]' % (v(255), v(vT + 1), sT2, sT2 + 1))
        a.label('L_nocp')
        a('s_mov_b64 exec, -1')
    a('s_and_b32 s%d, s2, 7' % sXCD)
    a('s_and_b32 s%d, s%d, 15' % (sJ, sT0))
    a('s_lshr_b32 s%d, s%d, 4' % (sT2, sT0))
    sx(sI, [(sXCD, 2), (sT2, 1)])
    a('s_and_b32 s%d, s%d, 1' % (sT3, sJ))
    a('s_lshr_b32 s%d, s%d, 1' % (sT1, sJ))
    a('s_and_b32 s%d, s%d, 1' % (sT0, sXCD))
    if cfg.get('halfrot', 0):
        sx(sT4, [(sT2, 4), (sT3, 2), (sT1, 2)])
    else:
        sx(sT4, [(sT2, 4), (sT3, 2), (sT1, 1), (sT0, 1)])
    a('s_and_b32 s%d, s%d, 7' % (sT4, sT4))
    a('s_lshl_b32 s%d, s%d, 7' % (sCX, sT4))
    a('s_mul_i32 s%d, s%d, %d' % (sCW, sT4, 64 * 3072))
    sx(sT0, [(sI, 1 << 17), (sW, 1 << 15)], 2048)
    sx(sLDSX, [(sW, 1 << 14)], L_XS)
    a('s_lshl_b32 s%d, s%d, 11' % (sLDSW, sW))
    a('v_lshrrev_b32 %s, 4, %s' % (v(vT + 1), v(vL)))
    a('v_and_b32 %s, 7, %s' % (v(vT + 2), v(vL)))
    a('v_xor_b32 %s, %s, %s' % (v(vT + 1), v(vT + 1), v(vT + 2)))
    vx(vXD, [(vL, 3, 0, 1024), (vT + 1, 0, 0, 16)], sadd=sT0)
    a('v_xor_b32 %s, 64, %s' % (v(vXD + 1), v(vXD)))
    a('s_lshl_b32 s%d, s%d, 14' % (sT1, sT3))
    a('s_sub_u32 s%d, %d, s%d' % (sT2, 2 * 7168, sT1))
    a('v_add_u32 %s, %d, %s' % (v(vXD + 1), 7168, v(vXD + 1)))
    a('v_add_u32 %s, s%d, %s' % (v(vXD + 2), sT2, v(vXD)))
    a('v_add_u32 %s, s%d, %s' % (v(vXD + 3), sT2, v(vXD + 1)))
    a('v_add_u32 %s, s%d, %s' % (v(vXD), sT1, v(vXD)))
    a('v_add_u32 %s, s%d, %s' % (v(vXD + 1), sT1, v(vXD + 1)))
    def touch_addr():
        a('s_lshr_b32 s%d, s2, 3' % sT1)
        sx(sT2, [(2, 16), (sW, 4)])
        sx(sT1, [(sT1, 16), (sW, 4)])
        a('v_and_b32 %s, 3, %s' % (v(vT), v(vL)))
        a('v_add_u32 %s, s%d, %s' % (v(vT + 1), sT2, v(vT)))
        a('v_add_u32 %s, s%d, %s' % (v(vT), sT1, v(vT)))
        a('v_cmp_gt_u32 vcc, 4, %s' % v(vL))
        vx(aV, [(vT + 1, 3, 0, 3072), (vT + 1, 0, 3, 128)])
        vx(aV + 1, [(vT, 0, 0, 3072)], const=384)
        a('v_cndmask_b32 %s, %s, %s, vcc' % (v(aV), v(aV + 1), v(aV)))
        a('v_lshlrev_b32 %s, 7, %s' % (v(aV + 2), v(vT + 1)))
        vx(aV + 1, [(vT, 0, 0, 1024)], const=384)
        a('v_cndmask_b32 %s, %s, %s, vcc' % (v(aV + 1), v(aV + 1), v(aV + 2)))
        a('v_lshlrev_b32 %s, 4, %s' % (v(vFR), v(vL)))
    if not cfg.get('latet', 1):
        touch_addr()
    a('s_lshl_b32 s%d, s%d, 6' % (sT2, sJ))
    vx(vWQD, [(0, 2, 0, 3072), (vL, 0, 2, 16)], sadd=sT2)
    a('v_add_u32 %s, 1024, %s' % (v(vWD), v(vWQD)))
    a('s_waitcnt lgkmcnt(0)')
    if cfg.get('stamps'):
        a('v_mov_b32 v4, 0')
        a('v_writelane_b32 v4, s100, 0')
        if cfg.get('cyc'):
            a('v_writelane_b32 v4, s98, 32')
        a.nstamp = 1
        a.names.append('start')
    a.stamp('karg', 2)
    srd(a, S_WQKV, S_PTR + 2, SIZES['wqkv'])

    def dma_w(s):
        return ['s_add_u32 m0, s%d, %d' % (sLDSW, s * 8192),
                'buffer_load_dwordx4 %s, %s, s%d offen %slds' % (v(vWD), sr(S_WQKV), sCW, 'nt ' if s < cfg.get('wnt', 0) else ''),
                'buffer_load_dwordx4 %s, %s, s%d offen offset:1024 %slds' % (v(vWD), sr(S_WQKV), sCW, 'nt ' if s < cfg.get('wnt', 0) else '')] + step(sCW, 64 * 3072, 512 * 3072)

    def dma_x(s):
        return ['s_add_u32 m0, s%d, %d' % (sLDSX, (s & 3) * 4096)] + [
            'buffer_load_dwordx4 %s, %s, s%d offen offset:%d %slds' % (v(vXD + q), sr(S_X), sCX, q * 1024, cfg.get('xf', 'nt') + ' ' if s < cfg.get('xnt', 0) else '') for q in range(4)
        ] + step(sCX, 128, 1024) + [Mark('slot%d' % s)]

    def dma_wq(s):
        return ['s_add_u32 m0, s%d, %d' % (sLDSW, L_WQ + (s >> 1) * 8192 + (s & 1) * 1024),
                'buffer_load_dwordx4 %s, %s, s%d offen lds' % (v(vWQD), sr(S_WQKV), sCW)] + step(sCW, 64 * 3072, 512 * 3072)

    a('s_load_dword s%d, s[%d:%d], 0x%x' % (sTAG, S_PTR + 20, S_PTR + 21, EPOCH))
    R(dma_w(0))
    a('s_sub_u32 s%d, s%d, 2048' % (S_PTR, S_PTR))
    a('s_subb_u32 s%d, s%d, 0' % (S_PTR + 1, S_PTR + 1))
    srd(a, S_X, S_PTR + 0, SIZES['x'] + 2048)
    dx0 = dma_x(0)
    R(dx0[:3])
    if cfg.get('latet', 1):
        touch_addr()
    srd(a, S_WO, S_PTR + 6, SIZES['wo'])
    srd(a, S_WPHI, S_PTR + 4, SIZES['wphi'])
    if cfg.get('warm0', 1):
        a('s_mov_b64 exec, 0x%x' % (0xff if cfg.get('touch3', 0) else 0xf))
        R('buffer_load_dword %s, %s, %s, 0 offen' % (v(254), v(aV), sr(S_WQKV)))
        R('buffer_load_dword %s, %s, %s, 0 offen' % (v(253), v(aV + 1), sr(S_WO)))
    if cfg.get('touchkv', 1):
        a('s_mov_b64 exec, 0xf0')
        R('buffer_load_dword %s, %s, %s, 0 offen offset:1024' % (v(252), v(aV), sr(S_WQKV)))
        R('buffer_load_dword %s, %s, %s, 0 offen offset:2048' % (v(251), v(aV), sr(S_WQKV)))
    sx(sT2, [(sJ, 1024), (sW, 256)])
    sx(sT3, [(sW, 256)], L_WPHI)
    a('s_mov_b32 m0, s%d' % sT3)
    a('s_mov_b64 exec, 0xffff')
    R('buffer_load_dwordx4 %s, %s, s%d offen lds' % (v(vFR), sr(S_WPHI), sT2))
    a('s_mov_b64 exec, -1')
    R([dx0[0]] + dx0[3:])
    a.stamp('dma0', 2)
    srd(a, S_WS, S_PTR + 20, SIZES['ws'])
    srd(a, S_W1, S_PTR + 10, SIZES['w1'])
    srd(a, S_B1, S_PTR + 12, SIZES['b1'])
    srd(a, S_W2, S_PTR + 14, SIZES['w2'])
    srd(a, S_OUT, S_PTR + 16, SIZES['out'])
    srd(a, S_TMP, S_PTR + 10, SIZES['w1'])

    a('s_mov_b32 s%d, 0x%x' % (sONES, ONES))
    a('s_mov_b32 s%d, 0x3f80' % sSEL0)
    a('s_mov_b32 s%d, 0x3f800000' % sSEL1)
    a('s_mov_b32 s%d, 0' % sCNT)
    a('s_mov_b32 s%d, 0x%x' % (sRS, fbits(math.sqrt(0.5))))
    a('s_mov_b32 s%d, 0x%x' % (sLN2, fbits(math.log(2.0))))
    a('s_lshr_b32 s%d, s%d, 1' % (sKH, sW))
    a('s_and_b32 s%d, s%d, 1' % (sTT, sW))
    a('s_and_b32 s%d, s%d, 1' % (sP, sJ))
    a('s_lshr_b32 s%d, s%d, 1' % (sC, sJ))
    a('s_and_b32 s%d, s%d, 3' % (sT2, sC))
    a('s_cmp_eq_u32 s%d, 3' % sT2)
    a('s_cselect_b32 s%d, 4, 0' % sT2)
    a('s_xor_b32 s%d, s%d, s%d' % (sC, sC, sT2))
    a('s_lshl_b32 s%d, s%d, 13' % (sLW2, sW))
    a('s_lshl_b32 s%d, s%d, 12' % (sLW1, sW))
    a('v_lshrrev_b32 %s, 5, %s' % (v(vHH), v(vL)))
    a('v_lshlrev_b32 %s, 2, %s' % (v(vL4), v(vL)))
    vx(aQ + 8, [(vL, 0, 1, 512), (vL, 1, 1, 8), (vL, 4, 1, 16), (vL, 2, 2, 32), (vHH, 0, 0, 128)], const=L_WPHI)
    a('v_bfe_u32 %s, %s, 2, 1' % (v(vT), v(vL)))
    a('v_cmp_eq_u32 s[%d:%d], 0, %s' % (sMSK, sMSK1, v(vT)))
    a('v_bfe_u32 %s, %s, 1, 3' % (v(vT + 1), v(vL)))
    a('s_lshl_b32 s%d, s%d, 1' % (sT2, sW))
    a('v_add_u32 %s, s%d, %s' % (v(vT + 2), sT2, v(vHH)))
    a('v_xor_b32 %s, %s, %s' % (v(vT + 1), v(vT + 1), v(vT + 2)))
    vx(vXR, [(vL, 0, 5, 128), (vT + 1, 0, 0, 16)], sadd=sLDSX)
    a('s_and_b32 s%d, s%d, 1' % (sT2, sJ))
    a('s_lshl_b32 s%d, s%d, 11' % (sT2, sT2))
    a('v_xor_b32 %s, s%d, %s' % (v(vXR), sT2, v(vXR)))
    for p in range(1, 4):
        a('v_xor_b32 %s, %d, %s' % (v(vXR + p), 32 * p, v(vXR)))
    vx(vOUT, [(vL, 0, 5, 1024), (vHH, 0, 0, 32)])
    vx(vWR, [(vL, 2, 2, 64), (vL, 4, 1, 32), (vL, 0, 2, 8), (vHH, 0, 0, 512)], sadd=sLDSW)
    for p in range(1, 4):
        a('v_xor_b32 %s, %d, %s' % (v(vWR + p), 2048 * p, v(vWR)))
    vx(vTRN, [(vL, 2, 2, 64), (vL, 0, 1, 32), (vL, 4, 1, 16), (vL, 1, 1, 8)])
    sx(sT2, [(sKH, 32768 + 512)], L_WO)
    vx(vT, [(vTRN, 0, 0, 1), (vHH, 0, 0, 1024)], sadd=sT2)
    a.stash('wo', vT)
    a('s_lshl_b32 s%d, s%d, 9' % (sT2, sW))
    vx(vT, [(vTRN, 0, 0, 1), (vHH, 0, 0, 4096)], sadd=sT2)
    a.stash('w1', vT)
    sx(sT2, [(sKH, 512), (sLW2, 1)])
    vx(vT, [(vTRN, 0, 0, 1), (vHH, 0, 0, 2048)], sadd=sT2)
    a.stash('w2', vT)
    vx(vT + 1, [(vL, 0, 2, 16), (vHH, 0, 0, 64)])
    sx(sT2, [(sKH, 1 << 18), (sC, 128)])
    vx(vT, [(vL, 2, 3, 1024), (vT + 1, 0, 0, 1)], sadd=sT2)
    a.stash('bdo', vT)
    sx(sT2, [(sP, 896 * 1024), (sW, 224 * 1024), (sC, 128)])
    vx(vT, [(vL, 2, 3, 1024), (vT + 1, 0, 0, 1)], sadd=sT2)
    a.stash('bd2', vT)
    sx(sT2, [(sW, 16 * 3584), (sJ, 256)], 3072)
    vx(vT, [(vL, 2, 3, 3584), (vT + 1, 0, 0, 1)], sadd=sT2)
    a.stash('bd1', vT)
    a('v_bfe_u32 %s, %s, 1, 2' % (v(vT), v(vL)))
    vx(vT + 1, [(vL, 3, 1, 2)])
    a('v_xor_b32 %s, %s, %s' % (v(vT + 1), v(vT), v(vT + 1)))
    vx(vT, [(vL, 0, 5, 64), (vT + 1, 0, 0, 16)], sadd=sLDSW)
    a('v_lshl_add_u32 %s, %s, 3, %s' % (v(vA), v(vHH), v(vT)))
    a('v_lshl_add_u32 %s, %s, 13, %s' % (v(vA + 4), v(vHH), v(vT)))
    for g in range(1, 4):
        a('v_xor_b32 %s, %d, %s' % (v(vA + g), 16 * g, v(vA)))
        a('v_xor_b32 %s, %d, %s' % (v(vA + 4 + g), 16 * g, v(vA + 4)))
    vx(vT, [(vL, 3, 1, 1), (vL, 4, 1, 2)])
    a('v_bfe_u32 %s, %s, 1, 1' % (v(vT + 1), v(vL)))
    a('v_xor_b32 %s, %s, %s' % (v(vT), v(vT), v(vT + 1)))
    vx(vT + 2, [(vL, 4, 0, 512), (vL, 2, 2, 64), (vT, 0, 0, 16), (vL, 0, 1, 8)])
    sx(sT2, [(sKH, 32), (sTT, 8192)])
    a('v_xor_b32 %s, s%d, %s' % (v(vT), sT2, v(vT + 2)))
    a.stash('kvphi', vT)
    a('s_lshl_b32 s%d, s%d, 5' % (sT2, sTT))
    a('v_xor_b32 %s, s%d, %s' % (v(vT), sT2, v(vT + 2)))
    a.stash('kvv', vT)
    vx(vT, [(0, 4, 0, 16)])
    a.stash('zst', vT)
    vx(vT + 1, [(vL, 0, 4, KVREC), (vT, 0, 0, 1)])
    a.stash('zld', vT + 1)
    sx(sT2, [(sTT, 17 * 80), (sKH, 32)], L_KVB)
    vx(vT, [(vL, 4, 0, 8)], sadd=sT2)
    a.stash('kbz', vT)
    vx(vT + 1, [(vL, 0, 3, 160), (vHH, 0, 0, 80), (vL, 3, 2, 8)], sadd=sT2)
    a.stash('kbw', vT + 1)
    a('s_lshl_b32 s%d, s%d, 9' % (sT3, sW))
    vx(vT + 1, [(vL, 0, 5, 16), (vHH, 0, 0, KVREC)], sadd=sT3)
    a.stash('gld', vT + 1)
    vx(vT + 2, [(vL, 2, 1, 8), (vL, 3, 1, 4), (vL, 0, 2, 1)])
    a('v_and_b32 %s, 16, %s' % (v(vT), v(vL)))
    a('v_cmp_eq_u32 vcc, 0, %s' % v(vT))
    a('v_cndmask_b32 %s, 16, %s, vcc' % (v(vT + 2), v(vT + 2)))
    vx(vT, [(vT + 2, 0, 0, 80), (vHH, 0, 0, 16)], const=L_KVB)
    a.stash('kbr', vT)
    sx(sT2, [(sJ, 256), (sW, 64)])
    vx(vT, [(vL, 2, 1, 32), (vL, 3, 2, 8), (vL, 0, 2, 2), (vHH, 0, 0, 8192)], sadd=sT2)
    a.stash('bias', vT)
    sx(sT2, [(sLW2, 1)], R2)
    a('v_add_u32 %s, s%d, %s' % (v(vT), sT2, v(vFR)))
    a.stash('red3', vT)
    vx(vT, [(vL, 2, 0, 1024), (vL, 0, 2, 16)], const=2048)
    a.stash('xd', vT)
    vx(vT, [(vL, 0, 5, 64), (vHH, 0, 0, 32)], sadd=sT2, const=4096)
    a.stash('xr', vT)

    a('v_lshlrev_b32 %s, 6, %s' % (v(vT), v(vHH)))
    a('v_xor_b32 %s, %s, %s' % (v(vT), v(vT), v(vFR)))
    sx(sT2, [(sKH, 4096 + 128), (sLW2, 1)])
    a('v_xor_b32 %s, s%d, %s' % (v(vT), sT2, v(vT)))
    a.stash('rw', vT)
    a('s_lshl_b32 s%d, s%d, 3' % (sT2, sW))
    vx(vT, [(vL, 3, 0, 1)], sadd=sT2)
    vx(vT + 1, [(vT, 0, 0, 1024), (vL, 0, 3, 16)])
    a.stash('os', vT + 1)
    vx(vT + 1, [(vL, 0, 3, 2)])
    a('v_xor_b32 %s, %s, %s' % (v(vT), v(vT), v(vT + 1)))
    vx(vT + 1, [(vT, 0, 0, 16), (vL, 1, 1, 512), (vL, 0, 1, 2048), (vL, 2, 1, 4096)])
    a.stash('rr', vT + 1)

    sx(sGAT, [(sJ, 16 * KVREC)], KVP)
    sx(sREC, [(sGAT, 1), (sI, KVREC)])
    sx(sFA, [(sJ, 128), (sI, 4)])
    sx(sFP, [(sI, 2048), (sJ, 128)])
    sx(sFB, [(sI, 2048)])
    sx(sFME, [(sI, 2048), (sJ, 4)])
    sx(sOST, [(sI, 4 << 15), (sW, 1 << 15), (sJ, 2048)], O_)
    sx(sSLD, [(sI, 4 << 12), (sW, 1 << 12)], ST)
    sx(sAST, [(sI, 4 * 112 * 1024), (sJ, 8192), (sW, 2048)], ACT)
    sx(sALD, [(sI, 4 * 112 * 1024), (sP, 56 * 1024), (sW, 14 * 1024)], ACT)
    sx(sT2, [(sI, 4), (sP, 1), (sTT, 2)])
    sx(sT3, [(sC, 2), (sKH, 1)])
    sx(sOLD, [(sT2, 1 << 15), (sKH, 1 << 14)], O_)
    sx(sOUT, [(sT2, 1 << 15), (sT3, 64)])
    sx(sHST, [(sT2, 1 << 15), (sT3, 2048)], H_)
    sx(sSST, [(sT2, 1 << 12), (sT3, 256)], ST)
    rot = cfg.get('rot', 1)
    a('s_and_b32 s%d, s%d, %d' % (sT2, sI, 1 if cfg.get('rotw', 0) else 0))
    a('s_and_b32 s%d, s%d, %d' % (sT3, sP, 1 if cfg.get('rotw', 0) else 0))
    sx(sT3, [(sT3, 1), (sT2, 2)])
    a('s_lshr_b32 s%d, s%d, 1' % (sT0, sC))
    a('s_add_u32 s%d, s%d, s%d' % (sT0, sT0, sT3))
    a('s_and_b32 s%d, s%d, %d' % (sT0, sT0, 3 if rot else 0))
    a('s_lshl_b32 s%d, s%d, 12' % (sR3, sT0))
    sx(sCO, [(sTT, 4 << 15), (sT0, 2 << 15)])
    a('s_and_b32 s%d, s%d, %d' % (sCO, sCO, (8 << 15) - 1))
    sx(sT0, [(sJ, 1), (sT2, 2)])
    a('s_and_b32 s%d, s%d, %d' % (sT0, sT0, 3 if rot else 0))
    a('s_mul_i32 s%d, s%d, %d' % (sC1, sT0, 128 * 3584))
    sx(sT1, [(sT0, 2), (sW, 1)])
    a('s_and_b32 s%d, s%d, 7' % (sT4, sT1))
    sx(sHL0, [(sI, 4 << 15), (sT4, 4096)], H_)
    a('s_xor_b32 s%d, s%d, 4' % (sT4, sT4))
    sx(sHL1, [(sI, 4 << 15), (sT4, 4096)], H_)
    sx(sT0, [(sC, 1), (sT3, 2)])
    a('s_add_u32 s%d, s%d, -7' % (sT1, sT0))
    a('s_cselect_b32 s%d, s%d, s%d' % (sT0, sT1, sT0))
    if not rot:
        a('s_mov_b32 s%d, 0' % sT0)
    a('s_lshl_b32 s%d, s%d, 15' % (sC2, sT0))
    a('s_lshl_b32 s%d, s%d, 11' % (sC5, sT0))
    a('s_sub_u32 s%d, s%d, 3072' % (S_W1, S_W1))
    a('s_subb_u32 s%d, s%d, 0' % (S_W1 + 1, S_W1 + 1))
    a('s_cmp_ge_u32 s%d, 14' % sJ)
    a('s_cselect_b32 s%d, 0, %d' % (S_W1 + 2, SIZES['w1'] + 3072))
    for r_ in (s1a, s1b, s2a, s2b, csk, csv, csq, vBX + 2, vBX + 3):
        a('v_mov_b32 %s, 0' % v(r_))

    def warm(srd_, nbytes, dst):
        nl = nbytes // 128 // 256
        a('s_mul_i32 s%d, s2, %d' % (sT2, nl * 128))
        a('v_lshlrev_b32 %s, 7, %s' % (v(vT), v(vL)))
        a('s_mov_b32 exec_lo, 0x%x' % (((1 << nl) - 1) & 0xffffffff))
        a('s_mov_b32 exec_hi, 0x%x' % (((1 << nl) - 1) >> 32))
        a('buffer_load_dword %s, %s, %s, s%d offen' % (v(dst), v(vT), sr(srd_), sT2))
        a('s_mov_b64 exec, -1')

    def touch3(srd_, rows, pitch, off, dst, row0=None):
        nl = rows // 32
        a('s_lshr_b32 s%d, s2, 3' % sT2)
        a('s_mul_i32 s%d, s%d, %d' % (sT2, sT2, nl * pitch))
        if row0 is not None:
            a('s_add_u32 s%d, s%d, s%d' % (sT2, sT2, row0))
        a('v_mul_u32_u24 %s, %d, %s' % (v(vT), pitch, v(vL)))
        a('s_mov_b32 exec_lo, 0x%x' % (((1 << nl) - 1) & 0xffffffff))
        a('s_mov_b32 exec_hi, 0x%x' % (((1 << nl) - 1) >> 32))
        a('buffer_load_dword %s, %s, %s, s%d offen offset:%d' % (v(dst), v(vT), sr(srd_), sT2, off))
        a('s_mov_b64 exec, -1')

    def warm_big():
        a('s_cmp_lg_u32 s%d, 1' % sW)
        a('s_cbranch_scc1 L_nw1')
        warm(S_TMP, SIZES['w1'], vT + 2)
        a.label('L_nw1')
        a('s_cmp_lg_u32 s%d, 2' % sW)
        a('s_cbranch_scc1 L_nw2')
        warm(S_W2, SIZES['w2'], vT + 2)
        a.label('L_nw2')

    if cfg.get('warm1', 7) == -1:
        warm_big()
    a('s_waitcnt lgkmcnt(0)')
    a('s_mul_i32 s%d, s%d, 0x9e3779b1' % (sTAG, sTAG))
    a('s_add_u32 s%d, s%d, 0x7f4a7c15' % (sTAG, sTAG))
    a('v_mov_b32 %s, s%d' % (v(vONE), sTAG))
    D0 = min(D, cfg.get('d0', 2))
    for s in range(1, D0):
        R(dma_w(s) + dma_x(s))
    a.stamp('prolog')

    def wreg(s, p, m):
        if p == 0:
            return lambda o, n: v(vWB + (s & 1) * 8 + m * 4 + o, n)
        return lambda o, n: ac(128 + (s & 1) * 24 + (p - 1) * 8 + m * 4 + o, n)

    def reads(s):
        o = []
        for p in range(4):
            o.append('ds_read_b128 %s, %s offset:%d' % (v(X + (4 * s + p) * 4, 4), v(vXR + p), (s & 3) * 4096))
            for m in range(2):
                for t in range(2):
                    o.append('ds_read_b64_tr_b16 %s, %s offset:%d' % (wreg(s, p, m)(2 * t, 2), v(vWR + p), s * 8192 + m * 1024 + t * 256))
        return o

    def mains(s):
        o = []
        for p in range(4):
            for m in range(2):
                acc = v(aK if m == 0 else aV, 16)
                o.append([mfma32(acc, wreg(s, p, m)(0, 4), v(X + (4 * s + p) * 4, 4), '0' if (s == 0 and p == 0) else acc)])
        return o

    def cs_dots(s):
        o = []
        for r_ in range(4):
            o.append('v_dot2_f32_bf16 %s, %s, s%d, %s' % (v(csk), wreg(s, 0, 0)(r_, 1), sONES, v(csk)))
            o.append('v_dot2_f32_bf16 %s, %s, s%d, %s' % (v(csv), wreg(s, 0, 1)(r_, 1), sONES, v(csv)))
        return o

    def stat_dots(s):
        o = []
        for r_ in range(16):
            x = v(X + 16 * s + r_)
            p1, p2 = (s1a, s2a) if r_ & 1 else (s1b, s2b)
            o.append('v_dot2_f32_bf16 %s, %s, s%d, %s' % (v(p1), x, sONES, v(p1)))
            o.append('v_dot2_f32_bf16 %s, %s, %s, %s' % (v(p2), x, x, v(p2)))
        return o

    def a_ext(dst, cs, t):
        return split_hl(cs, t, t + 1, dst) + ['v_cvt_pk_bf16_f32 %s, %s, 0' % (v(dst + 1), v(t + 1)),
                                              'v_mov_b32 %s, 0' % v(dst + 2), 'v_mov_b32 %s, 0' % v(dst + 3)]

    phi_merge = ['ds_read_b64_tr_b16 %s, %s' % (v(aQ + 12, 2), v(aQ + 8)),
                 'ds_read_b64_tr_b16 %s, %s offset:256' % (v(aQ + 14, 2), v(aQ + 8))]
    phi_merge2 = []
    for e in range(4):
        phi_merge2.append('v_cndmask_b32 %s, 0, %s, s[%d:%d]' % (v(aQ + e), v(aQ + 12 + e), sMSK, sMSK1))
        phi_merge2.append('v_cndmask_b32 %s, %s, 0, s[%d:%d]' % (v(aQ + 4 + e), v(aQ + 12 + e), sMSK, sMSK1))
    for e in range(8):
        phi_merge2.append('v_accvgpr_write_b32 %s, %s' % (ac(PA1 + e), v(aQ + e)))

    wq = [dma_wq(s) for s in range(8)]
    R(WaitVM('slot0'))
    a('s_barrier')
    a.stamp('c0', 2)
    R(phi_merge)
    R(reads(0))
    for s in range(D0, D):
        R(dma_w(s) + dma_x(s))
    R(phi_merge2)
    late = cfg.get('p1late', 0)
    for s in range(7):
        R(WaitVM('slot%d' % (s + 1)))
        a('s_waitcnt lgkmcnt(0)')
        a('s_barrier')
        a.stamp('c%d' % (s + 1), 2)
        if s + D < 8:
            dw, dx = dma_w(s + D), dma_x(s + D)
        else:
            k0, k1 = (s + D - 8) * 8 // D, (s + D - 7) * 8 // D
            fl = [x for g in wq[k0:k1] for x in g]
            dw, dx = fl[:len(fl) // 2], fl[len(fl) // 2:]
        rd = reads(s + 1)
        allm = dw + dx
        idx = [i for i, x in enumerate(allm) if isinstance(x, str) and x.startswith('buffer_')]
        nl = min(late, len(idx))
        cut = idx[len(idx) - nl] if nl else len(allm)
        if nl and isinstance(allm[cut - 1], str) and 'm0' in allm[cut - 1]:
            cut -= 1
        a.fill(mains(s), merge(rd, allm[:cut]))
        dots = cs_dots(s) + stat_dots(s)
        rest = allm[cut:]
        groups = []
        for x in rest:
            if not groups or (isinstance(x, str) and x.startswith('buffer_') and any(isinstance(y, str) and y.startswith('buffer_') for y in groups[-1])):
                groups.append([])
            groups[-1].append(x)
        ng_ = len(groups)
        for k in range(ng_ + 1):
            R(dots[k * 40 // (ng_ + cfg.get('p1e', 0)) if ng_ else 0:(k + 1) * 40 // (ng_ + cfg.get('p1e', 0)) if ng_ else 40])
            if k < ng_:
                R(groups[k])
        if cfg.get('warm1', 7) == s:
            warm_big()
    s = 7
    R(cs_dots(s))
    a('v_lshlrev_b32 %s, 3, v0' % v(vT))
    R('ds_write_b64 %s, %s offset:%d' % (v(vT), v(csk, 2), L_CSX))
    R(stat_dots(s))
    a('v_lshlrev_b32 %s, 3, %s' % (v(vT), v(vL)))
    a('s_waitcnt lgkmcnt(0)')
    a('s_barrier')
    for w in range(4):
        R('ds_read_b64 %s, %s offset:%d' % (v(aQ + 2 * w, 2), v(vT), L_CSX + 512 * w))
    fin = ['v_add_f32 %s, %s, %s' % (v(s1a), v(s1a), v(s1b)),
           'v_add_f32 %s, %s, %s' % (v(s2a), v(s2a), v(s2b)),
           'v_permlane32_swap_b32 %s, %s' % (v(s1a), v(s2a)),
           'v_add_f32 %s, %s, %s' % (v(s1a), v(s1a), v(s2a)),
           'v_mov_b32 %s, %s' % (v(s2a), v(s1a)),
           'v_permlane32_swap_b32 %s, %s' % (v(s1a), v(s2a))]
    fin += ln_ops(s1a, s2a, mean, rstd)
    fin += ['v_sub_f32 %s, 0, %s' % (v(s1a), v(mean))]
    fin += split_hl(s1a, s1b, s2b, vT)
    fin += ['v_cvt_pk_bf16_f32 %s, %s, %s' % (v(vBX), v(s1b), v(s2b)),
            'v_cvt_pk_bf16_f32 %s, %s, 0' % (v(vBX + 1), v(s1b))]
    fin2 = ['v_add_f32 %s, %s, %s' % (v(aQ + i), v(aQ + i), v(aQ + 4 + i)) for i in range(4)]
    fin2 += ['v_add_f32 %s, %s, %s' % (v(csk + i), v(aQ + i), v(aQ + 2 + i)) for i in range(2)]
    fin2 += a_ext(aQ + 8, csk, vT + 1) + a_ext(aQ + 12, csv, vT + 1)
    k0 = (7 + D - 8) * 8 // D
    m7 = mains(7)
    m7 = [m7[i] for i in (0, 2, 4, 6, 1, 3, 5, 7)]
    a.fill(m7, merge(fin, fin2))
    a.stamp('p1end')
    R(mfma32(v(aK, 16), v(aQ + 8, 4), v(vBX, 4), v(aK, 16)))
    R(mfma32(v(aV, 16), v(aQ + 12, 4), v(vBX, 4), v(aV, 16)))
    R([x for g in wq[k0:] for x in g] + [Mark('wq')])
    a('v_lshlrev_b32 %s, 7, %s' % (v(vL128), v(vL)))
    def touches(at):
        o = []
        if cfg.get('lo', 0) and cfg.get('to', 'p1') == at:
            o += pretouch(sOST, 16, s1a)
        if cfg.get('lh', 0) and cfg.get('th', 'p1') == at:
            o += pretouch(sHST, 16, s1a) + pretouch(sSST, 2, s1a)
        return o
    if cfg.get('warm1', 7) == 7:
        warm_big()
    R(touches('p1'))
    if cfg.get('wflag', 1):
        a('v_lshlrev_b32 %s, 15, %s' % (v(vRB), v(vL)))
        a('v_lshlrev_b32 %s, 7, %s' % (v(vT + 3), v(vL)))
        a('v_add_u32 %s, %d, %s' % (v(vT + 3), 3 * 32768 - 5 * 128, v(vT + 3)))
        a('v_cmp_lt_u32 vcc, 5, %s' % v(vL))
        a('v_cndmask_b32 %s, %s, %s, vcc' % (v(vRB), v(vRB), v(vT + 3)))
        a('s_cmp_eq_u32 s%d, 0' % sW)
        a('s_cselect_b32 s%d, s%d, s%d' % (sT2, sFP, sFB))
        a('s_cselect_b32 exec_lo, 1, 0xfe')
        a('s_mov_b32 exec_hi, 0')
        a('s_cmp_gt_u32 s%d, 1' % sW)
        a('s_cbranch_scc1 L_nowfl')
        a('buffer_load_dword %s, %s, %s, s%d offen sc1' % (v(vRB), v(vRB), sr(S_WS), sT2))
        a.label('L_nowfl')
        a('s_mov_b64 exec, -1')
    vBD = vXD
    def blk_regs(name, reg):
        return [a.unstash(name, reg)] + ['v_add_u32 %s, %d, %s' % (v(reg + q), q * 7168, v(reg)) for q in range(1, 4)]
    R(blk_regs('bdo', vBD))
    def dma_wo(g4):
        return ['s_add_u32 m0, s%d, %d' % (sLDSX, g4 * 4096)] + [
            'buffer_load_dwordx4 %s, %s, s%d offen offset:%d lds' % (v(vBD + b), sr(S_WO), sCO, b * 1024) for b in range(4)
        ] + step(sCO, 32768, 8 * 32768)
    vB1 = vWR
    def dma_w1(g4):
        return ['s_add_u32 m0, s%d, %d' % (sLW1, (g4 ^ 2 if g4 < 4 else g4) * 16384)] + [
            'buffer_load_dwordx4 %s, %s, s%d offen offset:%d lds' % (v(vB1 + b), sr(S_W1), sC1, b * 1024) for b in range(4)
        ] + step(sC1, 64 * 3584, 512 * 3584)
    def w2reg(ks, rho):
        return 112 + (ks * 2 + rho) * 4
    vW2, vW2c = vS + 2, vS + 14
    REG = {0: R2, 1: 0, 2: 32768, 3: 65536}
    TW2, TAC = 4, 14
    P0L = [False]
    def w2_dma(q):
        o = []
        for h in range(2 if q < 3 else 1):
            so = sC2 if (q == 0 and not P0L[0]) else TW2 + 2 * q + h
            o += ['s_add_u32 m0, s%d, %d' % (sLW2, REG[q] + h * 4096)] + [
                'buffer_load_dwordx4 %s, %s, s%d offen offset:%d lds' % (v(vBD2 + b), sr(S_W2), so, b * 1024) for b in range(4)]
            if q == 0 and not P0L[0]:
                o += step(sC2, 32768, 7 * 32768)
        return o + [Mark('w2_%d' % q)]
    def tables():
        o = []
        for n in range(0 if P0L[0] else 2, 7):
            o += ['s_mov_b32 s%d, s%d' % (TW2 + n, sC2)] + step(sC2, 32768, 7 * 32768)
        for n in range(7):
            o += ['s_mov_b32 s%d, s%d' % (TAC + n, sC5)] + step(sC5, 2048, 7 * 2048)
        return o
    def w2_read(q, h, a_, rho):
        n, region = 2 * q + h, REG[q]
        base, off = (vW2, region) if region < R1 else ((vW2c, region - R1) if region < R2 else (vW2 + 2, region - R2))
        return ['ds_read_b64_tr_b16 %s, %s offset:%d' % (ac(w2reg(2 * n + a_, rho) + 2 * t, 2), v(base + rho),
                                                        off + h * 4096 + a_ * 1024 + t * 256) for t in range(2)]
    def w2_park(q):
        return [x for h in range(2) for a_ in range(2) for rho in range(2) for x in w2_read(q, h, a_, rho)] + [Mark('park%d' % q)]

    vBD2 = vXR
    PLAN = dict(Wa=['o0'], Wb1=['o1', 'o2'], Wb2=['o3'], Wb3=['g0', 'g1'], Wc=[], Wd0=['g2', 'g3'], Wd=[], We=['g4', 'g5', 'g6'],
                Wf0=['g7'], Wf=['p0'])
    PLAN.update(cfg.get('plan', {}))
    ORDER = ['Wa', 'Wb1', 'Wb2', 'Wb3', 'Wc', 'Wd0', 'Wd', 'We', 'Wf0', 'Wf']
    where = {g: ORDER.index(w) for w in ORDER for g in PLAN[w]}
    P0L[0] = 'p0' not in where
    assert sorted(where) == sorted(['o%d' % i for i in range(4)] + ['g%d' % i for i in range(8)] + ([] if P0L[0] else ['p0']))
    assert all(where['o%d' % i] <= 4 for i in range(4)) and where.get('p0', 9) == 9
    assert all(where['g%d' % i] >= 3 for i in (0, 1)) and all(where['g%d' % i] >= 4 for i in (2, 3))
    assert all(where['g%d' % i] <= where['g%d' % (i + 1)] for i in range(7))
    assert all(where['g%d' % i] >= 6 for i in range(4, 8))
    where['p1'] = 99
    def window(w):
        o = []
        for g in PLAN[w]:
            o += {'o': dma_wo, 'g': dma_w1, 'p': w2_dma}[g[0]](int(g[1]))
            o.append(Mark(g))
        return o
    def landed(w):
        return sum(1 for i in range(8) if where['g%d' % i] <= ORDER.index(w))
    cs1 = vS + 6
    vW1 = vS + 10
    def w1_reads(k0, k1):
        o = []
        for ks in range(k0, k1):
            T, a_ = ks >> 1, ks & 1
            for t in range(2):
                off = (4 * T + a_) * 2048 + t * 256
                if off < 65536:
                    off ^= 32768
                o.append('ds_read_b64_tr_b16 %s, %s offset:%d' % (v(X + 4 * ks + 2 * t, 2), v(vW1 + (off >> 16)), off & 0xffff))
        return o
    def w1_dots(k0, k1):
        return ['v_dot2_f32_bf16 %s, %s, s%d, %s' % (v(cs1 + (r_ & 1)), v(X + r_), sONES, '0' if r_ < 2 else v(cs1 + (r_ & 1)))
                for r_ in range(4 * k0, 4 * k1)]

    a('v_mul_f32 %s, 0x%x, %s' % (v(cexp), LOG2E, v(rstd)))
    a('v_mul_f32 %s, 0x%x, %s' % (v(ncexp), LOG2E | 0x80000000, v(rstd)))
    for i in range(8):
        a('v_cvt_pk_bf16_f32 %s, %s, %s' % (v(vWB + i), v(aK + 2 * i), v(aK + 2 * i + 1)))
    R(mfma32(v(aK, 16), ac(PA1, 4), v(vWB, 4), '0'))
    R(mfma32(v(aK, 16), ac(PA2, 4), v(vWB + 4, 4), v(aK, 16)))
    nv_ = cfg.get('vplain', 8)
    for i in range(nv_):
        a('v_mul_f32 %s, %s, %s' % (v(aV + i), v(aV + i), v(rstd)))
    for i in range(nv_, 16, 2):
        a('v_pk_mul_f32 %s, %s, %s op_sel_hi:[1,0]' % (v(aV + i, 2), v(aV + i, 2), v(rstd, 2)))
    for i in range(8):
        a('v_cvt_pk_bf16_f32 %s, %s, %s' % (v(aQ + i), v(aV + 2 * i), v(aV + 2 * i + 1)))
    for g in range(4):
        R('ds_write_b64 %s, %s offset:%d' % (v(vA + g), v(aQ + 2 * g, 2), L_V))
    a.stamp('phik', 2)
    sm = softmax_ops(aK, vWB, aV, cexp, aQ + 8)
    R(sm[:34])
    R(merge(sm[34:66], window('Wa')))
    R(sm[66:-16])
    for q in range(2):
        R('ds_write_b128 %s, %s offset:%d' % (v(vA + 4 + q), v(aV + 4 * q, 4), L_PHI))
    R(sm[-16:])
    for q in range(2, 4):
        R('ds_write_b128 %s, %s offset:%d' % (v(vA + 4 + q), v(aV + 4 * q, 4), L_PHI))
    vKV = vXR
    R([a.unstash('kvphi', vKV), a.unstash('kvv', vKV + 2), 'v_xor_b32 %s, 32, %s' % (v(vKV + 1), v(vKV)),
       'v_xor_b32 %s, 32, %s' % (v(vKV + 3), v(vKV + 2))])
    for i in range(4):
        a('v_mov_b32 %s, s%d' % (v(aQ + 12 + i), sONES))
    a('s_waitcnt lgkmcnt(0)')
    a('s_barrier')
    a.stamp('B1')
    for s in range(4):
        R('ds_read_b64_tr_b16 %s, %s offset:%d' % (v(vWB + 8 * s, 2), v(vKV), L_PHI + 2048 * s))
        R('ds_read_b64_tr_b16 %s, %s offset:%d' % (v(vWB + 8 * s + 2, 2), v(vKV + 1), L_PHI + 2048 * s + 256))
        R('ds_read_b64_tr_b16 %s, %s offset:%d' % (v(vWB + 8 * s + 4, 2), v(vKV + 2), L_V + 2048 * s))
        R('ds_read_b64_tr_b16 %s, %s offset:%d' % (v(vWB + 8 * s + 6, 2), v(vKV + 3), L_V + 2048 * s + 256))
    a('v_lshlrev_b32 %s, 3, v0' % v(vA))
    R(a.unstash('zst', vA + 1))
    for s in range(4):
        R(mfma16(v(aK, 4), v(vWB + 8 * s, 4), v(vWB + 8 * s + 4, 4), '0' if s == 0 else v(aK, 4)))
        R(mfma16(v(aK + 4, 4), v(vWB + 8 * s, 4), v(aQ + 12, 4), '0' if s == 0 else v(aK + 4, 4)))
    for p in range(4):
        a('v_add_u32 %s, %d, %s' % (v(vWR + p), L_WQ, v(vWR + p)))
    R(blk_regs('bd2', vBD2))
    a('v_cvt_pk_bf16_f32 %s, %s, %s' % (v(aQ), v(aK), v(aK + 1)))
    a('v_cvt_pk_bf16_f32 %s, %s, %s' % (v(aQ + 1), v(aK + 2), v(aK + 3)))
    R('buffer_store_dwordx2 %s, %s, %s, s%d offen sc1' % (v(aQ, 2), v(vA), sr(S_WS), sREC))
    a('s_mov_b32 exec_lo, 0x00010001')
    a('s_mov_b32 exec_hi, 0x00010001')
    R('buffer_store_dwordx4 %s, %s, %s, s%d offen offset:2048 sc1' % (v(aK + 4, 4), v(vA + 1), sr(S_WS), sREC))
    R(Mark('kv'))
    a('s_mov_b64 exec, -1')
    a.stamp('kvst', 2)

    R(WaitVM('wq'))
    a('s_barrier')
    a.stamp('Bq', 2)
    def qoff(s):
        return (s >> 1) * 8192 + (s & 1) * 1024
    order = [(s, p) for p in range(4) for s in range(8)]
    def qreg(n):
        return (lambda o, k: v(vWB + 4 * n + o, k)) if n < 8 else (lambda o, k: ac(4 * (n - 8) + o, k))
    def qread(n):
        s, p = order[n]
        return ['ds_read_b64_tr_b16 %s, %s offset:%d' % (qreg(n)(2 * t, 2), v(vWR + p), qoff(s) + t * 256) for t in range(2)] + [Mark('q%d' % n)]
    for n in range(12):
        R(qread(n))
    a('v_mov_b32 %s, 0' % v(vT + 1))
    R(WaitDS('q7'))
    for r_ in range(32):
        d = csq if r_ & 1 else vT + 1
        a('v_dot2_f32_bf16 %s, %s, s%d, %s' % (v(d), v(vWB + r_), sONES, v(d)))
    a('v_lshlrev_b32 %s, 2, v0' % v(vT))
    a('v_add_f32 %s, %s, %s' % (v(csq), v(csq), v(vT + 1)))
    R('ds_write_b32 %s, %s offset:%d' % (v(vT), v(csq), L_CSQ))
    a.stamp('qdot', 2)
    qm, qp = [], []
    for n in range(32):
        s, p = order[n]
        g = []
        if n >= 8 and n % 4 == 0:
            g.append(WaitDS('q%d' % (n + 3)))
        g.append(mfma32(v(aQ, 16), qreg(n)(0, 4), v(X + (4 * s + p) * 4, 4), '0' if n == 0 else v(aQ, 16)))
        qm.append(g)
        qp.append(qread(n + 12) if n + 12 < 32 else [])
    n1 = cfg.get('q1', 12)
    a.fill(qm[:n1], window('Wb1') + ['v_lshlrev_b32 %s, 11, %s' % (v(vT), v(vL))], post=qp[:n1])
    a.stamp('q1', 2)
    R(WaitVM('kv'))
    a.stamp('kvack', 2)
    a('s_waitcnt lgkmcnt(0)')
    a('s_barrier')
    push_flags(sFA, 0, vT)
    lab = a.uniq('L_noid')
    a('s_getreg_b32 s%d, hwreg(HW_REG_XCC_ID, 0, 4)' % sXID)
    a('s_cmp_lg_u32 s%d, 0' % sW)
    a('s_cbranch_scc1 %s' % lab)
    a('s_add_u32 s%d, s%d, %d' % (sT5, sFME, 5 * 32768))
    a('v_add_u32 %s, s%d, %s' % (v(vT + 3), sXID, v(vONE)))
    a('s_mov_b64 exec, 1')
    a('buffer_store_dword %s, %s, %s, s%d offen sc1' % (v(vT + 3), v(vL4), sr(S_WS), sT5))
    a('s_mov_b64 exec, -1')
    a.label(lab)
    a.stamp('pushA')
    if cfg.get('ct1', 2):
        code_touch(cfg.get('ct1', 2), 2, vRB)
    R(touches('pa'))
    qx = ['ds_read_b32 %s, %s offset:%d' % (v(vA + 4 + w), v(vL4), L_CSQ + 256 * w) for w in range(4)]
    qy = ['v_add_f32 %s, %s, %s' % (v(vA + 4), v(vA + 4), v(vA + 5)),
          'v_add_f32 %s, %s, %s' % (v(vA + 6), v(vA + 6), v(vA + 7)),
          'v_add_f32 %s, %s, %s' % (v(csq), v(vA + 4), v(vA + 6))] + a_ext(vA + 4, csq, vT + 1)
    a.fill(qm[n1:], qx + merge(window('Wb2'), qy), post=qp[n1:])
    R(mfma32(v(aQ, 16), v(vA + 4, 4), v(vBX, 4), v(aQ, 16)))
    XR = vWB + 24
    R([a.unstash('w2', vW2), 'v_xor_b32 %s, 512, %s' % (v(vW2 + 1), v(vW2)),
       'v_add_u32 %s, %d, %s' % (v(vW2 + 2), R2, v(vW2)), 'v_add_u32 %s, %d, %s' % (v(vW2 + 3), R2, v(vW2 + 1))])
    R(a.unstash('bd1', vB1))
    for q in range(1, 4):
        a('v_add_u32 %s, %d, %s' % (v(vB1 + q), (q >> 1) * 8 * 3584 + (q & 1) * 128 - 1024 * q, v(vB1)))
    R(window('Wb3'))
    R(touches('b3'))
    a.stamp('qgemm', 2)
    for i in range(8):
        a('v_cvt_pk_bf16_f32 %s, %s, %s' % (v(vWB + i), v(aQ + 2 * i), v(aQ + 2 * i + 1)))
    R(mfma32(v(aK, 16), ac(PA1, 4), v(vWB, 4), '0'))
    R(mfma32(v(aK, 16), ac(PA2, 4), v(vWB + 4, 4), v(aK, 16)))
    R([a.unstash('gld', vA), a.unstash('zld', vA + 1), a.unstash('kbw', vA + 2), a.unstash('kbz', vA + 3), a.unstash('kbr', vA + 4),
       'v_lshlrev_b32 %s, 7, %s' % (v(vL128), v(vL))])
    PQ = aQ
    sm = softmax_ops(aK, vWB, PQ, cexp, aV)
    for q in range(4):
        sm.append('v_permlane32_swap_b32 %s, %s' % (v(PQ + q), v(PQ + 4 + q)))
        sm.append('v_permlane32_swap_b32 %s, %s' % (v(PQ + 8 + q), v(PQ + 12 + q)))
    ns = cfg.get('smpre', 20)
    R(sm[:ns])
    a.stamp('qsm', 2)

    poll(0, 16)
    a('s_barrier')
    a.stamp('gotA')
    G = X + 64
    GZ = X + 96
    gl = []
    for p in range(8):
        g = ['buffer_load_dwordx4 %s, %s, %s, s%d offen sc1' % (v(G + 4 * p, 4), v(vA), sr(S_WS), sGAT)]
        if p == 0:
            g.append('buffer_load_dwordx4 %s, %s, %s, s%d offen offset:2048 sc1' % (v(GZ, 4), v(vA + 1), sr(S_WS), sGAT))
        if p < 7:
            g.append('s_add_u32 s%d, s%d, %d' % (sGAT, sGAT, 2 * KVREC))
        if p % 2 == 1:
            g.append(Mark('g%d' % (p // 2)))
        gl.append(g)
    ng = cfg.get('gfirst', 8)
    R(gl[:ng])
    a.stamp('gl', 2)
    a.stamp('park0', 2)
    e0 = max(ns, cfg.get('gsplit', 66))
    R(sm[ns:e0])
    R(gl[ng:])
    vID = vS + 1
    R(check_issue(5, vID, None))
    lab = a.uniq('L_nowf')
    a('s_cmp_lg_u32 s%d, 1' % sW)
    a('s_cbranch_scc1 %s' % lab)
    a('v_lshlrev_b32 %s, 15, %s' % (v(vRB), v(vL)))
    a('v_lshlrev_b32 %s, 7, %s' % (v(vT + 3), v(vL)))
    a('v_add_u32 %s, %d, %s' % (v(vT + 3), 3 * 32768 - 5 * 128, v(vT + 3)))
    a('v_cmp_lt_u32 vcc, 5, %s' % v(vL))
    a('v_cndmask_b32 %s, %s, %s, vcc' % (v(vRB), v(vRB), v(vT + 3)))
    a('s_mov_b64 exec, 0xde')
    a('buffer_load_dword %s, %s, %s, s%d offen sc1' % (v(vRB), v(vRB), sr(S_WS), sFB))
    a('s_mov_b64 exec, -1')
    a.label(lab)
    R(window('Wc'))
    R(touches('wc'))
    a.stamp('gl2', 2)
    R(sm[e0:])
    a.stamp('sm2', 2)
    R([a.unstash('xd', vT), 'v_add_u32 %s, %d, %s' % (v(vT + 1), 16384 - 1024, v(vT)),
       's_add_u32 m0, s%d, %d' % (sLW2, R2 + 4096),
       'buffer_load_dwordx4 %s, %s, s%d offen lds' % (v(vT), sr(S_X), sOUT),
       'buffer_load_dwordx4 %s, %s, s%d offen offset:1024 lds' % (v(vT + 1), sr(S_X), sOUT), Mark('xr')])
    a.stamp('qsm2', 2)
    for sh in (1, 2, 4, 8):
        for i in range(4):
            a('v_add_f32_dpp %s, %s, %s row_ror:%d row_mask:0xf bank_mask:0xf' % (v(GZ + i), v(GZ + i), v(GZ + i), sh))
    a('v_cvt_pk_bf16_f32 %s, %s, %s' % (v(aK + 6), v(GZ), v(GZ + 1)))
    a('v_cvt_pk_bf16_f32 %s, %s, %s' % (v(aK + 7), v(GZ + 2), v(GZ + 3)))
    R('ds_write_b64 %s, %s offset:%d' % (v(vA + 3), v(aK + 6, 2), 16 * 80))
    S8 = aK + 8
    for p in range(8):
        if p % 2 == 0:
            R(WaitVM('g%d' % (p // 2)))
        for i in range(8):
            a('v_dot2_f32_bf16 %s, %s, s%d, %s' % (v(S8 + i), v(G + 4 * p + (i >> 1)), sSEL1 if i & 1 else sSEL0,
                                                  '0' if p == 0 else v(S8 + i)))
    for i in range(4):
        a('v_permlane32_swap_b32 %s, %s' % (v(S8 + i), v(S8 + 4 + i)))
    a('v_pk_add_f32 %s, %s, %s' % (v(aK, 2), v(S8, 2), v(S8 + 4, 2)))
    a('v_pk_add_f32 %s, %s, %s' % (v(aK + 2, 2), v(S8 + 2, 2), v(S8 + 6, 2)))
    a('v_cvt_pk_bf16_f32 %s, %s, %s' % (v(aK + 4), v(aK), v(aK + 1)))
    a('v_cvt_pk_bf16_f32 %s, %s, %s' % (v(aK + 5), v(aK + 2), v(aK + 3)))
    a.stamp('gdot', 2)
    R('ds_write_b64 %s, %s' % (v(vA + 2), v(aK + 4, 2)))
    check_done(5, 16, vID, None)
    R(WaitVM('o3'))
    a('s_waitcnt lgkmcnt(0)')
    a('s_barrier')
    a.stamp('B4', 2)
    for h in range(2):
        for s in range(2):
            R('ds_read_b128 %s, %s offset:%d' % (v(vWB + (h * 2 + s) * 4, 4), v(vA + 4), h * 17 * 80 + s * 32))
    for h in range(2):
        acc = v(aK if h == 0 else aV, 16)
        R(mfma32(acc, v(vWB + h * 8, 4), v(PQ + 4 * h, 4), '0'))
        R(mfma32(acc, v(vWB + h * 8 + 4, 4), v(PQ + 8 + 4 * h, 4), acc))
    for h in range(2):
        acc = aK if h == 0 else aV
        a('v_add_f32 %s, 0x358637bd, %s' % (v(acc + 8), v(acc + 8)))
        a('v_rcp_f32 %s, %s' % (v(acc + 8), v(acc + 8)))
        if h == 0:
            for i in range(8):
                a('v_mul_f32 %s, %s, %s' % (v(acc + i), v(acc + i), v(acc + 8)))
        else:
            for i in range(0, 8, 2):
                a('v_pk_mul_f32 %s, %s, %s op_sel_hi:[1,0]' % (v(acc + i, 2), v(acc + i, 2), v(acc + 8, 2)))
        for i in range(4):
            a('v_cvt_pk_bf16_f32 %s, %s, %s' % (v(acc + 12 + i), v(acc + 2 * i), v(acc + 2 * i + 1)))
        dual(['buffer_store_dwordx4 %s, %s, %s, s%d offen offset:%d' % (v(acc + 12, 4), v(vFR), sr(S_WS), sOST, h * 1024)], cfg.get('lo', 0))
    R(Mark('o'))
    a.stamp('ost', 2)
    vWO = vXD
    R([a.unstash('wo', vWO), 'v_xor_b32 %s, 512, %s' % (v(vWO + 1), v(vWO))])
    R([a.unstash('w1', vW1), 'v_add_u32 %s, 65536, %s' % (v(vW1 + 1), v(vW1)), a.unstash('xr', vT)])
    R([a.unstash('red3', vA), 'v_xor_b32 %s, 16384, %s' % (v(vA + 1), v(vA))])
    wop = []
    for s in range(16):
        for rho in range(2):
            for t in range(2):
                wop.append('ds_read_b64_tr_b16 %s, %s offset:%d' % (ac((s * 2 + rho) * 4 + 2 * t, 2), v(vWO + rho), s * 2048 + t * 256))
    R(merge(wop, window('Wd0')))
    R(WaitVM('o'))
    a('s_waitcnt lgkmcnt(0)')
    a('s_barrier')
    arrive(1)
    a.stamp('pushB')
    if cfg.get('ct3', 2):
        code_touch(cfg.get('ct3', 2), 2, vRB)
    R(['ds_read_b128 %s, %s' % (v(XR, 4), v(vT)), 'ds_read_b128 %s, %s offset:16' % (v(XR + 4, 4), v(vT))])
    k1 = 4 * landed('Wc')
    R(merge(w1_reads(0, k1), window('Wd')))
    R(Mark('Wd'))
    for i in range(8):
        a('v_lshlrev_b32 %s, 16, %s' % (v(aQ + 2 * i), v(XR + i)))
        a('v_and_b32 %s, 0xffff0000, %s' % (v(aQ + 2 * i + 1), v(XR + i)))
    a.stamp('wopark', 2)

    poll(1, 16)
    R(WaitVM('Wd'))
    a('s_waitcnt lgkmcnt(0)')
    a('s_barrier')
    a.stamp('gotB')
    OB = X + 64
    ol = []
    for s in range(16):
        g = []
        if s % 4 == 0:
            g += ['s_add_u32 s%d, s%d, s%d' % (sT2, sR3, sOLD)] + step(sR3, 4096, 16384)
        g.append('buffer_load_dwordx4 %s, %s, %s, s%d offen offset:%d %s' % (v(OB + 4 * s, 4), v(vFR), sr(S_WS), sT2, (s % 4) * 1024, SC))
        ol.append(g)
    no = cfg.get('ofirst', 10)
    R(ol[:no])
    a.stamp('old', 2)
    n3 = cfg.get('p3split', 5)
    o3 = [(s, rho) for s in range(16 - n3) for rho in range(2)] + [(s, 1) for s in range(16 - n3, 16)] + [(s, 0) for s in range(16 - n3, 16)]
    pm = []
    for s, rho in o3:
        acc = v(aK if rho == 0 else aV, 16)
        pm.append([mfma32(acc, ac((s * 2 + rho) * 4, 4), v(OB + 4 * s, 4), (v(aQ, 16) if rho == 0 else '0') if s == 0 else acc)])
    k2 = min(16, 4 * landed('Wd'))
    R(w1_reads(k1, k2))
    if where['p1'] == 6:
        R(w2_park(1))
    a.stamp('park1', 2)
    post = [[] for _ in pm]
    for k, g in enumerate(ol[no:]):
        post[2 * k] = g
    r3w = ['ds_write_b128 %s, %s offset:%d' % (v(vA), v(aV + 4 * q, 4), q * 1024) for q in range(4)]
    if n3 >= 4:
        post[30] = post[30] + r3w[:2]
        post[31] = post[31] + r3w[2:]
        r3w = []
    if where['p1'] != 7:
        a.fill(pm, window('We'), cfg.get('wefirst', 14), 28, post=post)
    else:
        a.fill(pm, window('We') + [WaitVM('p1')] + w2_park(1), 14, post=post)
    a.stamp('p3mf', 2)
    R(r3w)
    a('s_waitcnt lgkmcnt(0)')
    a('s_barrier')
    for q in range(4):
        R('ds_read_b128 %s, %s offset:%d' % (v(aV + 4 * q, 4), v(vA + 1), q * 1024))
    HP = vA
    for half in range(2):
        for i in range(8 * half, 8 * half + 8, 2):
            a('v_pk_add_f32 %s, %s, %s' % (v(aK + i, 2), v(aK + i, 2), v(aV + i, 2)))
        for i in range(8 * half, 8 * half + 8, 2):
            a('v_cvt_pk_bf16_f32 %s, %s, %s' % (v(HP + i // 2), v(aK + i), v(aK + i + 1)))
        dual(['buffer_store_dwordx4 %s, %s, %s, s%d offen offset:%d' % (v(HP + 4 * half, 4), v(vFR), sr(S_WS), sHST, half * 1024)], cfg.get('lh', 0))
    for i in range(8):
        a('v_dot2_f32_bf16 %s, %s, s%d, %s' % (v(vT), v(HP + i), sONES, '0' if i == 0 else v(vT)))
        a('v_dot2_f32_bf16 %s, %s, %s, %s' % (v(vT + 1), v(HP + i), v(HP + i), '0' if i == 0 else v(vT + 1)))
    a('v_permlane32_swap_b32 %s, %s' % (v(vT), v(vT + 1)))
    a('v_add_f32 %s, %s, %s' % (v(vT), v(vT), v(vT + 1)))
    dual(['buffer_store_dword %s, %s, %s, s%d offen' % (v(vT), v(vL4), sr(S_WS), sSST)], cfg.get('lh', 0))
    R(Mark('h'))
    a.stamp('hst', 2)
    R(a.unstash('bias', vT + 2))
    R('buffer_load_ushort %s, %s, %s, 0 offen' % (v(vS + 12), v(vT + 2), sr(S_B1)))
    R(window('Wf0'))
    R(w1_dots(0, k2))
    R(['v_add_u32 %s, %d, %s' % (v(vW2c), R1, v(vW2)), 'v_add_u32 %s, %d, %s' % (v(vW2c + 1), R1, v(vW2 + 1))])
    R(WaitVM('h'))
    if cfg.get('rbh', 0):
        R(readback(sHST, 16, vRB, sSST))
    a('s_barrier')
    arrive(2)
    a.stamp('pushC')
    if cfg.get('ct2', 4):
        code_touch(cfg.get('ct2', 4), 2, vRB)
    a('s_or_b32 s%d, s%d, s%d' % (sT2, sFME, sW))
    a('s_cmp_lg_u32 s%d, %d' % (sT2, 15 * 4))
    a('s_cbranch_scc1 L_noep')
    a('s_mov_b32 s%d, 0x%x' % (sT2, EPOCH))
    a('s_mov_b64 exec, 1')
    a('buffer_store_dword %s, %s, %s, s%d offen sc1' % (v(vONE), v(vL4), sr(S_WS), sT2))
    a('s_mov_b64 exec, -1')
    a.label('L_noep')
    R(window('Wf'))
    vAL = vXD
    a('v_add_u32 %s, s%d, %s' % (v(vAL), sALD, v(vFR)))
    a('v_add_u32 %s, %d, %s' % (v(vAL + 1), 112 * 1024, v(vAL)))
    a('s_mul_i32 s%d, s%d, %d' % (sT2, sP, 112 * 1024))
    a('s_sub_u32 s%d, %d, s%d' % (sT3, 3 * 112 * 1024, sT2))
    a('s_add_u32 s%d, s%d, %d' % (sT2, sT2, 2 * 112 * 1024))
    a('v_add_u32 %s, s%d, %s' % (v(vAL + 2), sT3, v(vAL)))
    a('v_add_u32 %s, s%d, %s' % (v(vAL + 3), sT2, v(vAL)))
    sM = [sCO, sC1, None, sR3]
    a('s_or_b32 s%d, s%d, s%d' % (sT2, sP, sTT))
    a('s_cmp_eq_u32 s%d, 0' % sT2)
    a('s_cselect_b32 s%d, 0x%x, 0' % (sM[0], LOG2E))
    a('s_cmp_gt_u32 s%d, s%d' % (sP, sTT))
    a('s_cselect_b32 s%d, 0x%x, 0' % (sM[1], LOG2E))
    a('s_cmp_eq_u32 s%d, 1' % sTT)
    a('s_cselect_b32 s%d, 0x%x, 0' % (sM[3], LOG2E))
    sx(sT2, [(sTT, 1 << 16), (sKH, 64)])
    a('s_sub_u32 s%d, s%d, s%d' % (sOUT, sOUT, sT2))
    sXS, sXR, sFPA = sREC, sGAT, sFA
    a('s_cmp_lg_u32 s%d, 0' % sLOC)
    a('s_cselect_b32 s%d, 0, 0x%x' % (sT2, XB - O_))
    sx(sXS, [(sT2, 1), (sI, 1 << 17), (sJ, 1 << 13), (sW, 1 << 11)], O_)
    a('s_xor_b32 s%d, s%d, 8192' % (sXR, sXS))
    a('s_xor_b32 s%d, s%d, 4' % (sFPA, sFME))
    vHR = vWR + 2
    a('v_mov_b32 %s, %s' % (v(vHR), v(vFR)))
    a('v_add_u32 %s, 65536, %s' % (v(vHR + 1), v(vFR)))
    a('s_lshl_b32 s%d, s%d, 10' % (sT2, sW))
    a('v_add_u32 %s, s%d, %s' % (v(vWR), sT2, v(vHR + 1)))
    BX4 = vWB + 24
    AXR = vWB + 28
    a('v_mov_b32 %s, 0' % v(BX4 + 3))
    a('s_cmp_ge_u32 s%d, 14' % sJ)
    a('s_cbranch_scc1 L_idle')
    k3 = min(cfg.get('k3', 16), 4 * landed('We'))
    R(w1_reads(k2, k3))
    R(w1_dots(k2, k3))
    sx(sT2, [(sJ, 80 * 128), (sW, 20 * 128)])
    sx(sT3, [(sI, 4 << 15)], H_)
    a('v_lshlrev_b32 %s, 7, %s' % (v(vT + 1), v(vL)))
    a('v_add_u32 %s, s%d, %s' % (v(vT + 1), sT2, v(vT + 1)))
    a('v_min_u32 %s, %d, %s' % (v(vT + 1), 131072 - 128, v(vT + 1)))
    a.stamp('w1park', 2)

    poll(2, 16)
    R(WaitVM('g7'))
    a('s_waitcnt lgkmcnt(0)')
    a('s_barrier')
    a.stamp('gotC')
    def h_dma(tau, half):
        sb = sHL1 if half else sHL0
        return ['s_add_u32 m0, s%d, %d' % (sLW1, tau * 32768 + half * 16384)] + [
            'buffer_load_dwordx4 %s, %s, s%d offen offset:%d %s lds' % (v(vFR), sr(S_WS), sb, b * 1024, SC) for b in range(4)
        ] + ['s_add_u32 s%d, s%d, 32768' % (sb, sb), Mark('h%d%d' % (tau, half))]
    R(h_dma(0, 0))
    R(h_dma(0, 1))
    SB = aQ
    L_ST = L_BX + 8192
    st_dma = ['s_add_u32 m0, s%d, %d' % (sLW1, L_ST)] + [
        'buffer_load_dwordx4 %s, %s, s%d offen offset:%d %s lds' % (v(vFR), sr(S_WS), sSLD, b * 1024, SC) for b in range(4)] + [Mark('st')]
    st_reads = [WaitVM('st')] + ['ds_read_b32 %s, %s offset:%d' % (v(SB + ct), v(vWR + 1), ct * 256) for ct in range(16)]
    a('s_add_u32 s%d, s%d, %d' % (sT2, sLW1, L_ST))
    a('v_add_u32 %s, s%d, %s' % (v(vWR + 1), sT2, v(vL4)))
    if cfg.get('touchh', 0):
        a('s_mov_b64 exec, 0xfffff')
        R('buffer_load_dword %s, %s, %s, s%d offen %s' % (v(vT + 2), v(vT + 1), sr(S_WS), sT3, SC))
        a('s_mov_b64 exec, -1')
    H1E = cfg.get('h1e', 0)
    for hh_ in range(H1E):
        R(h_dma(1, hh_))
    R(w1_reads(k3, 32))
    TSH = cfg.get('tshadow', 1)
    if not TSH:
        R(tables())
    kd1, kd2 = cfg.get('dots', [32, 32])
    R(w1_dots(k3, kd1))
    aext = ['v_add_f32 %s, %s, %s' % (v(AXR + 3), v(cs1), v(cs1 + 1))] + split_hl(AXR + 3, vT + 1, vT, AXR) + [
        'v_cvt_pk_bf16_f32 %s, %s, 0' % (v(AXR + 1), v(vT)),
        'v_lshl_or_b32 %s, %s, 16, %s' % (v(AXR + 1), v(vS + 12), v(AXR + 1)),
        'v_mov_b32 %s, %s' % (v(AXR + 2), v(vS + 12)), 'v_mov_b32 %s, 0' % v(AXR + 3)]
    a('s_waitcnt lgkmcnt(0)')
    a.stamp('w1b', 2)
    BXA = A_STASH
    vCK = vS + 1
    NR, LA = 12, 8
    def bread(n):
        tau, ks = n >> 5, n & 31
        off = tau * 32768 + ks * 1024
        return ['ds_read_b128 %s, %s offset:%d' % (ac(4 * (n % NR), 4), v(vHR + (off >> 16)), off & 0xffff), Mark('b%d' % n)]
    stats = []
    for i in range(8):
        stats.append('v_add_f32 %s, %s, %s' % (v(SB + i), v(SB + i), v(SB + 8 + i)))
    for i in range(4):
        stats.append('v_add_f32 %s, %s, %s' % (v(SB + i), v(SB + i), v(SB + 4 + i)))
    stats += ['v_add_f32 %s, %s, %s' % (v(SB), v(SB), v(SB + 2)), 'v_add_f32 %s, %s, %s' % (v(SB + 1), v(SB + 1), v(SB + 3)),
              'v_add_f32 %s, %s, %s' % (v(SB), v(SB), v(SB + 1)), 'v_mov_b32 %s, %s' % (v(SB + 1), v(SB)),
              'v_permlane32_swap_b32 %s, %s' % (v(SB), v(SB + 1))]
    stats += ln_ops(SB, SB + 1, SB + 2, SB + 15)
    stats += ['v_mul_f32 %s, %s, %s' % (v(SB + 4), v(SB + 1), v(SB + 15)), 'v_sub_f32 %s, 0, %s' % (v(SB + 2), v(SB + 2))]
    stats += split_hl(SB + 2, SB + 5, SB + 6, SB + 3) + split_hl(SB + 4, SB + 7, SB + 8, SB + 3)
    stats += ['v_cvt_pk_bf16_f32 %s, %s, %s' % (v(SB + 12), v(SB + 5), v(SB + 6)),
              'v_cvt_pk_bf16_f32 %s, %s, %s' % (v(SB + 13), v(SB + 5), v(SB + 7)),
              'v_cvt_pk_bf16_f32 %s, %s, 0' % (v(SB + 14), v(SB + 8)),
              'v_mul_f32 %s, 0x%x, %s' % (v(SB + 15), LOG2E, v(SB + 15)),
              'ds_write_b128 %s, %s offset:%d' % (v(vWR), v(SB + 12, 4), L_BX - 65536)]

    ACCS = [aK, aV, vWB + 8]
    PKS = [aQ, aQ + 8]
    T = lambda e: v(vWB + e % 4)
    Y = lambda e: v(ACCS[(e >> 4) % 3] + (e & 15))
    C1 = lambda e: v(vS + 12 + ((e >> 4) & 1))
    def elem_ops(m, lim_=64):
        E, o = m >> 1, []
        ok = lambda e: 0 <= e < lim_
        if m % 2 == 0:
            if ok(E):
                o.append('v_mul_f32 %s, %s, %s' % (Y(E), Y(E), C1(E)))
            if ok(E - 1):
                o.append('v_fma_f32 %s, %s, s%d, s%d' % (T(E - 1), T(E - 1), sRS, sRS))
            if ok(E):
                o.append('v_exp_f32 %s, %s' % (T(E), Y(E)))
        else:
            if ok(E - 1):
                o.append('v_fma_f32 %s, %s, %s, 0.5' % (T(E - 1), T(E - 1), T(E - 1)))
            if ok(E - 2):
                o.append('v_fma_f32 %s, -%s, %s, %s' % (Y(E - 2), T(E - 2), Y(E - 2), Y(E - 2)))
            if ok(E - 1):
                o.append('v_rcp_f32 %s, %s' % (T(E - 1), T(E - 1)))
            if ok(E - 2) and E & 1:
                e = E - 2
                o.append('v_cvt_pk_bf16_f32 %s, %s, %s' % (v(PKS[(e >> 4) & 1] + (e & 15) // 2), Y(e - 1), Y(e)))
        return o
    def act_store(tau):
        return ['buffer_store_dwordx4 %s, %s, %s, s%d offen offset:%d %s' % (v(PKS[tau & 1] + 4 * h, 4), v(vFR), sr(S_WS), sAST, h * 1024, SC)
                for h in range(2)] + ['s_add_u32 s%d, s%d, %d' % (sAST, sAST, 112 * 1024), Mark('act%d' % tau)]
    def ext_regs(tau):
        return ['v_accvgpr_read_b32 %s, %s' % (v(BX4 + i), ac(BXA + 4 * tau + i)) for i in range(3)] + [
            'v_accvgpr_read_b32 %s, %s' % (C1(16 * tau), ac(BXA + 4 * tau + 3))]
    bx_reads = ['ds_read_b128 %s, %s offset:%d' % (ac(BXA + 4 * t_, 4), v(vHR + 1), L_BX - 65536 + t_ * 1024) for t_ in range(4)]

    bars = {10: 'h01', 26: 'h11', 58: 'h21', 90: 'h31'}
    lim = lambda n: 16 if n < 10 else (32 if n < 26 else (64 if n < 58 else (96 if n < 90 else 128)))
    M0 = 36
    def paced(items):
        out, cur = [], []
        for x in items:
            if isinstance(x, str) and x.startswith('buffer_'):
                out.append(cur + [x])
                cur = []
            elif isinstance(x, str) and 'm0' in x:
                cur.append(x)
            else:
                out[-1].append(x)
        return out
    at_mem, at_val = {}, {}
    kd0, kc0, kc1 = cfg.get('d0n', [100, 122, 127])
    def breg(m):
        return ac(48 + 4 * m, 4) if m < 14 else v(X + 4 * ((m - 14) % 16), 4)
    def bload(m):
        q, ks = m // 14, m % 14
        return ['buffer_load_dwordx4 %s, %s, %s, s%d offen offset:%d %s' % (
            breg(m), v(vAL + q), sr(S_WS), TAC + ks // 2, (ks % 2) * 1024, SC)]
    nb0 = cfg.get('nb0', 2)
    b0s = cfg.get('b0s', [kc1, 0])
    assert b0s[0] >= kc1
    for k in range(nb0):
        at_mem.setdefault(min(127, b0s[0] + int(b0s[1] * k)), []).extend(bload(k))
    busy = [-1]
    def place(n0, items, every=2):
        assert n0 > busy[0], (n0, busy)
        for k, g in enumerate(paced(items)):
            busy[0] = n0 + int(k * every)
            at_mem.setdefault(busy[0], []).extend(g)
    P = dict(h1=[6, 2], h2=[22, 2], p1=[38, 2], h3=[58, 2], p2=[76, 2], p3=[92, 2])
    if P0L[0]:
        P = dict(h1=[6, 2], h2=[22, 1.5], p0=[34, 1.5], p1=[46, 1.5], h3=[58, 2], p2=[76, 2], p3=[92, 2])
    P.update(cfg.get('p4plan', {}))
    assert P['p1'][0] >= 26 and P['h3'][0] >= 58 and P['p2'][0] >= 58 and P['p3'][0] >= 90
    if TSH:
        tb = tables()
        for k in range(0, len(tb), 3):
            at_mem.setdefault(8 + k // 3, []).extend(tb[k:k + 3])
    stp = cfg.get('stp', [0, 1.5])
    if stp[0] < P['h1'][0]:
        place(stp[0], st_dma, stp[1])
    ns_ = cfg.get('stn', 14)
    for k in range(4):
        at_mem.setdefault(ns_ + k // 2, []).extend(st_reads[4 * k + (1 if k else 0):4 * k + 5])
    for name in sorted(P, key=lambda z: P[z][0]):
        t_ = int(name[1])
        if name == 'h1':
            items = [x for hh_ in range(H1E, 2) for x in h_dma(1, hh_)]
            if items:
                place(P[name][0], items, P[name][1])
            if stp[0] > P['h1'][0]:
                place(stp[0], st_dma, stp[1])
        else:
            place(P[name][0], h_dma(t_, 0) + h_dma(t_, 1) if name[0] == 'h' else w2_dma(t_), P[name][1])
    at_mem.setdefault(27, []).extend(bx_reads)
    ks0 = cfg.get('st0', M0 + 38)
    assert ks0 >= M0 + 36
    at_mem.setdefault(ks0, []).extend(act_store(0))
    st1 = cfg.get('st1', M0 + 68)
    assert M0 + 68 <= st1 < 128
    at_mem.setdefault(st1, []).extend(act_store(1))
    nsp = 25 - (ns_ + 3)
    per = (len(stats) + nsp - 1) // nsp
    for k in range(nsp):
        at_val.setdefault(ns_ + 3 + k, []).extend(stats[k * per:(k + 1) * per])
    at_val.setdefault(26, []).extend(aext[:4])
    at_val.setdefault(27, []).extend(aext[4:])
    for tau in range(4):
        er = ext_regs(tau)
        at_val.setdefault(32 * tau + 29, []).extend(er[:2])
        at_val.setdefault(32 * tau + 30, []).extend(er[2:3])
        at_val.setdefault(32 * tau + 31, []).extend(er[3:])
    R(WaitVM('h00'))
    a('s_barrier')
    a.stamp('h00', 2)
    for n in range(LA):
        R(bread(n))
    nxt = LA
    for n in range(128):
        tau, ks = n >> 5, n & 31
        acc = v(ACCS[tau % 3], 16)
        if n == 10:
            R(w1_dots(kd1, kd2))
        if n == 26:
            R(w1_dots(kd2, 32))
        if n in bars:
            R([WaitVM(bars[n]), 's_waitcnt lgkmcnt(0)', 's_barrier'])
            a.stamp('bar%d' % n, 2)
        if n == kd0:
            R(WaitVM('act0'))
            a('s_barrier')
            arrive(3, 0)
            a.stamp('pushD0', 2)
        if n == kc0:
            R(check_issue((3, 0), vCK, 3))
        if n == kc1:
            check_done((3, 0), 14, vCK, 3)
            a('s_barrier')
            a.stamp('gotD0', 2)
        wp = cfg.get('wpar', 2)
        if (n % 4 == wp or n == 0) and n not in bars:
            R(WaitDS('b%d' % min(n + 3, nxt - 1)))
        if n in cfg.get('nstamp', []):
            a.stamp('n%d' % n, 2)
        R(mfma32(acc, v(X + 4 * ks, 4), ac(4 * (n % NR), 4), '0' if ks == 0 else acc))
        if ks == 31:
            R(mfma32(acc, v(AXR, 4), v(BX4, 4), acc))
        mem = at_mem.pop(n, [])
        R([x for x in mem if isinstance(x, str) and 'm0,' in x])
        k = 0
        while nxt < min(n + LA + 2, lim(n + 1) if n + 1 not in bars else lim(n)) and k < 2:
            R(bread(nxt))
            nxt += 1
            k += 1
        R([x for x in mem if not (isinstance(x, str) and 'm0,' in x)])
        R(elem_ops(n - M0) if n >= M0 else [])
        R(at_val.pop(n, []))
        if ks == 31:
            a.stamp('t%d' % tau, 2)
    assert not at_mem and not at_val, (at_mem.keys(), at_val.keys())
    tail = [x for m in range(128 - M0, 100) for x in elem_ops(m, 48)]
    n2_ = len(tail)
    if cfg.get('pktail', 1):
        A3, E3, K3 = ACCS[0], vWB + 8, vT
        tail += ['v_mov_b32 %s, s%d' % (v(K3), sRS), 'v_mov_b32 %s, 0.5' % v(K3 + 1)]
        for g in range(0, 16, 8):
            r2, r1 = range(g, g + 8, 2), range(g, g + 8)
            tail += ['v_pk_mul_f32 %s, %s, %s op_sel:[0,1] op_sel_hi:[1,1]' % (v(A3 + i, 2), v(A3 + i, 2), v(vS + 12, 2)) for i in r2]
            tail += ['v_exp_f32 %s, %s' % (v(E3 + i), v(A3 + i)) for i in r1]
            tail += ['v_pk_fma_f32 %s, %s, %s, %s op_sel_hi:[1,0,0]' % (v(E3 + i, 2), v(E3 + i, 2), v(K3, 2), v(K3, 2)) for i in r2]
            tail += ['v_pk_fma_f32 %s, %s, %s, %s op_sel:[0,0,1] op_sel_hi:[1,1,1]' % (v(E3 + i, 2), v(E3 + i, 2), v(E3 + i, 2), v(K3, 2)) for i in r2]
            tail += ['v_rcp_f32 %s, %s' % (v(E3 + i), v(E3 + i)) for i in r1]
            tail += ['v_pk_fma_f32 %s, %s, %s, %s neg_lo:[1,0,0] neg_hi:[1,0,0]' % (v(A3 + i, 2), v(E3 + i, 2), v(A3 + i, 2), v(A3 + i, 2)) for i in r2]
            tail += ['v_cvt_pk_bf16_f32 %s, %s, %s' % (v(PKS[1] + i // 2), v(A3 + i), v(A3 + i + 1)) for i in r2]
    else:
        tail = [x for m in range(128 - M0, 134) for x in elem_ops(m)]
        n2_ = sum(len(elem_ops(m)) for m in range(128 - M0, 100))
    h0, h1, h2, h3 = [min(x, len(tail)) for x in cfg.get('tail', [4, 28, 999, 999])]
    nb1 = cfg.get('nb1', 6)
    ev = {}
    def pd():
        R(WaitVM('act1'))
        a('s_barrier')
        arrive(3, 1)
        a.stamp('pushD1', 2)
    def cd():
        check_done((3, 1), 14, vCK, 3)
        a('s_barrier')
        a.stamp('gotD1', 2)
    assert h1 >= n2_
    for k in range(nb0, 14):
        ev.setdefault(min(h1, 3 * (k - nb0)), []).append(bload(k))
    D1P = cfg.get('d1p', [0, 3])
    ev.setdefault(h0, []).append(pd)
    if D1P:
        nb1 = 0
    else:
        ev.setdefault(h2, []).append(check_issue((3, 1), vCK, 3))
        ev.setdefault(h3, []).append(cd)
    left = len(tail) - h3
    for k in range(nb1):
        ev.setdefault(h3 + (k // 2) * 2 * left // max(nb1, 1), []).append(bload(14 + k))
    ev.setdefault(h1, []).append(act_store(2))
    for k in range(len(tail) + 1):
        R(ev.pop(k, []))
        if k < len(tail):
            R(tail[k])
    assert not ev
    R(act_store(3))
    a.stamp('mish', 2)
    join = (a.vmn, a.dsn)
    a('s_branch L_p5')
    a.label('L_idle')
    saved = dict(a.marks)
    R(tables())
    a('s_waitcnt vmcnt(0)')
    a('s_barrier')
    for q in range(0 if P0L[0] else 1, 4):
        R(w2_dma(q))
    if P0L[0]:
        a('s_waitcnt vmcnt(20)')
    poll((3, 0), 14, 3)
    a('s_barrier')
    for m in range(14):
        R(bload(m))
    if not D1P:
        poll((3, 1), 14, 3)
        a('s_barrier')
    for m in range(14, 14 + nb1):
        R(bload(m))
    a('s_mov_b64 exec, 1')
    for _ in range(4):
        a('buffer_load_dword %s, %s, %s, s%d offen sc1' % (v(vRB), v(vL4), sr(S_WS), sFB))
    a('s_mov_b64 exec, -1')
    a.vmn, a.dsn = join
    a.marks = saved
    a.label('L_p5')

    ACC = lambda q, rc: X + 64 + 32 * (q & 1) + 16 * rc
    RD, KEEP, SEND, HU = 32, 64, 72, vWB + 16
    def areads(ks):
        n, a_ = ks >> 1, ks & 1
        return w2_read(n >> 1, n & 1, a_, 0) + w2_read(n >> 1, n & 1, a_, 1)
    vRW, vRR, vOS = vWR, vXR, vXR + 1
    pre = [a.unstash('rw', vRW), a.unstash('rr', vRR), a.unstash('os', vOS), 'v_xor_b32 %s, 32, %s' % (v(vRW + 1), v(vRW)),
           'v_xor_b32 %s, %d, %s' % (v(vRW + 2), 4096 + 128, v(vRW)), 'v_xor_b32 %s, %d, %s' % (v(vRW + 3), 4096 + 128 + 32, v(vRW))]
    unpack = []
    for i in range(8):
        unpack.append('v_lshlrev_b32 %s, 16, %s' % (v(HU + 2 * i), v(HP + i)))
        unpack.append('v_and_b32 %s, 0xffff0000, %s' % (v(HU + 2 * i + 1), v(HP + i)))
    res = lambda q: ['v_fma_f32 %s, %s, s%d, %s' % (v(ACC(q, 0) + i), v(HU + i), sM[q], v(ACC(q, 0) + i)) for i in range(16)]
    ini = lambda q: ['v_mul_f32 %s, s%d, %s' % (v(ACC(q, 0) + i), sM[q], v(HU + i)) for i in range(16)]
    def red_writes(q):
        return ['ds_write_b128 %s, %s offset:%d' % (v(vRW + 2 * rc + (z >> 1)), v(ACC(q, rc) + 4 * z, 4), (q & 1) * 32768 + z * 1024)
                for rc in (1, 0) for z in range(4)]
    def red_reads(q):
        return ['ds_read_b128 %s, %s offset:%d' % (v(RD + 8 * src + 4 * e, 4), v(vRR), (q & 1) * 32768 + src * 8192 + e * 1024)
                for src in range(4) for e in range(2)]
    red_sum = (['v_add_f32 %s, %s, %s' % (v(RD + i), v(RD + i), v(RD + 8 + i)) for i in range(8)] +
               ['v_add_f32 %s, %s, %s' % (v(RD + 16 + i), v(RD + 16 + i), v(RD + 24 + i)) for i in range(8)] +
               ['v_add_f32 %s, %s, %s' % (v(RD + i), v(RD + i), v(RD + 16 + i)) for i in range(8)])
    def route(q):
        def f():
            lab = a.uniq('L_rt')
            a('s_cmp_eq_u32 s%d, %d' % (sP, q))
            a('s_cbranch_scc1 %s_k' % lab)
            for i in range(4):
                a('v_cvt_pk_bf16_f32 %s, %s, %s' % (v(SEND + i), v(RD + 2 * i), v(RD + 2 * i + 1)))
            a('s_branch %s_e' % lab)
            a.label(lab + '_k')
            for i in range(8):
                a('v_mov_b32 %s, %s' % (v(KEEP + i), v(RD + i)))
            a.label(lab + '_e')
        f.cost = 9
        return f
    pack2 = ['v_cvt_pk_bf16_f32 %s, %s, %s' % (v(SEND + 4 + i), v(RD + 2 * i), v(RD + 2 * i + 1)) for i in range(4)]
    def send():
        dual(['buffer_store_dwordx4 %s, %s, %s, s%d offen offset:%d' % (v(SEND + 4 * e, 4), v(vFR), sr(S_WS), sXS, e * 1024) for e in range(2)], 1)
        R(Mark('send'))
    send.cost = 5
    def finish(src, part, off):
        o = []
        for i in range(4):
            o += ['v_lshlrev_b32 %s, 16, %s' % (v(vT), v(part + i)), 'v_and_b32 %s, 0xffff0000, %s' % (v(vT + 1), v(part + i)),
                  'v_pk_add_f32 %s, %s, %s' % (v(src + 2 * i, 2), v(src + 2 * i, 2), v(vT, 2)),
                  'v_pk_mul_f32 %s, %s, %s op_sel_hi:[1,0]' % (v(src + 2 * i, 2), v(src + 2 * i, 2), v(vT + 2, 2)),
                  'v_cvt_pk_bf16_f32 %s, %s, %s' % (v(part + i), v(src + 2 * i), v(src + 2 * i + 1))]
        if off:
            o.append('s_add_u32 s%d, s%d, %d' % (sOUT, sOUT, off))
        o.append('buffer_store_dwordx4 %s, %s, %s, s%d offen %s' % (v(part, 4), v(vOS), sr(S_OUT), sOUT, cfg.get('outf', 'sc1')))
        return o
    ALA = 3
    for ks in range(ALA):
        R(areads(ks))
    sched, at_pre = {}, {}
    def put(n0, items, per):
        for k in range(0, len(items), per):
            sched.setdefault(n0 + k // per, []).extend(items[k:k + per])
    put(0, unpack, 3)
    put(6, pre, 3)
    put(8, ini(1), 3)
    rper, rbar = cfg.get('rsch', [1, 10])
    for q in range(2):
        n0 = 14 * (q + 1)
        rw = red_writes(q)
        put(n0 + 1, rw[:4], rper)
        if q == 0:
            put(n0 + 1, res(0), 8)
        put(n0 + 1 + 4 // rper, rw[4:], rper)
        at_pre[n0 + rbar] = ['s_waitcnt lgkmcnt(0)', 's_barrier']
        put(n0 + rbar, red_reads(q), 4)
        left_ = 13 - (rbar + 2)
        put(n0 + rbar + 2, red_sum, (24 + left_ - 1) // left_)
        put(n0 + 13, [route(q)], 5)
    f0, f1, f2 = cfg.get('fsch', [3, 7, 12])
    put(43, red_writes(2), 8 // (f0 - 1))
    at_pre[42 + f0] = ['s_waitcnt lgkmcnt(0)', 's_barrier']
    put(42 + f0, red_reads(2), 8)
    put(42 + f0 + 1, red_sum + pack2, (28 + f1 - f0 - 2) // (f1 - f0 - 1))
    put(42 + f1, [send], 1)
    at_pre[42 + f2] = [WaitVM('send'), 's_barrier', lambda: arrive(4, 0), a.stamper('pushF')]
    put(28 + rbar + 1, ini(3), 6)
    if cfg.get('xtouch', 1):
        put(30, pretouch(sXS, 16, vRB), 1)
    ke, kc2, kc3 = cfg.get('d23', [12, 16, 20])
    PRE = cfg.get('p5pre', 12)
    nxt = 14 + nb1
    nl = cfg.get('lastsplit', 5)
    order5 = [(n, rc) for n in range(56) for rc in range(2)]
    order5 = order5[:-2 * nl] + [(n, 1) for n in range(56 - nl, 56)] + [(n, 0) for n in range(56 - nl, 56)]
    rw3 = red_writes(3)
    for n in range(56):
        q, ks = n // 14, n % 14
        side = []
        post = [[], []]
        if q == 0 and ks + ALA < 14:
            ar = areads(ks + ALA)
            post = [ar[:2], ar[2:]]
        if D1P and n == D1P[0]:
            R(check_issue((3, 1), vCK, 3))
        if D1P and n == D1P[1]:
            cd()
        if n == ke:
            R(WaitVM('act3'))
            a('s_barrier')
            lab = a.uniq('L_noe')
            a('s_cmp_ge_u32 s%d, 14' % sJ)
            a('s_cbranch_scc1 %s' % lab)
            arrive(3, 2)
            a.label(lab)
            a.stamp('pushE', 2)
        if n == kc2:
            R(check_issue((3, 2), vCK, 3))
        if n == kc3:
            check_done((3, 2), 14, vCK, 3)
            if n not in at_pre:
                a('s_barrier')
            a.stamp('gotE', 2)
        R(at_pre.pop(n, []))
        k = 0
        while nxt < min(56, n + 1 + PRE, 28 if n < kc3 else 56, 14 if (D1P and n < D1P[1]) else 56) and k < 2:
            side += bload(nxt)
            nxt += 1
            k += 1
        side += sched.pop(n, [])
        mm = []
        for n_, rc in order5[2 * n:2 * n + 2]:
            q_, ks_ = n_ // 14, n_ % 14
            acc = v(ACC(q_, rc), 16)
            mm.append([mfma32(acc, ac(w2reg(ks_, rc), 4), breg(n_), '0' if (ks_ == 0 and not (rc == 0 and q_ in (1, 3))) else acc)])
        if n == 55:
            side += rw3[:4]
        a.fill(mm, side, post=post)
        if n % 14 == 13:
            a.stamp('q%d' % q, 2)
    assert not sched and not at_pre
    R(check_issue((4, 0, sFPA), vCK, 3))
    R(rw3[4:])
    check_done((4, 0, sFPA), 1, vCK, 3)
    a('s_waitcnt lgkmcnt(0)')
    a('s_barrier')
    a.stamp('p5mf')
    for e in range(2):
        R('buffer_load_dwordx4 %s, %s, %s, s%d offen offset:%d sc1' % (v(SEND + 4 * e, 4), v(vFR), sr(S_WS), sXR, e * 1024))
    R(red_reads(3))
    a('v_mov_b32 %s, s%d' % (v(vT + 2), sLN2))
    R(red_sum)
    a.stamp('B12', 2)
    R(finish(KEEP, SEND, 0))
    R(finish(RD, SEND + 4, 65536))
    if cfg.get('stamps'):
        a('s_waitcnt vmcnt(0)')
        a.stamp('end')
        assert a.nstamp <= 64
        a('s_cmp_lg_u32 s%d, %d' % (sW, cfg.get('swave', 0)))
        a('s_cbranch_scc1 L_end')
        if 'dirty' in cfg:
            a('s_lshl_b32 s%d, s2, 16' % sT0)
            a('s_add_u32 s%d, s%d, 0x2000000' % (sT0, sT0))
            for n in range(cfg['dirty']):
                a('buffer_store_dwordx4 %s, %s, %s, s%d offen %s' % (v(X, 4), v(vFR), sr(S_WS), sT0, cfg.get('dirtyf', '')))
                a('s_add_u32 s%d, s%d, 1024' % (sT0, sT0))
            a('s_waitcnt vmcnt(0)')
        if 'probe' in cfg:
            a('v_readlane_b32 s%d, v4, %d' % (sT0, cfg['probe']))
            a('v_readlane_b32 s%d, v4, 0' % sT2)
            a('s_sub_u32 s%d, s%d, s%d' % (sT0, sT0, sT2))
            a('s_cmp_ge_u32 s%d, 14' % sJ)
            a('s_cselect_b32 s%d, 0, s%d' % (sT0, sT0))
            a('s_min_u32 s%d, s%d, 10000' % (sT0, sT0))
            a('s_lshl_b32 s%d, s%d, 2' % (sT0, sT0))
            a('s_add_u32 s%d, s%d, 10000' % (sT0, sT0))
            a.label('L_probe')
            a('s_memrealtime s[%d:%d]' % (S_ST, S_ST + 1))
            a('s_waitcnt lgkmcnt(0)')
            a('s_sub_u32 s%d, s%d, s%d' % (sT1, S_ST, sT2))
            a('s_cmp_lt_u32 s%d, s%d' % (sT1, sT0))
            a('s_cbranch_scc1 L_probe')
        a('s_lshl_b32 s%d, s2, 8' % sT0)
        a('s_add_u32 s%d, s%d, 0x%x' % (sT0, sT0, STAMP))
        a('buffer_store_dword v4, %s, %s, s%d offen' % (v(vL4), sr(S_WS), sT0))
    a.label('L_end')
    a('s_endpgm')
    return finalize(a), a.names


HEADER = open('header.txt').read().rstrip('\n').split('\n')


def build(cfg, path):
    body, names = gen(cfg)
    k = kernel_text(NAME + '_kernel', body, vgprs=512, accum=256, sgprs=102)
    hdr = HEADER + ['; @launch grid=(256,1,1) block=(256,1,1) lds=163840']
    if names:
        hdr.append('; stamps: ' + ' '.join(names))
        if cfg.get('cyc'):
            hdr.append('; cycle stamps')
    open(path, 'w').write(module_text(hdr, [k]))


if __name__ == '__main__':
    build(json.loads(sys.argv[2]) if len(sys.argv) > 2 else {}, sys.argv[1])
```

```python
import re

REG_RE = re.compile(r'^(-|abs\(|\|)?([vas])(\d+|\[(\d+):(\d+)\])')


def regs_of(tok):
    tok = tok.strip()
    t = tok
    for pre in ('-abs(', 'abs(', '-|', '|', '-', 'neg(', 'sext('):
        if t.startswith(pre):
            t = t[len(pre):]
            break
    t = t.rstrip(')|')
    m = re.match(r'^([vas])\[(\d+):(\d+)\]$', t)
    if m:
        return {(m.group(1), i) for i in range(int(m.group(2)), int(m.group(3)) + 1)}
    m = re.match(r'^([vas])(\d+)$', t)
    if m:
        return {(m.group(1), int(m.group(2)))}
    if t == 'vcc':
        return {('s', 'vcc_lo'), ('s', 'vcc_hi')}
    if t in ('vcc_lo', 'vcc_hi'):
        return {('s', t)}
    if t == 'exec':
        return {('s', 'exec_lo'), ('s', 'exec_hi')}
    if t in ('exec_lo', 'exec_hi'):
        return {('s', t)}
    if t == 'm0':
        return {('s', 'm0')}
    return set()


def split_ops(s):
    out, depth, cur = [], 0, ''
    for ch in s:
        if ch in '[(':
            depth += 1
        elif ch in '])':
            depth -= 1
        if ch == ',' and depth == 0:
            out.append(cur.strip())
            cur = ''
        else:
            cur += ch
    if cur.strip():
        out.append(cur.strip())
    return out


TRANS = ('v_exp_f32', 'v_log_f32', 'v_rcp_f32', 'v_rsq_f32', 'v_sqrt_f32', 'v_sin_f32', 'v_cos_f32',
         'v_rcp_iflag_f32')
DPP_RE = re.compile(r'quad_perm|row_shr|row_shl|row_ror|row_bcast|row_mirror|row_half_mirror|wave_sh|wave_ro|row_newbcast')
EXEC = {('s', 'exec_lo'), ('s', 'exec_hi')}
VCC = {('s', 'vcc_lo'), ('s', 'vcc_hi')}
M0 = {('s', 'm0')}
SALU_NODST = ('s_cmp', 's_waitcnt', 's_branch', 's_cbranch', 's_barrier', 's_nop', 's_setprio', 's_sleep',
              's_endpgm', 's_bitcmp', 's_setreg', 's_sethalt', 's_setpc')


class Ins:
    def __init__(self, text):
        self.text = text
        self.label = None
        body = text.split(';')[0].strip()
        self.is_label = body.endswith(':')
        self.is_dir = body.startswith('.') and not self.is_label
        self.mn = ''
        self.reads, self.writes = set(), set()
        self.srcA = self.srcB = self.srcC = set()
        self.cls = 'other'
        self.target = None
        self.dpp = False
        self.lanesel = set()
        self.opsel_dst = False
        self.store_data = set()
        self.vm = self.lgkm = False
        self.smem = False
        self.load_dst = set()
        self.ldsdma = False
        if self.is_label:
            self.label = body[:-1]
            self.cls = 'label'
            return
        if self.is_dir or not body:
            self.cls = 'dir'
            return
        parts = body.split(None, 1)
        mn = self.mn = parts[0]
        rest = parts[1] if len(parts) > 1 else ''
        ops = split_ops(rest)
        mods = ''
        if ops:
            last = ops[-1].split(None, 1)
            if len(last) > 1 and not ops[-1].startswith('hwreg') and not mn.startswith('s_waitcnt'):
                ops[-1] = last[0]
                mods = last[1]
        self.ops, self.mods = ops, mods
        R = [regs_of(o) for o in ops]
        base = re.sub(r'_(e32|e64|dpp|sdwa)$', '', mn)
        self.base = base
        allr = set().union(*R) if R else set()
        if mn.startswith('v_mfma'):
            self.cls = 'mfma'
            self.writes = R[0]
            self.srcA, self.srcB, self.srcC = R[1], R[2], R[3]
            self.reads = R[1] | R[2] | R[3]
            if '32x32x16' in mn or '32x32x8' in mn:
                self.passes = 8
            elif '16x16x32' in mn or '16x16x16' in mn:
                self.passes = 4
            elif '4x4x4' in mn:
                self.passes = 2
            else:
                raise ValueError('unknown mfma ' + mn)
        elif mn.startswith('v_'):
            self.cls = 'valu'
            self.dpp = bool(DPP_RE.search(mods)) or mn.endswith('_dpp')
            if base == 'v_nop':
                pass
            elif base.startswith('v_cmpx'):
                self.writes = R[0] | EXEC
                self.reads = set().union(*R[1:])
            elif base.startswith('v_cmp'):
                self.writes = R[0]
                self.reads = set().union(*R[1:])
            elif base in ('v_add_co_u32', 'v_sub_co_u32', 'v_subrev_co_u32', 'v_addc_co_u32', 'v_subb_co_u32',
                          'v_div_scale_f32', 'v_mad_u64_u32'):
                self.writes = R[0] | R[1]
                self.reads = set().union(*R[2:])
            elif base.startswith('v_permlane') or base == 'v_swap_b32':
                self.writes = R[0] | R[1]
                self.reads = R[0] | R[1]
            elif base in ('v_readlane_b32',):
                self.writes = R[0]
                self.reads = R[1] | R[2]
                self.lanesel = R[2]
            elif base in ('v_writelane_b32',):
                self.writes = R[0]
                self.reads = R[0] | R[1] | R[2]
                self.lanesel = R[2]
            else:
                self.writes = R[0]
                self.reads = set().union(*R[1:]) if len(R) > 1 else set()
                if base.startswith(('v_fmac', 'v_dot2c', 'v_dot4c', 'v_pk_fmac')) or self.dpp or mn.endswith('_sdwa'):
                    self.reads |= R[0]
                if base == 'v_div_fmas_f32':
                    self.reads |= VCC
            if mn.endswith('_sdwa') and 'dst_sel:DWORD' not in mods and 'dst_sel' in mods:
                self.opsel_dst = True
            if 'op_sel:' in mods and not base.startswith('v_pk_'):
                self.opsel_dst = True
            self.trans = base in TRANS
            self.dot = base.startswith('v_dot')
        elif mn.startswith('ds_'):
            self.cls = 'ds'
            self.lgkm = True
            if mn.startswith(('ds_read', 'ds_bpermute', 'ds_permute', 'ds_swizzle')) or '_rtn' in mn:
                self.writes = R[0]
                self.load_dst = R[0]
                self.reads = set().union(*R[1:]) if len(R) > 1 else set()
            else:
                self.reads = allr
            if 'addtid' in mn:
                self.reads |= M0
        elif mn.startswith('buffer_') or mn.startswith('global_'):
            self.cls = 'vmem'
            self.vm = True
            toks = mods.split()
            if mn.startswith(('buffer_wbl2', 'buffer_inv')):
                pass
            elif mn.startswith('global_load_lds') or (mn.startswith('buffer_load') and 'lds' in toks):
                self.ldsdma = True
                self.reads = allr | M0
            elif '_load' in mn:
                self.writes = R[0]
                self.load_dst = R[0]
                self.reads = set().union(*R[1:])
            elif 'atomic' in mn:
                ret = 'sc0' in toks
                if mn.startswith('buffer_'):
                    self.reads = allr
                    if ret:
                        self.writes = R[0]
                        self.load_dst = R[0]
                else:
                    if ret:
                        self.writes = R[0]
                        self.load_dst = R[0]
                        self.reads = set().union(*R[1:])
                    else:
                        self.reads = allr
            else:
                self.reads = allr
                if mn.endswith(('x3', 'x4')):
                    self.store_data = R[0] if mn.startswith('buffer_') else R[1]
        elif mn.startswith(('s_load', 's_buffer_load', 's_memtime', 's_memrealtime', 's_atomic')):
            self.cls = 'smem'
            self.lgkm = True
            self.smem = True
            self.writes = R[0]
            self.load_dst = R[0]
            self.reads = set().union(*R[1:]) if len(R) > 1 else set()
        elif mn.startswith('s_'):
            self.cls = 'salu'
            if mn.startswith(SALU_NODST):
                self.reads = allr
                if mn.startswith(('s_branch', 's_cbranch')):
                    self.target = ops[0]
                    if 'vcc' in mn:
                        self.reads = VCC
                    if 'exec' in mn:
                        self.reads = EXEC
            else:
                self.writes = R[0] if R else set()
                self.reads = set().union(*R[1:]) if len(R) > 1 else set()
                if 'saveexec' in mn:
                    self.writes = self.writes | EXEC
                    self.reads = self.reads | EXEC
                if mn.startswith(('s_addk', 's_mulk', 's_cmov', 's_bitset')):
                    self.reads = self.reads | R[0]
        else:
            raise ValueError('unknown instruction: ' + text)

    def states(self):
        if self.cls in ('label', 'dir'):
            return 0
        if self.mn == 's_nop':
            return int(self.ops[0], 0) + 1
        return 1


def is_vec(r):
    return r[0] in 'va'


def sg(rs):
    return {r for r in rs if r[0] == 's'}


def vg(rs):
    return {r for r in rs if r[0] != 's'}


def required(p, c):
    n = 0
    pv = p.cls == 'valu'
    if pv:
        wv, ws = vg(p.writes), sg(p.writes)
        if c.cls == 'mfma' and wv & c.reads:
            n = max(n, 3 if p.dot else 2)
        if c.cls == 'valu':
            if p.dot and wv & (c.reads | c.writes):
                if not (c.base == p.base and wv == vg(c.writes) and c.base.startswith('v_dot2c')
                        and not (wv & set().union(*[regs_of(o) for o in c.ops[1:]]))):
                    if not (c.base == p.base and len(c.ops) == 4 and wv == regs_of(c.ops[3])
                            and not (wv & (regs_of(c.ops[1]) | regs_of(c.ops[2])))):
                        n = max(n, 3)
            if c.dpp and wv & c.reads:
                n = max(n, 2)
            if c.base.startswith('v_permlane') and wv & c.reads:
                n = max(n, 2)
            if c.base in ('v_readlane_b32', 'v_readfirstlane_b32') and wv & c.reads:
                n = max(n, 1)
            if p.trans and not c.trans and wv & c.reads:
                n = max(n, 1)
            if p.opsel_dst and wv & (c.reads | c.writes):
                n = max(n, 1)
            if ws & c.lanesel:
                n = max(n, 4)
            if (ws - EXEC) & c.reads:
                n = max(n, 4 if c.base == 'v_div_fmas_f32' else 2)
            if ws & EXEC:
                if c.dpp:
                    n = max(n, 5)
                if c.base in ('v_readlane_b32', 'v_readfirstlane_b32', 'v_writelane_b32') or c.base.startswith('v_permlane'):
                    n = max(n, 4)
                if EXEC & c.reads:
                    n = max(n, 2)
        if c.cls in ('vmem', 'ds') and p.dot and wv & c.reads:
            n = max(n, 3)
        if c.cls in ('vmem', 'ds') and p.trans and wv & c.reads:
            n = max(n, 1)
        if c.cls == 'mfma' and ws & EXEC:
            n = max(n, 4)
        if c.cls == 'vmem' and ws & c.reads:
            n = max(n, 5)
        if c.cls in ('salu', 'smem') and ws & c.reads:
            n = max(n, 1)
    if p.cls == 'salu' and p.writes & M0:
        if (c.cls == 'vmem' and c.ldsdma) or (c.cls == 'ds' and 'addtid' in c.mn) or c.mn.startswith(('s_movrel', 's_sendmsg')):
            n = max(n, 1)
    if p.cls == 'vmem' and p.store_data and p.store_data & c.writes:
        n = max(n, 2)
    if p.cls == 'mfma':
        k = {2: 0, 4: 1, 8: 2, 16: 3}[p.passes]
        D = p.writes
        if c.cls == 'mfma':
            if D & c.srcC:
                if D == c.srcC and p.passes == c.passes:
                    n = max(n, (2, 0, 0, 0)[k])
                else:
                    n = max(n, (4, 6, 10, 18)[k])
            if D & (c.srcA | c.srcB):
                n = max(n, (5, 8, 12, 20)[k])
            if D & c.writes and not (D & c.srcC):
                n = max(n, (5, 8, 12, 20)[k])
        elif c.cls in ('valu', 'vmem', 'ds'):
            if D & (c.reads | c.writes):
                n = max(n, (5, 8, 12, 20)[k])
            if c.cls == 'valu' and p.srcC & c.writes:
                n = max(n, (1, 3, 7, 15)[k])
            if c.cls in ('vmem', 'ds') and p.srcC & c.writes:
                n = max(n, (1, 3, 7, 15)[k])
    return n


class Asm:
    def __init__(self):
        self.lines = []
        self._uniq = 0

    def __call__(self, text):
        for ln in text.split('\n'):
            ln = ln.strip()
            if ln:
                self.lines.append(ln)

    def label(self, name):
        self.lines.append(name + ':')

    def uniq(self, base):
        self._uniq += 1
        return '%s_%d' % (base, self._uniq)


def build_cfg(ins):
    labels = {x.label: i for i, x in enumerate(ins) if x.is_label}
    succ = [[] for _ in ins]
    for i, x in enumerate(ins):
        if x.mn == 's_endpgm':
            continue
        if x.target is not None:
            succ[i].append(labels[x.target])
            if x.mn == 's_branch':
                continue
        if i + 1 < len(ins):
            succ[i].append(i + 1)
    pred = [[] for _ in ins]
    for i, ss in enumerate(succ):
        for s in ss:
            pred[s].append(i)
    return succ, pred


WAIT_RE = re.compile(r'(vmcnt|lgkmcnt)\((\d+)\)')


def wait_pass(ins):
    succ, pred = build_cfg(ins)
    n = len(ins)
    state_in = [None] * n
    need = [None] * n

    def transfer(i, st):
        vm, lg = dict(st[0]), dict(st[1])
        x = ins[i]
        touched = (x.reads | x.writes)
        nv = min((vm[r] for r in touched if r in vm), default=None)
        nl = min((lg[r] for r in touched if r in lg), default=None)
        if x.load_dst and not x.smem:
            own = vm if x.vm else lg
            rd = min((own[r] for r in x.reads if r in own), default=None)
            if x.vm:
                nv = rd
            else:
                nl = rd
        if nv is not None:
            nv = min(nv, 63)
            vm = {r: a for r, a in vm.items() if a < nv}
        if nl is not None:
            nl = max(0, min(nl, 15))
            lg = {r: a for r, a in lg.items() if a < nl} if nl else {}
        if x.mn == 's_waitcnt':
            for name, val in WAIT_RE.findall(x.text):
                val = int(val)
                if name == 'vmcnt':
                    vm = {r: a for r, a in vm.items() if a < val}
                else:
                    lg = {r: a for r, a in lg.items() if a < val} if val else {}
        if x.vm:
            vm = {r: a + 1 for r, a in vm.items()}
            for r in x.load_dst:
                vm[r] = 0
        if x.lgkm:
            if x.smem:
                for r in x.load_dst:
                    lg[r] = -1
            else:
                lg = {r: (a + 1 if a >= 0 else a) for r, a in lg.items()}
                for r in x.load_dst:
                    lg[r] = 0
        return (vm, lg, False), (nv, nl)

    def merge(a, b):
        if a is None:
            return b
        out = []
        for da, db in ((a[0], b[0]), (a[1], b[1])):
            d = dict(da)
            for r, v in db.items():
                d[r] = min(d.get(r, v), v)
            out.append(d)
        return (out[0], out[1], a[2] or b[2])

    entries = [i for i in range(n) if not pred[i]]
    work = list(entries)
    for e in entries:
        state_in[e] = ({}, {}, False)
    while work:
        i = work.pop()
        out, nd = transfer(i, state_in[i])
        need[i] = nd
        for s in succ[i]:
            m = merge(state_in[s], out)
            if m != state_in[s]:
                state_in[s] = m
                work.append(s)
    res = []
    for i, x in enumerate(ins):
        nd = need[i]
        if nd and (nd[0] is not None or nd[1] is not None):
            t = 's_waitcnt'
            if nd[0] is not None:
                t += ' vmcnt(%d)' % nd[0]
            if nd[1] is not None:
                t += ' lgkmcnt(%d)' % nd[1]
            res.append(Ins(t))
        res.append(x)
    return res


def hazard_pass(ins):
    changed = True
    while changed:
        changed = False
        succ, pred = build_cfg(ins)
        inserts = {}
        for i, c in enumerate(ins):
            if c.cls in ('label', 'dir') or c.mn in ('s_nop', 's_waitcnt'):
                continue
            worst = 0
            stack = [(p, 0) for p in pred[i]]
            seen = {}
            while stack:
                j, dist = stack.pop()
                if dist >= 20 or seen.get(j, 99) <= dist:
                    continue
                seen[j] = dist
                p = ins[j]
                r = required(p, c)
                if r > dist:
                    worst = max(worst, r - dist)
                nd = dist + p.states() + (inserts.get(j, 0))
                for q in pred[j]:
                    stack.append((q, nd))
            if worst:
                inserts[i] = worst
        if inserts:
            changed = True
            out = []
            for i, x in enumerate(ins):
                k = inserts.get(i, 0)
                while k > 0:
                    m = min(k, 16)
                    out.append(Ins('s_nop %d' % (m - 1)))
                    k -= m
                out.append(x)
            ins = out
    return ins


def finalize(asm, waits=True):
    ins = [Ins(t) for t in asm.lines]
    if waits:
        ins = wait_pass(ins)
    ins = hazard_pass(ins)
    out = []
    for x in ins:
        out.append(x.text if x.is_label or x.is_dir else '    ' + x.text)
    return out


def max_regs(lines):
    mx = {'v': -1, 'a': -1, 's': -1}
    for t in lines:
        x = Ins(t.strip())
        for k, i in (x.reads | x.writes):
            if isinstance(i, int):
                mx[k] = max(mx[k], i)
    return mx


def kernel_text(name, body_lines, vgprs=None, accum=None, sgprs=None):
    mx = max_regs(body_lines)
    nv = mx['v'] + 1
    if accum is None:
        accum = max(4, (nv + 3) // 4 * 4)
    assert nv <= accum, (nv, accum)
    total = accum + mx['a'] + 1 if mx['a'] >= 0 else max(nv, 1)
    if vgprs is not None:
        assert vgprs >= total, (vgprs, total)
        total = vgprs
    ns = sgprs if sgprs is not None else max(mx['s'] + 1, 16)
    assert ns <= 102
    t = ['.text', '.globl %s' % name, '.p2align 8', '.type %s,@function' % name, name + ':']
    t += body_lines
    r = ['.section .rodata,"a"', '.p2align 6', '.amdhsa_kernel %s' % name,
         '  .amdhsa_next_free_vgpr %d' % total,
         '  .amdhsa_next_free_sgpr %d' % ns,
         '  .amdhsa_accum_offset %d' % accum,
         '  .amdhsa_group_segment_fixed_size 0',
         '  .amdhsa_kernarg_size 88',
         '  .amdhsa_user_sgpr_count 2',
         '  .amdhsa_user_sgpr_kernarg_segment_ptr 1',
         '  .amdhsa_system_sgpr_workgroup_id_x 1',
         '  .amdhsa_float_denorm_mode_32 3',
         '.end_amdhsa_kernel']
    return t, r


def module_text(header_lines, kernels):
    out = list(header_lines)
    out.append('.amdgcn_target "amdgcn-amd-amdhsa--gfx950"')
    for t, r in kernels:
        out += t
    for t, r in kernels:
        out += r
    return '\n'.join(out) + '\n'
```

```python
import sys, struct, json, math, re
sys.path.insert(0, 'gen')
from asmlib import *
from common import *

FL, KVP, ST, O_, H_, ACT, STAMP = 0x0, 0x40000, 0x100000, 0x200000, 0x400000, 0x600000, 0x8000000
KVREC = 2304
EPOCH = FL + 7 * 32768
XB = 0xE00000
R0, R1, R2 = 0, 65536, 131072
L_XS, L_WQ = R1, R2
L_PHI, L_V, L_CSX, L_CSQ = 0, 16384, 24576, 28672
L_WO = R1
L_KVB = R2 + 16384
L_BX = 3 * 32768
L_WPHI = L_WQ + 31 * 1024
LOG2E = 0x3fb8aa3b
ONES = 0x3f803f80
SPIN = 400000

S_X, S_WQKV, S_WPHI, S_WO, S_W1, S_B1, S_W2, S_OUT, S_DBG, S_WS = 4, 8, 12, 16, 20, 24, 28, 32, 36, 40
(sI, sJ, sW, sC, sCX, sCW, sT0, sT1, sT2, sT3, sONES, sSEL0, sSEL1, sLDSX, sLDSW, sCNT, sXCD, sP, sMSK, sMSK1) = range(44, 64)
S_PTR = 64
(sREC, sGAT, sFA, sFB, sFP, sOST, sOLD, sHST, sSST, sOUT, sHL0, sHL1, sSLD, sAST, sALD, sCO, sC1, sC2, sC5, sR3) = range(64, 84)
sLW2, sT4, sT5, sKH, sTT, sLW1, sRS, sLN2 = 86, 87, 88, 89, 90, 91, 3, 84
sFME, sLOC, sXID = 85, sXCD, sCX
sTAG = S_DBG
S_TMP = 92
S_ST = 96
A_STASH = 224


def v(i, n=1):
    return 'v%d' % i if n == 1 else 'v[%d:%d]' % (i, i + n - 1)


def ac(i, n=1):
    return 'a%d' % i if n == 1 else 'a[%d:%d]' % (i, i + n - 1)


def sr(i):
    return 's[%d:%d]' % (i, i + 3)


def fbits(x):
    return struct.unpack('<I', struct.pack('<f', x))[0]


class Mark:
    def __init__(self, name):
        self.name = name


class WaitVM:
    def __init__(self, name):
        self.name = name


class WaitDS:
    def __init__(self, name):
        self.name = name


def cost(x):
    if isinstance(x, Mark):
        return 0
    if isinstance(x, (WaitVM, WaitDS)):
        return 1
    if isinstance(x, (list, tuple)):
        return sum(cost(y) for y in x)
    if callable(x):
        return getattr(x, 'cost', 4)
    mn = x.split()[0]
    if mn.startswith('v_mfma'):
        return 0
    if mn.startswith(TRANS) or mn.startswith('v_permlane'):
        return 2
    return 1


def flat(x):
    if isinstance(x, (list, tuple)):
        return [z for y in x for z in flat(y)]
    return [x]


class K(Asm):
    def __init__(self, cfg):
        super().__init__()
        self.cfg = cfg
        self.vmn = 0
        self.dsn = 0
        self.marks = {}
        self.nstamp = 0
        self.names = []
        self.stash_slots = {}

    def run(self, x):
        if isinstance(x, Mark):
            self.marks[x.name] = (self.vmn, self.dsn)
        elif isinstance(x, WaitVM):
            self('s_waitcnt vmcnt(%d)' % min(63, self.vmn - self.marks[x.name][0]))
        elif isinstance(x, WaitDS):
            self('s_waitcnt lgkmcnt(%d)' % min(15, self.dsn - self.marks[x.name][1]))
        elif isinstance(x, (list, tuple)):
            for y in x:
                self.run(y)
        elif callable(x):
            x()
        else:
            for key in self.cfg.get('skip', []):
                if x.startswith('buffer_load') and key in x:
                    return
            for key in self.cfg.get('skipre', []):
                if re.search(key, x):
                    return
            self(x)
            if x.startswith(('buffer_', 'global_')):
                self.vmn += 1
            elif x.startswith('ds_'):
                self.dsn += 1

    def gap(self, items):
        front, back, wr, rd = [], [], set(), set()
        blocked = False
        for x in items:
            fl = flat(x)
            strs = [Ins(y) for y in fl if isinstance(y, str)]
            is_valu = any(i.cls == 'valu' for i in strs)
            opaque = any(callable(y) for y in fl)
            r_ = set().union(*[i.reads for i in strs]) if strs else set()
            w_ = set().union(*[i.writes for i in strs]) if strs else set()
            dep = bool(r_ & wr) or bool(w_ & (wr | rd))
            if is_valu or opaque or dep or blocked:
                back.append(x)
                wr |= w_
                rd |= r_
                if not is_valu:
                    blocked = True
            else:
                front.append(x)
        self.run(front)
        self.run(back)

    def fill(self, mains, side, first=0, last=None, post=None):
        n = len(mains)
        post = post or [[] for _ in mains]
        last = n - 1 if last is None else min(last, n - 1)
        span = last - first + 1
        extra = [(cost(mains[i + 1]) if i + 1 < n else 0) + cost(post[i]) for i in range(n)]
        total = sum(cost(x) for x in side) + sum(extra[first:last + 1])
        done, used = 0, 0.0
        for i, g in enumerate(mains):
            self.run(g)
            items = list(post[i])
            if first <= i <= last:
                used += extra[i]
                target = total * (i - first + 1) / span
                while done < len(side) and (used + cost(side[done]) / 2.0 <= target or i == last):
                    items.append(side[done])
                    used += cost(side[done])
                    done += 1
            self.gap(items)
        self.run(side[done:])

    def stamp(self, name='', level=1):
        only = self.cfg.get('only')
        if self.cfg.get('stamps', 0) >= level and (only is None or name in only or name == 'end'):
            n = self.nstamp
            self.nstamp += 1
            self.names.append(name)
            self('s_memrealtime s[%d:%d]' % (S_ST, S_ST + 1))
            if self.cfg.get('cyc'):
                assert n < 32
                self('s_memtime s[%d:%d]' % (S_ST + 2, S_ST + 3))
            self('s_waitcnt lgkmcnt(0)')
            self('v_writelane_b32 v4, s%d, %d' % (S_ST, n))
            if self.cfg.get('cyc'):
                self('v_writelane_b32 v4, s%d, %d' % (S_ST + 2, 32 + n))

    def stamper(self, name, level=2):
        f = lambda: self.stamp(name, level)
        f.cost = 0
        return f

    def stash(self, name, reg):
        slot = A_STASH + 8 + len(self.stash_slots)
        assert slot < 256
        self.stash_slots[name] = slot
        self('v_accvgpr_write_b32 %s, %s' % (ac(slot), v(reg)))

    def unstash(self, name, reg):
        return 'v_accvgpr_read_b32 %s, %s' % (v(reg), ac(self.stash_slots[name]))


def mfma32(d, a_, b, c):
    return 'v_mfma_f32_32x32x16_bf16 %s, %s, %s, %s' % (d, a_, b, c)


def mfma16(d, a_, b, c):
    return 'v_mfma_f32_16x16x32_bf16 %s, %s, %s, %s' % (d, a_, b, c)


def merge(*lists):
    lists = [l for l in lists if l]
    tot = [max(1, cost(l)) for l in lists]
    idx = [0] * len(lists)
    used = [0] * len(lists)
    out = []
    while any(idx[k] < len(l) for k, l in enumerate(lists)):
        best = min((used[k] / tot[k], k) for k, l in enumerate(lists) if idx[k] < len(l))[1]
        x = lists[best][idx[best]]
        out.append(x)
        used[best] += cost(x)
        idx[best] += 1
    return out


def split_hl(src, hi_f, lo_f, tmp):
    return ['v_cvt_pk_bf16_f32 %s, %s, %s' % (v(tmp), v(src), v(src)),
            'v_and_b32 %s, 0xffff0000, %s' % (v(hi_f), v(tmp)),
            'v_sub_f32 %s, %s, %s' % (v(lo_f), v(src), v(hi_f))]


def ln_ops(s1, s2, mean, rstd):
    return ['v_mul_f32 %s, 0x3b000000, %s' % (v(mean), v(s1)),
            'v_mul_f32 %s, 0x3b000000, %s' % (v(s2), v(s2)),
            'v_fma_f32 %s, -%s, %s, %s' % (v(s2), v(mean), v(mean), v(s2)),
            'v_max_f32 %s, 0, %s' % (v(s2), v(s2)),
            'v_add_f32 %s, 0x3727c5ac, %s' % (v(s2), v(s2)),
            'v_rsq_f32 %s, %s' % (v(rstd), v(s2))]


def softmax_ops(P, E, OUT, c, t):
    o = []
    mx, mn, sp, sn = t, t + 2, t + 4, t + 6
    o.append('v_max3_f32 %s, %s, %s, %s' % (v(mx), v(P), v(P + 1), v(P + 2)))
    o.append('v_min3_f32 %s, %s, %s, %s' % (v(mn), v(P), v(P + 1), v(P + 2)))
    o.append('v_max3_f32 %s, %s, %s, %s' % (v(mx + 1), v(P + 3), v(P + 4), v(P + 5)))
    o.append('v_min3_f32 %s, %s, %s, %s' % (v(mn + 1), v(P + 3), v(P + 4), v(P + 5)))
    for n, i in enumerate(range(6, 14, 2)):
        o.append('v_max3_f32 %s, %s, %s, %s' % (v(mx + n % 2), v(mx + n % 2), v(P + i), v(P + i + 1)))
        o.append('v_min3_f32 %s, %s, %s, %s' % (v(mn + n % 2), v(mn + n % 2), v(P + i), v(P + i + 1)))
    o.append('v_max3_f32 %s, %s, %s, %s' % (v(mx), v(mx), v(P + 14), v(P + 15)))
    o.append('v_min3_f32 %s, %s, %s, %s' % (v(mn), v(mn), v(P + 14), v(P + 15)))
    o.append('v_max_f32 %s, %s, %s' % (v(mx), v(mx), v(mx + 1)))
    o.append('v_min_f32 %s, %s, %s' % (v(mn), v(mn), v(mn + 1)))
    o.append('v_mul_f32 %s, %s, %s' % (v(mx), v(mx), v(c + 1)))
    o.append('v_mul_f32 %s, %s, %s' % (v(mn), v(mn), v(c)))
    for i in range(0, 16, 2):
        o.append('v_pk_fma_f32 %s, %s, %s, %s op_sel_hi:[1,0,0]' % (v(E + i, 2), v(P + i, 2), v(c, 2), v(mx, 2)))
        o.append('v_pk_fma_f32 %s, %s, %s, %s op_sel:[0,1,0] op_sel_hi:[1,1,0]' % (v(E + 16 + i, 2), v(P + i, 2), v(c, 2), v(mn, 2)))
    for i in range(32):
        o.append('v_exp_f32 %s, %s' % (v(E + i), v(E + i)))
    o.append('v_pk_add_f32 %s, %s, %s' % (v(sp, 2), v(E, 2), v(E + 2, 2)))
    o.append('v_pk_add_f32 %s, %s, %s' % (v(sn, 2), v(E + 16, 2), v(E + 18, 2)))
    for i in range(4, 16, 2):
        o.append('v_pk_add_f32 %s, %s, %s' % (v(sp, 2), v(sp, 2), v(E + i, 2)))
        o.append('v_pk_add_f32 %s, %s, %s' % (v(sn, 2), v(sn, 2), v(E + 16 + i, 2)))
    o.append('v_add_f32 %s, %s, %s' % (v(sp), v(sp), v(sp + 1)))
    o.append('v_add_f32 %s, %s, %s' % (v(sn), v(sn), v(sn + 1)))
    o.append('v_rcp_f32 %s, %s' % (v(sp), v(sp)))
    o.append('v_rcp_f32 %s, %s' % (v(sn), v(sn)))
    for half, sm in ((0, sp), (16, sn)):
        for i in range(0, 16, 2):
            o.append('v_pk_mul_f32 %s, %s, %s op_sel_hi:[1,0]' % (v(E + half + i, 2), v(E + half + i, 2), v(sm, 2)))
        for i in range(0, 16, 2):
            o.append('v_cvt_pk_bf16_f32 %s, %s, %s' % (v(OUT + (half + i) // 2), v(E + half + i), v(E + half + i + 1)))
    return o


def gen(cfg):
    a = K(cfg)
    R = a.run
    SC = 'sc1'
    D = cfg.get('depth', 3)
    vL, vFR, vL4, vOUT = 1, 2, 3, 5
    vXD, vWD, vWQD, vXR, vWR = 6, 10, 11, 12, 16
    vA = 20
    vT = 28
    aK, aV, aQ = 32, 48, 64
    vWB = 80
    vS = 112
    X = 128
    s1a, s1b, s2a, s2b, csk, csv, csq, mean, rstd, vONE, cexp, ncexp = range(vS, vS + 12)
    vBX = vS + 12
    PA1, PA2 = A_STASH, A_STASH + 4
    vL128, vRB = vWD, vWQD
    vHH, vTRN = aK, aK + 1

    def vx(dst, terms, sadd=None, const=0, tmp=vT + 3):
        first = True
        for src, lo, n, mul in terms:
            if n:
                a('v_bfe_u32 %s, %s, %d, %d' % (v(tmp), v(src), lo, n))
                s_ = tmp
            elif lo:
                a('v_lshrrev_b32 %s, %d, %s' % (v(tmp), lo, v(src)))
                s_ = tmp
            else:
                s_ = src
            pw = mul & (mul - 1) == 0
            if first:
                if pw:
                    a('v_lshlrev_b32 %s, %d, %s' % (v(dst), mul.bit_length() - 1, v(s_)))
                else:
                    a('v_mul_u32_u24 %s, %d, %s' % (v(dst), mul, v(s_)))
                first = False
            elif pw:
                a('v_lshl_add_u32 %s, %s, %d, %s' % (v(dst), v(s_), mul.bit_length() - 1, v(dst)))
            else:
                a('v_mul_u32_u24 %s, %d, %s' % (v(tmp), mul, v(s_)))
                a('v_add_u32 %s, %s, %s' % (v(dst), v(tmp), v(dst)))
        if sadd is not None:
            a('v_add_u32 %s, s%d, %s' % (v(dst), sadd, v(dst)))
        if const:
            a('v_add_u32 %s, %d, %s' % (v(dst), const, v(dst)))

    def sx(dst, terms, const=0, tmp=sT5):
        first = True
        for src, mul in terms:
            tgt = dst if first else tmp
            if mul == 1:
                if first:
                    a('s_mov_b32 s%d, s%d' % (dst, src))
                else:
                    a('s_add_u32 s%d, s%d, s%d' % (dst, dst, src))
                first = False
                continue
            if mul & (mul - 1) == 0:
                a('s_lshl_b32 s%d, s%d, %d' % (tgt, src, mul.bit_length() - 1))
            else:
                a('s_mul_i32 s%d, s%d, %d' % (tgt, src, mul))
            if not first:
                a('s_add_u32 s%d, s%d, s%d' % (dst, dst, tmp))
            first = False
        if const:
            a('s_add_u32 s%d, s%d, %d' % (dst, dst, const))

    def step(sreg, inc, period):
        if period & (period - 1) == 0:
            return ['s_add_u32 s%d, s%d, %d' % (sreg, sreg, inc), 's_and_b32 s%d, s%d, %d' % (sreg, sreg, period - 1)]
        return ['s_add_u32 s%d, s%d, %d' % (sreg, sreg, inc),
                ['s_cmp_eq_u32 s%d, %d' % (sreg, period), 's_cmov_b32 s%d, 0' % sreg]]

    def push_flags(sbase, add, vaddr):
        lab = a.uniq('L_nopush')
        a('s_cmp_lg_u32 s%d, 0' % sW)
        a('s_cbranch_scc1 %s' % lab)
        a('s_add_u32 s%d, s%d, %d' % (sT5, sbase, add))
        a('s_mov_b64 exec, 0xffff')
        a('buffer_store_dword %s, %s, %s, s%d offen sc1' % (v(vONE), v(vaddr), sr(S_WS), sT5))
        a('s_mov_b64 exec, -1')
        a.label(lab)

    def arrive(sync, line=0):
        lab = a.uniq('L_noarr')
        a('s_cmp_lg_u32 s%d, 0' % sW)
        a('s_cbranch_scc1 %s' % lab)
        a('s_add_u32 s%d, s%d, %d' % (sT5, sFME, sync * 32768 + line * 128))
        a('s_mov_b64 exec, 1')
        a('s_cmp_lg_u32 s%d, 0' % sLOC)
        a('s_cbranch_scc1 %s_l' % lab)
        a('buffer_store_dword %s, %s, %s, s%d offen sc1' % (v(vONE), v(vL4), sr(S_WS), sT5))
        a('s_branch %s_e' % lab)
        a.label(lab + '_l')
        a('buffer_store_dword %s, %s, %s, s%d offen' % (v(vONE), v(vL4), sr(S_WS), sT5))
        a.label(lab + '_e')
        a('s_mov_b64 exec, -1')
        a.label(lab)

    def not_ready(reg, sync):
        if sync == 5:
            a('v_subrev_u32 %s, s%d, %s' % (v(reg), sTAG, v(reg)))
            a('v_cmp_le_u32 vcc, 16, %s' % v(reg))
        else:
            a('v_cmp_ne_u32 vcc, s%d, %s' % (sTAG, v(reg)))

    def spin(lp, reg, srd_, soff, sync):
        a.label(lp)
        a('buffer_load_dword %s, %s, %s, %s offen sc1' % (v(reg), v(vL4), sr(srd_), soff))
        a('s_add_u32 s%d, s%d, 1' % (sCNT, sCNT))
        a('s_cmp_gt_u32 s%d, %d' % (sCNT, SPIN))
        a('s_cbranch_scc1 %s_y' % lp)
        a('s_waitcnt vmcnt(0)')
        not_ready(reg, sync)
        a('s_cbranch_vccnz %s' % lp)
        a.label(lp + '_y')
        a('s_waitcnt vmcnt(0)')

    def flag_addr(sync):
        if isinstance(sync, tuple):
            return 's_add_u32 s%d, s%d, %d' % (sT5, sync[2] if len(sync) > 2 else sFB, sync[0] * 32768 + sync[1] * 128)
        return 's_add_u32 s%d, s%d, %d' % (sT5, sFP if sync == 0 else sFB, sync * 32768)

    def poll(sync, n, wave=0):
        lab = a.uniq('L_nopoll')
        a('s_cmp_lg_u32 s%d, %d' % (sW, wave))
        a('s_cbranch_scc1 %s' % lab)
        a(flag_addr(sync))
        a('s_mov_b64 exec, 0x%x' % ((1 << n) - 1))
        spin(a.uniq('L_poll'), vT + 3, S_WS, 's%d' % sT5, sync)
        a('s_mov_b64 exec, -1')
        a.label(lab)

    def check_issue(sync, reg, wave):
        def f():
            lab = a.uniq('L_noci')
            if wave is not None:
                a('s_cmp_lg_u32 s%d, %d' % (sW, wave))
                a('s_cbranch_scc1 %s' % lab)
            a(flag_addr(sync))
            a('s_mov_b64 exec, 0xffff')
            a('buffer_load_dword %s, %s, %s, s%d offen sc1' % (v(reg), v(vL4), sr(S_WS), sT5))
            a('s_mov_b64 exec, -1')
            a.label(lab)
        f.cost = 3
        return f

    def check_done(sync, n, reg, wave):
        lp = a.uniq('L_chk')
        if wave is not None:
            a('s_cmp_lg_u32 s%d, %d' % (sW, wave))
            a('s_cbranch_scc1 %s_z' % lp)
        a('s_mov_b64 exec, 0x%x' % ((1 << n) - 1))
        not_ready(reg, sync)
        a('s_cbranch_vccz %s_x' % lp)
        a(flag_addr(sync))
        spin(lp, reg, S_WS, 's%d' % sT5, sync)
        a.label(lp + '_x')
        if sync == 5:
            a('v_cmp_ne_u32 vcc, s%d, %s' % (sXID, v(reg)))
            a('s_cmp_eq_u64 vcc, 0')
            a('s_cselect_b32 s%d, %d, 0' % (sLOC, 1 if cfg.get('local', 1) else 0))
        a('s_mov_b64 exec, -1')
        a.label(lp + '_z')

    def code_touch(nl, wave, dst):
        lab = a.uniq('L_ct')
        a('s_cmp_lg_u32 s%d, %d' % (sW, wave))
        a('s_cbranch_scc1 %s_e' % lab)
        a('s_getpc_b64 s[%d:%d]' % (S_TMP, S_TMP + 1))
        a.label(lab)
        a('s_lshr_b32 s%d, s2, 3' % sT5)
        a('s_mul_i32 s%d, s%d, %d' % (sT5, sT5, nl * 128))
        a('v_lshl_add_u32 %s, %s, 7, s%d' % (v(dst), v(vL), sT5))
        a('v_min_u32 %s, L_end-%s, %s' % (v(dst), lab, v(dst)))
        a('s_mov_b64 exec, 0x%x' % ((1 << nl) - 1))
        a('global_load_dword %s, %s, s[%d:%d]' % (v(dst), v(dst), S_TMP, S_TMP + 1))
        a('s_mov_b64 exec, -1')
        a.label(lab + '_e')

    def dual(stores, on):
        if not on:
            R([x + ' sc1' for x in stores])
            return
        lab = a.uniq('L_dual')
        a('s_cmp_lg_u32 s%d, 0' % sLOC)
        a('s_cbranch_scc1 %s_l' % lab)
        for x in stores:
            a(x + ' sc1')
        a('s_branch %s_e' % lab)
        a.label(lab + '_l')
        R(stores)
        a.label(lab + '_e')

    def pretouch(soff, nl, dst):
        return [['s_mov_b64 exec, 0x%x' % ((1 << nl) - 1),
                 'buffer_load_dword %s, %s, %s, s%d offen sc1' % (v(dst), v(vL128), sr(S_WS), soff), 's_mov_b64 exec, -1']]

    def readback(soff, nl, dst, extra=None):
        o = ['s_mov_b64 exec, 0x%x' % ((1 << nl) - 1),
             'buffer_load_dword %s, %s, %s, s%d offen sc1' % (v(dst), v(vL128), sr(S_WS), soff)]
        if extra is not None:
            o += ['s_mov_b64 exec, 3', 'buffer_load_dword %s, %s, %s, s%d offen sc1' % (v(dst), v(vL128), sr(S_WS), extra)]
        return [o + ['s_mov_b64 exec, -1']]

    a('; ---- prologue')
    a('s_cmp_ge_u32 s2, 256')
    a('s_cbranch_scc1 L_end')
    if cfg.get('stamps'):
        a('s_memrealtime s[100:101]')
        a('s_memtime s[98:99]')
    a('s_load_dwordx16 s[%d:%d], s[0:1], 0' % (S_PTR, S_PTR + 15))
    a('s_load_dwordx4 s[%d:%d], s[0:1], 64' % (S_PTR + 16, S_PTR + 19))
    a('s_load_dwordx2 s[%d:%d], s[0:1], 80' % (S_PTR + 20, S_PTR + 21))
    a('s_getpc_b64 s[%d:%d]' % (sT2, sT2 + 1))
    a.label('L_pc')
    a('s_lshr_b32 s%d, s2, 3' % sT0)
    a('v_lshrrev_b32 %s, 6, v0' % v(vT))
    a('v_and_b32 %s, 63, v0' % v(vL))
    a('v_readfirstlane_b32 s%d, %s' % (sW, v(vT)))
    ncl = cfg.get('code_lines', 9)
    if ncl:
        a('s_mul_i32 s%d, s%d, %d' % (sT1, sT0, ncl * 128))
        a('v_lshl_add_u32 %s, v0, 7, s%d' % (v(vT + 1), sT1))
        a('v_min_u32 %s, L_end-L_pc, %s' % (v(vT + 1), v(vT + 1)))
        a('v_cmp_gt_u32 vcc, %d, v0' % ncl)
        a('s_and_saveexec_b64 s[%d:%d], vcc' % (sMSK, sMSK1))
        a('s_cbranch_execz L_nocp')
        a('global_load_dword %s, %s, s[%d:%d]' % (v(255), v(vT + 1), sT2, sT2 + 1))
        a.label('L_nocp')
        a('s_mov_b64 exec, -1')
    a('s_and_b32 s%d, s2, 7' % sXCD)
    a('s_and_b32 s%d, s%d, 15' % (sJ, sT0))
    a('s_lshr_b32 s%d, s%d, 4' % (sT2, sT0))
    sx(sI, [(sXCD, 2), (sT2, 1)])
    a('s_and_b32 s%d, s%d, 1' % (sT3, sJ))
    a('s_lshr_b32 s%d, s%d, 1' % (sT1, sJ))
    a('s_and_b32 s%d, s%d, 1' % (sT0, sXCD))
    if cfg.get('halfrot', 0):
        sx(sT4, [(sT2, 4), (sT3, 2), (sT1, 2)])
    else:
        sx(sT4, [(sT2, 4), (sT3, 2), (sT1, 1), (sT0, 1)])
    a('s_and_b32 s%d, s%d, 7' % (sT4, sT4))
    a('s_lshl_b32 s%d, s%d, 7' % (sCX, sT4))
    a('s_mul_i32 s%d, s%d, %d' % (sCW, sT4, 64 * 3072))
    sx(sT0, [(sI, 1 << 17), (sW, 1 << 15)], 2048)
    sx(sLDSX, [(sW, 1 << 14)], L_XS)
    a('s_lshl_b32 s%d, s%d, 11' % (sLDSW, sW))
    a('v_lshrrev_b32 %s, 4, %s' % (v(vT + 1), v(vL)))
    a('v_and_b32 %s, 7, %s' % (v(vT + 2), v(vL)))
    a('v_xor_b32 %s, %s, %s' % (v(vT + 1), v(vT + 1), v(vT + 2)))
    vx(vXD, [(vL, 3, 0, 1024), (vT + 1, 0, 0, 16)], sadd=sT0)
    a('v_xor_b32 %s, 64, %s' % (v(vXD + 1), v(vXD)))
    a('s_lshl_b32 s%d, s%d, 14' % (sT1, sT3))
    a('s_sub_u32 s%d, %d, s%d' % (sT2, 2 * 7168, sT1))
    a('v_add_u32 %s, %d, %s' % (v(vXD + 1), 7168, v(vXD + 1)))
    a('v_add_u32 %s, s%d, %s' % (v(vXD + 2), sT2, v(vXD)))
    a('v_add_u32 %s, s%d, %s' % (v(vXD + 3), sT2, v(vXD + 1)))
    a('v_add_u32 %s, s%d, %s' % (v(vXD), sT1, v(vXD)))
    a('v_add_u32 %s, s%d, %s' % (v(vXD + 1), sT1, v(vXD + 1)))
    def touch_addr():
        a('s_lshr_b32 s%d, s2, 3' % sT1)
        sx(sT2, [(2, 16), (sW, 4)])
        sx(sT1, [(sT1, 16), (sW, 4)])
        a('v_and_b32 %s, 3, %s' % (v(vT), v(vL)))
        a('v_add_u32 %s, s%d, %s' % (v(vT + 1), sT2, v(vT)))
        a('v_add_u32 %s, s%d, %s' % (v(vT), sT1, v(vT)))
        a('v_cmp_gt_u32 vcc, 4, %s' % v(vL))
        vx(aV, [(vT + 1, 3, 0, 3072), (vT + 1, 0, 3, 128)])
        vx(aV + 1, [(vT, 0, 0, 3072)], const=384)
        a('v_cndmask_b32 %s, %s, %s, vcc' % (v(aV), v(aV + 1), v(aV)))
        a('v_lshlrev_b32 %s, 7, %s' % (v(aV + 2), v(vT + 1)))
        vx(aV + 1, [(vT, 0, 0, 1024)], const=384)
        a('v_cndmask_b32 %s, %s, %s, vcc' % (v(aV + 1), v(aV + 1), v(aV + 2)))
        a('v_lshlrev_b32 %s, 4, %s' % (v(vFR), v(vL)))
    if not cfg.get('latet', 1):
        touch_addr()
    a('s_lshl_b32 s%d, s%d, 6' % (sT2, sJ))
    vx(vWQD, [(0, 2, 0, 3072), (vL, 0, 2, 16)], sadd=sT2)
    a('v_add_u32 %s, 1024, %s' % (v(vWD), v(vWQD)))
    a('s_waitcnt lgkmcnt(0)')
    if cfg.get('stamps'):
        a('v_mov_b32 v4, 0')
        a('v_writelane_b32 v4, s100, 0')
        if cfg.get('cyc'):
            a('v_writelane_b32 v4, s98, 32')
        a.nstamp = 1
        a.names.append('start')
    a.stamp('karg', 2)
    srd(a, S_WQKV, S_PTR + 2, SIZES['wqkv'])

    def dma_w(s):
        return ['s_add_u32 m0, s%d, %d' % (sLDSW, s * 8192),
                'buffer_load_dwordx4 %s, %s, s%d offen %slds' % (v(vWD), sr(S_WQKV), sCW, 'nt ' if s < cfg.get('wnt', 0) else ''),
                'buffer_load_dwordx4 %s, %s, s%d offen offset:1024 %slds' % (v(vWD), sr(S_WQKV), sCW, 'nt ' if s < cfg.get('wnt', 0) else '')] + step(sCW, 64 * 3072, 512 * 3072)

    def dma_x(s):
        return ['s_add_u32 m0, s%d, %d' % (sLDSX, (s & 3) * 4096)] + [
            'buffer_load_dwordx4 %s, %s, s%d offen offset:%d %slds' % (v(vXD + q), sr(S_X), sCX, q * 1024, cfg.get('xf', 'nt') + ' ' if s < cfg.get('xnt', 0) else '') for q in range(4)
        ] + step(sCX, 128, 1024) + [Mark('slot%d' % s)]

    def dma_wq(s):
        return ['s_add_u32 m0, s%d, %d' % (sLDSW, L_WQ + (s >> 1) * 8192 + (s & 1) * 1024),
                'buffer_load_dwordx4 %s, %s, s%d offen lds' % (v(vWQD), sr(S_WQKV), sCW)] + step(sCW, 64 * 3072, 512 * 3072)

    a('s_load_dword s%d, s[%d:%d], 0x%x' % (sTAG, S_PTR + 20, S_PTR + 21, EPOCH))
    R(dma_w(0))
    a('s_sub_u32 s%d, s%d, 2048' % (S_PTR, S_PTR))
    a('s_subb_u32 s%d, s%d, 0' % (S_PTR + 1, S_PTR + 1))
    srd(a, S_X, S_PTR + 0, SIZES['x'] + 2048)
    dx0 = dma_x(0)
    R(dx0[:3])
    if cfg.get('latet', 1):
        touch_addr()
    srd(a, S_WO, S_PTR + 6, SIZES['wo'])
    srd(a, S_WPHI, S_PTR + 4, SIZES['wphi'])
    if cfg.get('warm0', 1):
        a('s_mov_b64 exec, 0x%x' % (0xff if cfg.get('touch3', 0) else 0xf))
        R('buffer_load_dword %s, %s, %s, 0 offen' % (v(254), v(aV), sr(S_WQKV)))
        R('buffer_load_dword %s, %s, %s, 0 offen' % (v(253), v(aV + 1), sr(S_WO)))
    if cfg.get('touchkv', 1):
        a('s_mov_b64 exec, 0xf0')
        R('buffer_load_dword %s, %s, %s, 0 offen offset:1024' % (v(252), v(aV), sr(S_WQKV)))
        R('buffer_load_dword %s, %s, %s, 0 offen offset:2048' % (v(251), v(aV), sr(S_WQKV)))
    sx(sT2, [(sJ, 1024), (sW, 256)])
    sx(sT3, [(sW, 256)], L_WPHI)
    a('s_mov_b32 m0, s%d' % sT3)
    a('s_mov_b64 exec, 0xffff')
    R('buffer_load_dwordx4 %s, %s, s%d offen lds' % (v(vFR), sr(S_WPHI), sT2))
    a('s_mov_b64 exec, -1')
    R([dx0[0]] + dx0[3:])
    a.stamp('dma0', 2)
    srd(a, S_WS, S_PTR + 20, SIZES['ws'])
    srd(a, S_W1, S_PTR + 10, SIZES['w1'])
    srd(a, S_B1, S_PTR + 12, SIZES['b1'])
    srd(a, S_W2, S_PTR + 14, SIZES['w2'])
    srd(a, S_OUT, S_PTR + 16, SIZES['out'])
    srd(a, S_TMP, S_PTR + 10, SIZES['w1'])

    a('s_mov_b32 s%d, 0x%x' % (sONES, ONES))
    a('s_mov_b32 s%d, 0x3f80' % sSEL0)
    a('s_mov_b32 s%d, 0x3f800000' % sSEL1)
    a('s_mov_b32 s%d, 0' % sCNT)
    a('s_mov_b32 s%d, 0x%x' % (sRS, fbits(math.sqrt(0.5))))
    a('s_mov_b32 s%d, 0x%x' % (sLN2, fbits(math.log(2.0))))
    a('s_lshr_b32 s%d, s%d, 1' % (sKH, sW))
    a('s_and_b32 s%d, s%d, 1' % (sTT, sW))
    a('s_and_b32 s%d, s%d, 1' % (sP, sJ))
    a('s_lshr_b32 s%d, s%d, 1' % (sC, sJ))
    a('s_and_b32 s%d, s%d, 3' % (sT2, sC))
    a('s_cmp_eq_u32 s%d, 3' % sT2)
    a('s_cselect_b32 s%d, 4, 0' % sT2)
    a('s_xor_b32 s%d, s%d, s%d' % (sC, sC, sT2))
    a('s_lshl_b32 s%d, s%d, 13' % (sLW2, sW))
    a('s_lshl_b32 s%d, s%d, 12' % (sLW1, sW))
    a('v_lshrrev_b32 %s, 5, %s' % (v(vHH), v(vL)))
    a('v_lshlrev_b32 %s, 2, %s' % (v(vL4), v(vL)))
    vx(aQ + 8, [(vL, 0, 1, 512), (vL, 1, 1, 8), (vL, 4, 1, 16), (vL, 2, 2, 32), (vHH, 0, 0, 128)], const=L_WPHI)
    a('v_bfe_u32 %s, %s, 2, 1' % (v(vT), v(vL)))
    a('v_cmp_eq_u32 s[%d:%d], 0, %s' % (sMSK, sMSK1, v(vT)))
    a('v_bfe_u32 %s, %s, 1, 3' % (v(vT + 1), v(vL)))
    a('s_lshl_b32 s%d, s%d, 1' % (sT2, sW))
    a('v_add_u32 %s, s%d, %s' % (v(vT + 2), sT2, v(vHH)))
    a('v_xor_b32 %s, %s, %s' % (v(vT + 1), v(vT + 1), v(vT + 2)))
    vx(vXR, [(vL, 0, 5, 128), (vT + 1, 0, 0, 16)], sadd=sLDSX)
    a('s_and_b32 s%d, s%d, 1' % (sT2, sJ))
    a('s_lshl_b32 s%d, s%d, 11' % (sT2, sT2))
    a('v_xor_b32 %s, s%d, %s' % (v(vXR), sT2, v(vXR)))
    for p in range(1, 4):
        a('v_xor_b32 %s, %d, %s' % (v(vXR + p), 32 * p, v(vXR)))
    vx(vOUT, [(vL, 0, 5, 1024), (vHH, 0, 0, 32)])
    vx(vWR, [(vL, 2, 2, 64), (vL, 4, 1, 32), (vL, 0, 2, 8), (vHH, 0, 0, 512)], sadd=sLDSW)
    for p in range(1, 4):
        a('v_xor_b32 %s, %d, %s' % (v(vWR + p), 2048 * p, v(vWR)))
    vx(vTRN, [(vL, 2, 2, 64), (vL, 0, 1, 32), (vL, 4, 1, 16), (vL, 1, 1, 8)])
    sx(sT2, [(sKH, 32768 + 512)], L_WO)
    vx(vT, [(vTRN, 0, 0, 1), (vHH, 0, 0, 1024)], sadd=sT2)
    a.stash('wo', vT)
    a('s_lshl_b32 s%d, s%d, 9' % (sT2, sW))
    vx(vT, [(vTRN, 0, 0, 1), (vHH, 0, 0, 4096)], sadd=sT2)
    a.stash('w1', vT)
    sx(sT2, [(sKH, 512), (sLW2, 1)])
    vx(vT, [(vTRN, 0, 0, 1), (vHH, 0, 0, 2048)], sadd=sT2)
    a.stash('w2', vT)
    vx(vT + 1, [(vL, 0, 2, 16), (vHH, 0, 0, 64)])
    sx(sT2, [(sKH, 1 << 18), (sC, 128)])
    vx(vT, [(vL, 2, 3, 1024), (vT + 1, 0, 0, 1)], sadd=sT2)
    a.stash('bdo', vT)
    sx(sT2, [(sP, 896 * 1024), (sW, 224 * 1024), (sC, 128)])
    vx(vT, [(vL, 2, 3, 1024), (vT + 1, 0, 0, 1)], sadd=sT2)
    a.stash('bd2', vT)
    sx(sT2, [(sW, 16 * 3584), (sJ, 256)], 3072)
    vx(vT, [(vL, 2, 3, 3584), (vT + 1, 0, 0, 1)], sadd=sT2)
    a.stash('bd1', vT)
    a('v_bfe_u32 %s, %s, 1, 2' % (v(vT), v(vL)))
    vx(vT + 1, [(vL, 3, 1, 2)])
    a('v_xor_b32 %s, %s, %s' % (v(vT + 1), v(vT), v(vT + 1)))
    vx(vT, [(vL, 0, 5, 64), (vT + 1, 0, 0, 16)], sadd=sLDSW)
    a('v_lshl_add_u32 %s, %s, 3, %s' % (v(vA), v(vHH), v(vT)))
    a('v_lshl_add_u32 %s, %s, 13, %s' % (v(vA + 4), v(vHH), v(vT)))
    for g in range(1, 4):
        a('v_xor_b32 %s, %d, %s' % (v(vA + g), 16 * g, v(vA)))
        a('v_xor_b32 %s, %d, %s' % (v(vA + 4 + g), 16 * g, v(vA + 4)))
    vx(vT, [(vL, 3, 1, 1), (vL, 4, 1, 2)])
    a('v_bfe_u32 %s, %s, 1, 1' % (v(vT + 1), v(vL)))
    a('v_xor_b32 %s, %s, %s' % (v(vT), v(vT), v(vT + 1)))
    vx(vT + 2, [(vL, 4, 0, 512), (vL, 2, 2, 64), (vT, 0, 0, 16), (vL, 0, 1, 8)])
    sx(sT2, [(sKH, 32), (sTT, 8192)])
    a('v_xor_b32 %s, s%d, %s' % (v(vT), sT2, v(vT + 2)))
    a.stash('kvphi', vT)
    a('s_lshl_b32 s%d, s%d, 5' % (sT2, sTT))
    a('v_xor_b32 %s, s%d, %s' % (v(vT), sT2, v(vT + 2)))
    a.stash('kvv', vT)
    vx(vT, [(0, 4, 0, 16)])
    a.stash('zst', vT)
    vx(vT + 1, [(vL, 0, 4, KVREC), (vT, 0, 0, 1)])
    a.stash('zld', vT + 1)
    sx(sT2, [(sTT, 17 * 80), (sKH, 32)], L_KVB)
    vx(vT, [(vL, 4, 0, 8)], sadd=sT2)
    a.stash('kbz', vT)
    vx(vT + 1, [(vL, 0, 3, 160), (vHH, 0, 0, 80), (vL, 3, 2, 8)], sadd=sT2)
    a.stash('kbw', vT + 1)
    a('s_lshl_b32 s%d, s%d, 9' % (sT3, sW))
    vx(vT + 1, [(vL, 0, 5, 16), (vHH, 0, 0, KVREC)], sadd=sT3)
    a.stash('gld', vT + 1)
    vx(vT + 2, [(vL, 2, 1, 8), (vL, 3, 1, 4), (vL, 0, 2, 1)])
    a('v_and_b32 %s, 16, %s' % (v(vT), v(vL)))
    a('v_cmp_eq_u32 vcc, 0, %s' % v(vT))
    a('v_cndmask_b32 %s, 16, %s, vcc' % (v(vT + 2), v(vT + 2)))
    vx(vT, [(vT + 2, 0, 0, 80), (vHH, 0, 0, 16)], const=L_KVB)
    a.stash('kbr', vT)
    sx(sT2, [(sJ, 256), (sW, 64)])
    vx(vT, [(vL, 2, 1, 32), (vL, 3, 2, 8), (vL, 0, 2, 2), (vHH, 0, 0, 8192)], sadd=sT2)
    a.stash('bias', vT)
    sx(sT2, [(sLW2, 1)], R2)
    a('v_add_u32 %s, s%d, %s' % (v(vT), sT2, v(vFR)))
    a.stash('red3', vT)
    vx(vT, [(vL, 2, 0, 1024), (vL, 0, 2, 16)], const=2048)
    a.stash('xd', vT)
    vx(vT, [(vL, 0, 5, 64), (vHH, 0, 0, 32)], sadd=sT2, const=4096)
    a.stash('xr', vT)

    a('v_lshlrev_b32 %s, 6, %s' % (v(vT), v(vHH)))
    a('v_xor_b32 %s, %s, %s' % (v(vT), v(vT), v(vFR)))
    sx(sT2, [(sKH, 4096 + 128), (sLW2, 1)])
    a('v_xor_b32 %s, s%d, %s' % (v(vT), sT2, v(vT)))
    a.stash('rw', vT)
    a('s_lshl_b32 s%d, s%d, 3' % (sT2, sW))
    vx(vT, [(vL, 3, 0, 1)], sadd=sT2)
    vx(vT + 1, [(vT, 0, 0, 1024), (vL, 0, 3, 16)])
    a.stash('os', vT + 1)
    vx(vT + 1, [(vL, 0, 3, 2)])
    a('v_xor_b32 %s, %s, %s' % (v(vT), v(vT), v(vT + 1)))
    vx(vT + 1, [(vT, 0, 0, 16), (vL, 1, 1, 512), (vL, 0, 1, 2048), (vL, 2, 1, 4096)])
    a.stash('rr', vT + 1)

    sx(sGAT, [(sJ, 16 * KVREC)], KVP)
    sx(sREC, [(sGAT, 1), (sI, KVREC)])
    sx(sFA, [(sJ, 128), (sI, 4)])
    sx(sFP, [(sI, 2048), (sJ, 128)])
    sx(sFB, [(sI, 2048)])
    sx(sFME, [(sI, 2048), (sJ, 4)])
    sx(sOST, [(sI, 4 << 15), (sW, 1 << 15), (sJ, 2048)], O_)
    sx(sSLD, [(sI, 4 << 12), (sW, 1 << 12)], ST)
    sx(sAST, [(sI, 4 * 112 * 1024), (sJ, 8192), (sW, 2048)], ACT)
    sx(sALD, [(sI, 4 * 112 * 1024), (sP, 56 * 1024), (sW, 14 * 1024)], ACT)
    sx(sT2, [(sI, 4), (sP, 1), (sTT, 2)])
    sx(sT3, [(sC, 2), (sKH, 1)])
    sx(sOLD, [(sT2, 1 << 15), (sKH, 1 << 14)], O_)
    sx(sOUT, [(sT2, 1 << 15), (sT3, 64)])
    sx(sHST, [(sT2, 1 << 15), (sT3, 2048)], H_)
    sx(sSST, [(sT2, 1 << 12), (sT3, 256)], ST)
    rot = cfg.get('rot', 1)
    a('s_and_b32 s%d, s%d, %d' % (sT2, sI, 1 if cfg.get('rotw', 0) else 0))
    a('s_and_b32 s%d, s%d, %d' % (sT3, sP, 1 if cfg.get('rotw', 0) else 0))
    sx(sT3, [(sT3, 1), (sT2, 2)])
    a('s_lshr_b32 s%d, s%d, 1' % (sT0, sC))
    a('s_add_u32 s%d, s%d, s%d' % (sT0, sT0, sT3))
    a('s_and_b32 s%d, s%d, %d' % (sT0, sT0, 3 if rot else 0))
    a('s_lshl_b32 s%d, s%d, 12' % (sR3, sT0))
    sx(sCO, [(sTT, 4 << 15), (sT0, 2 << 15)])
    a('s_and_b32 s%d, s%d, %d' % (sCO, sCO, (8 << 15) - 1))
    sx(sT0, [(sJ, 1), (sT2, 2)])
    a('s_and_b32 s%d, s%d, %d' % (sT0, sT0, 3 if rot else 0))
    a('s_mul_i32 s%d, s%d, %d' % (sC1, sT0, 128 * 3584))
    sx(sT1, [(sT0, 2), (sW, 1)])
    a('s_and_b32 s%d, s%d, 7' % (sT4, sT1))
    sx(sHL0, [(sI, 4 << 15), (sT4, 4096)], H_)
    a('s_xor_b32 s%d, s%d, 4' % (sT4, sT4))
    sx(sHL1, [(sI, 4 << 15), (sT4, 4096)], H_)
    sx(sT0, [(sC, 1), (sT3, 2)])
    a('s_add_u32 s%d, s%d, -7' % (sT1, sT0))
    a('s_cselect_b32 s%d, s%d, s%d' % (sT0, sT1, sT0))
    if not rot:
        a('s_mov_b32 s%d, 0' % sT0)
    a('s_lshl_b32 s%d, s%d, 15' % (sC2, sT0))
    a('s_lshl_b32 s%d, s%d, 11' % (sC5, sT0))
    a('s_sub_u32 s%d, s%d, 3072' % (S_W1, S_W1))
    a('s_subb_u32 s%d, s%d, 0' % (S_W1 + 1, S_W1 + 1))
    a('s_cmp_ge_u32 s%d, 14' % sJ)
    a('s_cselect_b32 s%d, 0, %d' % (S_W1 + 2, SIZES['w1'] + 3072))
    for r_ in (s1a, s1b, s2a, s2b, csk, csv, csq, vBX + 2, vBX + 3):
        a('v_mov_b32 %s, 0' % v(r_))

    def warm(srd_, nbytes, dst):
        nl = nbytes // 128 // 256
        a('s_mul_i32 s%d, s2, %d' % (sT2, nl * 128))
        a('v_lshlrev_b32 %s, 7, %s' % (v(vT), v(vL)))
        a('s_mov_b32 exec_lo, 0x%x' % (((1 << nl) - 1) & 0xffffffff))
        a('s_mov_b32 exec_hi, 0x%x' % (((1 << nl) - 1) >> 32))
        a('buffer_load_dword %s, %s, %s, s%d offen' % (v(dst), v(vT), sr(srd_), sT2))
        a('s_mov_b64 exec, -1')

    def touch3(srd_, rows, pitch, off, dst, row0=None):
        nl = rows // 32
        a('s_lshr_b32 s%d, s2, 3' % sT2)
        a('s_mul_i32 s%d, s%d, %d' % (sT2, sT2, nl * pitch))
        if row0 is not None:
            a('s_add_u32 s%d, s%d, s%d' % (sT2, sT2, row0))
        a('v_mul_u32_u24 %s, %d, %s' % (v(vT), pitch, v(vL)))
        a('s_mov_b32 exec_lo, 0x%x' % (((1 << nl) - 1) & 0xffffffff))
        a('s_mov_b32 exec_hi, 0x%x' % (((1 << nl) - 1) >> 32))
        a('buffer_load_dword %s, %s, %s, s%d offen offset:%d' % (v(dst), v(vT), sr(srd_), sT2, off))
        a('s_mov_b64 exec, -1')

    def warm_big():
        a('s_cmp_lg_u32 s%d, 1' % sW)
        a('s_cbranch_scc1 L_nw1')
        warm(S_TMP, SIZES['w1'], vT + 2)
        a.label('L_nw1')
        a('s_cmp_lg_u32 s%d, 2' % sW)
        a('s_cbranch_scc1 L_nw2')
        warm(S_W2, SIZES['w2'], vT + 2)
        a.label('L_nw2')

    if cfg.get('warm1', 7) == -1:
        warm_big()
    a('s_waitcnt lgkmcnt(0)')
    a('s_mul_i32 s%d, s%d, 0x9e3779b1' % (sTAG, sTAG))
    a('s_add_u32 s%d, s%d, 0x7f4a7c15' % (sTAG, sTAG))
    a('v_mov_b32 %s, s%d' % (v(vONE), sTAG))
    D0 = min(D, cfg.get('d0', 2))
    for s in range(1, D0):
        R(dma_w(s) + dma_x(s))
    a.stamp('prolog')

    def wreg(s, p, m):
        if p == 0:
            return lambda o, n: v(vWB + (s & 1) * 8 + m * 4 + o, n)
        return lambda o, n: ac(128 + (s & 1) * 24 + (p - 1) * 8 + m * 4 + o, n)

    def reads(s):
        o = []
        for p in range(4):
            o.append('ds_read_b128 %s, %s offset:%d' % (v(X + (4 * s + p) * 4, 4), v(vXR + p), (s & 3) * 4096))
            for m in range(2):
                for t in range(2):
                    o.append('ds_read_b64_tr_b16 %s, %s offset:%d' % (wreg(s, p, m)(2 * t, 2), v(vWR + p), s * 8192 + m * 1024 + t * 256))
        return o

    def mains(s):
        o = []
        for p in range(4):
            for m in range(2):
                acc = v(aK if m == 0 else aV, 16)
                o.append([mfma32(acc, wreg(s, p, m)(0, 4), v(X + (4 * s + p) * 4, 4), '0' if (s == 0 and p == 0) else acc)])
        return o

    def cs_dots(s):
        o = []
        for r_ in range(4):
            o.append('v_dot2_f32_bf16 %s, %s, s%d, %s' % (v(csk), wreg(s, 0, 0)(r_, 1), sONES, v(csk)))
            o.append('v_dot2_f32_bf16 %s, %s, s%d, %s' % (v(csv), wreg(s, 0, 1)(r_, 1), sONES, v(csv)))
        return o

    def stat_dots(s):
        o = []
        for r_ in range(16):
            x = v(X + 16 * s + r_)
            p1, p2 = (s1a, s2a) if r_ & 1 else (s1b, s2b)
            o.append('v_dot2_f32_bf16 %s, %s, s%d, %s' % (v(p1), x, sONES, v(p1)))
            o.append('v_dot2_f32_bf16 %s, %s, %s, %s' % (v(p2), x, x, v(p2)))
        return o

    def a_ext(dst, cs, t):
        return split_hl(cs, t, t + 1, dst) + ['v_cvt_pk_bf16_f32 %s, %s, 0' % (v(dst + 1), v(t + 1)),
                                              'v_mov_b32 %s, 0' % v(dst + 2), 'v_mov_b32 %s, 0' % v(dst + 3)]

    phi_merge = ['ds_read_b64_tr_b16 %s, %s' % (v(aQ + 12, 2), v(aQ + 8)),
                 'ds_read_b64_tr_b16 %s, %s offset:256' % (v(aQ + 14, 2), v(aQ + 8))]
    phi_merge2 = []
    for e in range(4):
        phi_merge2.append('v_cndmask_b32 %s, 0, %s, s[%d:%d]' % (v(aQ + e), v(aQ + 12 + e), sMSK, sMSK1))
        phi_merge2.append('v_cndmask_b32 %s, %s, 0, s[%d:%d]' % (v(aQ + 4 + e), v(aQ + 12 + e), sMSK, sMSK1))
    for e in range(8):
        phi_merge2.append('v_accvgpr_write_b32 %s, %s' % (ac(PA1 + e), v(aQ + e)))

    wq = [dma_wq(s) for s in range(8)]
    R(WaitVM('slot0'))
    a('s_barrier')
    a.stamp('c0', 2)
    R(phi_merge)
    R(reads(0))
    for s in range(D0, D):
        R(dma_w(s) + dma_x(s))
    R(phi_merge2)
    late = cfg.get('p1late', 0)
    for s in range(7):
        R(WaitVM('slot%d' % (s + 1)))
        a('s_waitcnt lgkmcnt(0)')
        a('s_barrier')
        a.stamp('c%d' % (s + 1), 2)
        if s + D < 8:
            dw, dx = dma_w(s + D), dma_x(s + D)
        else:
            k0, k1 = (s + D - 8) * 8 // D, (s + D - 7) * 8 // D
            fl = [x for g in wq[k0:k1] for x in g]
            dw, dx = fl[:len(fl) // 2], fl[len(fl) // 2:]
        rd = reads(s + 1)
        allm = dw + dx
        idx = [i for i, x in enumerate(allm) if isinstance(x, str) and x.startswith('buffer_')]
        nl = min(late, len(idx))
        cut = idx[len(idx) - nl] if nl else len(allm)
        if nl and isinstance(allm[cut - 1], str) and 'm0' in allm[cut - 1]:
            cut -= 1
        a.fill(mains(s), merge(rd, allm[:cut]))
        dots = cs_dots(s) + stat_dots(s)
        rest = allm[cut:]
        groups = []
        for x in rest:
            if not groups or (isinstance(x, str) and x.startswith('buffer_') and any(isinstance(y, str) and y.startswith('buffer_') for y in groups[-1])):
                groups.append([])
            groups[-1].append(x)
        ng_ = len(groups)
        for k in range(ng_ + 1):
            R(dots[k * 40 // (ng_ + cfg.get('p1e', 0)) if ng_ else 0:(k + 1) * 40 // (ng_ + cfg.get('p1e', 0)) if ng_ else 40])
            if k < ng_:
                R(groups[k])
        if cfg.get('warm1', 7) == s:
            warm_big()
    s = 7
    R(cs_dots(s))
    a('v_lshlrev_b32 %s, 3, v0' % v(vT))
    R('ds_write_b64 %s, %s offset:%d' % (v(vT), v(csk, 2), L_CSX))
    R(stat_dots(s))
    a('v_lshlrev_b32 %s, 3, %s' % (v(vT), v(vL)))
    a('s_waitcnt lgkmcnt(0)')
    a('s_barrier')
    for w in range(4):
        R('ds_read_b64 %s, %s offset:%d' % (v(aQ + 2 * w, 2), v(vT), L_CSX + 512 * w))
    fin = ['v_add_f32 %s, %s, %s' % (v(s1a), v(s1a), v(s1b)),
           'v_add_f32 %s, %s, %s' % (v(s2a), v(s2a), v(s2b)),
           'v_permlane32_swap_b32 %s, %s' % (v(s1a), v(s2a)),
           'v_add_f32 %s, %s, %s' % (v(s1a), v(s1a), v(s2a)),
           'v_mov_b32 %s, %s' % (v(s2a), v(s1a)),
           'v_permlane32_swap_b32 %s, %s' % (v(s1a), v(s2a))]
    fin += ln_ops(s1a, s2a, mean, rstd)
    fin += ['v_sub_f32 %s, 0, %s' % (v(s1a), v(mean))]
    fin += split_hl(s1a, s1b, s2b, vT)
    fin += ['v_cvt_pk_bf16_f32 %s, %s, %s' % (v(vBX), v(s1b), v(s2b)),
            'v_cvt_pk_bf16_f32 %s, %s, 0' % (v(vBX + 1), v(s1b))]
    fin2 = ['v_add_f32 %s, %s, %s' % (v(aQ + i), v(aQ + i), v(aQ + 4 + i)) for i in range(4)]
    fin2 += ['v_add_f32 %s, %s, %s' % (v(csk + i), v(aQ + i), v(aQ + 2 + i)) for i in range(2)]
    fin2 += a_ext(aQ + 8, csk, vT + 1) + a_ext(aQ + 12, csv, vT + 1)
    k0 = (7 + D - 8) * 8 // D
    m7 = mains(7)
    m7 = [m7[i] for i in (0, 2, 4, 6, 1, 3, 5, 7)]
    a.fill(m7, merge(fin, fin2))
    a.stamp('p1end')
    R(mfma32(v(aK, 16), v(aQ + 8, 4), v(vBX, 4), v(aK, 16)))
    R(mfma32(v(aV, 16), v(aQ + 12, 4), v(vBX, 4), v(aV, 16)))
    R([x for g in wq[k0:] for x in g] + [Mark('wq')])
    a('v_lshlrev_b32 %s, 7, %s' % (v(vL128), v(vL)))
    def touches(at):
        o = []
        if cfg.get('lo', 0) and cfg.get('to', 'p1') == at:
            o += pretouch(sOST, 16, s1a)
        if cfg.get('lh', 0) and cfg.get('th', 'p1') == at:
            o += pretouch(sHST, 16, s1a) + pretouch(sSST, 2, s1a)
        return o
    if cfg.get('warm1', 7) == 7:
        warm_big()
    R(touches('p1'))
    if cfg.get('wflag', 1):
        a('v_lshlrev_b32 %s, 15, %s' % (v(vRB), v(vL)))
        a('v_lshlrev_b32 %s, 7, %s' % (v(vT + 3), v(vL)))
        a('v_add_u32 %s, %d, %s' % (v(vT + 3), 3 * 32768 - 5 * 128, v(vT + 3)))
        a('v_cmp_lt_u32 vcc, 5, %s' % v(vL))
        a('v_cndmask_b32 %s, %s, %s, vcc' % (v(vRB), v(vRB), v(vT + 3)))
        a('s_cmp_eq_u32 s%d, 0' % sW)
        a('s_cselect_b32 s%d, s%d, s%d' % (sT2, sFP, sFB))
        a('s_cselect_b32 exec_lo, 1, 0xfe')
        a('s_mov_b32 exec_hi, 0')
        a('s_cmp_gt_u32 s%d, 1' % sW)
        a('s_cbranch_scc1 L_nowfl')
        a('buffer_load_dword %s, %s, %s, s%d offen sc1' % (v(vRB), v(vRB), sr(S_WS), sT2))
        a.label('L_nowfl')
        a('s_mov_b64 exec, -1')
    vBD = vXD
    def blk_regs(name, reg):
        return [a.unstash(name, reg)] + ['v_add_u32 %s, %d, %s' % (v(reg + q), q * 7168, v(reg)) for q in range(1, 4)]
    R(blk_regs('bdo', vBD))
    def dma_wo(g4):
        return ['s_add_u32 m0, s%d, %d' % (sLDSX, g4 * 4096)] + [
            'buffer_load_dwordx4 %s, %s, s%d offen offset:%d lds' % (v(vBD + b), sr(S_WO), sCO, b * 1024) for b in range(4)
        ] + step(sCO, 32768, 8 * 32768)
    vB1 = vWR
    def dma_w1(g4):
        return ['s_add_u32 m0, s%d, %d' % (sLW1, (g4 ^ 2 if g4 < 4 else g4) * 16384)] + [
            'buffer_load_dwordx4 %s, %s, s%d offen offset:%d lds' % (v(vB1 + b), sr(S_W1), sC1, b * 1024) for b in range(4)
        ] + step(sC1, 64 * 3584, 512 * 3584)
    def w2reg(ks, rho):
        return 112 + (ks * 2 + rho) * 4
    vW2, vW2c = vS + 2, vS + 14
    REG = {0: R2, 1: 0, 2: 32768, 3: 65536}
    TW2, TAC = 4, 14
    P0L = [False]
    def w2_dma(q):
        o = []
        for h in range(2 if q < 3 else 1):
            so = sC2 if (q == 0 and not P0L[0]) else TW2 + 2 * q + h
            o += ['s_add_u32 m0, s%d, %d' % (sLW2, REG[q] + h * 4096)] + [
                'buffer_load_dwordx4 %s, %s, s%d offen offset:%d lds' % (v(vBD2 + b), sr(S_W2), so, b * 1024) for b in range(4)]
            if q == 0 and not P0L[0]:
                o += step(sC2, 32768, 7 * 32768)
        return o + [Mark('w2_%d' % q)]
    def tables():
        o = []
        for n in range(0 if P0L[0] else 2, 7):
            o += ['s_mov_b32 s%d, s%d' % (TW2 + n, sC2)] + step(sC2, 32768, 7 * 32768)
        for n in range(7):
            o += ['s_mov_b32 s%d, s%d' % (TAC + n, sC5)] + step(sC5, 2048, 7 * 2048)
        return o
    def w2_read(q, h, a_, rho):
        n, region = 2 * q + h, REG[q]
        base, off = (vW2, region) if region < R1 else ((vW2c, region - R1) if region < R2 else (vW2 + 2, region - R2))
        return ['ds_read_b64_tr_b16 %s, %s offset:%d' % (ac(w2reg(2 * n + a_, rho) + 2 * t, 2), v(base + rho),
                                                        off + h * 4096 + a_ * 1024 + t * 256) for t in range(2)]
    def w2_park(q):
        return [x for h in range(2) for a_ in range(2) for rho in range(2) for x in w2_read(q, h, a_, rho)] + [Mark('park%d' % q)]

    vBD2 = vXR
    PLAN = dict(Wa=['o0'], Wb1=['o1', 'o2'], Wb2=['o3'], Wb3=['g0', 'g1'], Wc=[], Wd0=['g2', 'g3'], Wd=[], We=['g4', 'g5', 'g6'],
                Wf0=['g7'], Wf=['p0'])
    PLAN.update(cfg.get('plan', {}))
    ORDER = ['Wa', 'Wb1', 'Wb2', 'Wb3', 'Wc', 'Wd0', 'Wd', 'We', 'Wf0', 'Wf']
    where = {g: ORDER.index(w) for w in ORDER for g in PLAN[w]}
    P0L[0] = 'p0' not in where
    assert sorted(where) == sorted(['o%d' % i for i in range(4)] + ['g%d' % i for i in range(8)] + ([] if P0L[0] else ['p0']))
    assert all(where['o%d' % i] <= 4 for i in range(4)) and where.get('p0', 9) == 9
    assert all(where['g%d' % i] >= 3 for i in (0, 1)) and all(where['g%d' % i] >= 4 for i in (2, 3))
    assert all(where['g%d' % i] <= where['g%d' % (i + 1)] for i in range(7))
    assert all(where['g%d' % i] >= 6 for i in range(4, 8))
    where['p1'] = 99
    def window(w):
        o = []
        for g in PLAN[w]:
            o += {'o': dma_wo, 'g': dma_w1, 'p': w2_dma}[g[0]](int(g[1]))
            o.append(Mark(g))
        return o
    def landed(w):
        return sum(1 for i in range(8) if where['g%d' % i] <= ORDER.index(w))
    cs1 = vS + 6
    vW1 = vS + 10
    def w1_reads(k0, k1):
        o = []
        for ks in range(k0, k1):
            T, a_ = ks >> 1, ks & 1
            for t in range(2):
                off = (4 * T + a_) * 2048 + t * 256
                if off < 65536:
                    off ^= 32768
                o.append('ds_read_b64_tr_b16 %s, %s offset:%d' % (v(X + 4 * ks + 2 * t, 2), v(vW1 + (off >> 16)), off & 0xffff))
        return o
    def w1_dots(k0, k1):
        return ['v_dot2_f32_bf16 %s, %s, s%d, %s' % (v(cs1 + (r_ & 1)), v(X + r_), sONES, '0' if r_ < 2 else v(cs1 + (r_ & 1)))
                for r_ in range(4 * k0, 4 * k1)]

    a('v_mul_f32 %s, 0x%x, %s' % (v(cexp), LOG2E, v(rstd)))
    a('v_mul_f32 %s, 0x%x, %s' % (v(ncexp), LOG2E | 0x80000000, v(rstd)))
    for i in range(8):
        a('v_cvt_pk_bf16_f32 %s, %s, %s' % (v(vWB + i), v(aK + 2 * i), v(aK + 2 * i + 1)))
    R(mfma32(v(aK, 16), ac(PA1, 4), v(vWB, 4), '0'))
    R(mfma32(v(aK, 16), ac(PA2, 4), v(vWB + 4, 4), v(aK, 16)))
    nv_ = cfg.get('vplain', 8)
    for i in range(nv_):
        a('v_mul_f32 %s, %s, %s' % (v(aV + i), v(aV + i), v(rstd)))
    for i in range(nv_, 16, 2):
        a('v_pk_mul_f32 %s, %s, %s op_sel_hi:[1,0]' % (v(aV + i, 2), v(aV + i, 2), v(rstd, 2)))
    for i in range(8):
        a('v_cvt_pk_bf16_f32 %s, %s, %s' % (v(aQ + i), v(aV + 2 * i), v(aV + 2 * i + 1)))
    for g in range(4):
        R('ds_write_b64 %s, %s offset:%d' % (v(vA + g), v(aQ + 2 * g, 2), L_V))
    a.stamp('phik', 2)
    sm = softmax_ops(aK, vWB, aV, cexp, aQ + 8)
    R(sm[:34])
    R(merge(sm[34:66], window('Wa')))
    R(sm[66:-16])
    for q in range(2):
        R('ds_write_b128 %s, %s offset:%d' % (v(vA + 4 + q), v(aV + 4 * q, 4), L_PHI))
    R(sm[-16:])
    for q in range(2, 4):
        R('ds_write_b128 %s, %s offset:%d' % (v(vA + 4 + q), v(aV + 4 * q, 4), L_PHI))
    vKV = vXR
    R([a.unstash('kvphi', vKV), a.unstash('kvv', vKV + 2), 'v_xor_b32 %s, 32, %s' % (v(vKV + 1), v(vKV)),
       'v_xor_b32 %s, 32, %s' % (v(vKV + 3), v(vKV + 2))])
    for i in range(4):
        a('v_mov_b32 %s, s%d' % (v(aQ + 12 + i), sONES))
    a('s_waitcnt lgkmcnt(0)')
    a('s_barrier')
    a.stamp('B1')
    for s in range(4):
        R('ds_read_b64_tr_b16 %s, %s offset:%d' % (v(vWB + 8 * s, 2), v(vKV), L_PHI + 2048 * s))
        R('ds_read_b64_tr_b16 %s, %s offset:%d' % (v(vWB + 8 * s + 2, 2), v(vKV + 1), L_PHI + 2048 * s + 256))
        R('ds_read_b64_tr_b16 %s, %s offset:%d' % (v(vWB + 8 * s + 4, 2), v(vKV + 2), L_V + 2048 * s))
        R('ds_read_b64_tr_b16 %s, %s offset:%d' % (v(vWB + 8 * s + 6, 2), v(vKV + 3), L_V + 2048 * s + 256))
    a('v_lshlrev_b32 %s, 3, v0' % v(vA))
    R(a.unstash('zst', vA + 1))
    for s in range(4):
        R(mfma16(v(aK, 4), v(vWB + 8 * s, 4), v(vWB + 8 * s + 4, 4), '0' if s == 0 else v(aK, 4)))
        R(mfma16(v(aK + 4, 4), v(vWB + 8 * s, 4), v(aQ + 12, 4), '0' if s == 0 else v(aK + 4, 4)))
    for p in range(4):
        a('v_add_u32 %s, %d, %s' % (v(vWR + p), L_WQ, v(vWR + p)))
    R(blk_regs('bd2', vBD2))
    a('v_cvt_pk_bf16_f32 %s, %s, %s' % (v(aQ), v(aK), v(aK + 1)))
    a('v_cvt_pk_bf16_f32 %s, %s, %s' % (v(aQ + 1), v(aK + 2), v(aK + 3)))
    R('buffer_store_dwordx2 %s, %s, %s, s%d offen sc1' % (v(aQ, 2), v(vA), sr(S_WS), sREC))
    a('s_mov_b32 exec_lo, 0x00010001')
    a('s_mov_b32 exec_hi, 0x00010001')
    R('buffer_store_dwordx4 %s, %s, %s, s%d offen offset:2048 sc1' % (v(aK + 4, 4), v(vA + 1), sr(S_WS), sREC))
    R(Mark('kv'))
    a('s_mov_b64 exec, -1')
    a.stamp('kvst', 2)

    a('; ---- Q projection while the partial sums drain')
    R(WaitVM('wq'))
    a('s_barrier')
    a.stamp('Bq', 2)
    def qoff(s):
        return (s >> 1) * 8192 + (s & 1) * 1024
    order = [(s, p) for p in range(4) for s in range(8)]
    def qreg(n):
        return (lambda o, k: v(vWB + 4 * n + o, k)) if n < 8 else (lambda o, k: ac(4 * (n - 8) + o, k))
    def qread(n):
        s, p = order[n]
        return ['ds_read_b64_tr_b16 %s, %s offset:%d' % (qreg(n)(2 * t, 2), v(vWR + p), qoff(s) + t * 256) for t in range(2)] + [Mark('q%d' % n)]
    for n in range(12):
        R(qread(n))
    a('v_mov_b32 %s, 0' % v(vT + 1))
    R(WaitDS('q7'))
    for r_ in range(32):
        d = csq if r_ & 1 else vT + 1
        a('v_dot2_f32_bf16 %s, %s, s%d, %s' % (v(d), v(vWB + r_), sONES, v(d)))
    a('v_lshlrev_b32 %s, 2, v0' % v(vT))
    a('v_add_f32 %s, %s, %s' % (v(csq), v(csq), v(vT + 1)))
    R('ds_write_b32 %s, %s offset:%d' % (v(vT), v(csq), L_CSQ))
    a.stamp('qdot', 2)
    qm, qp = [], []
    for n in range(32):
        s, p = order[n]
        g = []
        if n >= 8 and n % 4 == 0:
            g.append(WaitDS('q%d' % (n + 3)))
        g.append(mfma32(v(aQ, 16), qreg(n)(0, 4), v(X + (4 * s + p) * 4, 4), '0' if n == 0 else v(aQ, 16)))
        qm.append(g)
        qp.append(qread(n + 12) if n + 12 < 32 else [])
    n1 = cfg.get('q1', 12)
    a.fill(qm[:n1], window('Wb1') + ['v_lshlrev_b32 %s, 11, %s' % (v(vT), v(vL))], post=qp[:n1])
    a.stamp('q1', 2)
    R(WaitVM('kv'))
    a.stamp('kvack', 2)
    a('s_waitcnt lgkmcnt(0)')
    a('s_barrier')
    push_flags(sFA, 0, vT)
    lab = a.uniq('L_noid')
    a('s_getreg_b32 s%d, hwreg(HW_REG_XCC_ID, 0, 4)' % sXID)
    a('s_cmp_lg_u32 s%d, 0' % sW)
    a('s_cbranch_scc1 %s' % lab)
    a('s_add_u32 s%d, s%d, %d' % (sT5, sFME, 5 * 32768))
    a('v_add_u32 %s, s%d, %s' % (v(vT + 3), sXID, v(vONE)))
    a('s_mov_b64 exec, 1')
    a('buffer_store_dword %s, %s, %s, s%d offen sc1' % (v(vT + 3), v(vL4), sr(S_WS), sT5))
    a('s_mov_b64 exec, -1')
    a.label(lab)
    a.stamp('pushA')
    if cfg.get('ct1', 2):
        code_touch(cfg.get('ct1', 2), 2, vRB)
    R(touches('pa'))
    qx = ['ds_read_b32 %s, %s offset:%d' % (v(vA + 4 + w), v(vL4), L_CSQ + 256 * w) for w in range(4)]
    qy = ['v_add_f32 %s, %s, %s' % (v(vA + 4), v(vA + 4), v(vA + 5)),
          'v_add_f32 %s, %s, %s' % (v(vA + 6), v(vA + 6), v(vA + 7)),
          'v_add_f32 %s, %s, %s' % (v(csq), v(vA + 4), v(vA + 6))] + a_ext(vA + 4, csq, vT + 1)
    a.fill(qm[n1:], qx + merge(window('Wb2'), qy), post=qp[n1:])
    R(mfma32(v(aQ, 16), v(vA + 4, 4), v(vBX, 4), v(aQ, 16)))
    XR = vWB + 24
    R([a.unstash('w2', vW2), 'v_xor_b32 %s, 512, %s' % (v(vW2 + 1), v(vW2)),
       'v_add_u32 %s, %d, %s' % (v(vW2 + 2), R2, v(vW2)), 'v_add_u32 %s, %d, %s' % (v(vW2 + 3), R2, v(vW2 + 1))])
    R(a.unstash('bd1', vB1))
    for q in range(1, 4):
        a('v_add_u32 %s, %d, %s' % (v(vB1 + q), (q >> 1) * 8 * 3584 + (q & 1) * 128 - 1024 * q, v(vB1)))
    R(window('Wb3'))
    R(touches('b3'))
    a.stamp('qgemm', 2)
    for i in range(8):
        a('v_cvt_pk_bf16_f32 %s, %s, %s' % (v(vWB + i), v(aQ + 2 * i), v(aQ + 2 * i + 1)))
    R(mfma32(v(aK, 16), ac(PA1, 4), v(vWB, 4), '0'))
    R(mfma32(v(aK, 16), ac(PA2, 4), v(vWB + 4, 4), v(aK, 16)))
    R([a.unstash('gld', vA), a.unstash('zld', vA + 1), a.unstash('kbw', vA + 2), a.unstash('kbz', vA + 3), a.unstash('kbr', vA + 4),
       'v_lshlrev_b32 %s, 7, %s' % (v(vL128), v(vL))])
    PQ = aQ
    sm = softmax_ops(aK, vWB, PQ, cexp, aV)
    for q in range(4):
        sm.append('v_permlane32_swap_b32 %s, %s' % (v(PQ + q), v(PQ + 4 + q)))
        sm.append('v_permlane32_swap_b32 %s, %s' % (v(PQ + 8 + q), v(PQ + 12 + q)))
    ns = cfg.get('smpre', 20)
    R(sm[:ns])
    a.stamp('qsm', 2)

    a('; ---- hand-off A: gather the 16 partial kv records')
    poll(0, 16)
    a('s_barrier')
    a.stamp('gotA')
    G = X + 64
    GZ = X + 96
    gl = []
    for p in range(8):
        g = ['buffer_load_dwordx4 %s, %s, %s, s%d offen sc1' % (v(G + 4 * p, 4), v(vA), sr(S_WS), sGAT)]
        if p == 0:
            g.append('buffer_load_dwordx4 %s, %s, %s, s%d offen offset:2048 sc1' % (v(GZ, 4), v(vA + 1), sr(S_WS), sGAT))
        if p < 7:
            g.append('s_add_u32 s%d, s%d, %d' % (sGAT, sGAT, 2 * KVREC))
        if p % 2 == 1:
            g.append(Mark('g%d' % (p // 2)))
        gl.append(g)
    ng = cfg.get('gfirst', 8)
    R(gl[:ng])
    a.stamp('gl', 2)
    a.stamp('park0', 2)
    e0 = max(ns, cfg.get('gsplit', 66))
    R(sm[ns:e0])
    R(gl[ng:])
    vID = vS + 1
    R(check_issue(5, vID, None))
    lab = a.uniq('L_nowf')
    a('s_cmp_lg_u32 s%d, 1' % sW)
    a('s_cbranch_scc1 %s' % lab)
    a('v_lshlrev_b32 %s, 15, %s' % (v(vRB), v(vL)))
    a('v_lshlrev_b32 %s, 7, %s' % (v(vT + 3), v(vL)))
    a('v_add_u32 %s, %d, %s' % (v(vT + 3), 3 * 32768 - 5 * 128, v(vT + 3)))
    a('v_cmp_lt_u32 vcc, 5, %s' % v(vL))
    a('v_cndmask_b32 %s, %s, %s, vcc' % (v(vRB), v(vRB), v(vT + 3)))
    a('s_mov_b64 exec, 0xde')
    a('buffer_load_dword %s, %s, %s, s%d offen sc1' % (v(vRB), v(vRB), sr(S_WS), sFB))
    a('s_mov_b64 exec, -1')
    a.label(lab)
    R(window('Wc'))
    R(touches('wc'))
    a.stamp('gl2', 2)
    R(sm[e0:])
    a.stamp('sm2', 2)
    R([a.unstash('xd', vT), 'v_add_u32 %s, %d, %s' % (v(vT + 1), 16384 - 1024, v(vT)),
       's_add_u32 m0, s%d, %d' % (sLW2, R2 + 4096),
       'buffer_load_dwordx4 %s, %s, s%d offen lds' % (v(vT), sr(S_X), sOUT),
       'buffer_load_dwordx4 %s, %s, s%d offen offset:1024 lds' % (v(vT + 1), sr(S_X), sOUT), Mark('xr')])
    a.stamp('qsm2', 2)
    for sh in (1, 2, 4, 8):
        for i in range(4):
            a('v_add_f32_dpp %s, %s, %s row_ror:%d row_mask:0xf bank_mask:0xf' % (v(GZ + i), v(GZ + i), v(GZ + i), sh))
    a('v_cvt_pk_bf16_f32 %s, %s, %s' % (v(aK + 6), v(GZ), v(GZ + 1)))
    a('v_cvt_pk_bf16_f32 %s, %s, %s' % (v(aK + 7), v(GZ + 2), v(GZ + 3)))
    R('ds_write_b64 %s, %s offset:%d' % (v(vA + 3), v(aK + 6, 2), 16 * 80))
    S8 = aK + 8
    for p in range(8):
        if p % 2 == 0:
            R(WaitVM('g%d' % (p // 2)))
        for i in range(8):
            a('v_dot2_f32_bf16 %s, %s, s%d, %s' % (v(S8 + i), v(G + 4 * p + (i >> 1)), sSEL1 if i & 1 else sSEL0,
                                                  '0' if p == 0 else v(S8 + i)))
    for i in range(4):
        a('v_permlane32_swap_b32 %s, %s' % (v(S8 + i), v(S8 + 4 + i)))
    a('v_pk_add_f32 %s, %s, %s' % (v(aK, 2), v(S8, 2), v(S8 + 4, 2)))
    a('v_pk_add_f32 %s, %s, %s' % (v(aK + 2, 2), v(S8 + 2, 2), v(S8 + 6, 2)))
    a('v_cvt_pk_bf16_f32 %s, %s, %s' % (v(aK + 4), v(aK), v(aK + 1)))
    a('v_cvt_pk_bf16_f32 %s, %s, %s' % (v(aK + 5), v(aK + 2), v(aK + 3)))
    a.stamp('gdot', 2)
    R('ds_write_b64 %s, %s' % (v(vA + 2), v(aK + 4, 2)))
    check_done(5, 16, vID, None)
    R(WaitVM('o3'))
    a('s_waitcnt lgkmcnt(0)')
    a('s_barrier')
    a.stamp('B4', 2)
    for h in range(2):
        for s in range(2):
            R('ds_read_b128 %s, %s offset:%d' % (v(vWB + (h * 2 + s) * 4, 4), v(vA + 4), h * 17 * 80 + s * 32))
    for h in range(2):
        acc = v(aK if h == 0 else aV, 16)
        R(mfma32(acc, v(vWB + h * 8, 4), v(PQ + 4 * h, 4), '0'))
        R(mfma32(acc, v(vWB + h * 8 + 4, 4), v(PQ + 8 + 4 * h, 4), acc))
    for h in range(2):
        acc = aK if h == 0 else aV
        a('v_add_f32 %s, 0x358637bd, %s' % (v(acc + 8), v(acc + 8)))
        a('v_rcp_f32 %s, %s' % (v(acc + 8), v(acc + 8)))
        if h == 0:
            for i in range(8):
                a('v_mul_f32 %s, %s, %s' % (v(acc + i), v(acc + i), v(acc + 8)))
        else:
            for i in range(0, 8, 2):
                a('v_pk_mul_f32 %s, %s, %s op_sel_hi:[1,0]' % (v(acc + i, 2), v(acc + i, 2), v(acc + 8, 2)))
        for i in range(4):
            a('v_cvt_pk_bf16_f32 %s, %s, %s' % (v(acc + 12 + i), v(acc + 2 * i), v(acc + 2 * i + 1)))
        dual(['buffer_store_dwordx4 %s, %s, %s, s%d offen offset:%d' % (v(acc + 12, 4), v(vFR), sr(S_WS), sOST, h * 1024)], cfg.get('lo', 0))
    R(Mark('o'))
    a.stamp('ost', 2)
    vWO = vXD
    R([a.unstash('wo', vWO), 'v_xor_b32 %s, 512, %s' % (v(vWO + 1), v(vWO))])
    R([a.unstash('w1', vW1), 'v_add_u32 %s, 65536, %s' % (v(vW1 + 1), v(vW1)), a.unstash('xr', vT)])
    R([a.unstash('red3', vA), 'v_xor_b32 %s, 16384, %s' % (v(vA + 1), v(vA))])
    wop = []
    for s in range(16):
        for rho in range(2):
            for t in range(2):
                wop.append('ds_read_b64_tr_b16 %s, %s offset:%d' % (ac((s * 2 + rho) * 4 + 2 * t, 2), v(vWO + rho), s * 2048 + t * 256))
    R(merge(wop, window('Wd0')))
    R(WaitVM('o'))
    a('s_waitcnt lgkmcnt(0)')
    a('s_barrier')
    arrive(1)
    a.stamp('pushB')
    if cfg.get('ct3', 2):
        code_touch(cfg.get('ct3', 2), 2, vRB)
    R(['ds_read_b128 %s, %s' % (v(XR, 4), v(vT)), 'ds_read_b128 %s, %s offset:16' % (v(XR + 4, 4), v(vT))])
    k1 = 4 * landed('Wc')
    R(merge(w1_reads(0, k1), window('Wd')))
    R(Mark('Wd'))
    for i in range(8):
        a('v_lshlrev_b32 %s, 16, %s' % (v(aQ + 2 * i), v(XR + i)))
        a('v_and_b32 %s, 0xffff0000, %s' % (v(aQ + 2 * i + 1), v(XR + i)))
    a.stamp('wopark', 2)

    poll(1, 16)
    R(WaitVM('Wd'))
    a('s_waitcnt lgkmcnt(0)')
    a('s_barrier')
    a.stamp('gotB')
    OB = X + 64
    ol = []
    for s in range(16):
        g = []
        if s % 4 == 0:
            g += ['s_add_u32 s%d, s%d, s%d' % (sT2, sR3, sOLD)] + step(sR3, 4096, 16384)
        g.append('buffer_load_dwordx4 %s, %s, %s, s%d offen offset:%d %s' % (v(OB + 4 * s, 4), v(vFR), sr(S_WS), sT2, (s % 4) * 1024, SC))
        ol.append(g)
    no = cfg.get('ofirst', 10)
    R(ol[:no])
    a.stamp('old', 2)
    n3 = cfg.get('p3split', 5)
    o3 = [(s, rho) for s in range(16 - n3) for rho in range(2)] + [(s, 1) for s in range(16 - n3, 16)] + [(s, 0) for s in range(16 - n3, 16)]
    pm = []
    for s, rho in o3:
        acc = v(aK if rho == 0 else aV, 16)
        pm.append([mfma32(acc, ac((s * 2 + rho) * 4, 4), v(OB + 4 * s, 4), (v(aQ, 16) if rho == 0 else '0') if s == 0 else acc)])
    k2 = min(16, 4 * landed('Wd'))
    R(w1_reads(k1, k2))
    if where['p1'] == 6:
        R(w2_park(1))
    a.stamp('park1', 2)
    post = [[] for _ in pm]
    for k, g in enumerate(ol[no:]):
        post[2 * k] = g
    r3w = ['ds_write_b128 %s, %s offset:%d' % (v(vA), v(aV + 4 * q, 4), q * 1024) for q in range(4)]
    if n3 >= 4:
        post[30] = post[30] + r3w[:2]
        post[31] = post[31] + r3w[2:]
        r3w = []
    if where['p1'] != 7:
        a.fill(pm, window('We'), cfg.get('wefirst', 14), 28, post=post)
    else:
        a.fill(pm, window('We') + [WaitVM('p1')] + w2_park(1), 14, post=post)
    a.stamp('p3mf', 2)
    R(r3w)
    a('s_waitcnt lgkmcnt(0)')
    a('s_barrier')
    for q in range(4):
        R('ds_read_b128 %s, %s offset:%d' % (v(aV + 4 * q, 4), v(vA + 1), q * 1024))
    HP = vA
    for half in range(2):
        for i in range(8 * half, 8 * half + 8, 2):
            a('v_pk_add_f32 %s, %s, %s' % (v(aK + i, 2), v(aK + i, 2), v(aV + i, 2)))
        for i in range(8 * half, 8 * half + 8, 2):
            a('v_cvt_pk_bf16_f32 %s, %s, %s' % (v(HP + i // 2), v(aK + i), v(aK + i + 1)))
        dual(['buffer_store_dwordx4 %s, %s, %s, s%d offen offset:%d' % (v(HP + 4 * half, 4), v(vFR), sr(S_WS), sHST, half * 1024)], cfg.get('lh', 0))
    for i in range(8):
        a('v_dot2_f32_bf16 %s, %s, s%d, %s' % (v(vT), v(HP + i), sONES, '0' if i == 0 else v(vT)))
        a('v_dot2_f32_bf16 %s, %s, %s, %s' % (v(vT + 1), v(HP + i), v(HP + i), '0' if i == 0 else v(vT + 1)))
    a('v_permlane32_swap_b32 %s, %s' % (v(vT), v(vT + 1)))
    a('v_add_f32 %s, %s, %s' % (v(vT), v(vT), v(vT + 1)))
    dual(['buffer_store_dword %s, %s, %s, s%d offen' % (v(vT), v(vL4), sr(S_WS), sSST)], cfg.get('lh', 0))
    R(Mark('h'))
    a.stamp('hst', 2)
    R(a.unstash('bias', vT + 2))
    R('buffer_load_ushort %s, %s, %s, 0 offen' % (v(vS + 12), v(vT + 2), sr(S_B1)))
    R(window('Wf0'))
    R(w1_dots(0, k2))
    R(['v_add_u32 %s, %d, %s' % (v(vW2c), R1, v(vW2)), 'v_add_u32 %s, %d, %s' % (v(vW2c + 1), R1, v(vW2 + 1))])
    R(WaitVM('h'))
    if cfg.get('rbh', 0):
        R(readback(sHST, 16, vRB, sSST))
    a('s_barrier')
    arrive(2)
    a.stamp('pushC')
    if cfg.get('ct2', 4):
        code_touch(cfg.get('ct2', 4), 2, vRB)
    a('s_or_b32 s%d, s%d, s%d' % (sT2, sFME, sW))
    a('s_cmp_lg_u32 s%d, %d' % (sT2, 15 * 4))
    a('s_cbranch_scc1 L_noep')
    a('s_mov_b32 s%d, 0x%x' % (sT2, EPOCH))
    a('s_mov_b64 exec, 1')
    a('buffer_store_dword %s, %s, %s, s%d offen sc1' % (v(vONE), v(vL4), sr(S_WS), sT2))
    a('s_mov_b64 exec, -1')
    a.label('L_noep')
    R(window('Wf'))
    vAL = vXD
    a('v_add_u32 %s, s%d, %s' % (v(vAL), sALD, v(vFR)))
    a('v_add_u32 %s, %d, %s' % (v(vAL + 1), 112 * 1024, v(vAL)))
    a('s_mul_i32 s%d, s%d, %d' % (sT2, sP, 112 * 1024))
    a('s_sub_u32 s%d, %d, s%d' % (sT3, 3 * 112 * 1024, sT2))
    a('s_add_u32 s%d, s%d, %d' % (sT2, sT2, 2 * 112 * 1024))
    a('v_add_u32 %s, s%d, %s' % (v(vAL + 2), sT3, v(vAL)))
    a('v_add_u32 %s, s%d, %s' % (v(vAL + 3), sT2, v(vAL)))
    sM = [sCO, sC1, None, sR3]
    a('s_or_b32 s%d, s%d, s%d' % (sT2, sP, sTT))
    a('s_cmp_eq_u32 s%d, 0' % sT2)
    a('s_cselect_b32 s%d, 0x%x, 0' % (sM[0], LOG2E))
    a('s_cmp_gt_u32 s%d, s%d' % (sP, sTT))
    a('s_cselect_b32 s%d, 0x%x, 0' % (sM[1], LOG2E))
    a('s_cmp_eq_u32 s%d, 1' % sTT)
    a('s_cselect_b32 s%d, 0x%x, 0' % (sM[3], LOG2E))
    sx(sT2, [(sTT, 1 << 16), (sKH, 64)])
    a('s_sub_u32 s%d, s%d, s%d' % (sOUT, sOUT, sT2))
    sXS, sXR, sFPA = sREC, sGAT, sFA
    a('s_cmp_lg_u32 s%d, 0' % sLOC)
    a('s_cselect_b32 s%d, 0, 0x%x' % (sT2, XB - O_))
    sx(sXS, [(sT2, 1), (sI, 1 << 17), (sJ, 1 << 13), (sW, 1 << 11)], O_)
    a('s_xor_b32 s%d, s%d, 8192' % (sXR, sXS))
    a('s_xor_b32 s%d, s%d, 4' % (sFPA, sFME))
    vHR = vWR + 2
    a('v_mov_b32 %s, %s' % (v(vHR), v(vFR)))
    a('v_add_u32 %s, 65536, %s' % (v(vHR + 1), v(vFR)))
    a('s_lshl_b32 s%d, s%d, 10' % (sT2, sW))
    a('v_add_u32 %s, s%d, %s' % (v(vWR), sT2, v(vHR + 1)))
    BX4 = vWB + 24
    AXR = vWB + 28
    a('v_mov_b32 %s, 0' % v(BX4 + 3))
    a('s_cmp_ge_u32 s%d, 14' % sJ)
    a('s_cbranch_scc1 L_idle')
    k3 = min(cfg.get('k3', 16), 4 * landed('We'))
    R(w1_reads(k2, k3))
    R(w1_dots(k2, k3))
    sx(sT2, [(sJ, 80 * 128), (sW, 20 * 128)])
    sx(sT3, [(sI, 4 << 15)], H_)
    a('v_lshlrev_b32 %s, 7, %s' % (v(vT + 1), v(vL)))
    a('v_add_u32 %s, s%d, %s' % (v(vT + 1), sT2, v(vT + 1)))
    a('v_min_u32 %s, %d, %s' % (v(vT + 1), 131072 - 128, v(vT + 1)))
    a.stamp('w1park', 2)

    poll(2, 16)
    R(WaitVM('g7'))
    a('s_waitcnt lgkmcnt(0)')
    a('s_barrier')
    a.stamp('gotC')
    def h_dma(tau, half):
        sb = sHL1 if half else sHL0
        return ['s_add_u32 m0, s%d, %d' % (sLW1, tau * 32768 + half * 16384)] + [
            'buffer_load_dwordx4 %s, %s, s%d offen offset:%d %s lds' % (v(vFR), sr(S_WS), sb, b * 1024, SC) for b in range(4)
        ] + ['s_add_u32 s%d, s%d, 32768' % (sb, sb), Mark('h%d%d' % (tau, half))]
    R(h_dma(0, 0))
    R(h_dma(0, 1))
    SB = aQ
    L_ST = L_BX + 8192
    st_dma = ['s_add_u32 m0, s%d, %d' % (sLW1, L_ST)] + [
        'buffer_load_dwordx4 %s, %s, s%d offen offset:%d %s lds' % (v(vFR), sr(S_WS), sSLD, b * 1024, SC) for b in range(4)] + [Mark('st')]
    st_reads = [WaitVM('st')] + ['ds_read_b32 %s, %s offset:%d' % (v(SB + ct), v(vWR + 1), ct * 256) for ct in range(16)]
    a('s_add_u32 s%d, s%d, %d' % (sT2, sLW1, L_ST))
    a('v_add_u32 %s, s%d, %s' % (v(vWR + 1), sT2, v(vL4)))
    if cfg.get('touchh', 0):
        a('s_mov_b64 exec, 0xfffff')
        R('buffer_load_dword %s, %s, %s, s%d offen %s' % (v(vT + 2), v(vT + 1), sr(S_WS), sT3, SC))
        a('s_mov_b64 exec, -1')
    H1E = cfg.get('h1e', 0)
    for hh_ in range(H1E):
        R(h_dma(1, hh_))
    R(w1_reads(k3, 32))
    TSH = cfg.get('tshadow', 1)
    if not TSH:
        R(tables())
    kd1, kd2 = cfg.get('dots', [32, 32])
    R(w1_dots(k3, kd1))
    aext = ['v_add_f32 %s, %s, %s' % (v(AXR + 3), v(cs1), v(cs1 + 1))] + split_hl(AXR + 3, vT + 1, vT, AXR) + [
        'v_cvt_pk_bf16_f32 %s, %s, 0' % (v(AXR + 1), v(vT)),
        'v_lshl_or_b32 %s, %s, 16, %s' % (v(AXR + 1), v(vS + 12), v(AXR + 1)),
        'v_mov_b32 %s, %s' % (v(AXR + 2), v(vS + 12)), 'v_mov_b32 %s, 0' % v(AXR + 3)]
    a('s_waitcnt lgkmcnt(0)')
    a.stamp('w1b', 2)
    BXA = A_STASH
    vCK = vS + 1
    NR, LA = 12, 8
    def bread(n):
        tau, ks = n >> 5, n & 31
        off = tau * 32768 + ks * 1024
        return ['ds_read_b128 %s, %s offset:%d' % (ac(4 * (n % NR), 4), v(vHR + (off >> 16)), off & 0xffff), Mark('b%d' % n)]
    stats = []
    for i in range(8):
        stats.append('v_add_f32 %s, %s, %s' % (v(SB + i), v(SB + i), v(SB + 8 + i)))
    for i in range(4):
        stats.append('v_add_f32 %s, %s, %s' % (v(SB + i), v(SB + i), v(SB + 4 + i)))
    stats += ['v_add_f32 %s, %s, %s' % (v(SB), v(SB), v(SB + 2)), 'v_add_f32 %s, %s, %s' % (v(SB + 1), v(SB + 1), v(SB + 3)),
              'v_add_f32 %s, %s, %s' % (v(SB), v(SB), v(SB + 1)), 'v_mov_b32 %s, %s' % (v(SB + 1), v(SB)),
              'v_permlane32_swap_b32 %s, %s' % (v(SB), v(SB + 1))]
    stats += ln_ops(SB, SB + 1, SB + 2, SB + 15)
    stats += ['v_mul_f32 %s, %s, %s' % (v(SB + 4), v(SB + 1), v(SB + 15)), 'v_sub_f32 %s, 0, %s' % (v(SB + 2), v(SB + 2))]
    stats += split_hl(SB + 2, SB + 5, SB + 6, SB + 3) + split_hl(SB + 4, SB + 7, SB + 8, SB + 3)
    stats += ['v_cvt_pk_bf16_f32 %s, %s, %s' % (v(SB + 12), v(SB + 5), v(SB + 6)),
              'v_cvt_pk_bf16_f32 %s, %s, %s' % (v(SB + 13), v(SB + 5), v(SB + 7)),
              'v_cvt_pk_bf16_f32 %s, %s, 0' % (v(SB + 14), v(SB + 8)),
              'v_mul_f32 %s, 0x%x, %s' % (v(SB + 15), LOG2E, v(SB + 15)),
              'ds_write_b128 %s, %s offset:%d' % (v(vWR), v(SB + 12, 4), L_BX - 65536)]

    ACCS = [aK, aV, vWB + 8]
    PKS = [aQ, aQ + 8]
    T = lambda e: v(vWB + e % 4)
    Y = lambda e: v(ACCS[(e >> 4) % 3] + (e & 15))
    C1 = lambda e: v(vS + 12 + ((e >> 4) & 1))
    def elem_ops(m, lim_=64):
        E, o = m >> 1, []
        ok = lambda e: 0 <= e < lim_
        if m % 2 == 0:
            if ok(E):
                o.append('v_mul_f32 %s, %s, %s' % (Y(E), Y(E), C1(E)))
            if ok(E - 1):
                o.append('v_fma_f32 %s, %s, s%d, s%d' % (T(E - 1), T(E - 1), sRS, sRS))
            if ok(E):
                o.append('v_exp_f32 %s, %s' % (T(E), Y(E)))
        else:
            if ok(E - 1):
                o.append('v_fma_f32 %s, %s, %s, 0.5' % (T(E - 1), T(E - 1), T(E - 1)))
            if ok(E - 2):
                o.append('v_fma_f32 %s, -%s, %s, %s' % (Y(E - 2), T(E - 2), Y(E - 2), Y(E - 2)))
            if ok(E - 1):
                o.append('v_rcp_f32 %s, %s' % (T(E - 1), T(E - 1)))
            if ok(E - 2) and E & 1:
                e = E - 2
                o.append('v_cvt_pk_bf16_f32 %s, %s, %s' % (v(PKS[(e >> 4) & 1] + (e & 15) // 2), Y(e - 1), Y(e)))
        return o
    def act_store(tau):
        return ['buffer_store_dwordx4 %s, %s, %s, s%d offen offset:%d %s' % (v(PKS[tau & 1] + 4 * h, 4), v(vFR), sr(S_WS), sAST, h * 1024, SC)
                for h in range(2)] + ['s_add_u32 s%d, s%d, %d' % (sAST, sAST, 112 * 1024), Mark('act%d' % tau)]
    def ext_regs(tau):
        return ['v_accvgpr_read_b32 %s, %s' % (v(BX4 + i), ac(BXA + 4 * tau + i)) for i in range(3)] + [
            'v_accvgpr_read_b32 %s, %s' % (C1(16 * tau), ac(BXA + 4 * tau + 3))]
    bx_reads = ['ds_read_b128 %s, %s offset:%d' % (ac(BXA + 4 * t_, 4), v(vHR + 1), L_BX - 65536 + t_ * 1024) for t_ in range(4)]

    bars = {10: 'h01', 26: 'h11', 58: 'h21', 90: 'h31'}
    lim = lambda n: 16 if n < 10 else (32 if n < 26 else (64 if n < 58 else (96 if n < 90 else 128)))
    M0 = 36
    def paced(items):
        out, cur = [], []
        for x in items:
            if isinstance(x, str) and x.startswith('buffer_'):
                out.append(cur + [x])
                cur = []
            elif isinstance(x, str) and 'm0' in x:
                cur.append(x)
            else:
                out[-1].append(x)
        return out
    at_mem, at_val = {}, {}
    kd0, kc0, kc1 = cfg.get('d0n', [100, 122, 127])
    def breg(m):
        return ac(48 + 4 * m, 4) if m < 14 else v(X + 4 * ((m - 14) % 16), 4)
    def bload(m):
        q, ks = m // 14, m % 14
        return ['buffer_load_dwordx4 %s, %s, %s, s%d offen offset:%d %s' % (
            breg(m), v(vAL + q), sr(S_WS), TAC + ks // 2, (ks % 2) * 1024, SC)]
    nb0 = cfg.get('nb0', 2)
    b0s = cfg.get('b0s', [kc1, 0])
    assert b0s[0] >= kc1
    for k in range(nb0):
        at_mem.setdefault(min(127, b0s[0] + int(b0s[1] * k)), []).extend(bload(k))
    busy = [-1]
    def place(n0, items, every=2):
        assert n0 > busy[0], (n0, busy)
        for k, g in enumerate(paced(items)):
            busy[0] = n0 + int(k * every)
            at_mem.setdefault(busy[0], []).extend(g)
    P = dict(h1=[6, 2], h2=[22, 2], p1=[38, 2], h3=[58, 2], p2=[76, 2], p3=[92, 2])
    if P0L[0]:
        P = dict(h1=[6, 2], h2=[22, 1.5], p0=[34, 1.5], p1=[46, 1.5], h3=[58, 2], p2=[76, 2], p3=[92, 2])
    P.update(cfg.get('p4plan', {}))
    assert P['p1'][0] >= 26 and P['h3'][0] >= 58 and P['p2'][0] >= 58 and P['p3'][0] >= 90
    if TSH:
        tb = tables()
        for k in range(0, len(tb), 3):
            at_mem.setdefault(8 + k // 3, []).extend(tb[k:k + 3])
    stp = cfg.get('stp', [0, 1.5])
    if stp[0] < P['h1'][0]:
        place(stp[0], st_dma, stp[1])
    ns_ = cfg.get('stn', 14)
    for k in range(4):
        at_mem.setdefault(ns_ + k // 2, []).extend(st_reads[4 * k + (1 if k else 0):4 * k + 5])
    for name in sorted(P, key=lambda z: P[z][0]):
        t_ = int(name[1])
        if name == 'h1':
            items = [x for hh_ in range(H1E, 2) for x in h_dma(1, hh_)]
            if items:
                place(P[name][0], items, P[name][1])
            if stp[0] > P['h1'][0]:
                place(stp[0], st_dma, stp[1])
        else:
            place(P[name][0], h_dma(t_, 0) + h_dma(t_, 1) if name[0] == 'h' else w2_dma(t_), P[name][1])
    at_mem.setdefault(27, []).extend(bx_reads)
    ks0 = cfg.get('st0', M0 + 38)
    assert ks0 >= M0 + 36
    at_mem.setdefault(ks0, []).extend(act_store(0))
    st1 = cfg.get('st1', M0 + 68)
    assert M0 + 68 <= st1 < 128
    at_mem.setdefault(st1, []).extend(act_store(1))
    nsp = 25 - (ns_ + 3)
    per = (len(stats) + nsp - 1) // nsp
    for k in range(nsp):
        at_val.setdefault(ns_ + 3 + k, []).extend(stats[k * per:(k + 1) * per])
    at_val.setdefault(26, []).extend(aext[:4])
    at_val.setdefault(27, []).extend(aext[4:])
    for tau in range(4):
        er = ext_regs(tau)
        at_val.setdefault(32 * tau + 29, []).extend(er[:2])
        at_val.setdefault(32 * tau + 30, []).extend(er[2:3])
        at_val.setdefault(32 * tau + 31, []).extend(er[3:])
    R(WaitVM('h00'))
    a('s_barrier')
    a.stamp('h00', 2)
    for n in range(LA):
        R(bread(n))
    nxt = LA
    for n in range(128):
        tau, ks = n >> 5, n & 31
        acc = v(ACCS[tau % 3], 16)
        if n == 10:
            R(w1_dots(kd1, kd2))
        if n == 26:
            R(w1_dots(kd2, 32))
        if n in bars:
            R([WaitVM(bars[n]), 's_waitcnt lgkmcnt(0)', 's_barrier'])
            a.stamp('bar%d' % n, 2)
        if n == kd0:
            R(WaitVM('act0'))
            a('s_barrier')
            arrive(3, 0)
            a.stamp('pushD0', 2)
        if n == kc0:
            R(check_issue((3, 0), vCK, 3))
        if n == kc1:
            check_done((3, 0), 14, vCK, 3)
            a('s_barrier')
            a.stamp('gotD0', 2)
        wp = cfg.get('wpar', 2)
        if (n % 4 == wp or n == 0) and n not in bars:
            R(WaitDS('b%d' % min(n + 3, nxt - 1)))
        if n in cfg.get('nstamp', []):
            a.stamp('n%d' % n, 2)
        R(mfma32(acc, v(X + 4 * ks, 4), ac(4 * (n % NR), 4), '0' if ks == 0 else acc))
        if ks == 31:
            R(mfma32(acc, v(AXR, 4), v(BX4, 4), acc))
        mem = at_mem.pop(n, [])
        R([x for x in mem if isinstance(x, str) and 'm0,' in x])
        k = 0
        while nxt < min(n + LA + 2, lim(n + 1) if n + 1 not in bars else lim(n)) and k < 2:
            R(bread(nxt))
            nxt += 1
            k += 1
        R([x for x in mem if not (isinstance(x, str) and 'm0,' in x)])
        R(elem_ops(n - M0) if n >= M0 else [])
        R(at_val.pop(n, []))
        if ks == 31:
            a.stamp('t%d' % tau, 2)
    assert not at_mem and not at_val, (at_mem.keys(), at_val.keys())
    tail = [x for m in range(128 - M0, 100) for x in elem_ops(m, 48)]
    n2_ = len(tail)
    if cfg.get('pktail', 1):
        A3, E3, K3 = ACCS[0], vWB + 8, vT
        tail += ['v_mov_b32 %s, s%d' % (v(K3), sRS), 'v_mov_b32 %s, 0.5' % v(K3 + 1)]
        for g in range(0, 16, 8):
            r2, r1 = range(g, g + 8, 2), range(g, g + 8)
            tail += ['v_pk_mul_f32 %s, %s, %s op_sel:[0,1] op_sel_hi:[1,1]' % (v(A3 + i, 2), v(A3 + i, 2), v(vS + 12, 2)) for i in r2]
            tail += ['v_exp_f32 %s, %s' % (v(E3 + i), v(A3 + i)) for i in r1]
            tail += ['v_pk_fma_f32 %s, %s, %s, %s op_sel_hi:[1,0,0]' % (v(E3 + i, 2), v(E3 + i, 2), v(K3, 2), v(K3, 2)) for i in r2]
            tail += ['v_pk_fma_f32 %s, %s, %s, %s op_sel:[0,0,1] op_sel_hi:[1,1,1]' % (v(E3 + i, 2), v(E3 + i, 2), v(E3 + i, 2), v(K3, 2)) for i in r2]
            tail += ['v_rcp_f32 %s, %s' % (v(E3 + i), v(E3 + i)) for i in r1]
            tail += ['v_pk_fma_f32 %s, %s, %s, %s neg_lo:[1,0,0] neg_hi:[1,0,0]' % (v(A3 + i, 2), v(E3 + i, 2), v(A3 + i, 2), v(A3 + i, 2)) for i in r2]
            tail += ['v_cvt_pk_bf16_f32 %s, %s, %s' % (v(PKS[1] + i // 2), v(A3 + i), v(A3 + i + 1)) for i in r2]
    else:
        tail = [x for m in range(128 - M0, 134) for x in elem_ops(m)]
        n2_ = sum(len(elem_ops(m)) for m in range(128 - M0, 100))
    h0, h1, h2, h3 = [min(x, len(tail)) for x in cfg.get('tail', [4, 28, 999, 999])]
    nb1 = cfg.get('nb1', 6)
    ev = {}
    def pd():
        R(WaitVM('act1'))
        a('s_barrier')
        arrive(3, 1)
        a.stamp('pushD1', 2)
    def cd():
        check_done((3, 1), 14, vCK, 3)
        a('s_barrier')
        a.stamp('gotD1', 2)
    assert h1 >= n2_
    for k in range(nb0, 14):
        ev.setdefault(min(h1, 3 * (k - nb0)), []).append(bload(k))
    D1P = cfg.get('d1p', [0, 3])
    ev.setdefault(h0, []).append(pd)
    if D1P:
        nb1 = 0
    else:
        ev.setdefault(h2, []).append(check_issue((3, 1), vCK, 3))
        ev.setdefault(h3, []).append(cd)
    left = len(tail) - h3
    for k in range(nb1):
        ev.setdefault(h3 + (k // 2) * 2 * left // max(nb1, 1), []).append(bload(14 + k))
    ev.setdefault(h1, []).append(act_store(2))
    for k in range(len(tail) + 1):
        R(ev.pop(k, []))
        if k < len(tail):
            R(tail[k])
    assert not ev
    R(act_store(3))
    a.stamp('mish', 2)
    join = (a.vmn, a.dsn)
    a('s_branch L_p5')
    a.label('L_idle')
    saved = dict(a.marks)
    R(tables())
    a('s_waitcnt vmcnt(0)')
    a('s_barrier')
    for q in range(0 if P0L[0] else 1, 4):
        R(w2_dma(q))
    if P0L[0]:
        a('s_waitcnt vmcnt(20)')
    poll((3, 0), 14, 3)
    a('s_barrier')
    for m in range(14):
        R(bload(m))
    if not D1P:
        poll((3, 1), 14, 3)
        a('s_barrier')
    for m in range(14, 14 + nb1):
        R(bload(m))
    a('s_mov_b64 exec, 1')
    for _ in range(4):
        a('buffer_load_dword %s, %s, %s, s%d offen sc1' % (v(vRB), v(vL4), sr(S_WS), sFB))
    a('s_mov_b64 exec, -1')
    a.vmn, a.dsn = join
    a.marks = saved
    a.label('L_p5')

    a('; ---- P5: act[:, K half] @ w2, one token tile per pass')
    ACC = lambda q, rc: X + 64 + 32 * (q & 1) + 16 * rc
    RD, KEEP, SEND, HU = 32, 64, 72, vWB + 16
    def areads(ks):
        n, a_ = ks >> 1, ks & 1
        return w2_read(n >> 1, n & 1, a_, 0) + w2_read(n >> 1, n & 1, a_, 1)
    vRW, vRR, vOS = vWR, vXR, vXR + 1
    pre = [a.unstash('rw', vRW), a.unstash('rr', vRR), a.unstash('os', vOS), 'v_xor_b32 %s, 32, %s' % (v(vRW + 1), v(vRW)),
           'v_xor_b32 %s, %d, %s' % (v(vRW + 2), 4096 + 128, v(vRW)), 'v_xor_b32 %s, %d, %s' % (v(vRW + 3), 4096 + 128 + 32, v(vRW))]
    unpack = []
    for i in range(8):
        unpack.append('v_lshlrev_b32 %s, 16, %s' % (v(HU + 2 * i), v(HP + i)))
        unpack.append('v_and_b32 %s, 0xffff0000, %s' % (v(HU + 2 * i + 1), v(HP + i)))
    res = lambda q: ['v_fma_f32 %s, %s, s%d, %s' % (v(ACC(q, 0) + i), v(HU + i), sM[q], v(ACC(q, 0) + i)) for i in range(16)]
    ini = lambda q: ['v_mul_f32 %s, s%d, %s' % (v(ACC(q, 0) + i), sM[q], v(HU + i)) for i in range(16)]
    def red_writes(q):
        return ['ds_write_b128 %s, %s offset:%d' % (v(vRW + 2 * rc + (z >> 1)), v(ACC(q, rc) + 4 * z, 4), (q & 1) * 32768 + z * 1024)
                for rc in (1, 0) for z in range(4)]
    def red_reads(q):
        return ['ds_read_b128 %s, %s offset:%d' % (v(RD + 8 * src + 4 * e, 4), v(vRR), (q & 1) * 32768 + src * 8192 + e * 1024)
                for src in range(4) for e in range(2)]
    red_sum = (['v_add_f32 %s, %s, %s' % (v(RD + i), v(RD + i), v(RD + 8 + i)) for i in range(8)] +
               ['v_add_f32 %s, %s, %s' % (v(RD + 16 + i), v(RD + 16 + i), v(RD + 24 + i)) for i in range(8)] +
               ['v_add_f32 %s, %s, %s' % (v(RD + i), v(RD + i), v(RD + 16 + i)) for i in range(8)])
    def route(q):
        def f():
            lab = a.uniq('L_rt')
            a('s_cmp_eq_u32 s%d, %d' % (sP, q))
            a('s_cbranch_scc1 %s_k' % lab)
            for i in range(4):
                a('v_cvt_pk_bf16_f32 %s, %s, %s' % (v(SEND + i), v(RD + 2 * i), v(RD + 2 * i + 1)))
            a('s_branch %s_e' % lab)
            a.label(lab + '_k')
            for i in range(8):
                a('v_mov_b32 %s, %s' % (v(KEEP + i), v(RD + i)))
            a.label(lab + '_e')
        f.cost = 9
        return f
    pack2 = ['v_cvt_pk_bf16_f32 %s, %s, %s' % (v(SEND + 4 + i), v(RD + 2 * i), v(RD + 2 * i + 1)) for i in range(4)]
    def send():
        dual(['buffer_store_dwordx4 %s, %s, %s, s%d offen offset:%d' % (v(SEND + 4 * e, 4), v(vFR), sr(S_WS), sXS, e * 1024) for e in range(2)], 1)
        R(Mark('send'))
    send.cost = 5
    def finish(src, part, off):
        o = []
        for i in range(4):
            o += ['v_lshlrev_b32 %s, 16, %s' % (v(vT), v(part + i)), 'v_and_b32 %s, 0xffff0000, %s' % (v(vT + 1), v(part + i)),
                  'v_pk_add_f32 %s, %s, %s' % (v(src + 2 * i, 2), v(src + 2 * i, 2), v(vT, 2)),
                  'v_pk_mul_f32 %s, %s, %s op_sel_hi:[1,0]' % (v(src + 2 * i, 2), v(src + 2 * i, 2), v(vT + 2, 2)),
                  'v_cvt_pk_bf16_f32 %s, %s, %s' % (v(part + i), v(src + 2 * i), v(src + 2 * i + 1))]
        if off:
            o.append('s_add_u32 s%d, s%d, %d' % (sOUT, sOUT, off))
        o.append('buffer_store_dwordx4 %s, %s, %s, s%d offen %s' % (v(part, 4), v(vOS), sr(S_OUT), sOUT, cfg.get('outf', 'sc1')))
        return o
    ALA = 3
    for ks in range(ALA):
        R(areads(ks))
    sched, at_pre = {}, {}
    def put(n0, items, per):
        for k in range(0, len(items), per):
            sched.setdefault(n0 + k // per, []).extend(items[k:k + per])
    put(0, unpack, 3)
    put(6, pre, 3)
    put(8, ini(1), 3)
    rper, rbar = cfg.get('rsch', [1, 10])
    for q in range(2):
        n0 = 14 * (q + 1)
        rw = red_writes(q)
        put(n0 + 1, rw[:4], rper)
        if q == 0:
            put(n0 + 1, res(0), 8)
        put(n0 + 1 + 4 // rper, rw[4:], rper)
        at_pre[n0 + rbar] = ['s_waitcnt lgkmcnt(0)', 's_barrier']
        put(n0 + rbar, red_reads(q), 4)
        left_ = 13 - (rbar + 2)
        put(n0 + rbar + 2, red_sum, (24 + left_ - 1) // left_)
        put(n0 + 13, [route(q)], 5)
    f0, f1, f2 = cfg.get('fsch', [3, 7, 12])
    put(43, red_writes(2), 8 // (f0 - 1))
    at_pre[42 + f0] = ['s_waitcnt lgkmcnt(0)', 's_barrier']
    put(42 + f0, red_reads(2), 8)
    put(42 + f0 + 1, red_sum + pack2, (28 + f1 - f0 - 2) // (f1 - f0 - 1))
    put(42 + f1, [send], 1)
    at_pre[42 + f2] = [WaitVM('send'), 's_barrier', lambda: arrive(4, 0), a.stamper('pushF')]
    put(28 + rbar + 1, ini(3), 6)
    if cfg.get('xtouch', 1):
        put(30, pretouch(sXS, 16, vRB), 1)
    ke, kc2, kc3 = cfg.get('d23', [12, 16, 20])
    PRE = cfg.get('p5pre', 12)
    nxt = 14 + nb1
    nl = cfg.get('lastsplit', 5)
    order5 = [(n, rc) for n in range(56) for rc in range(2)]
    order5 = order5[:-2 * nl] + [(n, 1) for n in range(56 - nl, 56)] + [(n, 0) for n in range(56 - nl, 56)]
    rw3 = red_writes(3)
    for n in range(56):
        q, ks = n // 14, n % 14
        side = []
        post = [[], []]
        if q == 0 and ks + ALA < 14:
            ar = areads(ks + ALA)
            post = [ar[:2], ar[2:]]
        if D1P and n == D1P[0]:
            R(check_issue((3, 1), vCK, 3))
        if D1P and n == D1P[1]:
            cd()
        if n == ke:
            R(WaitVM('act3'))
            a('s_barrier')
            lab = a.uniq('L_noe')
            a('s_cmp_ge_u32 s%d, 14' % sJ)
            a('s_cbranch_scc1 %s' % lab)
            arrive(3, 2)
            a.label(lab)
            a.stamp('pushE', 2)
        if n == kc2:
            R(check_issue((3, 2), vCK, 3))
        if n == kc3:
            check_done((3, 2), 14, vCK, 3)
            if n not in at_pre:
                a('s_barrier')
            a.stamp('gotE', 2)
        R(at_pre.pop(n, []))
        k = 0
        while nxt < min(56, n + 1 + PRE, 28 if n < kc3 else 56, 14 if (D1P and n < D1P[1]) else 56) and k < 2:
            side += bload(nxt)
            nxt += 1
            k += 1
        side += sched.pop(n, [])
        mm = []
        for n_, rc in order5[2 * n:2 * n + 2]:
            q_, ks_ = n_ // 14, n_ % 14
            acc = v(ACC(q_, rc), 16)
            mm.append([mfma32(acc, ac(w2reg(ks_, rc), 4), breg(n_), '0' if (ks_ == 0 and not (rc == 0 and q_ in (1, 3))) else acc)])
        if n == 55:
            side += rw3[:4]
        a.fill(mm, side, post=post)
        if n % 14 == 13:
            a.stamp('q%d' % q, 2)
    assert not sched and not at_pre
    R(check_issue((4, 0, sFPA), vCK, 3))
    R(rw3[4:])
    check_done((4, 0, sFPA), 1, vCK, 3)
    a('s_waitcnt lgkmcnt(0)')
    a('s_barrier')
    a.stamp('p5mf')
    for e in range(2):
        R('buffer_load_dwordx4 %s, %s, %s, s%d offen offset:%d sc1' % (v(SEND + 4 * e, 4), v(vFR), sr(S_WS), sXR, e * 1024))
    R(red_reads(3))
    a('v_mov_b32 %s, s%d' % (v(vT + 2), sLN2))
    R(red_sum)
    a.stamp('B12', 2)
    R(finish(KEEP, SEND, 0))
    R(finish(RD, SEND + 4, 65536))
    if cfg.get('stamps'):
        a('s_waitcnt vmcnt(0)')
        a.stamp('end')
        assert a.nstamp <= 64
        a('s_cmp_lg_u32 s%d, %d' % (sW, cfg.get('swave', 0)))
        a('s_cbranch_scc1 L_end')
        if 'dirty' in cfg:
            a('s_lshl_b32 s%d, s2, 16' % sT0)
            a('s_add_u32 s%d, s%d, 0x2000000' % (sT0, sT0))
            for n in range(cfg['dirty']):
                a('buffer_store_dwordx4 %s, %s, %s, s%d offen %s' % (v(X, 4), v(vFR), sr(S_WS), sT0, cfg.get('dirtyf', '')))
                a('s_add_u32 s%d, s%d, 1024' % (sT0, sT0))
            a('s_waitcnt vmcnt(0)')
        if 'probe' in cfg:
            a('v_readlane_b32 s%d, v4, %d' % (sT0, cfg['probe']))
            a('v_readlane_b32 s%d, v4, 0' % sT2)
            a('s_sub_u32 s%d, s%d, s%d' % (sT0, sT0, sT2))
            a('s_cmp_ge_u32 s%d, 14' % sJ)
            a('s_cselect_b32 s%d, 0, s%d' % (sT0, sT0))
            a('s_min_u32 s%d, s%d, 10000' % (sT0, sT0))
            a('s_lshl_b32 s%d, s%d, 2' % (sT0, sT0))
            a('s_add_u32 s%d, s%d, 10000' % (sT0, sT0))
            a.label('L_probe')
            a('s_memrealtime s[%d:%d]' % (S_ST, S_ST + 1))
            a('s_waitcnt lgkmcnt(0)')
            a('s_sub_u32 s%d, s%d, s%d' % (sT1, S_ST, sT2))
            a('s_cmp_lt_u32 s%d, s%d' % (sT1, sT0))
            a('s_cbranch_scc1 L_probe')
        a('s_lshl_b32 s%d, s2, 8' % sT0)
        a('s_add_u32 s%d, s%d, 0x%x' % (sT0, sT0, STAMP))
        a('buffer_store_dword v4, %s, %s, s%d offen' % (v(vL4), sr(S_WS), sT0))
    a.label('L_end')
    a('s_endpgm')
    return finalize(a), a.names


HEADER = open('header.txt').read().rstrip('\n').split('\n')


DOC = """
; One persistent launch, 256 workgroups (one per CU) of 4 waves with 512 registers each.
; Workgroup -> cluster i (128 tokens) and member j (0..15); ids with equal (id & 7) are grouped so that a cluster
; normally shares one XCD (speed only: the placement is checked at run time, see below).
;   P1  member j: LayerNorm folded into k, v, q = x @ Wqkv for heads 2j, 2j+1 (row statistics by dot products, the mean
;       correction as one extra k-step), feature maps (true-max softmax pairs), partial kv / z of the 128 tokens
;   A   partial kv records are gathered across the 16 clusters, o = phi_q kv / (phi_q z + 1e-6)
;   B   P3: h = x + o @ Wo, 64 x 64 tile per member, row statistics published with h
;   C   P4: act = mish(LN(h) @ W1 + b1), 128 x 128 tile on members 0..13 (log2(e) scaling undone in P5)
;   D   P5: act @ W2, half of K per member, four token-tile passes; member pairs exchange two partial tiles
; Hand-off data is stored write-through (sc1) and read with sc1 loads; flag words carry a tag derived from a
; workspace word read at entry, which only tells this launch's hand-offs from an earlier launch's.
; When all members of a cluster report the same XCC id, flags and the last exchange use plain stores (same L2);
; otherwise everything is write-through. All spins are bounded.
""".strip().split('\n')


def build(cfg, path):
    body, names = gen(cfg)
    k = kernel_text(NAME + '_kernel', body, vgprs=512, accum=256, sgprs=102)
    hdr = HEADER + ['; @launch grid=(256,1,1) block=(256,1,1) lds=163840'] + DOC
    if names:
        hdr.append('; stamps: ' + ' '.join(names))
        if cfg.get('cyc'):
            hdr.append('; cycle stamps')
    open(path, 'w').write(module_text(hdr, [k]))


if __name__ == '__main__':
    build(json.loads(sys.argv[2]) if len(sys.argv) > 2 else {}, sys.argv[1])
```
